```python
import torch

def _softmax(x, axis=-1):
    return torch.softmax(x, dim=axis)

def _gelu(x):
    return torch.nn.functional.gelu(x, approximate='tanh')

def _silu(x):
    return torch.nn.functional.silu(x)

def _sigmoid(x):
    return torch.sigmoid(x)

def _layernorm(x, axis=-1, eps=1e-05):
    m = x.mean(dim=axis, keepdim=True)
    v = x.var(dim=axis, keepdim=True, unbiased=False)
    return (x - m) / torch.sqrt(v + eps)

def _scatter_add(tgt, idx, src, axis=0):
    return tgt.clone().index_add_(axis, idx, src)

def _segment_sum(src, seg, n):
    out = torch.zeros((n,) + src.shape[1:], dtype=src.dtype)
    return out.index_add_(0, seg, src)

def _pad(x, pw):
    flat = tuple((v for pair in reversed(pw) for v in pair))
    return torch.nn.functional.pad(x, flat)
kernel_name = 'adaLN_cond__sliding_local_dilated__glu_gated_glu__prompt'

def setup_inputs():

    _w = lambda a: (lambda t: t.to(torch.bfloat16) if t.is_floating_point() else t)(torch.as_tensor(a))

    def _A_setup():
        B, S, D = (1, 2048, 576)
        return {'x': _w((lambda *s: torch.randn(*s, dtype=torch.bfloat16) * 0.05)(B, S, D)), 'wqkv': _w((lambda *s: torch.randn(*s, dtype=torch.bfloat16) * 0.05)(D, 3 * D)), 'wo': _w((lambda *s: torch.randn(*s, dtype=torch.bfloat16) * 0.05)(D, D))}
    _A_in = _A_setup()

    def _B_setup():
        B, S, D, F = (1, 2048, 576, 4608)
        return {'x': _w((lambda *s: torch.randn(*s, dtype=torch.bfloat16) * 0.05)(B, S, D)), 'w_gate': _w((lambda *s: torch.randn(*s, dtype=torch.bfloat16) * 0.05)(D, F)), 'w_up': _w((lambda *s: torch.randn(*s, dtype=torch.bfloat16) * 0.05)(D, F)), 'w_down': _w((lambda *s: torch.randn(*s, dtype=torch.bfloat16) * 0.05)(F, D))}
    _B_in = _B_setup()
    return {'A_x': _A_in['x'], 'A_wqkv': _A_in['wqkv'], 'A_wo': _A_in['wo'], 'B_x': _B_in['x'], 'B_w_gate': _B_in['w_gate'], 'B_w_up': _B_in['w_up'], 'B_w_down': _B_in['w_down'], 'c': _w((lambda *s: torch.randn(*s, dtype=torch.bfloat16) * 0.1)(1, 576) * 8.0), 'w_mod': _w((lambda *s: torch.randn(*s, dtype=torch.bfloat16) * 0.1)(576, 6 * 576) * 576 ** (-0.5) * 8.0)}

def reference(A_x, A_wqkv, A_wo, B_x, B_w_gate, B_w_up, B_w_down, c, w_mod):

    def _A_ref(x, wqkv, wo):
        B, S, D = x.shape
        H = 32
        Dh = D // H
        W, dil = (8, 2)
        qkv = (lambda x, *d: x.permute(*d))((x @ wqkv).reshape(B, S, 3, H, Dh), 2, 0, 3, 1, 4)
        q, k, v = (qkv[0], qkv[1], qkv[2])
        scale = Dh ** (-0.5)
        pos = torch.arange(S)
        off = torch.arange(W) * dil
        idx = pos[:, None] - off[None, :]
        mask = idx >= 0
        idx_c = torch.where(mask, idx, 0).reshape(-1)
        kg = k[:, :, idx_c, :].reshape(B, H, S, W, Dh)
        vg = v[:, :, idx_c, :].reshape(B, H, S, W, Dh)
        logits = torch.einsum('bhsd,bhswd->bhsw', q, kg) * scale
        logits = torch.where(mask[None, None, :, :], logits, -1000000000.0)
        attn = _softmax(logits, axis=-1)
        o = torch.einsum('bhsw,bhswd->bhsd', attn, vg)
        return (lambda x, *d: x.permute(*d))(o, 0, 2, 1, 3).reshape(B, S, D) @ wo

    def _B_ref(x, w_gate, w_up, w_down):
        g = torch.einsum('bsd,df->bsf', x, w_gate)
        u = torch.einsum('bsd,df->bsf', x, w_up)
        h = _sigmoid(g) * u
        return torch.einsum('bsf,fd->bsd', h, w_down)
    x = A_x
    mod = (_silu(c) @ w_mod).reshape(c.shape[0], 6, 1, -1)
    sa, ca, ga, sb, cb, gb = (mod[:, 0].clone(), mod[:, 1].clone(), mod[:, 2].clone(), mod[:, 3].clone(), mod[:, 4].clone(), mod[:, 5].clone())
    h = _layernorm(x, axis=-1) * (1 + ca) + sa
    x = x + ga * _A_ref(h, A_wqkv, A_wo)
    h = _layernorm(x, axis=-1) * (1 + cb) + sb
    x = x + gb * _B_ref(h, B_w_gate, B_w_up, B_w_down)
    return x
```

```python
import re

TRANS = ('v_exp_f32', 'v_log_f32', 'v_rcp_f32', 'v_rsq_f32', 'v_sqrt_f32', 'v_sin_f32', 'v_cos_f32')
REG_RE = re.compile(r'^(-|\|)?(abs\()?([vas])(\d+|\[(\d+):(\d+)\])\)?\|?$')


def regs_of(tok):
    tok = tok.strip()
    if tok in ('vcc',):
        return [('s', 'vcc_lo'), ('s', 'vcc_hi')]
    if tok in ('vcc_lo', 'vcc_hi'):
        return [('s', tok)]
    if tok == 'exec':
        return [('s', 'exec')]
    if tok in ('exec_lo', 'exec_hi'):
        return [('s', 'exec')]
    if tok == 'm0':
        return [('s', 'm0')]
    m = REG_RE.match(tok)
    if not m:
        return []
    k = m.group(3)
    if m.group(5) is not None:
        return [(k, i) for i in range(int(m.group(5)), int(m.group(6)) + 1)]
    return [(k, int(m.group(4)))]


def split_ops(rest):
    out, cur, d = [], '', 0
    for ch in rest:
        if ch == '[' or ch == '(':
            d += 1
        elif ch == ']' or ch == ')':
            d -= 1
        if ch == ',' and d == 0:
            out.append(cur.strip()); cur = ''
        else:
            cur += ch
    if cur.strip():
        out.append(cur.strip())
    mods = []
    if out:
        parts = out[-1].split()
        out[-1] = parts[0]
        mods = parts[1:]
    return out, mods


class Ins:
    def __init__(self, text):
        self.text = text
        self.defs, self.uses = [], []
        self.kind = 'other'
        self.srcc = []
        self.passes = 0
        self.states = 1
        t = text.strip()
        if t.endswith(':'):
            self.kind = 'label'; self.op = t; self.states = 0
            return
        if t.startswith('.') or t.startswith(';'):
            self.kind = 'directive'; self.op = t; self.states = 0
            return
        sp = t.split(None, 1)
        op = sp[0]
        self.op = op
        ops, mods = split_ops(sp[1]) if len(sp) > 1 else ([], [])
        self.ops, self.mods = ops, mods
        R = [regs_of(o) for o in ops]
        flat = lambda L: [r for x in L for r in x]
        if op.startswith('v_mfma'):
            self.kind = 'mfma'
            self.defs = R[0]; self.uses = flat(R[1:]); self.srcc = R[3]
            self.srca = R[1] + R[2]
            self.passes = 8 if '32x32' in op else 4
        elif op.startswith('v_'):
            self.kind = 'valu'
            base = op.replace('_e32', '').replace('_e64', '').replace('_dpp', '').replace('_sdwa', '')
            self.base = base
            self.dpp = any(m.startswith(('row_', 'quad_perm', 'wave_')) for m in mods) or op.endswith('_dpp')
            if base.startswith('v_cmpx'):
                raise ValueError('no v_cmpx please')
            if base.startswith('v_permlane') and 'swap' in base:
                self.defs = flat(R[:2]); self.uses = flat(R[:2])
            elif base in ('v_add_co_u32', 'v_sub_co_u32', 'v_subrev_co_u32'):
                self.defs = R[0] + R[1]; self.uses = flat(R[2:])
            elif base in ('v_addc_co_u32', 'v_subb_co_u32'):
                self.defs = R[0] + R[1]; self.uses = flat(R[2:])
            else:
                self.defs = R[0]; self.uses = flat(R[1:])
                if base.startswith(('v_fmac', 'v_dot2c', 'v_pk_fmac', 'v_writelane')) or self.dpp:
                    self.uses = self.uses + R[0]
                if base == 'v_cndmask_b32' and len(ops) == 3:
                    self.uses += regs_of('vcc')
            self.trans = base in TRANS
            self.dl = base.startswith('v_dot')
        elif op.startswith('ds_'):
            if op.startswith('ds_read') or op.startswith(('ds_bpermute', 'ds_permute', 'ds_swizzle')):
                self.kind = 'ds'; self.defs = R[0]; self.uses = flat(R[1:])
            else:
                self.kind = 'ds'; self.uses = flat(R)
        elif op.startswith('buffer_') and op not in ('buffer_wbl2', 'buffer_inv'):
            self.kind = 'vmem'
            if 'lds' in mods:
                self.uses = flat(R) + [('s', 'm0')]; self.dma = True
            elif op.startswith('buffer_load'):
                self.defs = R[0]; self.uses = flat(R[1:])
            elif op.startswith('buffer_store'):
                self.uses = flat(R); self.sdata = R[0]
                self.wide = op.endswith(('x3', 'x4'))
            else:
                self.uses = flat(R)
                if 'sc0' in mods:
                    self.defs = R[0]
        elif op in ('buffer_wbl2', 'buffer_inv'):
            self.kind = 'vmem'
        elif op.startswith('global_'):
            self.kind = 'vmem'
            if op.startswith('global_load'):
                self.defs = R[0]; self.uses = flat(R[1:])
            elif op.startswith('global_store'):
                self.uses = flat(R); self.sdata = R[1]
                self.wide = op.endswith(('x3', 'x4'))
            else:
                raise ValueError(op)
        elif op.startswith('s_load') or op in ('s_memtime', 's_memrealtime'):
            self.kind = 'smem'; self.defs = R[0]; self.uses = flat(R[1:])
        elif op == 's_waitcnt':
            self.kind = 'waitcnt'
            self.vm = self.lgkm = None
            m = re.search(r'vmcnt\((\d+)\)', t)
            if m: self.vm = int(m.group(1))
            m = re.search(r'lgkmcnt\((\d+)\)', t)
            if m: self.lgkm = int(m.group(1))
        elif op == 's_nop':
            self.kind = 'nop'; self.states = int(ops[0]) + 1
        elif op == 's_barrier':
            self.kind = 'barrier'
        elif op.startswith('s_cbranch') or op == 's_branch' or op == 's_endpgm':
            self.kind = 'branch'
        elif op.startswith('s_'):
            self.kind = 'salu'
            if op.startswith(('s_cmp', 's_bitcmp', 's_setprio', 's_sleep', 's_sethalt')):
                self.uses = flat(R)
            elif 'saveexec' in op:
                self.defs = R[0] + [('s', 'exec')]; self.uses = flat(R[1:]) + [('s', 'exec')]
            else:
                self.defs = R[0]; self.uses = flat(R[1:])
                if op.startswith(('s_addk', 's_mulk', 's_cmov')):
                    self.uses += R[0]
        else:
            raise ValueError('unknown instruction: ' + text)


def need_states(p, c):
    n = 0
    pd = set(p.defs)
    if p.kind == 'valu':
        vd = {r for r in pd if r[0] in 'va'}
        sd = {r for r in pd if r[0] == 's'}
        if c.kind == 'mfma' and vd & set(c.uses):
            n = max(n, 2)
        if c.kind == 'valu':
            cu = set(c.uses)
            if p.trans and not c.trans and vd & cu:
                n = max(n, 1)
            if c.base.startswith('v_permlane') and vd & cu:
                n = max(n, 2)
            if c.dpp and vd & cu:
                n = max(n, 2)
            if c.base in ('v_readlane_b32', 'v_readfirstlane_b32') and vd & cu:
                n = max(n, 1)
            if sd & cu:
                n = max(n, 4 if c.base in ('v_readlane_b32', 'v_writelane_b32') else 2)
            if p.dl and (vd & cu or vd & set(c.defs)):
                same_c = c.dl and c.base == p.base and not (vd & set(regs_of(c.ops[1]) + regs_of(c.ops[2])))
                if not same_c:
                    n = max(n, 3)
        if c.kind == 'vmem' and sd & set(c.uses):
            n = max(n, 5)
        if c.kind in ('salu', 'smem') and sd & set(c.uses):
            n = max(n, 1)
        if p.dl and c.kind in ('vmem', 'ds', 'mfma') and vd & set(c.uses):
            n = max(n, 3)
    elif p.kind == 'mfma':
        big = p.passes == 8
        if c.kind == 'mfma':
            if pd & set(c.srca):
                n = max(n, 12 if big else 8)
            if pd & set(c.srcc):
                if not (c.srcc == p.defs and c.passes == p.passes):
                    n = max(n, 10 if big else 6)
            elif pd & set(c.defs):
                n = max(n, 10 if big else 6)
        elif c.kind in ('valu', 'vmem', 'ds'):
            if pd & (set(c.uses) | set(c.defs)):
                n = max(n, 12 if big else 8)
            if c.kind == 'valu' and set(p.srcc) & set(c.defs):
                n = max(n, 7 if big else 3)
            if c.kind != 'valu' and set(p.srcc) & set(c.defs):
                n = max(n, 7 if big else 3)
    elif p.kind == 'salu':
        if ('s', 'm0') in pd and c.kind == 'vmem' and ('s', 'm0') in c.uses:
            n = max(n, 1)
    elif p.kind == 'vmem' and getattr(p, 'wide', False):
        if set(p.sdata) & set(c.defs):
            n = max(n, 2 if c.kind == 'valu' else 1)
    return n


class Asm:
    LOOKBACK = 16

    def __init__(self):
        self.out = []
        self.vmq = []
        self.lgq = []
        self.vm_issued = 0
        self.lg_issued = 0
        self.nops_inserted = 0
        self.waits_inserted = 0
        self.uid = 0

    def label(self, base):
        self.uid += 1
        return f'{base}_{self.uid}'

    def _emit(self, ins):
        self.out.append(ins)

    def _hazard(self, c):
        need = 0
        dist = 0
        for p in reversed(self.out):
            if p.kind in ('label',):
                break
            if p.states == 0:
                continue
            n = need_states(p, c)
            if n > dist:
                need = max(need, n - dist)
            dist += p.states
            if dist >= self.LOOKBACK:
                break
        while need > 0:
            k = min(need, 16)
            self._emit(Ins(f's_nop {k-1}'))
            self.nops_inserted += k
            need -= k

    def _apply_wait(self, vm, lgkm):
        if vm is not None:
            self.vmq = self.vmq[len(self.vmq) - vm:] if vm < len(self.vmq) and vm > 0 else ([] if vm == 0 else self.vmq)
        if lgkm is not None:
            if lgkm == 0:
                self.lgq = []
            elif not any(e['smem'] for e in self.lgq) and lgkm < len(self.lgq):
                self.lgq = self.lgq[len(self.lgq) - lgkm:]

    def _needed(self, regs):
        regs = set(regs)
        vm = lg = None
        for i, e in enumerate(self.vmq):
            if e['defs'] & regs:
                vm = len(self.vmq) - 1 - i
        for i, e in enumerate(self.lgq):
            if e['defs'] & regs:
                lg = len(self.lgq) - 1 - i
        if lg is not None and any(e['smem'] for e in self.lgq):
            lg = 0
        return vm, lg

    def _wait(self, vm, lg):
        if vm is None and lg is None:
            return
        if vm is not None: vm = min(vm, 63)
        if lg is not None: lg = min(lg, 15)
        s = 's_waitcnt'
        if vm is not None: s += f' vmcnt({vm})'
        if lg is not None: s += f' lgkmcnt({lg})'
        self._emit(Ins(s))
        self.waits_inserted += 1
        self._apply_wait(vm, lg)

    def wait_regs(self, regs):
        self._wait(*self._needed(regs))

    def mark(self):
        return self.vm_issued

    def wait_vm_mark(self, mark):
        n = self.vm_issued - mark
        if len(self.vmq) > n:
            self._wait(n, None)

    def wait_all(self, vm=True, lgkm=True):
        v = 0 if (vm and self.vmq) else None
        l = 0 if (lgkm and self.lgq) else None
        self._wait(v, l)

    def one(self, text):
        ins = Ins(text)
        if ins.kind in ('label', 'directive'):
            self._emit(ins); return
        if ins.kind == 'waitcnt':
            self._emit(ins); self._apply_wait(ins.vm, ins.lgkm); return
        touched = set(ins.defs) | set(ins.uses)
        self._wait(*self._needed(touched))
        self._hazard(ins)
        self._emit(ins)
        if ins.kind == 'vmem':
            self.vmq.append({'defs': set(ins.defs)})
            self.vm_issued += 1
            assert len(self.vmq) <= 63, 'vmcnt overflow'
        elif ins.kind == 'ds':
            self.lgq.append({'defs': set(ins.defs), 'smem': False})
            self.lg_issued += 1
        elif ins.kind == 'smem':
            self.lgq.append({'defs': set(ins.defs), 'smem': True})
            self.lg_issued += 1

    def __call__(self, text):
        for line in text.split('\n'):
            line = line.split(';')[0].strip() if not line.strip().startswith(';') else line.strip()
            if line:
                self.one(line)

    def comment(self, s):
        self._emit(Ins('; ' + s))

    def fence(self):
        need = 0
        dist = 0
        for p in reversed(self.out):
            if p.kind == 'label':
                break
            if p.states == 0:
                continue
            n = {'mfma': 12 if p.passes == 8 else 8, 'valu': 5, 'salu': 1, 'vmem': 2}.get(p.kind, 0)
            need = max(need, n - dist)
            dist += p.states
            if dist >= self.LOOKBACK:
                break
        if need > 0:
            self._emit(Ins(f's_nop {need-1}'))

    def begin_skip(self, branch_text_fmt):
        lab = self.label('L_skip')
        self.fence()
        self.one(branch_text_fmt.format(lab))
        return (lab, list(self.vmq), list(self.lgq), self.vm_issued, self.lg_issued)

    def end_skip(self, ctx):
        lab, vmq, lgq, issued, lgissued = ctx
        new_vm = self.vm_issued != issued
        new_lg = self.lg_issued != lgissued
        self._wait(0 if (new_vm and self.vmq) else None, 0 if (new_lg and self.lgq) else None)
        self.fence()
        self.one(lab + ':')
        self.vmq, self.lgq, self.vm_issued, self.lg_issued = vmq, lgq, issued, lgissued

    def text(self):
        res = []
        for i in self.out:
            res.append(i.text if i.kind == 'label' else '    ' + i.text)
        return '\n'.join(res)


def vr(b, n=1, k='v'):
    return f'{k}{b}' if n == 1 else f'{k}[{b}:{b+n-1}]'


def ar(b, n=1):
    return vr(b, n, 'a')


def sr(b, n=1):
    return vr(b, n, 's')


def rl(k, b, n):
    return [(k, i) for i in range(b, b + n)]
```

```python
from asmgen import *

S, D, F = 2048, 576, 4608
WS_MOD = 0
WS_FLAG = 0x8000
WS_O = 0x10000
O_G = 8 * 80 * 256
WS_X1 = WS_O + 16 * O_G
WS_ST = WS_X1 + 64 * 36864
WS_PART = WS_ST + 64 * 2048
WS_HX = WS_PART + 256 * 4 * 36864
WS_END = WS_HX + 256 * 4 * 18432
WS_SIZE = 268435456

sX, sWQKV, sWO, sWG, sWU, sWD, sC = 64, 66, 68, 72, 74, 76, 78
sWMOD, sOUT, sDBG, sWS = 80, 82, 84, 86
sG, sJ, sW = 32, 33, 34
sMASKHI = 35
sHALF = 36
vTID, vLANE = 0, 1

LOG2E = 1.4426950408889634


def fbits(x):
    import struct
    return '0x%08x' % struct.unpack('<I', struct.pack('<f', x))[0]


def prologue(A, nwg, endlabel, xcd_spread=4):
    A(f's_cmp_ge_u32 s2, {nwg}')
    A(f's_cbranch_scc1 {endlabel}')
    A('s_load_dwordx16 s[64:79], s[0:1], 0')
    A('s_load_dwordx8 s[80:87], s[0:1], 64')
    A(f'v_lshrrev_b32 v2, 6, v{vTID}')
    A(f'v_and_b32 v{vLANE}, 63, v{vTID}')
    A(f'v_readfirstlane_b32 s{sW}, v2')
    mapping(A, xcd_spread)
    A(f's_mov_b32 s{sMASKHI}, 0xffff0000')
    A(f's_mov_b32 s{sHALF}, 0')
    A(f's_mov_b32 s{sHALF+1}, -1')


def mapping(A, n):
    if n == 8:
        A(f's_lshr_b32 s{sG}, s2, 4\ns_and_b32 s{sJ}, s2, 15')
    elif n == 4:
        A(f'''s_and_b32 s40, s2, 7
        s_lshr_b32 s{sG}, s40, 2
        s_lshr_b32 s41, s2, 5
        s_lshl_b32 s41, s41, 1
        s_add_u32 s{sG}, s{sG}, s41
        s_and_b32 s{sJ}, s40, 3
        s_lshl_b32 s{sJ}, s{sJ}, 2
        s_lshr_b32 s41, s2, 3
        s_and_b32 s41, s41, 3
        s_add_u32 s{sJ}, s{sJ}, s41''')
    elif n == 2:
        A(f'''s_and_b32 s40, s2, 7
        s_lshr_b32 s{sG}, s40, 1
        s_lshr_b32 s41, s2, 6
        s_lshl_b32 s41, s41, 2
        s_add_u32 s{sG}, s{sG}, s41
        s_and_b32 s{sJ}, s40, 1
        s_lshl_b32 s{sJ}, s{sJ}, 3
        s_lshr_b32 s41, s2, 3
        s_and_b32 s41, s41, 7
        s_add_u32 s{sJ}, s{sJ}, s41''')
    elif n == 1:
        A(f'''s_and_b32 s{sG}, s2, 7
        s_lshl_b32 s{sG}, s{sG}, 1
        s_lshr_b32 s41, s2, 3
        s_and_b32 s41, s41, 1
        s_add_u32 s{sG}, s{sG}, s41
        s_lshr_b32 s{sJ}, s2, 4''')
    else:
        raise ValueError


def srd(A, q, ptr, size, off=0, bias=0):
    d = off - bias
    if d == 0:
        A(f's_mov_b32 s{q}, s{ptr}\ns_mov_b32 s{q+1}, s{ptr+1}')
    elif d > 0:
        A(f's_add_u32 s{q}, s{ptr}, {d}\ns_addc_u32 s{q+1}, s{ptr+1}, 0')
    else:
        A(f's_sub_u32 s{q}, s{ptr}, {-d}\ns_subb_u32 s{q+1}, s{ptr+1}, 0')
    A(f's_mov_b32 s{q+2}, {size + bias}\ns_mov_b32 s{q+3}, 0x20000')


def unpack(A, lo, hi, src):
    A(f'v_lshlrev_b32 v{lo}, 16, v{src}')
    A(f'v_and_b32 v{hi}, s{sMASKHI}, v{src}')


HDR = open('adaLN_cond__sliding_local_dilated__glu_gated_glu__prompt.s.ref').read().split('\n')[:13]


def kd(name, vgpr, accum, sgpr=102):
    return f""".p2align 6
.amdhsa_kernel {name}
  .amdhsa_next_free_vgpr {vgpr}
  .amdhsa_next_free_sgpr {sgpr}
  .amdhsa_accum_offset {accum}
  .amdhsa_group_segment_fixed_size 0
  .amdhsa_kernarg_size 96
  .amdhsa_user_sgpr_count 2
  .amdhsa_user_sgpr_kernarg_segment_ptr 1
  .amdhsa_system_sgpr_workgroup_id_x 1
  .amdhsa_float_denorm_mode_32 3
.end_amdhsa_kernel"""


def build(kernels):
    out = list(HDR)
    for k in kernels:
        out.append(f"; @launch kernel={k['name']} grid=({k['grid']},1,1) block=({k['block']},1,1) lds={k['lds']}")
    out.append('.amdgcn_target "amdgcn-amd-amdhsa--gfx950"')
    out.append('.text')
    seen = set()
    for k in kernels:
        if k['name'] in seen:
            continue
        seen.add(k['name'])
        out.append(f".globl {k['name']}\n.p2align 8\n.type {k['name']},@function\n{k['name']}:")
        out.append(k['body'])
        out.append('')
    out.append('.section .rodata,"a"')
    seen = set()
    for k in kernels:
        if k['name'] in seen:
            continue
        seen.add(k['name'])
        out.append(kd(k['name'], k.get('vgpr', 512), k.get('accum', 256), k.get('sgpr', 102)))
    return '\n'.join(out) + '\n'
```

```python
from common import *

A_WIMG = 0
A_XS = 138240
A_VT = A_XS + 16384
A_MP = A_VT + 4608
A_LDS = A_MP + 2048
A_KREC = 0
A_VREC = 13824

PT = [(0, 1, 2, 3), (4, 13, 10, 11), (12, 21, 14, 23), (20, 24, 22, 22)]
QLOC = [(0, 0), (0, 1), (0, 2), (0, 3), (1, 0)]
KLOC = [(1, 2), (1, 3), (2, 0), (1, 1), (2, 2)]
VLOC = [(3, 0), (2, 1), (3, 2), (2, 3), (3, 1)]

XB = 16
CB = 160
TB = 192
HB = 200
vAT = 220
vAH = 224
vHB = 225
vCT = 229
pMAIN = 230
pHALO = 232
pX0 = 234
SUM = 236
aACC = 0
aHACC = 64
aFR = 80
aHBF = 120


def pk_bcast(lo):
    return 'op_sel:[0,0,1] op_sel_hi:[1,0,1]'


def ph_a_loads(A):
    A.comment('==== phase A: loads ====')
    srd(A, 8, sX, S * D * 2)
    srd(A, 12, sWQKV, 576 * 3456)
    srd(A, 16, sWS, WS_SIZE)
    A(f'''s_movk_i32 s38, 1152
    v_lshrrev_b32 v4, 3, v{vLANE}
    v_and_b32 v5, 7, v{vLANE}
    v_mul_lo_u32 v2, v4, s38
    v_lshl_add_u32 v2, v5, 4, v2
    s_mul_i32 s39, s{sG}, {128*1152}
    s_mul_i32 s40, s{sW}, {32*1152}
    s_add_u32 s40, s40, s39
    s_add_u32 s41, s40, {8*1152}
    s_add_u32 s42, s40, {16*1152}
    s_add_u32 s43, s40, {24*1152}''')
    for p in range(9):
        for i in range(4):
            r = XB + 16 * p + 4 * i
            A(f'buffer_load_dwordx4 v[{r}:{r+3}], v2, s[8:11], s{40+i} offen offset:{128*p}')
    A(f'''v_lshrrev_b32 v6, 4, v{vLANE}
    v_and_b32 v7, 15, v{vLANE}
    v_mul_lo_u32 v3, v6, s38
    v_lshl_add_u32 v3, v7, 4, v3
    s_mul_i32 s44, s{sW}, {4*1152}
    s_add_u32 s44, s44, s39
    s_sub_u32 s44, s44, {16*1152}
    s_cmp_eq_u32 s{sG}, 0
    s_cselect_b32 s44, 0x80000000, s44''')
    for n in range(4):
        A(f'buffer_load_dwordx4 v[{HB+4*n}:{HB+4*n+3}], v3, s[8:11], s44 offen offset:{256*n}')
    A('s_mov_b32 exec_lo, 0x00ff00ff\ns_mov_b32 exec_hi, 0x00ff00ff')
    A(f'buffer_load_dwordx4 v[{HB+16}:{HB+19}], v3, s[8:11], s44 offen offset:1024')
    A('s_mov_b64 exec, -1')
    A(f'''v_lshrrev_b32 v8, 2, v{vLANE}
    v_and_b32 v9, 3, v{vLANE}
    v_mul_u32_u24 v10, 13, v8
    v_lshrrev_b32 v10, 6, v10
    v_mul_u32_u24 v11, 5, v10
    v_sub_u32 v11, v8, v11
    s_movk_i32 s45, 3456
    v_mul_lo_u32 v9, v9, s45
    v_mad_u32_u24 v9, v10, s38, v9
    v_lshl_add_u32 v15, v11, 4, v9
    s_mul_i32 s46, s{sJ}, 72
    s_and_b32 s46, s46, 0xfffffff0
    s_mul_i32 s47, s{sW}, {4*3456}
    s_add_u32 s46, s46, s47
    s_mul_i32 s47, s{sW}, 960''')


def wdma(A, i0, i1):
    if i1 <= i0:
        return
    A('s_mov_b32 exec_hi, 0x0fffffff')
    for i in range(i0, i1):
        A(f's_add_u32 m0, s47, {A_WIMG + i*4*960}')
        A(f's_add_u32 s48, s46, {i*16*3456}')
        A('buffer_load_dwordx4 v15, s[12:15], s48 offen lds')
    A('s_mov_b32 exec_hi, -1')


def stats_step(A, src, first, k):
    for d in range(4):
        unpack(A, TB + 2 * d, TB + 2 * d + 1, src + d)
    if first:
        A(f'v_mov_b32 v{pX0}, v{TB}')
    for d in range(4):
        t = TB + 2 * d
        A(f'v_pk_add_f32 v[{t}:{t+1}], v[{t}:{t+1}], v[{pX0}:{pX0+1}] op_sel_hi:[1,0] neg_lo:[0,1] neg_hi:[0,1]')
    for d in range(4):
        t = TB + 2 * d
        a = SUM + 2 * (d & 1)
        q = SUM + 4 + 2 * (d & 1)
        if first and d < 2:
            A(f'v_pk_mul_f32 v[{q}:{q+1}], v[{t}:{t+1}], v[{t}:{t+1}]')
            A(f'v_mov_b32 v{a}, v{t}\nv_mov_b32 v{a+1}, v{t+1}')
        else:
            A(f'v_pk_add_f32 v[{a}:{a+1}], v[{a}:{a+1}], v[{t}:{t+1}]')
            A(f'v_pk_fma_f32 v[{q}:{q+1}], v[{t}:{t+1}], v[{t}:{t+1}], v[{q}:{q+1}]')


def ph_a_pre(A):
    A.comment('==== phase A: transposition + statistics ====')
    vTW, vTR = CB, CB + 2
    A(f'''s_lshl_b32 s49, s{sW}, 12
    s_add_u32 s49, s49, {A_XS}
    v_lshrrev_b32 v8, 1, v4
    v_xor_b32 v9, v5, v8
    v_lshlrev_b32 v10, 7, v4
    v_add_u32 v10, s49, v10
    v_lshl_add_u32 v{vTW}, v9, 4, v10
    v_xor_b32 v9, 4, v9
    v_lshl_add_u32 v{vTW+1}, v9, 4, v10
    v_and_b32 v8, 31, v{vLANE}
    v_lshrrev_b32 v9, 5, v{vLANE}
    v_bfe_u32 v10, v8, 1, 3
    v_xor_b32 v9, v9, v10
    v_lshlrev_b32 v8, 7, v8
    v_add_u32 v8, s49, v8''')
    for sp in range(4):
        A(f'v_xor_b32 v10, {2*sp}, v9')
        A(f'v_lshl_add_u32 v{vTR+sp}, v10, 4, v8')
    wdma(A, 0, 20)
    nd = 20
    for p in range(10):
        if p < 9:
            for i in range(4):
                r = XB + 16 * p + 4 * i
                A(f'ds_write_b128 v{vTW+(i&1)}, v[{r}:{r+3}] offset:{1024*i}')
            for sp in range(4):
                r = XB + 16 * p + 4 * sp
                A(f'ds_read_b128 v[{r}:{r+3}], v{vTR+sp}')
            k = min(36, nd + 2)
            wdma(A, nd, k); nd = k
        if p > 0:
            for sp in range(4):
                stats_step(A, XB + 16 * (p - 1) + 4 * sp, p == 1 and sp == 0, sp)
    assert nd == 36
    a, q = SUM, SUM + 4
    A(f'''v_pk_add_f32 v[{a}:{a+1}], v[{a}:{a+1}], v[{a+2}:{a+3}]
    v_pk_add_f32 v[{q}:{q+1}], v[{q}:{q+1}], v[{q+2}:{q+3}]
    v_add_f32 v{a}, v{a}, v{a+1}
    v_add_f32 v{q}, v{q}, v{q+1}
    s_mov_b32 s50, {fbits(1.0/288)}
    v_mul_f32 v{a+1}, s50, v{a}
    v_fma_f32 v{q}, -v{a+1}, v{a}, v{q}
    v_add_f32 v{a}, v{pX0}, v{a+1}
    v_mov_b32 v{a+1}, v{a}
    v_mov_b32 v{q+1}, v{q}
    v_permlane32_swap_b32 v{a}, v{a+1}
    v_permlane32_swap_b32 v{q}, v{q+1}
    v_sub_f32 v{a+2}, v{a}, v{a+1}
    v_add_f32 v{a}, v{a}, v{a+1}
    v_add_f32 v{q}, v{q}, v{q+1}
    v_mul_f32 v{a+2}, v{a+2}, v{a+2}
    s_mov_b32 s50, {fbits(144.0)}
    v_fmac_f32 v{q}, s50, v{a+2}
    v_max_f32 v{q}, 0, v{q}
    s_mov_b32 s50, {fbits(1.0/576)}
    v_mov_b32 v{q+1}, {fbits(1e-5)}
    v_fmac_f32 v{q+1}, s50, v{q}
    v_rsq_f32 v{pMAIN}, v{q+1}
    v_mul_f32 v{a}, -0.5, v{a}
    v_mul_f32 v{pMAIN+1}, v{a}, v{pMAIN}''')
    for s in range(36):
        r = XB + 4 * s
        for d in range(4):
            unpack(A, TB + 2 * d, TB + 2 * d + 1, r + d)
        for d in range(4):
            t = TB + 2 * d
            A(f'v_pk_fma_f32 v[{t}:{t+1}], v[{t}:{t+1}], v[{pMAIN}:{pMAIN+1}], v[{pMAIN}:{pMAIN+1}] {pk_bcast(0)}')
        for d in range(4):
            A(f'v_cvt_pk_bf16_f32 v{r+d}, v{TB+2*d}, v{TB+2*d+1}')
    a, q = SUM, SUM + 4

    def rowsum(reg):
        for rot in (8, 4, 2, 1):
            A(f'v_add_f32_dpp v{reg}, v{reg}, v{reg} row_ror:{rot} row_mask:0xf bank_mask:0xf')
    for pas in range(2):
        for n in range(5):
            if n == 4:
                A('s_mov_b32 exec_lo, 0x00ff00ff\ns_mov_b32 exec_hi, 0x00ff00ff')
            for d in range(4):
                unpack(A, TB + 2 * d, TB + 2 * d + 1, HB + 4 * n + d)
            for d in range(4):
                t = TB + 2 * d
                if pas == 0:
                    if n == 0 and d == 0:
                        A(f'v_mov_b32 v{a}, v{t}\nv_mov_b32 v{a+1}, v{t+1}')
                    else:
                        A(f'v_pk_add_f32 v[{a}:{a+1}], v[{a}:{a+1}], v[{t}:{t+1}]')
                else:
                    A(f'v_pk_add_f32 v[{t}:{t+1}], v[{t}:{t+1}], v[{pX0}:{pX0+1}] op_sel_hi:[1,0] neg_lo:[0,1] neg_hi:[0,1]')
            if pas == 1:
                for d in range(4):
                    t = TB + 2 * d
                    if n == 0 and d == 0:
                        A(f'v_pk_mul_f32 v[{q}:{q+1}], v[{t}:{t+1}], v[{t}:{t+1}]')
                    else:
                        A(f'v_pk_fma_f32 v[{q}:{q+1}], v[{t}:{t+1}], v[{t}:{t+1}], v[{q}:{q+1}]')
            if n == 4:
                A('s_mov_b64 exec, -1')
        if pas == 0:
            A(f'v_add_f32 v{a}, v{a}, v{a+1}')
            rowsum(a)
            A(f's_mov_b32 s50, {fbits(1.0/576)}\nv_mul_f32 v{pX0}, s50, v{a}')
        else:
            A(f'v_add_f32 v{q}, v{q}, v{q+1}')
            rowsum(q)
            A(f'''v_mov_b32 v{q+1}, {fbits(1e-5)}
            v_fmac_f32 v{q+1}, s50, v{q}
            v_rsq_f32 v{pHALO}, v{q+1}
            v_mul_f32 v{pHALO+1}, -1.0, v{pX0}
            v_mul_f32 v{pHALO+1}, v{pHALO+1}, v{pHALO}''')


def ph_a_addr(A):
    A.comment('phase A: stream addresses')
    A(f'''v_lshrrev_b32 v4, 5, v{vLANE}
    v_bfe_u32 v5, v{vLANE}, 2, 2
    v_and_b32 v6, 3, v{vLANE}
    v_bfe_u32 v7, v{vLANE}, 4, 1
    v_lshlrev_b32 v7, 1, v7
    v_lshrrev_b32 v9, 1, v6
    v_add_u32 v7, v7, v9
    v_lshlrev_b32 v7, 3, v7
    v_and_b32 v8, 1, v6
    v_lshlrev_b32 v8, 2, v8
    s_and_b32 s50, s{sJ}, 1
    v_add_u32 v8, s50, v8
    v_mul_u32_u24 v9, 1920, v4
    v_lshl_add_u32 v9, v5, 4, v9''')
    packs = [t[0] | t[1] << 8 | t[2] << 16 | t[3] << 24 for t in PT]
    for T in range(4):
        A(f's_mov_b32 s{52+T}, {packs[T]}')
    A(f'''s_cmp_eq_u32 s{sW}, 1
    s_cselect_b32 s56, s53, s52
    s_cmp_eq_u32 s{sW}, 2
    s_cselect_b32 s56, s54, s56
    s_cmp_eq_u32 s{sW}, 3
    s_cselect_b32 s56, s55, s56''')
    for T in range(5):
        A(f'''v_bfe_u32 v10, s{52+T}, v7, 8
        v_add_u32 v10, v10, v8
        v_lshrrev_b32 v11, 1, v10
        v_and_b32 v10, 1, v10
        v_lshl_add_u32 v11, v11, 6, v9
        v_lshl_add_u32 v{vAT+T}, v10, 3, v11''')
    A(f'''v_and_b32 v10, 31, v{vLANE}
    v_min_u32 v10, 13, v10
    v_bfe_u32 v11, v10, 1, 3
    v_xor_b32 v11, v11, v4
    v_mul_u32_u24 v10, 1152, v10
    v_add_u32 v10, {A_XS}, v10''')
    for sp in range(4):
        A(f'v_xor_b32 v12, {2*sp}, v11\nv_lshl_add_u32 v{vHB+sp}, v12, 4, v10')
    A(f'v_lshlrev_b32 v{vCT}, 6, v4\nv_add_u32 v{vCT}, {A_VT}, v{vCT}')


def mod_table(A, vt, col_b, col_s, srdq=16):
    A(f'''v_lshlrev_b32 v8, 2, v{vTID}
    v_lshlrev_b32 v9, 2, v{vLANE}
    s_mov_b32 s50, {WS_MOD + 4*col_s}
    s_mov_b32 s51, {WS_MOD + 4*col_b}
    buffer_load_dword v10, v8, s[{srdq}:{srdq+3}], s50 offen sc1
    buffer_load_dword v11, v8, s[{srdq}:{srdq+3}], s50 offen offset:1024 sc1
    buffer_load_dword v12, v9, s[{srdq}:{srdq+3}], s50 offen offset:2048 sc1
    buffer_load_dword v13, v8, s[{srdq}:{srdq+3}], s51 offen sc1
    buffer_load_dword v14, v8, s[{srdq}:{srdq+3}], s51 offen offset:1024 sc1
    buffer_load_dword v15, v9, s[{srdq}:{srdq+3}], s51 offen offset:2048 sc1
    v_lshrrev_b32 v8, 3, v{vTID}
    v_lshlrev_b32 v8, 6, v8
    v_and_b32 v9, 7, v{vTID}
    v_lshl_add_u32 v8, v9, 2, v8
    v_add_u32 v8, {vt}, v8
    v_lshrrev_b32 v7, 3, v{vLANE}
    v_lshlrev_b32 v7, 6, v7
    v_lshl_add_u32 v9, v9, 2, v7
    v_add_u32 v9, {vt}, v9''')

    def write():
        A('''ds_write_b32 v8, v10
        ds_write_b32 v8, v11 offset:2048
        ds_write_b32 v9, v12 offset:4096
        ds_write_b32 v8, v13 offset:32
        ds_write_b32 v8, v14 offset:2080
        ds_write_b32 v9, v15 offset:4128''')
    return write


def ph_a_main(A):
    A.comment('==== phase A: modulation table, halo, QKV stream ====')
    A.wait_all()
    A('s_barrier')
    A(f'''v_lshrrev_b32 v6, 4, v{vLANE}
    v_and_b32 v7, 15, v{vLANE}
    s_lshl_b32 s50, s{sW}, 2
    s_sub_u32 s50, s50, 2
    v_add_u32 v6, s50, v6
    v_bfe_u32 v8, v6, 1, 3
    v_xor_b32 v8, v8, v7
    v_mul_i32_i24 v6, 1152, v6
    v_lshl_add_u32 v6, v8, 4, v6
    v_add_u32 v6, {A_XS}, v6
    v_lshlrev_b32 v7, 6, v7
    v_add_u32 v7, {A_VT}, v7
    s_cmp_eq_u32 s{sW}, 0
    s_cselect_b32 s52, 0, -1
    s_mov_b32 s53, -1
    s_and_b32 s54, s52, 0x00ff00ff
    s_mov_b32 s55, 0x00ff00ff''')
    for n in range(5):
        c = CB + 16 * (n & 1)
        for z in range(4):
            A(f'ds_read_b128 v[{c+4*z}:{c+4*z+3}], v7 offset:{1024*n+16*z}')
        for d in range(4):
            unpack(A, TB + 2 * d, TB + 2 * d + 1, HB + 4 * n + d)
        for d in range(4):
            t = TB + 2 * d
            A(f'v_pk_fma_f32 v[{t}:{t+1}], v[{t}:{t+1}], v[{pHALO}:{pHALO+1}], v[{pHALO}:{pHALO+1}] {pk_bcast(0)}')
        for d in range(4):
            t = TB + 2 * d
            A(f'v_pk_fma_f32 v[{t}:{t+1}], v[{t}:{t+1}], v[{c+2*d}:{c+2*d+1}], v[{c+8+2*d}:{c+9+2*d}]')
        for d in range(4):
            A(f'v_cvt_pk_bf16_f32 v{HB+4*n+d}, v{TB+2*d}, v{TB+2*d+1}')
        A(f's_mov_b64 exec, s[{52 if n < 4 else 54}:{53 if n < 4 else 55}]')
        A(f'ds_write_b128 v6, v[{HB+4*n}:{HB+4*n+3}] offset:{256*n}')
        A('s_mov_b64 exec, -1')

    def consts(s, z):
        c = CB + 16 * (s & 1)
        return f'ds_read_b128 v[{c+4*z}:{c+4*z+3}], v{vCT} offset:{128*s+16*z}'

    def norm_ops(s):
        c = CB + 16 * (s & 1)
        r = XB + 4 * s
        ops = []
        for d in range(4):
            ops.append(f'v_lshlrev_b32 v{TB+2*d}, 16, v{r+d}')
            ops.append(f'v_and_b32 v{TB+2*d+1}, s{sMASKHI}, v{r+d}')
        for e in range(8):
            ops.append(f'v_fmac_f32 v{c+8+e}, v{TB+e}, v{c+e}')
        for d in range(4):
            ops.append(f'v_cvt_pk_bf16_f32 v{r+d}, v{c+8+2*d}, v{c+9+2*d}')
        return ops

    def areads(m):
        s, T = divmod(m, 5)
        f = aFR + 4 * (m % 10)
        res = []
        if T == 0 and s in (16, 32):
            for t in range(5):
                res.append(f'v_add_u32 v{vAT+t}, 61440, v{vAT+t}')
        for rd in range(2):
            res.append(f'ds_read_b64_tr_b16 a[{f+2*rd}:{f+2*rd+1}], v{vAT+T} offset:{(4*(s%16)+rd)*960}')
        return res

    def hread(s):
        f = aHBF + 4 * (s & 1)
        return f'ds_read_b128 a[{f}:{f+3}], v{vHB+(s%4)} offset:{128*(s//4)}'

    for z in range(4):
        A(consts(0, z))
    for z in range(4):
        A(consts(1, z))
    for m in range(5):
        for x in areads(m):
            A(x)
    for x in norm_ops(0):
        A(x)
    A.wait_all(vm=False)
    A('s_barrier')
    A(hread(0))
    for s in range(36):
        nops = norm_ops(s + 1) if s + 1 < 36 else []
        for T in range(5):
            m = 5 * s + T
            f = aFR + 4 * (m % 10)
            if T < 4:
                acc = aACC + 16 * T
                b = f'v[{XB+4*s}:{XB+4*s+3}]'
            else:
                acc = aHACC
                b = f'a[{aHBF+4*(s&1)}:{aHBF+4*(s&1)+3}]'
            cin = '0' if s == 0 else f'a[{acc}:{acc+15}]'
            A(f'v_mfma_f32_32x32x16_bf16 a[{acc}:{acc+15}], a[{f}:{f+3}], {b}, {cin}')
            if m + 5 < 180:
                for x in areads(m + 5):
                    A(x)
            for x in nops[4 * T:4 * T + 4]:
                A(x)
            if T >= 1 and s + 2 < 36:
                A(consts(s + 2, T - 1))
            if T == 0 and s + 1 < 36:
                A(hread(s + 1))


def ph_a_attn(A):
    A.comment('==== phase A: attention ====')
    Q, KO, TM, KN, VN, OA, L = 16, 28, 40, 60, 144, 224, 244
    vK, vV, vO, vKh, vVh, vTok = 252, 253, 254, 255, 2, 3
    A(f'''v_lshrrev_b32 v4, 5, v{vLANE}
    v_and_b32 v5, 31, v{vLANE}
    v_mul_u32_u24 v6, 144, v4
    v_add3_u32 v6, v6, v5, 2
    v_mul_u32_u24 v{vKh}, 48, v6
    v_mul_u32_u24 v{vVh}, 80, v6
    v_add_u32 v{vVh}, {A_VREC}, v{vVh}
    s_mul_i32 s50, s{sW}, {32*48}
    v_add_u32 v{vK}, s50, v{vKh}
    s_mul_i32 s50, s{sW}, {32*80}
    v_add_u32 v{vV}, s50, v{vVh}
    s_lshl_b32 s50, s{sG}, 2
    s_add_u32 s50, s50, s{sW}
    s_lshl_b32 s50, s50, 5
    v_add_u32 v{vTok}, s50, v5''')
    for m in range(5):
        T, i = KLOC[m]
        for jj in range(4):
            A(f'v_accvgpr_read_b32 v{TM+4*m+jj}, a{aACC+16*T+4*i+jj}')
    for d in range(10):
        A(f'v_cvt_pk_bf16_f32 v{KO+d}, v{TM+2*d}, v{TM+2*d+1}')
    A(f'v_mov_b32 v{KO+10}, 0\nv_mov_b32 v{KO+11}, 0')
    A('s_barrier')
    for z in range(3):
        A(f'ds_write_b128 v{vK}, v[{KO+4*z}:{KO+4*z+3}] offset:{14*48+16*z}')
    for m in range(5):
        T, i = VLOC[m]
        r = aACC + 16 * T + 4 * i
        A(f'ds_write_b128 v{vV}, a[{r}:{r+3}] offset:{14*80+16*m}')
    for w in (1, 2, 3):
        A(f's_cmp_lg_u32 s{sW}, {w}')
        ctx = A.begin_skip('s_cbranch_scc1 {}')
        A('s_mov_b32 exec_lo, 0x3fff\ns_mov_b32 exec_hi, 0x3fff')
        for m in range(5):
            T, i = KLOC[m]
            if T == w:
                for jj in range(4):
                    A(f'v_accvgpr_read_b32 v{TM+jj}, a{aHACC+4*i+jj}')
                A(f'v_cvt_pk_bf16_f32 v{TM+4}, v{TM}, v{TM+1}\nv_cvt_pk_bf16_f32 v{TM+5}, v{TM+2}, v{TM+3}')
                A(f'ds_write_b64 v{vKh}, v[{TM+4}:{TM+5}] offset:{8*m}')
                A('s_nop 1')
            T, i = VLOC[m]
            if T == w:
                A(f'ds_write_b128 v{vVh}, a[{aHACC+4*i}:{aHACC+4*i+3}] offset:{16*m}')
        A('s_mov_b64 exec, -1')
        A.end_skip(ctx)
    for m in range(5):
        T, i = QLOC[m]
        for jj in range(4):
            A(f'v_accvgpr_read_b32 v{TM+4*m+jj}, a{aACC+16*T+4*i+jj}')
    for e in (0, 1):
        A(f'v_cndmask_b32 v{TM+e}, v{TM+e}, 0, s[{sHALF}:{sHALF+1}]')
        A(f'v_cndmask_b32 v{TM+18+e}, 0, v{TM+18+e}, s[{sHALF}:{sHALF+1}]')
    for d in range(10):
        A(f'v_cvt_pk_bf16_f32 v{Q+d}, v{TM+2*d}, v{TM+2*d+1}')
    for m in range(5):
        T, i = VLOC[m]
        for jj in range(4):
            A(f'v_accvgpr_read_b32 v{OA+4*m+jj}, a{aACC+16*T+4*i+jj}')
    A.wait_all(vm=False)
    A('s_barrier')
    for w in range(1, 8):
        for z in range(3):
            r = KN + 12 * (w - 1) + 4 * z
            A(f'ds_read_b128 v[{r}:{r+3}], v{vK} offset:{(14-2*w)*48+16*z}')

    def vread(w, base):
        for z in range(5):
            A(f'ds_read_b128 v[{base+4*z}:{base+4*z+3}], v{vV} offset:{(14-2*w)*80+16*z}')
    vb = {w: VN + 20 * (w - 1) for w in range(1, 5)}
    vb.update({w: KN + 20 * (w - 5) for w in range(5, 8)})
    for ws in ((0, 1, 2, 3), (4, 5, 6, 7)):
        for d in range(10):
            for w in ws:
                k = (KO if w == 0 else KN + 12 * (w - 1)) + d
                c = '0' if d == 0 else f'v{L+w}'
                A(f'v_dot2_f32_bf16 v{L+w}, v{Q+d}, v{k}, {c}')
        if ws[0] == 0:
            for w in range(1, 5):
                vread(w, vb[w])
    for w in range(5, 8):
        vread(w, vb[w])
    A(f's_mov_b32 s50, {fbits(18 ** -0.5 * LOG2E)}')
    A(f's_mov_b32 s51, {fbits(-1e9)}')
    for w in range(8):
        A(f'v_mul_f32 v{L+w}, s50, v{L+w}')
    A(f'v_mov_b32 v4, s51')
    for w in range(1, 8):
        A(f'v_cmp_le_u32 vcc, {2*w}, v{vTok}')
        A(f'v_cndmask_b32 v{L+w}, v4, v{L+w}, vcc')
    A(f'''v_max3_f32 v4, v{L}, v{L+1}, v{L+2}
    v_max3_f32 v5, v{L+3}, v{L+4}, v{L+5}
    v_max3_f32 v4, v4, v{L+6}, v{L+7}
    v_max_f32 v4, v4, v5''')
    for w in range(8):
        A(f'v_sub_f32 v{L+w}, v{L+w}, v4')
    for w in range(8):
        A(f'v_exp_f32 v{L+w}, v{L+w}')
    A(f'''v_add_f32 v4, v{L}, v{L+1}
    v_add_f32 v5, v{L+2}, v{L+3}
    v_add_f32 v6, v{L+4}, v{L+5}
    v_add_f32 v7, v{L+6}, v{L+7}
    v_add_f32 v4, v4, v5
    v_add_f32 v6, v6, v7
    v_add_f32 v4, v4, v6
    v_rcp_f32 v4, v4''')
    for w in range(8):
        A(f'v_mul_f32 v{L+w}, v{L+w}, v4')
    for w in range(8):
        lp = L + (w & ~1)
        for d in range(10):
            o = OA + 2 * d
            if w == 0:
                A(f'v_pk_mul_f32 v[{o}:{o+1}], v[{o}:{o+1}], v[{lp}:{lp+1}] op_sel_hi:[1,0]')
            else:
                m = 'op_sel_hi:[1,0,1]' if w % 2 == 0 else 'op_sel:[0,1,0] op_sel_hi:[1,1,1]'
                v = vb[w] + 2 * d
                A(f'v_pk_fma_f32 v[{o}:{o+1}], v[{v}:{v+1}], v[{lp}:{lp+1}], v[{o}:{o+1}] {m}')
    for d in range(10):
        A(f'v_cvt_pk_bf16_f32 v{TM+d}, v{OA+2*d}, v{OA+2*d+1}')
    OUT, E = 16, 24
    for d in range(9):
        A(f'v_cndmask_b32 v{OUT+d}, v{TM+d}, v{TM+d+1}, s[{sHALF}:{sHALF+1}]')
    A(f'''v_mov_b32 v{E+1}, v{E}
    v_mov_b32 v{E+2}, 0
    v_mov_b32 v{E+3}, 0
    v_permlane32_swap_b32 v{E}, v{E+1}''')
    A(f'''v_bfe_u32 v4, v{vLANE}, 4, 1
    v_mul_u32_u24 v4, 20480, v4
    v_and_b32 v5, 15, v{vLANE}
    v_lshl_add_u32 v4, v5, 4, v4
    v_lshrrev_b32 v5, 5, v{vLANE}
    v_lshl_add_u32 v{vO}, v5, 9, v4
    s_mul_i32 s50, s{sG}, {O_G}
    s_mul_i32 s51, s{sW}, 40960
    s_add_u32 s50, s50, s51
    s_mul_i32 s51, s{sJ}, 1280
    s_add_u32 s50, s50, s51
    s_add_u32 s50, s50, {WS_O}
    buffer_store_dwordx4 v[{OUT}:{OUT+3}], v{vO}, s[16:19], s50 offen sc1
    buffer_store_dwordx4 v[{OUT+4}:{OUT+7}], v{vO}, s[16:19], s50 offen offset:256 sc1
    s_mov_b32 exec_hi, 0
    buffer_store_dwordx4 v[{E}:{E+3}], v{vO}, s[16:19], s50 offen offset:1024 sc1
    s_mov_b32 exec_hi, -1''')


def ph_a(A):
    ph_a_loads(A)
    ph_a_pre(A)
    ph_a_addr(A)
    wr = mod_table(A, A_VT, 0, 576)
    wr()
    ph_a_main(A)
    ph_a_attn(A)
```

```python
from common import *

B_IMG = 40960
B_LDS = B_IMG + 160 * 576 + 128
RB = (0, 4, 8, 12, 18, 22, 26, 30)


def ph_b_dma(A):
    A.comment('==== phase B: wo image ====')
    srd(A, 20, sWO, 576 * 1152)
    A(f'''v_lshrrev_b32 v4, 2, v{vLANE}
    v_and_b32 v5, 3, v{vLANE}
    v_mul_u32_u24 v6, 1152, v5
    v_lshl_add_u32 v6, v4, 4, v6
    v_lshrrev_b32 v7, 1, v5
    v_and_b32 v5, 1, v5
    v_mul_u32_u24 v7, 18, v7
    v_add3_u32 v7, v7, v5, 16
    v_mul_u32_u24 v7, 1152, v7
    v_lshl_add_u32 v7, v4, 4, v7
    s_and_b32 s40, s{sJ}, 7
    s_mul_i32 s40, s40, 144
    s_mul_i32 s41, s{sW}, {36*1152}
    s_add_u32 s40, s40, s41
    s_mul_i32 s41, s{sW}, 5760
    s_mov_b32 exec_lo, -1
    s_mov_b32 exec_hi, 0xf''')
    for a in range(4):
        for z in range(10):
            A(f's_add_u32 m0, s41, {B_IMG + (40*a + z)*576}')
            rb = RB[z] if z < 8 else 0
            A(f's_add_u32 s42, s40, {(144*a + rb)*1152}')
            A(f'buffer_load_dwordx4 v{7 if z == 8 else 6}, s[20:23], s42 offen lds')
    A('s_mov_b64 exec, -1')


def ph_b(A, dma=True):
    OB, XR, GA, ACC, TM = 16, 96, 108, 128, 148
    aFR = 0
    vA0, vA1, vL16, vX1, vST = 200, 201, 202, 203, 204
    srd(A, 8, sX, S * D * 2)
    srd(A, 16, sWS, WS_SIZE)
    if dma:
        ph_b_dma(A)
        A('s_waitcnt vmcnt(30)')
    A(f'''s_lshr_b32 s44, s{sJ}, 3
    s_and_b32 s45, s{sJ}, 7
    v_lshlrev_b32 v{vL16}, 4, v{vLANE}
    s_lshl_b32 s46, s44, 2
    s_add_u32 s46, s46, s{sW}
    s_mul_i32 s47, s46, 20480
    s_mul_i32 s48, s{sG}, {O_G}
    s_add_u32 s47, s47, s48
    s_add_u32 s47, s47, {WS_O}''')
    A(f'''v_and_b32 v4, 15, v{vLANE}
    v_lshrrev_b32 v5, 4, v{vLANE}
    v_mul_u32_u24 v6, 1152, v4
    v_lshl_add_u32 v6, v5, 3, v6
    v_lshlrev_b32 v7, 4, v5
    s_lshl_b32 s48, s{sG}, 3
    s_add_u32 s48, s48, s46
    s_mul_i32 s48, s48, {16*1152}
    s_mul_i32 s49, s45, 144
    s_add_u32 s48, s48, s49
    s_mul_i32 s49, s45, 288
    s_add_u32 s49, s49, {WS_MOD + 4*1152}''')
    for T in range(5):
        A(f'buffer_load_dwordx2 v[{XR+2*T}:{XR+2*T+1}], v6, s[8:11], s48 offen offset:{32*T}')
    for T in range(5):
        A(f'buffer_load_dwordx4 v[{GA+4*T}:{GA+4*T+3}], v7, s[16:19], s49 offen offset:{64*T} sc1')
    mk = A.mark()
    return_point = None
    for k in range(20):
        A(f'buffer_load_dwordx4 v[{OB+4*k}:{OB+4*k+3}], v{vL16}, s[16:19], s47 offen offset:{1024*(k%4)} sc1')
        if k % 4 == 3 and k < 19:
            A('s_add_u32 s47, s47, 4096')
    A(f'''v_mul_u32_u24 v8, 1152, v5
    v_bfe_u32 v9, v{vLANE}, 2, 2
    v_lshl_add_u32 v8, v9, 4, v8
    v_bfe_u32 v9, v{vLANE}, 1, 1
    v_lshl_add_u32 v8, v9, 6, v8
    v_and_b32 v9, 1, v{vLANE}
    v_lshl_add_u32 v8, v9, 3, v8
    v_add_u32 v{vA0}, {B_IMG}, v8
    v_add_u32 v{vA1}, {B_IMG + 46080}, v8''')
    A(f'''v_and_b32 v8, 1, v5
    v_lshlrev_b32 v8, 1, v8
    v_lshrrev_b32 v9, 1, v5
    v_or_b32 v8, v8, v9
    v_lshlrev_b32 v8, 9, v8
    v_lshl_add_u32 v{vX1}, v4, 4, v8
    v_lshlrev_b32 v{vST}, 4, v4
    s_lshr_b32 s50, s46, 1
    s_lshl_b32 s51, s{sG}, 2
    s_add_u32 s50, s50, s51
    s_and_b32 s51, s{sW}, 1
    s_lshl_b32 s51, s51, 8
    s_mul_i32 s52, s50, 36864
    s_mul_i32 s53, s45, 4608
    s_add_u32 s52, s52, s53
    s_add_u32 s52, s52, s51
    s_add_u32 s52, s52, {WS_X1}
    s_lshl_b32 s53, s50, 11
    s_add_u32 s53, s53, s51
    s_lshr_b32 s54, s45, 1
    s_lshl_b32 s54, s54, 9
    s_add_u32 s53, s53, s54
    s_and_b32 s54, s45, 1
    s_lshl_b32 s54, s54, 3
    s_add_u32 s53, s53, s54
    s_add_u32 s53, s53, {WS_ST}''')
    A.wait_vm_mark(mk)
    A('s_barrier')
    NB, LA = 8, 6

    def reads(m):
        k, T = divmod(m, 5)
        f = aFR + 4 * (m % NB)
        va = vA0 if k < 10 else vA1
        return [f'ds_read_b64_tr_b16 a[{f+2*rd}:{f+2*rd+1}], v{va} offset:{(k%10)*4608 + rd*576 + T*128}' for rd in range(2)]
    for m in range(LA):
        for x in reads(m):
            A(x)
    for m in range(100):
        k, T = divmod(m, 5)
        f = aFR + 4 * (m % NB)
        acc = ACC + 4 * T
        cin = '0' if k == 0 else f'v[{acc}:{acc+3}]'
        A(f'v_mfma_f32_16x16x32_bf16 v[{acc}:{acc+3}], a[{f}:{f+3}], v[{OB+4*k}:{OB+4*k+3}], {cin}')
        if m + LA < 100:
            for x in reads(m + LA):
                A(x)
    for T in range(5):
        for d in range(2):
            unpack(A, TM + 4 * T + 2 * d, TM + 4 * T + 2 * d + 1, XR + 2 * T + d)
    for T in range(5):
        for d in range(2):
            t = TM + 4 * T + 2 * d
            A(f'v_pk_fma_f32 v[{t}:{t+1}], v[{ACC+4*T+2*d}:{ACC+4*T+2*d+1}], v[{GA+4*T+2*d}:{GA+4*T+2*d+1}], v[{t}:{t+1}]')
    P = 168
    for T in range(5):
        for d in range(2):
            t = TM + 4 * T + 2 * d
            A(f'v_cvt_pk_bf16_f32 v{P+2*T+d}, v{t}, v{t+1}')
    for T in range(5):
        for d in range(2):
            unpack(A, TM + 4 * T + 2 * d, TM + 4 * T + 2 * d + 1, P + 2 * T + d)
    A(f'v_mov_b32 v{P+10}, v{P+8}\nv_mov_b32 v{P+11}, v{P+9}')
    for b in (0, 4, 8):
        A(f'v_permlane16_swap_b32 v{P+b}, v{P+b+2}')
        A(f'v_permlane16_swap_b32 v{P+b+1}, v{P+b+3}')
    A(f'buffer_store_dwordx4 v[{P}:{P+3}], v{vX1}, s[16:19], s52 offen sc1')
    A(f'buffer_store_dwordx4 v[{P+4}:{P+7}], v{vX1}, s[16:19], s52 offen offset:2048 sc1')
    A('s_mov_b64 exec, 0xffff')
    A('s_add_u32 s52, s52, 4096')
    A(f'buffer_store_dwordx4 v[{P+8}:{P+11}], v{vX1}, s[16:19], s52 offen sc1')
    A('s_mov_b64 exec, -1')
    a, b = 184, 186

    def allsum(r):
        A(f'''v_mov_b32 v{r+1}, v{r}
        v_permlane16_swap_b32 v{r}, v{r+1}
        v_add_f32 v{r}, v{r}, v{r+1}
        v_mov_b32 v{r+1}, v{r}
        v_permlane32_swap_b32 v{r}, v{r+1}
        v_add_f32 v{r}, v{r}, v{r+1}''')
    A(f'v_pk_add_f32 v[{a}:{a+1}], v[{TM}:{TM+1}], v[{TM+2}:{TM+3}]')
    for u in range(2, 10):
        if u == 8:
            A('s_mov_b32 exec_hi, 0')
        A(f'v_pk_add_f32 v[{a}:{a+1}], v[{a}:{a+1}], v[{TM+2*u}:{TM+2*u+1}]')
    A('s_mov_b32 exec_hi, -1')
    A(f'v_add_f32 v{a}, v{a}, v{a+1}')
    allsum(a)
    A(f's_mov_b32 s54, {fbits(1.0/72)}\nv_mul_f32 v{a}, s54, v{a}')
    for u in range(10):
        t = TM + 2 * u
        A(f'v_pk_add_f32 v[{t}:{t+1}], v[{t}:{t+1}], v[{a}:{a+1}] op_sel_hi:[1,0] neg_lo:[0,1] neg_hi:[0,1]')
    A(f'v_pk_mul_f32 v[{b}:{b+1}], v[{TM}:{TM+1}], v[{TM}:{TM+1}]')
    for u in range(1, 10):
        if u == 8:
            A('s_mov_b32 exec_hi, 0')
        t = TM + 2 * u
        A(f'v_pk_fma_f32 v[{b}:{b+1}], v[{t}:{t+1}], v[{t}:{t+1}], v[{b}:{b+1}]')
    A('s_mov_b32 exec_hi, -1')
    A(f'v_add_f32 v{b}, v{b}, v{b+1}')
    allsum(b)
    A(f'v_mov_b32 v{a+1}, v{b}')
    A('s_mov_b64 exec, 0xffff')
    A(f'buffer_store_dwordx2 v[{a}:{a+1}], v{vST}, s[16:19], s53 offen sc1')
    A('s_mov_b64 exec, -1')
```

```python
from common import *
from ph_a import mod_table

NS = 9
C_VT = NS * 16384
C_LDS = C_VT + 4608
BIAS = 4096

XB = 16
HB = 160
vF = 232
vH = 238
vDG, vDH, vDD = 241, 242, 243
vCT = 244
pST = 246
TMP = 248
OUTT = 4
vL16 = 245
CB = HB
NT = HB + 32
aACC = 0
aFR = 128
NB, LA = 8, 6
sgGU, sgGH, sgD, sgWS = 8, 12, 20, 16


def steps():
    st = []
    for p in range(4):
        for s in range(36):
            st.append(dict(kind='gu', p=p, s=s))
    for u in range(18):
        st.append(dict(kind='gh', p=4, s=u))
    ND = 4
    for db in range(ND):
        for u in range(6):
            st.append(dict(kind='dn', p=db, s=u, last=False))
    for db in range(ND):
        for u in range(6, 9):
            st.append(dict(kind='dn', p=db, s=u, last=u == 8))
    for db in range(ND, 9):
        for u in range(9):
            st.append(dict(kind='dn', p=db, s=u, last=u == 8))
    return st


def ph_c_setup(A):
    A.comment('==== phase C: setup ====')
    srd(A, sgWS, sWS, WS_SIZE)
    A(f'''s_cmp_lt_u32 s{sW}, 2
    s_cselect_b32 s40, s{sWG}, s{sWU}
    s_cselect_b32 s41, s{sWG+1}, s{sWU+1}''')
    srd(A, sgGU, 40, 576 * 9216, bias=BIAS)
    A(f'''s_bitcmp0_b32 s{sW}, 0
    s_cselect_b32 s40, s{sWG}, s{sWU}
    s_cselect_b32 s41, s{sWG+1}, s{sWU+1}''')
    srd(A, sgGH, 40, 576 * 9216, bias=BIAS)
    srd(A, sgD, sWD, F * 1152, bias=BIAS)
    A(f'''v_lshrrev_b32 v4, 3, v{vLANE}
    v_and_b32 v5, 7, v{vLANE}
    v_bfe_u32 v6, v{vLANE}, 4, 1
    v_lshlrev_b32 v6, 2, v6
    v_xor_b32 v5, v5, v6
    v_lshlrev_b32 v5, 4, v5
    s_and_b32 s40, s{sW}, 1
    s_lshr_b32 s41, s{sW}, 1
    s_lshl_b32 s42, s40, 3
    v_add_u32 v6, s42, v4
    s_movk_i32 s43, 9216
    v_mul_lo_u32 v6, v6, s43
    v_add_u32 v{vDG}, v6, v5
    v_lshrrev_b32 v6, 2, v4
    v_lshlrev_b32 v6, 3, v6
    v_and_b32 v7, 3, v4
    v_add_u32 v6, v6, v7
    s_lshl_b32 s42, s40, 2
    s_lshl_b32 s44, s41, 4
    s_add_u32 s42, s42, s44
    v_add_u32 v6, s42, v6
    v_mul_u32_u24 v6, 1152, v6
    v_add_u32 v{vDD}, v6, v5
    v_lshrrev_b32 v6, 2, v{vLANE}
    v_add_u32 v6, s44, v6
    v_mul_lo_u32 v6, v6, s43
    v_and_b32 v7, 3, v{vLANE}
    v_lshl_add_u32 v{vDH}, v7, 4, v6''')
    A(f'''s_and_b32 s40, s{sJ}, 1
    s_mul_i32 s41, s{sJ}, 288
    s_lshl_b32 s42, s40, 5
    s_add_u32 s42, s42, s41
    s_lshl_b32 s56, s42, 1
    s_mul_i32 s58, s42, 1152
    s_cmp_eq_u32 s40, 0
    s_cselect_b32 s42, 256, 0
    s_add_u32 s42, s42, s41
    s_lshl_b32 s57, s42, 1
    s_mul_i32 s59, s42, 1152
    s_lshl_b32 s60, s{sW}, 12''')
    A(f'''v_lshrrev_b32 v4, 5, v{vLANE}
    v_bfe_u32 v5, v{vLANE}, 2, 2
    v_bfe_u32 v6, v{vLANE}, 4, 1
    v_bfe_u32 v7, v{vLANE}, 1, 1
    v_lshl_add_u32 v6, v6, 1, v7
    v_and_b32 v7, 1, v{vLANE}
    v_lshlrev_b32 v7, 3, v7
    v_lshl_add_u32 v7, v6, 4, v7
    v_lshrrev_b32 v8, 1, v5
    v_lshlrev_b32 v8, 6, v8
    v_xor_b32 v8, v8, v7
    v_lshl_add_u32 v8, v5, 7, v8
    v_lshl_add_u32 v8, v4, 12, v8
    v_lshl_add_u32 v7, v5, 6, v7
    v_lshl_add_u32 v7, v4, 9, v7''')
    for wd in range(3):
        A(f'v_add_u32 v{vF+2*wd}, {49152*wd}, v8')
        A(f'v_xor_b32 v{vF+2*wd+1}, 64, v{vF+2*wd}')
        A(f'v_add_u32 v{vH+wd}, {49152*wd}, v7')
    A(f'v_lshlrev_b32 v{vCT}, 6, v4\nv_add_u32 v{vCT}, {C_VT}, v{vCT}')


def dma(A, st, n):
    if n >= len(st):
        return
    e = st[n]
    slot, z = divmod(n, 4)
    if z == 0:
        A(f's_add_u32 m0, s60, {(slot % NS) * 16384}')
    comp = BIAS - 1024 * z
    if e['kind'] == 'gu':
        A(f's_add_u32 s61, s56, {comp + e["p"]*128 + e["s"]*16*9216}')
        A(f'buffer_load_dwordx4 v{vDG}, s[{sgGU}:{sgGU+3}], s61 offen offset:{1024*z} lds')
    elif e['kind'] == 'gh':
        A(f's_add_u32 s61, s57, {comp + e["s"]*32*9216}')
        A(f'buffer_load_dwordx4 v{vDH}, s[{sgGH}:{sgGH+3}], s61 offen offset:{1024*z} lds')
    else:
        if e['s'] < 8:
            A(f's_add_u32 s61, s58, {comp + e["p"]*128 + e["s"]*32*1152}')
        else:
            A(f's_add_u32 s61, s59, {comp + e["p"]*128}')
        A(f'buffer_load_dwordx4 v{vDD}, s[{sgD}:{sgD+3}], s61 offen offset:{1024*z} lds')


def mf_info(st, m):
    n, i = divmod(m, 4)
    e = st[n]
    slot, z = divmod(n, 4)
    win, sl = divmod(slot % NS, 3)
    base = sl * 16384 + z * 1024
    if e['kind'] == 'gu':
        acc = aACC + 64 * (e['p'] & 1) + 16 * i
        b = XB + 4 * e['s']
        first = e['s'] == 0
        mat, t = divmod(i, 2)
        return acc, b, first, vF + 2 * win + t, [base + (2 * mat) * 4096 + rd * 512 for rd in range(2)]
    if e['kind'] == 'gh':
        par, mat = divmod(i, 2)
        acc = aACC + 32 * mat
        b = XB + 4 * (2 * e['s'] + par)
        first = e['s'] == 0 and par == 0
        return acc, b, first, vH + win, [base + i * 4096 + rd * 256 for rd in range(2)]
    par, t = divmod(i, 2)
    acc = XB + 16 * ((2 * e['p'] + t) % 9)
    b = HB + 4 * (2 * e['s'] + par)
    first = e['s'] == 0 and par == 0
    return acc, b, first, vF + 2 * win + t, [base + (2 * par) * 4096 + rd * 512 for rd in range(2)]


def act_ops(p):
    ops = []
    s = aACC + 64 * (p & 1)
    tiles = (0, 1) if p < 4 else (0,)
    for t in tiles:
        g, u = s + 16 * t, s + 32 + 16 * t
        h = HB + 16 * p + 8 * t
        for c in range(4):
            T = TMP
            r = range(4)
            ops += [(f'v_accvgpr_read_b32 v{T+e}, a{g+4*c+e}', 1) for e in r]
            ops += [(f'v_mul_f32 v{T+e}, s62, v{T+e}', 1) for e in r]
            ops += [(f'v_exp_f32 v{T+e}, v{T+e}', 2) for e in r]
            ops += [(f'v_accvgpr_read_b32 v{T+4+e}, a{u+4*c+e}', 1) for e in r]
            ops += [(f'v_add_f32 v{T+e}, 1.0, v{T+e}', 1) for e in r]
            ops += [(f'v_rcp_f32 v{T+e}, v{T+e}', 2) for e in r]
            ops += [(f'v_mul_f32 v{T+4+e}, v{T+4+e}, v{T+e}', 1) for e in r]
            ops += [(f'v_cvt_pk_bf16_f32 v{h+2*c+d}, v{T+4+2*d}, v{T+5+2*d}', 1) for d in range(2)]
    return ops


def out_ops(db):
    ops = []
    for t in range(2):
        s = XB + 16 * ((2 * db + t) % 9)
        for m in range(2):
            P = OUTT + 4 * (m & 1)
            ops += [(f'v_cvt_pk_bf16_f32 v{P+d}, v{s+8*m+2*d}, v{s+8*m+2*d+1}', 1) for d in range(4)]
            if t == 0 and m == 0:
                ops.append((f's_add_u32 s63, s55, {db*4096}', 1))
            ops += [(f'v_permlane32_swap_b32 v{P}, v{P+2}', 1), (f'v_permlane32_swap_b32 v{P+1}, v{P+3}', 1)]
            ops.append((f'buffer_store_dwordx4 v[{P}:{P+3}], v{vL16}, s[{sgWS}:{sgWS+3}], s63 offen offset:{(2*t+m)*1024} sc1', 1))
    return ops


def consts(s, z):
    c = CB + 16 * (s & 1)
    return f'ds_read_b128 v[{c+4*z}:{c+4*z+3}], v{vCT} offset:{128*s+16*z}'


def norm_parts(s):
    c = CB + 16 * (s & 1)
    r = XB + 4 * s
    up, pk, cv = [], [], []
    for d in range(4):
        up.append(f'v_lshlrev_b32 v{NT+2*d}, 16, v{r+d}')
        up.append(f'v_and_b32 v{NT+2*d+1}, s{sMASKHI}, v{r+d}')
    for d in range(4):
        t = NT + 2 * d
        pk.append(f'v_pk_fma_f32 v[{t}:{t+1}], v[{t}:{t+1}], v[{pST}:{pST+1}], v[{pST}:{pST+1}] op_sel:[0,0,1] op_sel_hi:[1,0,1]')
    for d in range(4):
        t = NT + 2 * d
        pk.append(f'v_pk_fma_f32 v[{t}:{t+1}], v[{t}:{t+1}], v[{c+2*d}:{c+2*d+1}], v[{c+8+2*d}:{c+9+2*d}]')
    for d in range(4):
        cv.append(f'v_cvt_pk_bf16_f32 v{r+d}, v{NT+2*d}, v{NT+2*d+1}')
    return up, pk, cv


def ph_c(A, budget=2):
    st = steps()
    NST = len(st)
    NM = 4 * NST
    ph_c_setup(A)
    marks = {}
    wr = mod_table(A, C_VT, 3 * 576, 4 * 576, sgWS)
    A(f'''s_lshl_b32 s40, s{sG}, 2
    s_add_u32 s40, s40, s{sW}
    s_mul_i32 s41, s40, 36864
    s_add_u32 s41, s41, {WS_X1}
    s_lshl_b32 s42, s40, 11
    s_add_u32 s42, s42, {WS_ST}
    v_and_b32 v4, 31, v{vLANE}
    v_lshlrev_b32 v4, 4, v4
    v_lshlrev_b32 v5, 4, v{vLANE}''')
    ST = HB + 40
    for cp in range(4):
        A(f'buffer_load_dwordx4 v[{ST+4*cp}:{ST+4*cp+3}], v4, s[{sgWS}:{sgWS+3}], s42 offen offset:{512*cp} sc1')
    for n in range(4):
        dma(A, st, n)
    marks[0] = A.mark()
    for s in range(36):
        A(f'buffer_load_dwordx4 v[{XB+4*s}:{XB+4*s+3}], v5, s[{sgWS}:{sgWS+3}], s41 offen offset:{1024*(s%4)} sc1')
        if s % 4 == 3 and s < 35:
            A('s_add_u32 s41, s41, 4096')
    for n in range(4, 8):
        dma(A, st, n)
    marks[1] = A.mark()
    wr()
    A(f'''s_lshl_b32 s40, s{sG}, 4
    s_add_u32 s40, s40, s{sJ}
    s_lshl_b32 s40, s40, 2
    s_add_u32 s40, s40, s{sW}
    s_mul_i32 s55, s40, 36864
    s_add_u32 s55, s55, {WS_PART}
    s_mov_b32 s62, {fbits(-LOG2E)}''')
    a = TMP
    A(f'''v_add_f32 v{a}, v{ST}, v{ST+2}
    v_add_f32 v{a+1}, v{ST+4}, v{ST+6}
    v_add_f32 v{a+2}, v{ST+8}, v{ST+10}
    v_add_f32 v{a+3}, v{ST+12}, v{ST+14}
    v_add_f32 v{a}, v{a}, v{a+1}
    v_add_f32 v{a+2}, v{a+2}, v{a+3}
    v_add_f32 v{a}, v{a}, v{a+2}
    v_mul_f32 v{a}, 0.125, v{a}'''.replace('0.125', fbits(0.125)))
    A(f'v_mov_b32 v{a+1}, 0\nv_mov_b32 v{a+2}, 0')
    for p in range(8):
        A(f'v_sub_f32 v{ST+2*p}, v{ST+2*p}, v{a}')
        A(f'v_add_f32 v{a+2}, v{a+2}, v{ST+2*p+1}')
        A(f'v_fmac_f32 v{a+1}, v{ST+2*p}, v{ST+2*p}')
    A(f'''s_mov_b32 s40, {fbits(72.0)}
    v_fmac_f32 v{a+2}, s40, v{a+1}
    s_mov_b32 s40, {fbits(1.0/576)}
    v_mov_b32 v{a+1}, {fbits(1e-5)}
    v_fmac_f32 v{a+1}, s40, v{a+2}
    v_rsq_f32 v{pST}, v{a+1}
    v_mul_f32 v{a}, -1.0, v{a}
    v_mul_f32 v{pST+1}, v{a}, v{pST}''')
    for slot in range(2, NS - 3):
        for z in range(4):
            dma(A, st, 4 * slot + z)
        marks[slot] = A.mark()

    def boundary(slot):
        A.wait_vm_mark(marks[slot])
        if slot == 0:
            A.wait_all(vm=False)
        A('s_barrier')

    def reads(m):
        acc, b, first, va, offs = mf_info(st, m)
        f = aFR + 4 * (m % NB)
        return [f'ds_read_b64_tr_b16 a[{f+2*rd}:{f+2*rd+1}], v{va} offset:{offs[rd]}' for rd in range(2)]

    boundary(0)
    for z in range(4):
        A(consts(0, z))
    for z in range(4):
        A(consts(1, z))
    for m in range(LA):
        for x in reads(m):
            A(x)
    up, pk, cv = norm_parts(0)
    for x in up + pk + cv:
        A(x)
    fill = []
    pend_dma = []
    for z in range(8):
        pend_dma.append(4 * (NS - 3) + z)
    flushed = 0
    A(f'v_lshlrev_b32 v{vL16}, 4, v{vLANE}')
    for m in range(NM):
        n, i = divmod(m, 4)
        e = st[n]
        acc, b, first, va, offs = mf_info(st, m)
        f = aFR + 4 * (m % NB)
        ak = 'v' if e['kind'] == 'dn' else 'a'
        if i == 2 and n > 0:
            pe = st[n - 1]
            if pe['kind'] == 'gu' and pe['s'] == 35 or pe['kind'] == 'gh' and pe['s'] == 17:
                fill += act_ops(pe['p'])
            elif pe['kind'] == 'dn' and pe['last']:
                fill += out_ops(pe['p'])
        need_b = set(rl('v', b, 4))
        accr = set(rl(ak, acc, 16))
        k = -1
        for q, (x, c) in enumerate(fill):
            ins = Ins(x)
            if set(ins.defs) & need_b or (first and set(ins.uses) & accr):
                k = q
        if k >= 0:
            flushed += k + 1
            for x, c in fill[:k + 1]:
                A(x)
            fill = fill[k + 1:]
        if m % 2 == 0:
            f2 = aFR + 4 * ((m + 1) % NB)
            A.wait_regs(rl('a', f, 4) + rl('a', f2, 4))
        cin = '0' if first else f'{ak}[{acc}:{acc+15}]'
        A(f'v_mfma_f32_32x32x16_bf16 {ak}[{acc}:{acc+15}], a[{f}:{f+3}], v[{b}:{b+3}], {cin}')
        mm = m + LA
        if mm < NM:
            if mm % 16 == 0:
                slot = mm // 16
                boundary(slot)
                pend_dma += [4 * (slot + NS - 2) + z for z in range(4)]
            for x in reads(mm):
                A(x)
        if pend_dma and (i == 1 or (i == 3 and len(pend_dma) > 4 and m > 32)):
            nd = pend_dma.pop(0)
            dma(A, st, nd)
            if nd % 4 == 3 or nd == NST - 1:
                marks[nd // 4] = A.mark()
        if e['kind'] == 'gu' and e['p'] == 0:
            s = e['s']
            if s + 1 < 36:
                up, pk, cv = norm_parts(s + 1)
                if i == 0:
                    for x in up[:4]: A(x)
                elif i == 1:
                    for x in up[4:]: A(x)
                elif i == 3:
                    for x in pk + cv: A(x)
            if s + 2 < 36 and i == 3:
                for z in range(4):
                    A(consts(s + 2, z))
        else:
            left = budget + (1 if m % 2 else 0)
            while fill and left >= fill[0][1]:
                x, c = fill.pop(0)
                A(x)
                left -= c
    for x, c in fill + out_ops(8):
        A(x)
    import sys
    print('phase C: flushed', flushed, 'tail', len(fill), file=sys.stderr)
```

```python
from common import *


def ph_mod(A, sM, lds):
    A.comment('==== phase mod ====')
    srd(A, 8, sWMOD, 576 * 6912)
    srd(A, 12, sC, 1152)
    srd(A, 16, sWS, WS_SIZE)
    A(f'''v_lshrrev_b32 v2, 2, v{vLANE}
    v_and_b32 v3, 3, v{vLANE}
    s_mul_i32 s40, s{sW}, 144
    v_add_u32 v4, s40, v2
    s_movk_i32 s41, 6912
    v_mul_lo_u32 v5, v4, s41
    v_lshl_add_u32 v5, v3, 4, v5
    v_lshlrev_b32 v6, 1, v4
    s_lshl_b32 s41, s{sM}, 6''')
    for i in range(9):
        A(f'buffer_load_ushort v{10+i}, v6, s[12:15], 0 offen offset:{32*i}')
    for i in range(9):
        A(f's_add_u32 s42, s41, {i*16*6912}')
        A(f'buffer_load_dwordx4 v[{20+4*i}:{23+4*i}], v5, s[8:11], s42 offen')
    A(f's_mov_b32 s43, {fbits(-LOG2E)}')
    for i in range(9):
        A(f'v_lshlrev_b32 v{10+i}, 16, v{10+i}')
    for i in range(9):
        A(f'v_mul_f32 v{64+i}, s43, v{10+i}')
    for i in range(9):
        A(f'v_exp_f32 v{64+i}, v{64+i}')
    for i in range(9):
        A(f'v_add_f32 v{64+i}, 1.0, v{64+i}')
    for i in range(9):
        A(f'v_rcp_f32 v{64+i}, v{64+i}')
    for i in range(9):
        A(f'v_mul_f32 v{10+i}, v{10+i}, v{64+i}')
    for i in range(9):
        A(f'v_cvt_pk_bf16_f32 v{10+i}, v{10+i}, v{10+i}')
    for i in range(9):
        A(f'v_and_b32 v{10+i}, s{sMASKHI}, v{10+i}')
    for i in range(9):
        for d in range(4):
            unpack(A, 64 + 2 * d, 65 + 2 * d, 20 + 4 * i + d)
        sp = 10 + (i & ~1)
        for d in range(4):
            if i == 0:
                A(f'v_pk_mul_f32 v[{56+2*d}:{57+2*d}], v[{64+2*d}:{65+2*d}], v[{sp}:{sp+1}] op_sel_hi:[1,0]')
            else:
                m = 'op_sel_hi:[1,0,1]' if i % 2 == 0 else 'op_sel:[0,1,0] op_sel_hi:[1,1,1]'
                A(f'v_pk_fma_f32 v[{56+2*d}:{57+2*d}], v[{64+2*d}:{65+2*d}], v[{sp}:{sp+1}], v[{56+2*d}:{57+2*d}] {m}')
    for rot in (8, 4):
        for d in range(8):
            A(f'v_add_f32_dpp v{56+d}, v{56+d}, v{56+d} row_ror:{rot} row_mask:0xf bank_mask:0xf')
    A(f'''v_lshrrev_b32 v7, 4, v{vLANE}
    s_lshl_b32 s40, s{sW}, 2
    v_add_u32 v7, s40, v7
    v_lshlrev_b32 v7, 7, v7
    v_lshl_add_u32 v7, v3, 5, v7
    s_mov_b32 exec_lo, 0x000f000f
    s_mov_b32 exec_hi, 0x000f000f
    ds_write_b128 v7, v[56:59] offset:{lds}
    ds_write_b128 v7, v[60:63] offset:{lds+16}
    s_mov_b64 exec, -1''')
    A.wait_all(vm=False)
    A('s_barrier')
    A(f's_cmp_lg_u32 s{sW}, 0')
    ctx = A.begin_skip('s_cbranch_scc1 {}')
    A(f'''v_lshrrev_b32 v7, 5, v{vLANE}
    v_and_b32 v8, 31, v{vLANE}
    v_lshlrev_b32 v7, 10, v7
    v_lshl_add_u32 v7, v8, 2, v7''')
    for k in range(8):
        A(f'ds_read_b32 v{56+k}, v7 offset:{lds+128*k}')
    A('''v_add_f32 v56, v56, v57
    v_add_f32 v58, v58, v59
    v_add_f32 v60, v60, v61
    v_add_f32 v62, v62, v63
    v_add_f32 v56, v56, v58
    v_add_f32 v60, v60, v62
    v_add_f32 v56, v56, v60
    v_mov_b32 v57, v56
    v_permlane32_swap_b32 v56, v57
    v_add_f32 v56, v56, v57''')
    A(f'''v_cvt_pk_bf16_f32 v56, v56, v56
    v_and_b32 v56, s{sMASKHI}, v56
    s_mul_i32 s40, s{sM}, 57
    s_lshr_b32 s40, s40, 10
    s_cmp_eq_u32 s40, 1
    s_cselect_b32 s41, 1.0, 0
    s_cmp_eq_u32 s40, 4
    s_cselect_b32 s41, 1.0, s41
    v_add_f32 v56, s41, v56
    v_cvt_pk_bf16_f32 v56, v56, v56
    v_and_b32 v56, s{sMASKHI}, v56
    s_lshl_b32 s40, s{sM}, 7
    v_lshlrev_b32 v8, 2, v8
    s_mov_b32 exec_hi, 0
    buffer_store_dword v56, v8, s[16:19], s40 offen offset:{WS_MOD}
    s_mov_b64 exec, -1''')
    A.end_skip(ctx)


def ph_out(A, npart):
    raise NotImplementedError


def ph_final(A, npart):
    A.comment('==== phase final ====')
    srd(A, 8, sWS, WS_SIZE)
    srd(A, 12, sOUT, S * D * 2)
    A(f'''s_lshr_b32 s40, s{sJ}, 2
    s_and_b32 s41, s{sJ}, 3
    v_lshrrev_b32 v2, 3, v{vLANE}
    v_and_b32 v3, 7, v{vLANE}
    v_lshlrev_b32 v4, 9, v2
    v_lshl_add_u32 v4, v3, 4, v4
    v_lshlrev_b32 v5, 5, v2
    s_movk_i32 s42, 1152
    v_mul_lo_u32 v6, v3, s42
    v_lshl_add_u32 v6, v2, 4, v6
    s_lshl_b32 s43, s{sG}, 2
    s_add_u32 s43, s43, s40
    s_mul_i32 s44, s43, 36864
    s_lshl_b32 s45, s41, 7
    s_add_u32 s44, s44, s45
    s_add_u32 s44, s44, {WS_X1}
    s_mul_i32 s46, s{sG}, {npart*4*36864}
    s_mul_i32 s47, s40, 36864
    s_add_u32 s46, s46, s47
    s_add_u32 s46, s46, s45
    s_add_u32 s46, s46, {WS_PART}
    s_lshl_b32 s47, s43, 5
    s_lshl_b32 s48, s41, 3
    s_add_u32 s47, s47, s48
    s_mul_i32 s47, s47, 1152''')

    def slot(sN, base):
        P = base
        X = P + 4 * npart
        G = X + 4
        A(f's_lshl_b32 s50, s{sN}, 12')
        A(f's_add_u32 s51, s46, s50')
        for p in range(npart):
            A(f'buffer_load_dwordx4 v[{P+4*p}:{P+4*p+3}], v4, s[8:11], s51 offen sc1')
            if p + 1 < npart:
                A(f's_add_u32 s51, s51, {4*36864}')
        A(f's_add_u32 s51, s44, s50')
        A(f'buffer_load_dwordx4 v[{X}:{X+3}], v4, s[8:11], s51 offen sc1')
        A(f's_lshl_b32 s51, s{sN}, 8')
        A(f'buffer_load_dwordx4 v[{G}:{G+3}], v5, s[8:11], s51 offen offset:{WS_MOD+5*576*4} sc1') if False else None
        A(f's_add_u32 s51, s51, {WS_MOD+5*576*4}')
        A(f'buffer_load_dwordx4 v[{G}:{G+3}], v5, s[8:11], s51 offen sc1')
        A(f'buffer_load_dwordx4 v[{G+4}:{G+7}], v5, s[8:11], s51 offen offset:16 sc1')
        return P, X, G

    def finish(sN, P, X, G, acc, tmp):
        for p in range(npart):
            dst = acc if p == 0 else tmp
            for d in range(4):
                unpack(A, dst + 2 * d, dst + 2 * d + 1, P + 4 * p + d)
            if p:
                for d in range(4):
                    A(f'v_pk_add_f32 v[{acc+2*d}:{acc+2*d+1}], v[{acc+2*d}:{acc+2*d+1}], v[{tmp+2*d}:{tmp+2*d+1}]')
        for d in range(4):
            unpack(A, tmp + 2 * d, tmp + 2 * d + 1, X + d)
        for d in range(4):
            A(f'v_pk_fma_f32 v[{acc+2*d}:{acc+2*d+1}], v[{acc+2*d}:{acc+2*d+1}], v[{G+2*d}:{G+2*d+1}], v[{tmp+2*d}:{tmp+2*d+1}]')
        for d in range(4):
            A(f'v_cvt_pk_bf16_f32 v{X+d}, v{acc+2*d}, v{acc+2*d+1}')
        A(f's_lshl_b32 s50, s{sN}, 7')
        A(f's_add_u32 s50, s50, s47')
        A(f'buffer_store_dwordx4 v[{X}:{X+3}], v6, s[12:15], s50 offen')

    sz = 4 * npart + 12
    acc, tmp = 8, 16
    b0, b1, b2 = 24, 24 + sz, 24 + 2 * sz
    A(f's_add_u32 s52, s{sW}, 4\ns_mov_b32 s53, 8')
    r0 = slot(sW, b0)
    r1 = slot(52, b1)
    A(f's_cmp_lg_u32 s{sW}, 0')
    ctx = A.begin_skip('s_cbranch_scc1 {}')
    r2 = slot(53, b2)
    finish(sW, *r0, acc, tmp)
    finish(52, *r1, acc, tmp)
    finish(53, *r2, acc, tmp)
    A('s_endpgm')
    A.end_skip(ctx)
    finish(sW, *r0, acc, tmp)
    finish(52, *r1, acc, tmp)
```

```python
import sys
sys.path.insert(0, 'gen')
from common import *
from ph_small import ph_mod, ph_final
import ph_a, ph_b, ph_c

def kernel(name, fn, nwg, lds, vgpr=512, accum=256, spread=4):
    A = Asm()
    end = f'L_end_{name}'
    A.uid = {'k0':0,'ka':1000,'kb':2000,'kc':3000,'kd':4000}.get(name[:2], 5000)
    prologue(A, nwg, end, spread)
    fn(A)
    A.wait_all()
    A(end + ':')
    A('s_endpgm')
    n = {}
    for i in A.out: n[i.kind] = n.get(i.kind, 0) + 1
    print(name, n, 'nops', A.nops_inserted, 'waits', A.waits_inserted, file=sys.stderr)
    return dict(name=name, grid=nwg, block=256, lds=lds, body=A.text(), vgpr=vgpr, accum=accum)

def multi(spread=4):
    ks = [kernel('k0_kernel', lambda A: ph_mod(A, 2, 0), 108, 2048, 128, 128, spread),
          kernel('ka_kernel', ph_a.ph_a, 256, ph_a.A_LDS, spread=spread),
          kernel('kb_kernel', ph_b.ph_b, 256, ph_b.B_LDS, spread=spread),
          kernel('kc_kernel', ph_c.ph_c, 256, ph_c.C_LDS, spread=spread),
          kernel('kd_kernel', lambda A: ph_final(A, 16), 256, 0, 256, 256, spread)]
    return ks

if __name__ == '__main__':
    out = sys.argv[1] if len(sys.argv) > 1 else 'v1.s'
    open(out, 'w').write(build(multi()))
```

```python
import re

TRANS = ('v_exp_f32', 'v_log_f32', 'v_rcp_f32', 'v_rsq_f32', 'v_sqrt_f32', 'v_sin_f32', 'v_cos_f32')
REG_RE = re.compile(r'^(-|\|)?(abs\()?([vas])(\d+|\[(\d+):(\d+)\])\)?\|?$')


def regs_of(tok):
    tok = tok.strip()
    if tok in ('vcc',):
        return [('s', 'vcc_lo'), ('s', 'vcc_hi')]
    if tok in ('vcc_lo', 'vcc_hi'):
        return [('s', tok)]
    if tok == 'exec':
        return [('s', 'exec')]
    if tok in ('exec_lo', 'exec_hi'):
        return [('s', 'exec')]
    if tok == 'm0':
        return [('s', 'm0')]
    m = REG_RE.match(tok)
    if not m:
        return []
    k = m.group(3)
    if m.group(5) is not None:
        return [(k, i) for i in range(int(m.group(5)), int(m.group(6)) + 1)]
    return [(k, int(m.group(4)))]


def split_ops(rest):
    out, cur, d = [], '', 0
    for ch in rest:
        if ch == '[' or ch == '(':
            d += 1
        elif ch == ']' or ch == ')':
            d -= 1
        if ch == ',' and d == 0:
            out.append(cur.strip()); cur = ''
        else:
            cur += ch
    if cur.strip():
        out.append(cur.strip())
    mods = []
    if out:
        parts = out[-1].split()
        out[-1] = parts[0]
        mods = parts[1:]
    return out, mods


class Ins:
    def __init__(self, text):
        self.text = text
        self.defs, self.uses = [], []
        self.kind = 'other'
        self.srcc = []
        self.passes = 0
        self.states = 1
        t = text.strip()
        if t.endswith(':'):
            self.kind = 'softlabel' if t.startswith('L_back') else 'label'; self.op = t; self.states = 0
            return
        if t.startswith('.') or t.startswith(';'):
            self.kind = 'directive'; self.op = t; self.states = 0
            return
        sp = t.split(None, 1)
        op = sp[0]
        self.op = op
        ops, mods = split_ops(sp[1]) if len(sp) > 1 else ([], [])
        self.ops, self.mods = ops, mods
        R = [regs_of(o) for o in ops]
        flat = lambda L: [r for x in L for r in x]
        if op.startswith('v_mfma'):
            self.kind = 'mfma'
            self.defs = R[0]; self.uses = flat(R[1:]); self.srcc = R[3]
            self.srca = R[1] + R[2]
            self.passes = 8 if '32x32' in op else 4
        elif op.startswith('v_'):
            self.kind = 'valu'
            base = op.replace('_e32', '').replace('_e64', '').replace('_dpp', '').replace('_sdwa', '')
            self.base = base
            self.dpp = any(m.startswith(('row_', 'quad_perm', 'wave_')) for m in mods) or op.endswith('_dpp')
            if base.startswith('v_cmpx'):
                raise ValueError('no v_cmpx please')
            if base.startswith('v_permlane') and 'swap' in base:
                self.defs = flat(R[:2]); self.uses = flat(R[:2])
            elif base in ('v_add_co_u32', 'v_sub_co_u32', 'v_subrev_co_u32'):
                self.defs = R[0] + R[1]; self.uses = flat(R[2:])
            elif base in ('v_addc_co_u32', 'v_subb_co_u32'):
                self.defs = R[0] + R[1]; self.uses = flat(R[2:])
            else:
                self.defs = R[0]; self.uses = flat(R[1:])
                if base.startswith(('v_fmac', 'v_dot2c', 'v_pk_fmac', 'v_writelane')) or self.dpp:
                    self.uses = self.uses + R[0]
                if base == 'v_cndmask_b32' and len(ops) == 3:
                    self.uses += regs_of('vcc')
            self.trans = base in TRANS
            self.dl = base.startswith('v_dot')
        elif op.startswith('ds_'):
            if op.startswith('ds_read') or op.startswith(('ds_bpermute', 'ds_permute', 'ds_swizzle')):
                self.kind = 'ds'; self.defs = R[0]; self.uses = flat(R[1:])
            else:
                self.kind = 'ds'; self.uses = flat(R)
        elif op.startswith('buffer_') and op not in ('buffer_wbl2', 'buffer_inv'):
            self.kind = 'vmem'
            if 'lds' in mods:
                self.uses = flat(R) + [('s', 'm0')]; self.dma = True
            elif op.startswith('buffer_load'):
                self.defs = R[0]; self.uses = flat(R[1:])
            elif op.startswith('buffer_store'):
                self.uses = flat(R); self.sdata = R[0]
                self.wide = op.endswith(('x3', 'x4'))
            else:
                self.uses = flat(R)
                if 'sc0' in mods:
                    self.defs = R[0]
        elif op in ('buffer_wbl2', 'buffer_inv'):
            self.kind = 'vmem'
        elif op.startswith('global_'):
            self.kind = 'vmem'
            if op.startswith('global_load'):
                self.defs = R[0]; self.uses = flat(R[1:])
            elif op.startswith('global_store'):
                self.uses = flat(R); self.sdata = R[1]
                self.wide = op.endswith(('x3', 'x4'))
            else:
                raise ValueError(op)
        elif op.startswith('s_load') or op in ('s_memtime', 's_memrealtime'):
            self.kind = 'smem'; self.defs = R[0]; self.uses = flat(R[1:])
        elif op == 's_waitcnt':
            self.kind = 'waitcnt'
            self.vm = self.lgkm = None
            m = re.search(r'vmcnt\((\d+)\)', t)
            if m: self.vm = int(m.group(1))
            m = re.search(r'lgkmcnt\((\d+)\)', t)
            if m: self.lgkm = int(m.group(1))
        elif op == 's_nop':
            self.kind = 'nop'; self.states = int(ops[0]) + 1
        elif op == 's_barrier':
            self.kind = 'barrier'
        elif op.startswith('s_cbranch') or op == 's_branch' or op == 's_endpgm':
            self.kind = 'branch'
        elif op.startswith('s_'):
            self.kind = 'salu'
            if op.startswith(('s_cmp', 's_bitcmp', 's_setprio', 's_sleep', 's_sethalt')):
                self.uses = flat(R)
            elif 'saveexec' in op:
                self.defs = R[0] + [('s', 'exec')]; self.uses = flat(R[1:]) + [('s', 'exec')]
            else:
                self.defs = R[0]; self.uses = flat(R[1:])
                if op.startswith(('s_addk', 's_mulk', 's_cmov')):
                    self.uses += R[0]
        else:
            raise ValueError('unknown instruction: ' + text)


def need_states(p, c):
    n = 0
    pd = set(p.defs)
    if p.kind == 'valu':
        vd = {r for r in pd if r[0] in 'va'}
        sd = {r for r in pd if r[0] == 's'}
        if c.kind == 'mfma' and vd & set(c.uses):
            n = max(n, 2)
        if c.kind == 'valu':
            cu = set(c.uses)
            if p.trans and not c.trans and vd & cu:
                n = max(n, 1)
            if c.base.startswith('v_permlane') and vd & cu:
                n = max(n, 2)
            if c.dpp and vd & cu:
                n = max(n, 2)
            if c.base in ('v_readlane_b32', 'v_readfirstlane_b32') and vd & cu:
                n = max(n, 1)
            if sd & cu:
                n = max(n, 4 if c.base in ('v_readlane_b32', 'v_writelane_b32') else 2)
            if p.dl and (vd & cu or vd & set(c.defs)):
                same_c = c.dl and c.base == p.base and not (vd & set(regs_of(c.ops[1]) + regs_of(c.ops[2])))
                if not same_c:
                    n = max(n, 3)
        if c.kind == 'vmem' and sd & set(c.uses):
            n = max(n, 5)
        if c.kind in ('salu', 'smem') and sd & set(c.uses):
            n = max(n, 1)
        if p.dl and c.kind in ('vmem', 'ds', 'mfma') and vd & set(c.uses):
            n = max(n, 3)
    elif p.kind == 'mfma':
        big = p.passes == 8
        if c.kind == 'mfma':
            if pd & set(c.srca):
                n = max(n, 12 if big else 8)
            if pd & set(c.srcc):
                if not (c.srcc == p.defs and c.passes == p.passes):
                    n = max(n, 10 if big else 6)
            elif pd & set(c.defs):
                n = max(n, 10 if big else 6)
        elif c.kind in ('valu', 'vmem', 'ds'):
            if pd & (set(c.uses) | set(c.defs)):
                n = max(n, 12 if big else 8)
            if c.kind == 'valu' and set(p.srcc) & set(c.defs):
                n = max(n, 7 if big else 3)
            if c.kind != 'valu' and set(p.srcc) & set(c.defs):
                n = max(n, 7 if big else 3)
    elif p.kind == 'salu':
        if ('s', 'm0') in pd and c.kind == 'vmem' and ('s', 'm0') in c.uses:
            n = max(n, 1)
    elif p.kind == 'vmem' and getattr(p, 'wide', False):
        if set(p.sdata) & set(c.defs):
            n = max(n, 2 if c.kind == 'valu' else 1)
    return n


class Asm:
    LOOKBACK = 16

    def __init__(self):
        self.out = []
        self.vmq = []
        self.lgq = []
        self.vm_issued = 0
        self.lg_issued = 0
        self.nops_inserted = 0
        self.waits_inserted = 0
        self.uid = 0
        self.tail = []

    def label(self, base):
        self.uid += 1
        return f'{base}_{self.uid}'

    def _emit(self, ins):
        self.out.append(ins)

    def _hazard(self, c):
        need = 0
        dist = 0
        for p in reversed(self.out):
            if p.kind in ('label',):
                break
            if p.states == 0:
                continue
            n = need_states(p, c)
            if n > dist:
                need = max(need, n - dist)
            dist += p.states
            if dist >= self.LOOKBACK:
                break
        while need > 0:
            k = min(need, 16)
            self._emit(Ins(f's_nop {k-1}'))
            self.nops_inserted += k
            need -= k

    def _apply_wait(self, vm, lgkm):
        if vm is not None:
            self.vmq = self.vmq[len(self.vmq) - vm:] if vm < len(self.vmq) and vm > 0 else ([] if vm == 0 else self.vmq)
        if lgkm is not None:
            if lgkm == 0:
                self.lgq = []
            elif not any(e['smem'] for e in self.lgq) and lgkm < len(self.lgq):
                self.lgq = self.lgq[len(self.lgq) - lgkm:]

    def _needed(self, regs):
        regs = set(regs)
        vm = lg = None
        for i, e in enumerate(self.vmq):
            if e['defs'] & regs:
                vm = len(self.vmq) - 1 - i
        for i, e in enumerate(self.lgq):
            if e['defs'] & regs:
                lg = len(self.lgq) - 1 - i
        if lg is not None and any(e['smem'] for e in self.lgq):
            lg = 0
        return vm, lg

    def _wait(self, vm, lg):
        if vm is None and lg is None:
            return
        if vm is not None: vm = min(vm, 63)
        if lg is not None: lg = min(lg, 15)
        s = 's_waitcnt'
        if vm is not None: s += f' vmcnt({vm})'
        if lg is not None: s += f' lgkmcnt({lg})'
        self._emit(Ins(s))
        self.waits_inserted += 1
        self._apply_wait(vm, lg)

    def wait_regs(self, regs):
        self._wait(*self._needed(regs))

    def mark(self):
        return self.vm_issued

    def wait_vm_mark(self, mark):
        n = self.vm_issued - mark
        if len(self.vmq) > n:
            self._wait(n, None)

    def wait_all(self, vm=True, lgkm=True):
        v = 0 if (vm and self.vmq) else None
        l = 0 if (lgkm and self.lgq) else None
        self._wait(v, l)

    def one(self, text):
        ins = Ins(text)
        if ins.kind in ('label', 'softlabel', 'directive'):
            self._emit(ins); return
        if ins.kind == 'waitcnt':
            self._emit(ins); self._apply_wait(ins.vm, ins.lgkm); return
        touched = set(ins.defs) | set(ins.uses)
        self._wait(*self._needed(touched))
        self._hazard(ins)
        self._emit(ins)
        if ins.kind == 'vmem':
            self.vmq.append({'defs': set(ins.defs)})
            self.vm_issued += 1
            assert len(self.vmq) <= 63, 'vmcnt overflow'
        elif ins.kind == 'ds':
            self.lgq.append({'defs': set(ins.defs), 'smem': False})
            self.lg_issued += 1
        elif ins.kind == 'smem':
            self.lgq.append({'defs': set(ins.defs), 'smem': True})
            self.lg_issued += 1

    def __call__(self, text):
        for line in text.split('\n'):
            line = line.split(';')[0].strip() if not line.strip().startswith(';') else line.strip()
            if line:
                self.one(line)

    def comment(self, s):
        self._emit(Ins('; ' + s))

    def fence(self):
        need = 0
        dist = 0
        for p in reversed(self.out):
            if p.kind == 'label':
                break
            if p.states == 0:
                continue
            n = {'mfma': 12 if p.passes == 8 else 8, 'valu': 5, 'salu': 1, 'vmem': 2}.get(p.kind, 0)
            need = max(need, n - dist)
            dist += p.states
            if dist >= self.LOOKBACK:
                break
        if need > 0:
            self._emit(Ins(f's_nop {need-1}'))

    def begin_skip(self, branch_text_fmt):
        lab = self.label('L_skip')
        self.fence()
        self.one(branch_text_fmt.format(lab))
        return (lab, list(self.vmq), list(self.lgq), self.vm_issued, self.lg_issued)

    def end_skip(self, ctx):
        lab, vmq, lgq, issued, lgissued = ctx
        new_vm = self.vm_issued != issued
        new_lg = self.lg_issued != lgissued
        self._wait(0 if (new_vm and self.vmq) else None, 0 if (new_lg and self.lgq) else None)
        self.fence()
        self.one(lab + ':')
        self.vmq, self.lgq, self.vm_issued, self.lg_issued = vmq, lgq, issued, lgissued

    def text(self):
        res = []
        for i in self.out:
            res.append(i.text if i.kind in ('label', 'softlabel') else '    ' + i.text)
        return '\n'.join(res)


def vr(b, n=1, k='v'):
    return f'{k}{b}' if n == 1 else f'{k}[{b}:{b+n-1}]'


def ar(b, n=1):
    return vr(b, n, 'a')


def sr(b, n=1):
    return vr(b, n, 's')


def rl(k, b, n):
    return [(k, i) for i in range(b, b + n)]
```

```python
from asmgen import *

S, D, F = 2048, 576, 4608
WS_MOD = 0
WS_FLAG = 0x4000
WS_PF = WS_FLAG + 4 * 4096
WS_ST = WS_PF + 16384
WS_ZEND = WS_ST + 128 * 2048
WS_XH = 0x50000
WS_WQ = WS_XH + 64 * 36864
WQ_J = 36 * 3840
WS_WO = WS_WQ + 16 * WQ_J + 1024
WO_C = 100 * 1024
WS_O = WS_WO + 8 * WO_C
O_G = 8 * 80 * 256
WS_X1 = WS_O + 16 * O_G
T16 = 72 * 256
WS_H2 = WS_X1 + 128 * T16
WS_PART = WS_H2 + 128 * T16
WS_HX = WS_PART + 256 * 8 * T16
WS_END = WS_HX + 256 * 4 * 18432
assert WS_ZEND <= WS_XH
WS_SIZE = 268435456

sX, sWQKV, sWO, sWG, sWU, sWD, sC = 64, 66, 68, 72, 74, 76, 78
sWMOD, sOUT, sDBG, sWS = 80, 82, 84, 86
sG, sJ, sW = 32, 33, 34
sMASKHI = 35
sHALF = 36
vTID, vLANE = 0, 1

LOG2E = 1.4426950408889634


def fbits(x):
    import struct
    return '0x%08x' % struct.unpack('<I', struct.pack('<f', x))[0]


def prologue(A, nwg, endlabel, xcd_spread=4):
    A(f's_cmp_ge_u32 s2, {nwg}')
    A(f's_cbranch_scc1 {endlabel}')
    A('s_load_dwordx16 s[64:79], s[0:1], 0')
    A('s_load_dwordx8 s[80:87], s[0:1], 64')
    A(f'v_lshrrev_b32 v2, 6, v{vTID}')
    A(f'v_and_b32 v{vLANE}, 63, v{vTID}')
    A(f'v_readfirstlane_b32 s{sW}, v2')
    mapping(A, xcd_spread)
    A(f's_mov_b32 s{sMASKHI}, 0xffff0000')
    A(f's_mov_b32 s{sHALF}, 0')
    A(f's_mov_b32 s{sHALF+1}, -1')


def mapping(A, n):
    if n == 8:
        A(f's_lshr_b32 s{sG}, s2, 4\ns_and_b32 s{sJ}, s2, 15')
    elif n == 4:
        A(f'''s_and_b32 s40, s2, 7
        s_lshr_b32 s{sG}, s40, 2
        s_lshr_b32 s41, s2, 5
        s_lshl_b32 s41, s41, 1
        s_add_u32 s{sG}, s{sG}, s41
        s_and_b32 s{sJ}, s40, 3
        s_lshl_b32 s{sJ}, s{sJ}, 2
        s_lshr_b32 s41, s2, 3
        s_and_b32 s41, s41, 3
        s_add_u32 s{sJ}, s{sJ}, s41''')
    elif n == 2:
        A(f'''s_and_b32 s40, s2, 7
        s_lshr_b32 s{sG}, s40, 1
        s_lshr_b32 s41, s2, 6
        s_lshl_b32 s41, s41, 2
        s_add_u32 s{sG}, s{sG}, s41
        s_and_b32 s{sJ}, s40, 1
        s_lshl_b32 s{sJ}, s{sJ}, 3
        s_lshr_b32 s41, s2, 3
        s_and_b32 s41, s41, 7
        s_add_u32 s{sJ}, s{sJ}, s41''')
    elif n == 1:
        A(f'''s_and_b32 s{sG}, s2, 7
        s_lshl_b32 s{sG}, s{sG}, 1
        s_lshr_b32 s41, s2, 3
        s_and_b32 s41, s41, 1
        s_add_u32 s{sG}, s{sG}, s41
        s_lshr_b32 s{sJ}, s2, 4''')
    else:
        raise ValueError


def srd(A, q, ptr, size, off=0, bias=0):
    d = off - bias
    if d == 0:
        A(f's_mov_b32 s{q}, s{ptr}\ns_mov_b32 s{q+1}, s{ptr+1}')
    elif d > 0:
        A(f's_add_u32 s{q}, s{ptr}, {d}\ns_addc_u32 s{q+1}, s{ptr+1}, 0')
    else:
        A(f's_sub_u32 s{q}, s{ptr}, {-d}\ns_subb_u32 s{q+1}, s{ptr+1}, 0')
    A(f's_mov_b32 s{q+2}, {size + bias}\ns_mov_b32 s{q+3}, 0x20000')


def unpack(A, lo, hi, src):
    A(f'v_lshlrev_b32 v{lo}, 16, v{src}')
    A(f'v_and_b32 v{hi}, s{sMASKHI}, v{src}')


HDR = open('adaLN_cond__sliding_local_dilated__glu_gated_glu__prompt.s.ref').read().split('\n')[:13]


def kd(name, vgpr, accum, sgpr=102):
    return f""".p2align 6
.amdhsa_kernel {name}
  .amdhsa_next_free_vgpr {vgpr}
  .amdhsa_next_free_sgpr {sgpr}
  .amdhsa_accum_offset {accum}
  .amdhsa_group_segment_fixed_size 0
  .amdhsa_kernarg_size 96
  .amdhsa_user_sgpr_count 2
  .amdhsa_user_sgpr_kernarg_segment_ptr 1
  .amdhsa_system_sgpr_workgroup_id_x 1
  .amdhsa_float_denorm_mode_32 3
.end_amdhsa_kernel"""


def build(kernels):
    out = list(HDR)
    for k in kernels:
        out.append(f"; @launch kernel={k['name']} grid=({k['grid']},1,1) block=({k['block']},1,1) lds={k['lds']}")
    out.append('.amdgcn_target "amdgcn-amd-amdhsa--gfx950"')
    out.append('.text')
    seen = set()
    for k in kernels:
        if k['name'] in seen:
            continue
        seen.add(k['name'])
        out.append(f".globl {k['name']}\n.p2align 8\n.type {k['name']},@function\n{k['name']}:")
        out.append(k['body'])
        out.append('')
    out.append('.section .rodata,"a"')
    seen = set()
    for k in kernels:
        if k['name'] in seen:
            continue
        seen.add(k['name'])
        out.append(kd(k['name'], k.get('vgpr', 512), k.get('accum', 256), k.get('sgpr', 102)))
    return '\n'.join(out) + '\n'


WS_STAMP = 0x8000000
class Stamps:
    on = False
    vreg = 14
    n = 0
    names = []
    kidx = 0


def stamp_begin(A, kidx, vreg):
    Stamps.n = 0; Stamps.kidx = kidx; Stamps.vreg = vreg
    Stamps.names.append([])
    if not Stamps.on:
        return
    A(f'v_mov_b32 v{vreg}, 0')
    A('s_memrealtime s[90:91]')
    A(f'v_writelane_b32 v{vreg}, s90, 62')
    stamp(A, 'start')


def stamp(A, name):
    if not Stamps.on:
        return
    A('s_memtime s[88:89]')
    A(f'v_writelane_b32 v{Stamps.vreg}, s88, {Stamps.n}')
    Stamps.names[-1].append(name)
    Stamps.n += 1


def stamp_end(A, again=False):
    if not Stamps.on:
        return
    A.wait_all()
    stamp(A, 'end')
    if again:
        Stamps.names[-1].pop(); Stamps.n -= 1
    A('s_memrealtime s[90:91]')
    A(f'v_writelane_b32 v{Stamps.vreg}, s90, 63')
    srd(A, 92, sWS, WS_SIZE)
    A(f'''s_lshl_b32 s88, s2, 2
    s_add_u32 s88, s88, s{sW}
    s_lshl_b32 s88, s88, 8
    s_add_u32 s88, s88, {WS_STAMP + Stamps.kidx * 0x80000}
    v_lshlrev_b32 v2, 2, v{vLANE}
    buffer_store_dword v{Stamps.vreg}, v2, s[92:95], s88 offen''')


SPIN_MAX = 400000


def flag_base(A, sD, stage, sCls):
    A(f'''s_lshl_b32 s{sD}, s{sG}, 2
    s_add_u32 s{sD}, s{sD}, s{sCls}
    s_lshl_b32 s{sD}, s{sD}, 6
    s_add_u32 s{sD}, s{sD}, {WS_FLAG + stage*4096}''')


def publish(A, srdq, sOff, v0):
    A('s_waitcnt vmcnt(0)')
    A(f'v_mov_b32 v{v0}, 1\nv_mov_b32 v{v0+1}, 0\ns_mov_b64 exec, 1')
    A(f'buffer_store_dword v{v0}, v{v0+1}, s[{srdq}:{srdq+3}], s{sOff} offen sc1')
    A('s_mov_b64 exec, -1')


def poll(A, srdq, sOff, v0, sCnt):
    lab = A.label('L_poll'); done = A.label('L_polled')
    A(f'v_and_b32 v{v0}, 15, v{vLANE}\nv_lshlrev_b32 v{v0}, 2, v{v0}\ns_mov_b32 s{sCnt}, 0')
    A.fence()
    A(lab + ':')
    A(f'buffer_load_dword v{v0+1}, v{v0}, s[{srdq}:{srdq+3}], s{sOff} offen sc1')
    A(f's_add_u32 s{sCnt}, s{sCnt}, 1\ns_cmp_gt_u32 s{sCnt}, {SPIN_MAX}')
    A(f's_cbranch_scc1 {done}')
    A(f'v_cmp_eq_u32 vcc, 0, v{v0+1}')
    A(f's_cbranch_vccnz {lab}')
    A(done + ':')
    A('s_waitcnt vmcnt(0)')


def code_prefetch(A, label, nbytes_expr, vOff, vDst, sq, ninstr, sBase=None):
    here = A.label('L_pc')
    A(f's_getpc_b64 s[{sq}:{sq+1}]')
    A(here + ':')
    A(f's_add_u32 s{sq}, s{sq}, {label}-{here}')
    A(f's_addc_u32 s{sq+1}, s{sq+1}, (({label}-{here})>>63)&0xffffffff' if False else f's_addc_u32 s{sq+1}, s{sq+1}, 0')
    A(f'v_lshlrev_b32 v{vOff}, 7, v{vLANE}')
    if sBase is not None:
        A(f'v_add_u32 v{vOff}, s{sBase}, v{vOff}')
    for i in range(ninstr):
        if i:
            A(f'v_add_u32 v{vOff}, 8192, v{vOff}')
        A(f'v_min_u32 v{vOff+1}, {nbytes_expr}, v{vOff}')
        A(f'global_load_dword v{vDst+i}, v{vOff+1}, s[{sq}:{sq+1}]')
```

```python
from common import *

A_WIMG = 0
A_HH = 138240
A_VT = A_HH + 18432
A_LDS = A_VT + 4608
A_KREC = 0
A_VREC = 13824

QLOC = [(0, 0), (0, 1), (0, 2), (0, 3), (1, 0)]
KLOC = [(1, 2), (1, 3), (2, 0), (1, 1), (2, 2)]
VLOC = [(3, 0), (2, 1), (3, 2), (2, 3), (3, 1)]

XB = 16
TAB = 160
TB = 196
HB = 204
vA = 224
vA3 = 227
vAH = 230
vHB = 233
vL16 = 234
HT = 236
aACC = 0
aHACC = 64
aFR = 80
aHBF = 120
NWI = 34


def mod_table(A, vt, col_b, col_s, srdq=16, V=192):
    A(f'''v_lshlrev_b32 v8, 2, v{vTID}
    v_lshlrev_b32 v9, 2, v{vLANE}
    s_mov_b32 s96, {WS_MOD + 4*col_s}
    s_mov_b32 s97, {WS_MOD + 4*col_b}
    buffer_load_dword v{V}, v8, s[{srdq}:{srdq+3}], s96 offen sc1
    buffer_load_dword v{V+1}, v8, s[{srdq}:{srdq+3}], s96 offen offset:1024 sc1
    buffer_load_dword v{V+2}, v9, s[{srdq}:{srdq+3}], s96 offen offset:2048 sc1
    buffer_load_dword v{V+3}, v8, s[{srdq}:{srdq+3}], s97 offen sc1
    buffer_load_dword v{V+4}, v8, s[{srdq}:{srdq+3}], s97 offen offset:1024 sc1
    buffer_load_dword v{V+5}, v9, s[{srdq}:{srdq+3}], s97 offen offset:2048 sc1
    v_lshrrev_b32 v8, 3, v{vTID}
    v_lshlrev_b32 v8, 6, v8
    v_and_b32 v9, 7, v{vTID}
    v_lshl_add_u32 v8, v9, 2, v8
    v_add_u32 v8, {vt}, v8
    v_lshrrev_b32 v7, 3, v{vLANE}
    v_lshlrev_b32 v7, 6, v7
    v_lshl_add_u32 v9, v9, 2, v7
    v_add_u32 v9, {vt}, v9''')

    def write():
        A(f'''ds_write_b32 v8, v{V}
        ds_write_b32 v8, v{V+1} offset:2048
        ds_write_b32 v9, v{V+2} offset:4096
        ds_write_b32 v8, v{V+3} offset:32
        ds_write_b32 v8, v{V+4} offset:2080
        ds_write_b32 v9, v{V+5} offset:4128''')
    return write


def ph_a_main(A, early=None, late=None):
    A.comment('==== phase A ====')
    srd(A, 16, sWS, WS_SIZE)
    wr = mod_table(A, A_VT, 0, 576, 16, TB)
    A(f'''v_lshlrev_b32 v{vL16}, 4, v{vLANE}
    s_lshl_b32 s40, s{sG}, 2
    s_add_u32 s40, s40, s{sW}
    s_mul_i32 s40, s40, 36864
    s_add_u32 s40, s40, {WS_XH}
    s_mul_i32 s41, s{sG}, {4*36864}
    s_add_u32 s41, s41, {WS_XH - 36864 + 256}
    s_cmp_eq_u32 s{sG}, 0
    s_cselect_b32 s41, {WS_XH + 256}, s41
    s_lshl_b32 s42, s{sW}, 11
    s_add_u32 s41, s41, s42
    v_lshrrev_b32 v4, 4, v{vLANE}
    v_and_b32 v5, 15, v{vLANE}
    v_lshlrev_b32 v6, 9, v4
    v_lshl_add_u32 v6, v5, 4, v6
    s_mul_i32 s42, s{sJ}, {WQ_J}
    s_lshl_b32 s43, s{sW}, 10
    s_add_u32 s42, s42, s43
    s_add_u32 s42, s42, {WS_WQ}''')
    xq = list(range(36))
    wq = list(range(NWI))
    marks = {}

    def xload():
        s = xq.pop(0)
        if s % 4 == 0:
            A(f's_add_u32 s3, s40, {4096*(s//4)}')
        A(f'buffer_load_dwordx4 v[{XB+4*s}:{XB+4*s+3}], v{vL16}, s[16:19], s3 offen offset:{1024*(s%4)}')

    def issue_w():
        i = wq.pop(0)
        if i == NWI - 1:
            A(f's_min_u32 s5, s{sW}, 2\ns_lshl_b32 s5, s5, 10\ns_sub_u32 s4, s42, s43\ns_add_u32 s4, s4, s5')
            A(f's_add_u32 m0, s5, {4096*i}\ns_add_u32 s4, s4, {4096*i}')
        else:
            A(f's_add_u32 m0, s43, {4096*i}\ns_add_u32 s4, s42, {4096*i}')
        A(f'buffer_load_dwordx4 v{vL16}, s[16:19], s4 offen lds')
        marks[i] = A.mark()

    def halo_load(i):
        if i < 4:
            A(f's_add_u32 s6, s41, {8192*i}')
        else:
            A(f's_min_u32 s4, s{sW}, 1\ns_sub_u32 s4, s4, s{sW}\ns_lshl_b32 s4, s4, 11')
            A(f's_add_u32 s6, s41, s4\ns_add_u32 s6, s6, {8192*4}')
        A(f'buffer_load_dwordx4 v[{HB+4*i}:{HB+4*i+3}], v6, s[16:19], s6 offen')

    for i in range(5):
        halo_load(i)
    for k in range(2):
        xload()
    for k in range(3):
        issue_w()
    mk0 = A.mark()
    wr()
    for k in range(2):
        xload()
    for k in range(4):
        issue_w()
    if early:
        early()
    A(f'''v_lshrrev_b32 v7, 5, v{vLANE}
    v_and_b32 v10, 31, v{vLANE}
    v_min_u32 v11, 23, v10
    v_mul_u32_u24 v12, 24, v7
    v_add_u32 v11, v11, v12
    v_lshlrev_b32 v11, 4, v11
    v_add_u32 v11, 3072, v11
    v_add_u32 v12, s43, v{vL16}
    s_cmp_eq_u32 s{sW}, 3
    s_cselect_b64 vcc, -1, 0
    v_cndmask_b32 v12, v12, v11, vcc''')
    for wd in range(3):
        A(f'v_add_u32 v{vA+wd}, {61440*wd}, v{vL16}')
        A(f'v_add_u32 v{vA3+wd}, {61440*wd}, v11')
        A(f'v_add_u32 v{vAH+wd}, {61440*wd}, v12')
    A(f'''v_and_b32 v10, 15, v{vLANE}
    v_lshlrev_b32 v10, 4, v10
    v_lshl_add_u32 v10, v7, 8, v10
    v_add_u32 v{vHB}, {A_HH}, v10
    v_lshlrev_b32 v10, 2, v5
    v_lshl_add_u32 v8, v7, 6, v10
    v_add_u32 v8, {A_VT}, v8
    v_lshl_add_u32 v9, v4, 6, v10
    s_lshl_b32 s4, s{sW}, 8
    s_add_u32 s4, s4, {A_VT}
    v_add_u32 v9, s4, v9
    v_add_u32 v5, s43, v{vL16}
    v_add_u32 v5, {A_HH}, v5
    s_min_u32 s5, s{sW}, 1
    s_sub_u32 s5, s5, s{sW}
    s_lshl_b32 s6, s5, 8
    v_add_u32 v6, s6, v9
    s_lshl_b32 s6, s5, 10
    v_add_u32 v7, s6, v5''')
    A.wait_all(vm=False)
    A('s_barrier')
    stamp(A, 'table')
    for i in range(5):
        A(f'ds_read_b32 v{HT+i}, v{9 if i < 4 else 6} offset:{1024*i}')
    for s in range(36):
        A(f'ds_read_b32 v{TAB+s}, v8 offset:{128*s}')

    def norm_ops(r, tab):
        ops = []
        for d in range(4):
            ops.append(f'v_lshlrev_b32 v{TB+2*d}, 16, v{r+d}')
            ops.append(f'v_and_b32 v{TB+2*d+1}, s{sMASKHI}, v{r+d}')
        for e in range(8):
            ops.append(f'v_mul_f32_dpp v{TB+e}, v{tab}, v{TB+e} row_newbcast:{e} row_mask:0xf bank_mask:0xf')
        for e in range(8):
            ops.append(f'v_add_f32_dpp v{TB+e}, v{tab}, v{TB+e} row_newbcast:{8+e} row_mask:0xf bank_mask:0xf')
        for d in range(4):
            ops.append(f'v_cvt_pk_bf16_f32 v{r+d}, v{TB+2*d}, v{TB+2*d+1}')
        return ops
    for i in range(5):
        for x in norm_ops(HB + 4 * i, HT + i):
            A(x)
        A(f'ds_write_b128 v{5 if i < 4 else 7}, v[{HB+4*i}:{HB+4*i+3}] offset:{4096*i}')
        if i < 2:
            issue_w()
        else:
            xload()
    for x in norm_ops(XB, TAB):
        A(x)

    def aread(m):
        s, T = divmod(m, 5)
        f = aFR + 4 * (m % 10)
        wd, sl = divmod(s, 16)
        if T < 3:
            return f'ds_read_b128 a[{f}:{f+3}], v{vA+wd} offset:{3840*sl+1024*T}'
        return f'ds_read_b128 a[{f}:{f+3}], v{(vA3 if T == 3 else vAH)+wd} offset:{3840*sl}'

    def hread(s):
        f = aHBF + 4 * (s & 1)
        return f'ds_read_b128 a[{f}:{f+3}], v{vHB} offset:{512*s}'

    BS = (0, 3, 6, 10, 14, 18, 22, 26, 30, 33, 36)
    NEED = {BS[q]: (3840 * BS[q + 1] - 1) // 4096 for q in range(len(BS) - 1)}

    def boundary(s):
        A.wait_vm_mark(mk0 if s == 0 else marks[NEED[s]])
        if s == 0:
            A.wait_all(vm=False)
        A('s_barrier')
    boundary(0)
    stamp(A, 'first data')
    for m in range(5):
        A(aread(m))
    A(hread(0))
    for s in range(36):
        nops = norm_ops(XB + 4 * (s + 1), TAB + s + 1) if s + 1 < 36 else []
        for T in range(5):
            m = 5 * s + T
            f = aFR + 4 * (m % 10)
            if T < 4:
                acc = aACC + 16 * T
                b = f'v[{XB+4*s}:{XB+4*s+3}]'
            else:
                acc = aHACC
                b = f'a[{aHBF+4*(s&1)}:{aHBF+4*(s&1)+3}]'
            cin = '0' if s == 0 else f'a[{acc}:{acc+15}]'
            if T in (0, 2):
                regs = rl('a', f, 4) + rl('a', aFR + 4 * ((m + 1) % 10), 4)
                if T == 2:
                    regs += rl('a', aFR + 4 * ((m + 2) % 10), 4) + rl('a', aHBF + 4 * (s & 1), 4)
                A.wait_regs(regs)
            A(f'v_mfma_f32_32x32x16_bf16 a[{acc}:{acc+15}], a[{f}:{f+3}], {b}, {cin}')
            if m + 5 < 180:
                if T == 0 and s + 1 in NEED:
                    boundary(s + 1)
                A(aread(m + 5))
            if T == 0 and s + 1 < 36:
                A(hread(s + 1))
            for x in nops[(0, 5, 10, 16, 22)[T]:(5, 10, 16, 22, 28)[T]]:
                A(x)
            if T == 1 and xq:
                xload()
            if T == 3 and wq:
                issue_w()
            if late and T == 3 and s == 30:
                late()


def ph_a_attn(A, bg=()):
    bg = list(bg)

    def idle(n=1):
        for _ in range(n):
            if bg:
                A(bg.pop(0))

    stamp(A, 'gemm done')
    Q, KO, TM, KN, VN, OA, L = 16, 28, 40, 60, 144, 224, 244
    vK, vV, vO, vKh, vVh, vTok = 252, 253, 9, 10, 2, 3
    A(f'''v_lshrrev_b32 v4, 5, v{vLANE}
    v_and_b32 v5, 31, v{vLANE}
    v_mul_u32_u24 v6, 144, v4
    v_add_u32 v6, v6, v5
    v_mul_u32_u24 v{vKh}, 48, v6
    v_mul_u32_u24 v{vVh}, 80, v6
    v_add_u32 v{vVh}, {A_VREC}, v{vVh}
    s_mul_i32 s96, s{sW}, {32*48}
    s_add_u32 s96, s96, 96
    v_add_u32 v{vK}, s96, v{vKh}
    s_mul_i32 s96, s{sW}, {32*80}
    s_add_u32 s96, s96, 160
    v_add_u32 v{vV}, s96, v{vVh}
    s_lshl_b32 s96, s{sG}, 2
    s_add_u32 s96, s96, s{sW}
    s_lshl_b32 s96, s96, 5
    v_add_u32 v{vTok}, s96, v5''')
    for m in range(5):
        T, i = KLOC[m]
        for jj in range(4):
            A(f'v_accvgpr_read_b32 v{TM+4*m+jj}, a{aACC+16*T+4*i+jj}')
    for d in range(10):
        A(f'v_cvt_pk_bf16_f32 v{KO+d}, v{TM+2*d}, v{TM+2*d+1}')
    A(f'v_mov_b32 v{KO+10}, 0\nv_mov_b32 v{KO+11}, 0')
    A('s_barrier')
    for z in range(3):
        A(f'ds_write_b128 v{vK}, v[{KO+4*z}:{KO+4*z+3}] offset:{14*48+16*z}')
    for m in range(5):
        T, i = VLOC[m]
        r = aACC + 16 * T + 4 * i
        A(f'ds_write_b128 v{vV}, a[{r}:{r+3}] offset:{14*80+16*m}')
    idle(3)
    for w in (1, 2, 3):
        A(f's_cmp_lg_u32 s{sW}, {w}')
        ctx = A.begin_skip('s_cbranch_scc1 {}')
        A('s_mov_b32 exec_lo, 0xffff\ns_mov_b32 exec_hi, 0xffff')
        for m in range(5):
            T, i = KLOC[m]
            if T == w:
                for jj in range(4):
                    A(f'v_accvgpr_read_b32 v{TM+jj}, a{aHACC+4*i+jj}')
                A(f'v_cvt_pk_bf16_f32 v{TM+4}, v{TM}, v{TM+1}\nv_cvt_pk_bf16_f32 v{TM+5}, v{TM+2}, v{TM+3}')
                A(f'ds_write_b64 v{vKh}, v[{TM+4}:{TM+5}] offset:{8*m}')
                A('s_nop 1')
            T, i = VLOC[m]
            if T == w:
                A(f'ds_write_b128 v{vVh}, a[{aHACC+4*i}:{aHACC+4*i+3}] offset:{16*m}')
        A('s_mov_b64 exec, -1')
        A.end_skip(ctx)
    for m in range(5):
        T, i = QLOC[m]
        for jj in range(4):
            A(f'v_accvgpr_read_b32 v{TM+4*m+jj}, a{aACC+16*T+4*i+jj}')
    for e in (0, 1):
        A(f'v_cndmask_b32 v{TM+e}, v{TM+e}, 0, s[{sHALF}:{sHALF+1}]')
        A(f'v_cndmask_b32 v{TM+18+e}, 0, v{TM+18+e}, s[{sHALF}:{sHALF+1}]')
    for d in range(10):
        A(f'v_cvt_pk_bf16_f32 v{Q+d}, v{TM+2*d}, v{TM+2*d+1}')
    for m in range(5):
        T, i = VLOC[m]
        for jj in range(4):
            A(f'v_accvgpr_read_b32 v{OA+4*m+jj}, a{aACC+16*T+4*i+jj}')
    idle(3)
    A.wait_all(vm=False)
    A('s_barrier')
    for w in range(1, 8):
        for z in range(3):
            r = KN + 12 * (w - 1) + 4 * z
            A(f'ds_read_b128 v[{r}:{r+3}], v{vK} offset:{(14-2*w)*48+16*z}')

    def vread(w, base):
        for z in range(5):
            A(f'ds_read_b128 v[{base+4*z}:{base+4*z+3}], v{vV} offset:{(14-2*w)*80+16*z}')
    vb = {w: VN + 20 * (w - 1) for w in range(1, 5)}
    vb.update({w: KN + 20 * (w - 5) for w in range(5, 8)})
    for ws in ((0, 1, 2, 3), (4, 5, 6, 7)):
        for d in range(10):
            for w in ws:
                k = (KO if w == 0 else KN + 12 * (w - 1)) + d
                c = '0' if d == 0 else f'v{L+w}'
                A(f'v_dot2_f32_bf16 v{L+w}, v{Q+d}, v{k}, {c}')
            if d % 3 == 0:
                idle()
        if ws[0] == 0:
            for w in range(1, 5):
                vread(w, vb[w])
    for w in range(5, 8):
        vread(w, vb[w])
    A(f's_mov_b32 s96, {fbits(18 ** -0.5 * LOG2E)}')
    A(f's_mov_b32 s97, {fbits(-1e9)}')
    for w in range(8):
        A(f'v_mul_f32 v{L+w}, s96, v{L+w}')
    A(f'v_mov_b32 v4, s97')
    for w in range(1, 8):
        A(f'v_cmp_le_u32 vcc, {2*w}, v{vTok}')
        A(f'v_cndmask_b32 v{L+w}, v4, v{L+w}, vcc')
    A(f'''v_max3_f32 v4, v{L}, v{L+1}, v{L+2}
    v_max3_f32 v5, v{L+3}, v{L+4}, v{L+5}
    v_max3_f32 v4, v4, v{L+6}, v{L+7}
    v_max_f32 v4, v4, v5''')
    for w in range(8):
        A(f'v_sub_f32 v{L+w}, v{L+w}, v4')
    for w in range(8):
        A(f'v_exp_f32 v{L+w}, v{L+w}')
    A(f'''v_add_f32 v4, v{L}, v{L+1}
    v_add_f32 v5, v{L+2}, v{L+3}
    v_add_f32 v6, v{L+4}, v{L+5}
    v_add_f32 v7, v{L+6}, v{L+7}
    v_add_f32 v4, v4, v5
    v_add_f32 v6, v6, v7
    v_add_f32 v4, v4, v6
    v_rcp_f32 v4, v4''')
    for w in range(8):
        A(f'v_mul_f32 v{L+w}, v{L+w}, v4')
    idle(3)
    for w in range(8):
        idle()
        lp = L + (w & ~1)
        for d in range(10):
            o = OA + 2 * d
            if w == 0:
                A(f'v_pk_mul_f32 v[{o}:{o+1}], v[{o}:{o+1}], v[{lp}:{lp+1}] op_sel_hi:[1,0]')
            else:
                m = 'op_sel_hi:[1,0,1]' if w % 2 == 0 else 'op_sel:[0,1,0] op_sel_hi:[1,1,1]'
                v = vb[w] + 2 * d
                A(f'v_pk_fma_f32 v[{o}:{o+1}], v[{v}:{v+1}], v[{lp}:{lp+1}], v[{o}:{o+1}] {m}')
    for d in range(10):
        A(f'v_cvt_pk_bf16_f32 v{TM+d}, v{OA+2*d}, v{OA+2*d+1}')
    idle(100)
    OUT, E = 16, 24
    for d in range(9):
        A(f'v_cndmask_b32 v{OUT+d}, v{TM+d}, v{TM+d+1}, s[{sHALF}:{sHALF+1}]')
    A(f'''v_mov_b32 v{E+1}, v{E}
    v_mov_b32 v{E+2}, 0
    v_mov_b32 v{E+3}, 0
    v_permlane32_swap_b32 v{E}, v{E+1}''')
    A(f'''v_bfe_u32 v4, v{vLANE}, 4, 1
    v_mul_u32_u24 v4, 20480, v4
    v_and_b32 v5, 15, v{vLANE}
    v_lshl_add_u32 v4, v5, 4, v4
    v_lshrrev_b32 v5, 5, v{vLANE}
    v_lshl_add_u32 v{vO}, v5, 9, v4
    s_mul_i32 s96, s{sG}, {O_G}
    s_mul_i32 s97, s{sW}, 40960
    s_add_u32 s96, s96, s97
    s_mul_i32 s97, s{sJ}, 1280
    s_add_u32 s96, s96, s97
    s_add_u32 s96, s96, {WS_O}
    buffer_store_dwordx4 v[{OUT}:{OUT+3}], v{vO}, s[16:19], s96 offen sc1
    buffer_store_dwordx4 v[{OUT+4}:{OUT+7}], v{vO}, s[16:19], s96 offen offset:256 sc1
    s_mov_b32 exec_hi, 0
    buffer_store_dwordx4 v[{E}:{E+3}], v{vO}, s[16:19], s96 offen offset:1024 sc1
    s_mov_b32 exec_hi, -1''')


def ph_a(A):
    ph_a_main(A)
    ph_a_attn(A)
```

```python
from common import *

B_IMG = 61440
B_LDS = B_IMG + WO_C


def ph_b_dma(A, srdq=16):
    A.comment('==== phase B: wo image ====')
    A(f'''s_and_b32 s40, s{sJ}, 7
    s_mul_i32 s40, s40, {WO_C}
    s_lshl_b32 s41, s{sW}, 10
    s_add_u32 s40, s40, s41
    s_add_u32 s40, s40, {WS_WO}
    s_add_u32 s41, s41, {B_IMG}
    v_lshlrev_b32 v8, 4, v{vLANE}''')
    return [f's_add_u32 m0, s41, {4096*i}\ns_add_u32 s42, s40, {4096*i}\nbuffer_load_dwordx4 v8, s[{srdq}:{srdq+3}], s42 offen lds' for i in range(25)]


OB, XR, GA, SC, SH, ACC, TM = 16, 96, 108, 128, 148, 168, 188
PK = 240
vL16, vX1, vST, vA = 238, 239, 252, 253
sgX = 28


def ph_b_pre(A):
    srd(A, sgX, sX, S * D * 2)
    A(f'''s_lshr_b32 s3, s{sJ}, 3
    s_and_b32 s4, s{sJ}, 7
    v_lshlrev_b32 v{vL16}, 4, v{vLANE}
    s_lshl_b32 s5, s3, 2
    s_add_u32 s5, s5, s{sW}
    s_mul_i32 s6, s5, 20480
    s_mul_i32 s7, s{sG}, {O_G}
    s_add_u32 s6, s6, s7
    s_add_u32 s6, s6, {WS_O}
    v_and_b32 v4, 15, v{vLANE}
    v_lshrrev_b32 v5, 4, v{vLANE}
    v_mul_u32_u24 v6, 1152, v4
    v_lshl_add_u32 v6, v5, 3, v6
    v_lshlrev_b32 v7, 4, v5
    s_lshl_b32 s39, s{sG}, 3
    s_add_u32 s39, s39, s5
    s_mul_i32 s7, s39, {16*1152}
    s_mul_i32 s38, s4, 144
    s_add_u32 s7, s7, s38
    s_mul_i32 s38, s4, 288
    s_add_u32 s38, s38, {WS_MOD + 4*1152}''')
    for T in range(5):
        A(f'buffer_load_dwordx2 v[{XR+2*T}:{XR+2*T+1}], v6, s[{sgX}:{sgX+3}], s7 offen offset:{32*T}')
    for base in (GA, SH, SC):
        for T in range(5):
            A(f'buffer_load_dwordx4 v[{base+4*T}:{base+4*T+3}], v7, s[16:19], s38 offen offset:{64*T}')
        if base != SC:
            A(f's_add_u32 s38, s38, {4*576}')
    A(f'''v_add_u32 v{vA}, {B_IMG}, v{vL16}
    v_and_b32 v8, 1, v5
    v_lshlrev_b32 v8, 1, v8
    v_lshrrev_b32 v9, 1, v5
    v_or_b32 v8, v8, v9
    v_lshlrev_b32 v8, 8, v8
    v_lshl_add_u32 v{vX1}, v4, 4, v8
    v_lshlrev_b32 v{vST}, 4, v4
    s_mul_i32 s96, s39, {T16}
    s_mul_i32 s97, s4, 2304
    s_add_u32 s96, s96, s97
    s_add_u32 s96, s96, {WS_X1}
    s_lshl_b32 s97, s39, 11
    s_add_u32 s97, s97, {WS_ST}
    s_lshl_b32 s98, s4, 8
    s_add_u32 s98, s98, s97''')


def ph_b_main(A, after_stat=None):
    A.comment('==== phase B ====')
    aFR = 0
    for k in range(20):
        A(f'buffer_load_dwordx4 v[{OB+4*k}:{OB+4*k+3}], v{vL16}, s[16:19], s6 offen offset:{1024*(k%4)} sc1')
        if k % 4 == 3 and k < 19:
            A('s_add_u32 s6, s6, 4096')
    NB, LA = 8, 6

    def read(m):
        f = aFR + 4 * (m % NB)
        if m == 60:
            A(f'v_add_u32 v{vA}, 61440, v{vA}')
        return f'ds_read_b128 a[{f}:{f+3}], v{vA} offset:{(m % 60)*1024}'
    for m in range(LA):
        A(read(m))
    for m in range(100):
        k, T = divmod(m, 5)
        f = aFR + 4 * (m % NB)
        acc = ACC + 4 * T
        cin = '0' if k == 0 else f'v[{acc}:{acc+3}]'
        if m % 2 == 0:
            A.wait_regs(rl('a', f, 4) + rl('a', aFR + 4 * ((m + 1) % NB), 4))
        A(f'v_mfma_f32_16x16x32_bf16 v[{acc}:{acc+3}], a[{f}:{f+3}], v[{OB+4*k}:{OB+4*k+3}], {cin}')
        if m + LA < 100:
            A(read(m + LA))
        if m < 10:
            unpack(A, TM + 2 * m, TM + 2 * m + 1, XR + m)
    stamp(A, 'gemm done')
    for u in range(10):
        t = TM + 2 * u
        A(f'v_pk_fma_f32 v[{t}:{t+1}], v[{ACC+2*u}:{ACC+2*u+1}], v[{GA+2*u}:{GA+2*u+1}], v[{t}:{t+1}]')
    for u in range(10):
        A(f'v_cvt_pk_bf16_f32 v{PK+u}, v{TM+2*u}, v{TM+2*u+1}')
    for u in range(10):
        unpack(A, TM + 2 * u, TM + 2 * u + 1, PK + u)
    a, b = 8, 12

    def allsum(r, t):
        A(f'''v_mov_b32 v{t}, v{r}
        v_permlane16_swap_b32 v{r}, v{t}
        v_add_f32 v{r}, v{r}, v{t}
        v_mov_b32 v{t}, v{r}
        v_permlane32_swap_b32 v{r}, v{t}
        v_add_f32 v{r}, v{r}, v{t}''')
    A(f'v_pk_add_f32 v[{a}:{a+1}], v[{TM}:{TM+1}], v[{TM+2}:{TM+3}]')
    for u in range(2, 10):
        if u == 8:
            A('s_mov_b32 exec_hi, 0')
        A(f'v_pk_add_f32 v[{a}:{a+1}], v[{a}:{a+1}], v[{TM+2*u}:{TM+2*u+1}]')
    A('s_mov_b32 exec_hi, -1')
    A(f'v_add_f32 v{a}, v{a}, v{a+1}')
    allsum(a, a + 1)
    A(f's_mov_b32 s99, {fbits(1.0/72)}\nv_mul_f32 v{a}, s99, v{a}')
    DV = ACC
    for u in range(10):
        A(f'v_pk_add_f32 v[{DV+2*u}:{DV+2*u+1}], v[{TM+2*u}:{TM+2*u+1}], v[{a}:{a+1}] op_sel_hi:[1,0] neg_lo:[0,1] neg_hi:[0,1]')
    A(f'v_pk_mul_f32 v[{b}:{b+1}], v[{DV}:{DV+1}], v[{DV}:{DV+1}]')
    for u in range(1, 10):
        if u == 8:
            A('s_mov_b32 exec_hi, 0')
        t = DV + 2 * u
        A(f'v_pk_fma_f32 v[{b}:{b+1}], v[{t}:{t+1}], v[{t}:{t+1}], v[{b}:{b+1}]')
    A('s_mov_b32 exec_hi, -1')
    A(f'v_add_f32 v{b}, v{b}, v{b+1}')
    allsum(b, b + 1)
    A(f'v_mov_b32 v{a+1}, v{b}\nv_mov_b32 v{a+2}, 1\nv_mov_b32 v{a+3}, 0')
    A('s_mov_b64 exec, 0xffff')
    A(f'buffer_store_dwordx4 v[{a}:{a+3}], v{vST}, s[16:19], s98 offen sc1')
    A('s_mov_b64 exec, -1')
    if after_stat:
        after_stat()

    def swap_store(P, sOff):
        A(f'v_mov_b32 v{P+10}, v{P+8}\nv_mov_b32 v{P+11}, v{P+9}')
        for bb in (0, 4, 8):
            A(f'v_permlane16_swap_b32 v{P+bb}, v{P+bb+2}')
            A(f'v_permlane16_swap_b32 v{P+bb+1}, v{P+bb+3}')
        A(f'buffer_store_dwordx4 v[{P}:{P+3}], v{vX1}, s[16:19], s{sOff} offen sc1')
        A(f'buffer_store_dwordx4 v[{P+4}:{P+7}], v{vX1}, s[16:19], s{sOff} offen offset:1024 sc1')
        A('s_mov_b64 exec, 0xffff')
        A(f'buffer_store_dwordx4 v[{P+8}:{P+11}], v{vX1}, s[16:19], s{sOff} offen offset:2048 sc1')
        A('s_mov_b64 exec, -1')
    G0, G1 = 32, 36
    lab = A.label('L_stat'); done = A.label('L_statd')
    A('s_mov_b32 s100, 0')
    A.fence()
    A(lab + ':')
    A(f'buffer_load_dwordx4 v[{G0}:{G0+3}], v{vL16}, s[16:19], s97 offen sc1')
    A(f'buffer_load_dwordx4 v[{G1}:{G1+3}], v{vL16}, s[16:19], s97 offen offset:1024 sc1')
    A(f's_add_u32 s100, s100, 1\ns_cmp_gt_u32 s100, {SPIN_MAX}')
    A(f's_cbranch_scc1 {done}')
    A(f'v_and_b32 v4, v{G0+2}, v{G1+2}')
    A('v_cmp_eq_u32 vcc, 0, v4')
    A(f's_cbranch_vccnz {lab}')
    A(done + ':')
    A('s_waitcnt vmcnt(0)')
    stamp(A, 'stats in')
    swap_store(PK, 96)
    A(f'v_add_f32 v{a}, v{G0}, v{G1}')
    allsum(a, a + 1)
    A(f'''v_mul_f32 v{a}, {fbits(0.125)}, v{a}
    v_sub_f32 v{G0}, v{G0}, v{a}
    v_sub_f32 v{G1}, v{G1}, v{a}
    v_mul_f32 v{G0}, v{G0}, v{G0}
    v_fmac_f32 v{G0}, v{G1}, v{G1}
    v_add_f32 v{b}, v{G0+1}, v{G1+1}
    s_mov_b32 s99, {fbits(72.0)}
    v_fmac_f32 v{b}, s99, v{G0}''')
    allsum(b, b + 1)
    A(f'''s_mov_b32 s99, {fbits(1.0/576)}
    v_mov_b32 v{b+1}, {fbits(1e-5)}
    v_fmac_f32 v{b+1}, s99, v{b}
    v_rsq_f32 v{b}, v{b+1}''')
    for u in range(10):
        t = TM + 2 * u
        A(f'v_pk_add_f32 v[{t}:{t+1}], v[{t}:{t+1}], v[{a}:{a+1}] op_sel_hi:[1,0] neg_lo:[0,1] neg_hi:[0,1]')
    for u in range(10):
        t = TM + 2 * u
        A(f'v_pk_mul_f32 v[{t}:{t+1}], v[{t}:{t+1}], v[{b}:{b+1}] op_sel_hi:[1,0]')
    for u in range(10):
        t = TM + 2 * u
        A(f'v_pk_fma_f32 v[{t}:{t+1}], v[{t}:{t+1}], v[{SC+2*u}:{SC+2*u+1}], v[{SH+2*u}:{SH+2*u+1}]')
    P2 = OB
    for u in range(10):
        A(f'v_cvt_pk_bf16_f32 v{P2+u}, v{TM+2*u}, v{TM+2*u+1}')
    A(f's_add_u32 s96, s96, {WS_H2 - WS_X1}')
    swap_store(P2, 96)


def ph_b(A):
    srd(A, 16, sWS, WS_SIZE)
    for x in ph_b_dma(A):
        A(x)
    ph_b_pre(A)
    A.wait_all()
    A('s_barrier')
    stamp(A, 'img landed')
    ph_b_main(A)
```

```python
from common import *
import sys

NS = 9
C_LDS = NS * 16384
BIAS = 4096

ACC = 16
HB = 144
vF = 216
vH = 228
vDG, vDH, vDD, vDE = 234, 235, 236, 237
vL16, vOUT = 238, 239
TMP = 240
OUTT = 248
aX = 0
aPH = 144
aFR = 216
sgG, sgU, sgGH, sgD, sgWS = 8, 12, 20, 24, 16

OPT = dict(dma=True, fill=True, barrier=True, reads=True, pairs=False, NB=8, LA=4, wstep=2, xburst=8, xpace=5, dlag=16, prefill=6,
           rush={0: 70, 1: 106, 2: 142, 3: 162, 4: 172}, pubdelay=64, pf=[],
           checks=[(1, (0, 1), 122, 128), (2, (2,), 154, 159), (3, (3,), 176, 182), (4, (4,), 184, 189)])


def steps():
    st = []
    for p in range(4):
        for k in range(18):
            st.append(dict(kind='g', p=p, k=k))
            st.append(dict(kind='u', p=p, k=k))
    for k in range(18):
        st.append(dict(kind='gh', p=4, k=k))

    def dn(db, ks, who=0):
        for a in ks:
            st.append(dict(kind='dn', p=db, a=a, who=who))
    if not OPT['pairs']:
        ND = 3
        for db in range(ND):
            dn(db, range(6))
        for db in range(ND):
            dn(db, range(6, 9))
        for db in range(ND, 9):
            dn(db, range(9))
    else:
        dn(0, range(6)); dn(0, range(6), 1)
        dn(1, range(6)); dn(1, range(6), 1)
        dn(0, range(6, 9)); dn(1, range(6, 9))
        dn(0, range(6, 9), 1); dn(1, range(6, 9), 1)
        for db in (2, 3):
            dn(db, range(9)); dn(db, range(9), 1)
        for u in range(9):
            st.append(dict(kind='dh', p=4, u=u))
    seen = set()
    for e in st:
        if e['kind'] in ('dn', 'dh'):
            e['first'] = e['p'] not in seen
            seen.add(e['p'])
    seen = set()
    for e in reversed(st):
        if e['kind'] in ('dn', 'dh'):
            e['last'] = e['p'] not in seen
            seen.add(e['p'])
    return st


def down_acc(db):
    if not OPT['pairs']:
        tab = {0: ('a', aX), 1: ('a', aX + 32), 2: ('a', aX + 64)}
        return tab.get(db, ('v', ACC + 32 * ((db + 1) % 4)))
    return {0: ('a', aX), 1: ('a', aX + 32), 2: ('v', ACC), 3: ('v', ACC + 32), 4: ('v', ACC + 64)}[db]


def ph_c_setup_s(A):
    A.comment('==== phase C: setup ====')
    srd(A, sgG, sWG, 576 * 9216, bias=BIAS)
    srd(A, sgU, sWU, 576 * 9216, bias=BIAS)
    A(f'''s_cmp_lt_u32 s{sW}, 2
    s_cselect_b32 s96, s{sWG}, s{sWU}
    s_cselect_b32 s97, s{sWG+1}, s{sWU+1}''')
    srd(A, sgGH, 96, 576 * 9216, bias=BIAS)
    srd(A, sgD, sWD, F * 1152, bias=BIAS)
    A(f'''s_and_b32 s96, s{sJ}, 1
    s_mul_i32 s97, s{sJ}, 288
    s_lshl_b32 s98, s96, 5
    s_add_u32 s98, s98, s97
    s_lshl_b32 s56, s98, 1
    s_mul_i32 s58, s98, 1152
    s_cmp_eq_u32 s96, 0
    s_cselect_b32 s98, 256, 0
    s_add_u32 s98, s98, s97
    s_lshl_b32 s57, s98, 1
    s_mul_i32 s59, s98, 1152
    s_lshl_b32 s60, s{sW}, 12''')
    if OPT['pairs']:
        A(f'''s_cmp_eq_u32 s96, 0
        s_mov_b32 s98, {-288*1152 & 0xffffffff}
        s_cmov_b32 s98, {320*1152}
        s_mov_b32 s99, {-32*1152 & 0xffffffff}
        s_cmov_b32 s99, {288*1152}
        s_cselect_b32 s52, 0, 640
        s_movk_i32 s53, 576
        s_cmov_b32 s53, 512
        s_mul_i32 s100, s97, 1152
        s_add_u32 s50, s100, s98
        s_add_u32 s51, s100, s99
        s_add_u32 s50, s50, s52
        s_add_u32 s51, s51, s52
        s_add_u32 s48, s59, s53
        s_add_u32 s49, s51, s53
        s_sub_u32 s49, s49, s52
        s_add_u32 s46, s58, s53
        s_add_u32 s47, s50, s53
        s_sub_u32 s47, s47, s52
        s_add_u32 s58, s58, s52
        s_add_u32 s59, s59, s52
        s_lshr_b32 s45, s{sW}, 1
        s_mul_i32 s45, s45, {32*1152}''')
    np_ = 8 if OPT['pairs'] else 16
    A(f'''s_mul_i32 s96, s{sG}, {np_}
    s_lshr_b32 s97, s{sJ}, {1 if OPT['pairs'] else 0}
    s_add_u32 s96, s96, s97
    s_lshl_b32 s96, s96, 3
    s_lshl_b32 s97, s{sW}, 1
    s_add_u32 s96, s96, s97
    s_mul_i32 s55, s96, {T16}
    s_add_u32 s55, s55, {WS_PART}
    s_mov_b32 s62, {fbits(-LOG2E)}''')
    if OPT['pairs']:
        A(f'''s_lshl_b32 s96, s53, 4
        s_add_u32 s54, s55, s96
        s_lshl_b32 s96, s52, 4
        s_add_u32 s55, s55, s96''')


vPG, vPD, aJ = 254, 255, 216


def pf_setup(A):
    A(f'''v_mul_u32_u24 v160, 57, v{vLANE}
    v_lshrrev_b32 v160, 9, v160
    v_mul_u32_u24 v161, 9, v160
    v_sub_u32 v161, v{vLANE}, v161
    s_lshl_b32 s96, s{sG}, 2
    s_add_u32 s96, s96, s{sW}
    s_mul_i32 s96, s96, 9
    v_add_u32 v161, s96, v161
    s_movk_i32 s97, 9216
    v_mul_lo_u32 v162, v161, s97
    v_lshlrev_b32 v163, 7, v160
    v_add_u32 v164, s56, v163
    v_mov_b32 v165, s57
    v_cmp_eq_u32 vcc, 4, v160
    v_cndmask_b32 v164, v164, v165, vcc
    v_add_u32 v{vPG}, v162, v164
    s_lshr_b32 s96, s{sJ}, 1
    s_mul_i32 s96, s96, 576
    v_add_u32 v161, s96, v161
    v_mul_u32_u24 v161, 1152, v161
    s_and_b32 s96, s{sJ}, 1
    s_lshl_b32 s96, s96, 9
    v_add_u32 v163, s96, v163
    v_add_u32 v{vPD}, v161, v163''')


def pf_ops(mats, lo, hi):
    m = ((1 << hi) - 1) ^ ((1 << lo) - 1)
    r = [f's_mov_b32 exec_lo, {m & 0xffffffff}', f's_mov_b32 exec_hi, {m >> 32}', f's_movk_i32 s{sPFB}, {BIAS}']
    for q, c in enumerate(mats):
        sg, v = {'g': (sgG, vPG), 'u': (sgU, vPG), 'd': (sgD, vPD)}[c]
        r.append(f'buffer_load_dword a{aJ+q}, v{v}, s[{sg}:{sg+3}], s{sPFB} offen')
    r.append('s_mov_b64 exec, -1')
    return r


sPFB = 100


def ph_c_setup_v(A):
    A(f'''v_lshrrev_b32 v4, 3, v{vLANE}
    v_and_b32 v5, 7, v{vLANE}
    v_bfe_u32 v6, v{vLANE}, 4, 1
    s_and_b32 s40, s{sW}, 1
    s_lshr_b32 s41, s{sW}, 1
    s_lshl_b32 s42, s40, 1
    v_add_u32 v6, s42, v6
    v_lshlrev_b32 v6, 1, v6
    v_xor_b32 v5, v5, v6
    v_lshlrev_b32 v5, 4, v5
    s_lshl_b32 s42, s{sW}, 3
    v_add_u32 v6, s42, v4
    s_movk_i32 s43, 9216
    v_mul_lo_u32 v6, v6, s43
    v_add_u32 v{vDG}, v6, v5
    v_lshrrev_b32 v6, 2, v4
    v_lshlrev_b32 v6, 4, v6
    v_and_b32 v7, 3, v4
    v_add_u32 v6, v6, v7
    s_lshl_b32 s42, s{sW}, 2
    v_add_u32 v6, s42, v6
    v_mul_u32_u24 v6, 1152, v6
    v_add_u32 v{vDD}, v6, v5''')
    A(f'''v_lshrrev_b32 v4, 2, v{vLANE}
    v_and_b32 v5, 3, v{vLANE}
    v_lshrrev_b32 v6, 5, v{vLANE}
    v_lshlrev_b32 v7, 1, v6
    v_xor_b32 v5, v5, v7
    v_lshlrev_b32 v5, 4, v5
    s_lshl_b32 s42, s40, 4
    v_add_u32 v7, s42, v4
    v_mul_lo_u32 v7, v7, s43
    v_add_u32 v{vDH}, v7, v5
    v_bfe_u32 v7, v4, 2, 1
    v_lshlrev_b32 v7, 4, v7
    v_lshl_add_u32 v7, v6, 2, v7
    v_and_b32 v8, 3, v4
    v_add_u32 v7, v7, v8
    s_lshl_b32 s42, s40, 3
    v_add_u32 v7, s42, v7
    v_mul_u32_u24 v7, 1152, v7
    v_add_u32 v{vDE}, v7, v5''')
    A(f'''v_lshrrev_b32 v4, 4, v{vLANE}
    v_bfe_u32 v5, v{vLANE}, 2, 2
    v_bfe_u32 v6, v{vLANE}, 1, 1
    v_and_b32 v7, 1, v{vLANE}
    v_lshlrev_b32 v7, 3, v7
    v_lshl_add_u32 v7, v6, 4, v7
    v_and_b32 v8, 1, v4
    v_lshlrev_b32 v9, 1, v8
    v_lshrrev_b32 v10, 1, v5
    v_add_u32 v9, v9, v10
    v_lshlrev_b32 v9, 5, v9
    v_xor_b32 v9, v9, v7
    v_lshl_add_u32 v9, v5, 7, v9
    v_lshl_add_u32 v9, v4, 12, v9
    v_lshlrev_b32 v10, 5, v8
    v_xor_b32 v10, v10, v7
    v_lshl_add_u32 v10, v5, 6, v10
    v_lshl_add_u32 v10, v8, 9, v10
    v_lshrrev_b32 v11, 1, v4
    v_lshl_add_u32 v10, v11, 12, v10''')
    for wd in range(3):
        A(f'v_add_u32 v{vF+4*wd}, {49152*wd}, v9')
        for ft in range(1, 4):
            A(f'v_xor_b32 v{vF+4*wd+ft}, {32*ft}, v{vF+4*wd}')
        A(f'v_add_u32 v{vH+2*wd}, {49152*wd}, v10')
        A(f'v_xor_b32 v{vH+2*wd+1}, 32, v{vH+2*wd}')
    A(f'''v_lshlrev_b32 v{vL16}, 4, v{vLANE}
    v_lshlrev_b32 v8, 1, v8
    v_or_b32 v8, v8, v11
    v_lshlrev_b32 v8, 8, v8
    v_and_b32 v9, 15, v{vLANE}
    v_lshl_add_u32 v{vOUT}, v9, 4, v8''')


def ph_c_setup(A):
    ph_c_setup_s(A)
    ph_c_setup_v(A)


def dma_ops(st, n):
    if n >= len(st) or (not OPT['dma'] and n >= 28):
        return []
    e = st[n]
    slot, z = divmod(n, 4)
    r = []
    if z == 0:
        r.append(f's_add_u32 m0, s60, {(slot % NS) * 16384}')
    comp = BIAS - 1024 * z
    k = e['kind']
    if k in 'gu':
        r.append(f's_add_u32 s61, s56, {comp + e["p"]*128 + e["k"]*32*9216}')
        q, v = (sgG if k == 'g' else sgU), vDG
    elif k == 'gh':
        r.append(f's_add_u32 s61, s57, {comp + e["k"]*32*9216}')
        q, v = sgGH, vDH
    elif k == 'dn':
        full, half = ((58, 59), (50, 51))[e['who']]
        if e['a'] < 8:
            r.append(f's_add_u32 s61, s{full}, {comp + e["p"]*128 + e["a"]*32*1152}')
        else:
            r.append(f's_add_u32 s61, s{half}, {comp + e["p"]*128}')
        q, v = sgD, vDD
    else:
        offs = []
        for par in range(2):
            who, a = divmod(2 * e['u'] + par, 9)
            sreg = ((46, 48), (47, 49))[who][a == 8]
            offs.append((sreg, comp + (a % 8) * 32 * 1152))
        if offs[0][0] == offs[1][0]:
            r.append(f's_add_u32 s61, s{offs[0][0]}, s45')
            r.append(f's_add_u32 s61, s61, {offs[0][1]}')
        else:
            r.append(f's_add_u32 s61, s{offs[0][0]}, {offs[0][1]}')
            r.append(f's_add_u32 s44, s{offs[1][0]}, {offs[1][1]}')
            r.append(f's_cmp_lt_u32 s{sW}, 2')
            r.append('s_cselect_b32 s61, s61, s44')
        q, v = sgD, vDE
    r.append(f'buffer_load_dwordx4 v{v}, s[{q}:{q+3}], s61 offen offset:{1024*z} lds')
    return r


def mf_info(st, mu):
    n, e8 = divmod(mu, 8)
    fl, tt = divmod(e8, 2)
    e = st[n]
    slot, z = divmod(n, 4)
    win, sl = divmod(slot % NS, 3)
    base = sl * 16384 + z * 1024
    k = e['kind']
    if k in 'gu':
        acc = ('v', ACC + 64 * (e['p'] & 1) + (32 if k == 'u' else 0) + 8 * fl + 4 * tt)
        b = ('a', aX + 72 * tt + 4 * e['k'])
        return acc, b, e['k'] == 0, vF + 4 * win + fl, [base + rd * 512 for rd in range(2)]
    if k == 'gh':
        mat, ft = divmod(fl, 2)
        acc = ('v', ACC + 32 * mat + 8 * ft + 4 * tt)
        b = ('a', aX + 72 * tt + 4 * e['k'])
        return acc, b, e['k'] == 0, vH + 2 * win + ft, [base + mat * 8192 + rd * 256 for rd in range(2)]
    ak, ab = down_acc(e['p'])
    if k == 'dn':
        acc = (ak, ab + 8 * fl + 4 * tt)
        b = ('v', HB + 8 * e['a'] + 4 * tt) if e['who'] == 0 else ('a', aPH + 8 * e['a'] + 4 * tt)
        return acc, b, e['first'], vF + 4 * win + fl, [base + rd * 512 for rd in range(2)]
    par, dt = divmod(fl, 2)
    who, a = divmod(2 * e['u'] + par, 9)
    acc = (ak, ab + 8 * dt + 4 * tt)
    b = ('v', HB + 8 * a + 4 * tt) if who == 0 else ('a', aPH + 8 * a + 4 * tt)
    return acc, b, e['first'] and par == 0, vH + 2 * win + dt, [base + par * 8192 + rd * 256 for rd in range(2)]


def act_ops(p):
    ops = []
    s = ACC + 64 * (p & 1)
    for ft in range(4 if p < 4 else 2):
        for tt in range(2):
            g = s + 8 * ft + 4 * tt
            u = g + 32
            h = HB + 8 * (2 * p + ft // 2) + 4 * tt + 2 * (ft & 1)
            T = TMP + 4 * tt
            r = range(4)
            ops += [(f'v_mul_f32 v{T+e}, s62, v{g+e}', 1) for e in r]
            ops += [(f'v_exp_f32 v{T+e}, v{T+e}', 2) for e in r]
            ops += [(f'v_add_f32 v{T+e}, 1.0, v{T+e}', 1) for e in r]
            ops += [(f'v_rcp_f32 v{T+e}, v{T+e}', 2) for e in r]
            ops += [(f'v_mul_f32 v{T+e}, v{u+e}, v{T+e}', 1) for e in r]
            ops += [(f'v_cvt_pk_bf16_f32 v{h+d}, v{T+2*d}, v{T+2*d+1}', 1) for d in range(2)]
    return ops


def out_ops(db, half=False):
    ops = []
    ak, ab = down_acc(db)
    for tt in range(2):
        for pr in range(1 if half else 2):
            P = OUTT + 4 * (pr & 1)
            for d in range(2):
                src = ab + 8 * (2 * pr + d) + 4 * tt
                if ak == 'a':
                    ops += [(f'v_accvgpr_read_b32 v{TMP+e}, a{src+e}', 1) for e in range(4)]
                    src = TMP
                ops += [(f'v_cvt_pk_bf16_f32 v{P+2*d+c}, v{src+2*c}, v{src+2*c+1}', 1) for c in range(2)]
            if pr == 0:
                off = tt * T16 + (0 if half else db * 2048)
                ops.append((f's_add_u32 s63, s{54 if half else 55}, {off}', 1))
            ops += [(f'v_permlane16_swap_b32 v{P}, v{P+2}', 2), (f'v_permlane16_swap_b32 v{P+1}, v{P+3}', 2)]
            ops.append((f'buffer_store_dwordx4 v[{P}:{P+3}], v{vOUT}, s[{sgWS}:{sgWS+3}], s63 offen offset:{pr*1024} sc1', 2))
    return ops


sHXO, sHXP, sPFO, sPFP, sT = 52, 53, 7, 38, 39
vPF, vPV, vZ = 2, 3, 15


def pair_setup(A):
    A(f'''s_lshl_b32 s40, s{sG}, 4
    s_add_u32 s40, s40, s{sJ}
    s_lshl_b32 s40, s40, 2
    s_add_u32 s40, s40, s{sW}
    s_xor_b32 s43, s40, 4
    s_mul_i32 s{sHXO}, s40, 18432
    s_add_u32 s{sHXO}, s{sHXO}, {WS_HX}
    s_mul_i32 s{sHXP}, s43, 18432
    s_add_u32 s{sHXP}, s{sHXP}, {WS_HX}
    s_lshl_b32 s{sPFO}, s40, 4
    s_add_u32 s{sPFO}, s{sPFO}, {WS_PF}
    s_lshl_b32 s{sPFP}, s43, 4
    s_add_u32 s{sPFP}, s{sPFP}, {WS_PF}
    v_mov_b32 v{vZ}, 0''')


def hx_store_ops(p):
    n = 4 if p < 4 else 2
    ops = [(f's_add_u32 s{sT}, s{sHXO}, {4096*p}', 1)]
    for q in range(n):
        r = HB + 16 * p + 4 * q
        ops.append((f'buffer_store_dwordx4 v[{r}:{r+3}], v{vL16}, s[{sgWS}:{sgWS+3}], s{sT} offen offset:{1024*q} sc1', 2))
    return ops


def hx_load_ops(p):
    n = 4 if p < 4 else 2
    ops = [f's_add_u32 s43, s{sHXP}, {4096*p}']
    for q in range(n):
        r = aPH + 16 * p + 4 * q
        ops.append(f'buffer_load_dwordx4 a[{r}:{r+3}], v{vL16}, s[{sgWS}:{sgWS+3}], s43 offen offset:{1024*q} sc1')
    return ops


class Ring:
    def __init__(self, A):
        self.A = A
        self.st = steps()
        self.marks = {}

    def issue(self, n):
        for x in dma_ops(self.st, n):
            self.A(x)
        if n % 4 == 3 or n == len(self.st) - 1:
            self.marks[n // 4] = self.A.mark()


def ph_c_prefill(A, R, s0, s1):
    for n in range(4 * s0, 4 * s1):
        R.issue(n)


def ph_c_xload(A):
    A(f'''s_lshl_b32 s40, s{sG}, 3
    s_lshl_b32 s41, s{sW}, 1
    s_add_u32 s40, s40, s41
    s_mul_i32 s41, s40, {T16}
    s_add_u32 s41, s41, {WS_H2}
    s_add_u32 s42, s41, {T16}''')
    ops = []
    for k in range(18):
        for tt in range(2):
            r = aX + 72 * tt + 4 * k
            ops.append(f'buffer_load_dwordx4 a[{r}:{r+3}], v{vL16}, s[{sgWS}:{sgWS+3}], s{41+tt} offen offset:{1024*(k%4)} sc1')
        if k % 4 == 3:
            ops.append('s_add_u32 s41, s41, 4096')
            ops.append('s_add_u32 s42, s42, 4096')
    return ops


def ph_c_stream(A, R, prefilled, xops):
    st = R.st
    NST = len(st)
    NM = 8 * NST
    NF = 4 * NST
    info = [mf_info(st, mu) for mu in range(NM)]
    NB, LA, WS_ = OPT['NB'], OPT['LA'], OPT['wstep']
    global aFR
    aFR = 256 - 4 * NB

    def reads(phi):
        if not OPT['reads'] and phi >= 8:
            return [None, None]
        acc, b, first, va, offs = info[2 * phi]
        f = aFR + 4 * (phi % NB)
        return [f'ds_read_b64_tr_b16 a[{f+2*rd}:{f+2*rd+1}], v{va} offset:{offs[rd]}' for rd in range(2)]

    def boundary(slot):
        A.wait_vm_mark(R.marks[slot])
        if OPT['barrier']:
            A('s_barrier')

    def deadline(ins, mu0):
        d, u = set(ins.defs), set(ins.uses)
        for mu in range(mu0, NM):
            acc, b, first, va, offs = info[mu]
            if d & set(rl(b[0], b[1], 4)):
                return mu
            if first and u & set(rl(acc[0], acc[1], 4)):
                return mu
        return NM + 40

    xq = list(xops)

    def xissue():
        while xq[0].startswith('s_'):
            A(xq.pop(0))
        A(xq.pop(0))
        while xq and xq[0].startswith('s_'):
            A(xq.pop(0))
    for k in range(OPT['xburst']):
        xissue()
    boundary(0)
    stamp(A, 'slot0 landed')
    for phi in range(LA):
        for x in reads(phi):
            A(x)
    pairs = OPT['pairs'] and OPT['fill']
    if pairs:
        pair_setup(A)
    events = []
    hxq = []

    def ev_publish(val, mark):
        def f():
            A.wait_vm_mark(mark())
            A(f'v_mov_b32 v{vPV}, {val}\ns_mov_b64 exec, 1')
            A(f'buffer_store_dword v{vPV}, v{vZ}, s[{sgWS}:{sgWS+3}], s{sPFO} offen sc1')
            A('s_mov_b64 exec, -1')
        return f

    def ev_flagload():
        A(f'buffer_load_dword v{vPF}, v{vZ}, s[{sgWS}:{sgWS+3}], s{sPFP} offen sc1')

    def ev_check(val, blocks):
        def f():
            slow, back, again = A.label('L_slow'), A.label('L_back'), A.label('L_again')
            A(f'v_readfirstlane_b32 s40, v{vPF}')
            A(f's_cmp_ge_u32 s40, {val}')
            A(f's_cbranch_scc0 {slow}')
            A(back + ':')
            A.tail += [slow + ':', 's_mov_b32 s44, 0', again + ':',
                       f'buffer_load_dword v{vPF}, v{vZ}, s[{sgWS}:{sgWS+3}], s{sPFP} offen sc1',
                       's_add_u32 s44, s44, 1', f's_cmp_gt_u32 s44, {SPIN_MAX}', f's_cbranch_scc1 {back}',
                       's_waitcnt vmcnt(0)', f'v_readfirstlane_b32 s40, v{vPF}', 's_nop 1', f's_cmp_ge_u32 s40, {val}',
                       f's_cbranch_scc0 {again}', f's_branch {back}']
            for p in blocks:
                hxq.extend(hx_load_ops(p))
        return f
    for (n_, mats, lo, hi) in OPT['pf']:
        events.append([8 * n_ + 6, (lambda mats=mats, lo=lo, hi=hi: [A(x) for x in pf_ops(mats, lo, hi)])])
    if pairs:
        for (val, blocks, nload, ncheck) in OPT['checks']:
            events.append([8 * nload + 2, ev_flagload])
            events.append([8 * ncheck + 3, ev_check(val, blocks)])
    fill = []
    misc = []
    pend = list(range(4 * prefilled, 4 * (NS - 1)))
    credit = 0.0
    forced = 0
    for mu in range(NM):
        n, e8 = divmod(mu, 8)
        e = st[n]
        phi, tt = divmod(mu, 2)
        acc, b, first, va, offs = info[mu]
        f = aFR + 4 * (phi % NB)
        if e8 == 0 and n in (36, 72, 108, 144, 162, 180, 198, 216, 234):
            stamp(A, f'step {n}')
        if e8 == 4 and n > 0 and OPT['fill']:
            pe = st[n - 1]
            new = []
            if pe['kind'] == 'u' and pe['k'] == 17 or pe['kind'] == 'gh' and pe['k'] == 17:
                new = act_ops(pe['p'])
            elif pe['kind'] in ('dn', 'dh') and pe['last']:
                new = out_ops(pe['p'], pe['kind'] == 'dh')
            rush = NM + 40
            if new and pairs and pe['kind'] in ('u', 'gh'):
                p = pe['p']
                new = new + hx_store_ops(p)
                rush = 8 * OPT['rush'][p]
                if p >= 1:
                    new.append((('pub', p), 0))
            for x, c in new:
                fill.append([x, c, min(rush, deadline(Ins(x), mu + 1)) if c else rush])
            for q in range(len(fill) - 2, -1, -1):
                fill[q][2] = min(fill[q][2], fill[q + 1][2])
        def emit_fill():
            x, c, d = fill.pop(0)
            if isinstance(x, tuple):
                mk = A.mark()
                events.append([mu + OPT['pubdelay'], ev_publish(x[1], lambda: mk)])
            else:
                A(x)
            return c
        while fill and fill[0][2] <= mu:
            emit_fill(); forced += 1
        cin = '0' if first else f'{acc[0]}[{acc[1]}:{acc[1]+3}]'
        A(f'v_mfma_f32_16x16x32_bf16 {acc[0]}[{acc[1]}:{acc[1]+3}], a[{f}:{f+3}], {b[0]}[{b[1]}:{b[1]+3}], {cin}')
        used = 0
        p2 = phi + LA
        if p2 < NF:
            if tt == 0 and p2 % 16 == 0:
                slot = p2 // 16
                boundary(slot); used += 2
                pend += [4 * (slot + NS - 2) + z for z in range(4)]
            x = reads(p2)[tt]
            if x:
                A(x); used += 1
        wait_next = tt == 1 and (phi + 1) % WS_ == 0 and phi + 1 < NF
        if wait_next:
            used += 1
        free = 2 - used
        for ev in [ev for ev in events if ev[0] <= mu]:
            events.remove(ev)
            ev[1](); free -= 2
        if hxq and mu % OPT['xpace'] == 0:
            if hxq[0].startswith('s_'):
                A(hxq.pop(0))
            A(hxq.pop(0)); free -= 1
        if xq and mu % OPT['xpace'] == 0:
            xissue(); free -= 1
        if not misc and pend and (not xq or len(pend) > OPT['dlag']) and (e8 == 0 or (e8 in (3, 5) and len(pend) > 4)):
            nd = pend.pop(0)
            misc = dma_ops(st, nd)
            if nd % 4 == 3 or nd == NST - 1:
                misc.append(('mark', nd // 4))
        while misc and isinstance(misc[0], tuple):
            R.marks[misc.pop(0)[1]] = A.mark()
        if misc and free > 0:
            A(misc.pop(0)); free -= 1
            while misc and isinstance(misc[0], tuple):
                R.marks[misc.pop(0)[1]] = A.mark()
        if fill:
            rate = max((q + 1) / max(1, d - mu) for q, (x, c, d) in enumerate(fill))
            credit += rate
            while fill and (free > 0 or credit >= 1.0):
                free -= emit_fill()
                credit = max(0.0, credit - 1.0)
        else:
            credit = 0.0
        if wait_next:
            A.wait_regs([r for q in range(WS_) for r in rl('a', aFR + 4 * ((phi + 1 + q) % NB), 4)])
    stamp(A, 'mfma done')
    last = st[-1]
    assert not events and not hxq
    for x, c, d in fill:
        A(x)
    for x, c in out_ops(last['p'], last['kind'] == 'dh'):
        A(x)
    print('phase C: forced', forced, 'tail', len(fill), file=sys.stderr)


def ph_c(A):
    srd(A, sgWS, sWS, WS_SIZE)
    ph_c_setup(A)
    R = Ring(A)
    ph_c_prefill(A, R, 0, OPT['prefill'])
    xops = ph_c_xload(A)
    stamp(A, 'prologue')
    ph_c_stream(A, R, OPT['prefill'], xops)
```

```python
from common import *
from ph_small import ph_mod
from ph_a import mod_table

PT = [(0, 1, 2, 3), (4, 13, 10, 11), (12, 21, 14, 23), (20, 24, 22, 22)]
N_MOD, N_XH, N_WQ, N_WO = 108, 64, 144, 40
N_PREP = N_MOD + N_XH + N_WQ + N_WO
PREP_LDS = 4 * 9216


def task_xhat(A, sI):
    A.comment('---- prep: xhat')
    X, T, P = 16, 56, 136
    srd(A, 8, sX, S * D * 2)
    srd(A, 16, sWS, WS_SIZE)
    A(f'''v_lshrrev_b32 v4, 3, v{vLANE}
    v_and_b32 v5, 7, v{vLANE}
    v_mul_u32_u24 v2, 1152, v4
    v_lshl_add_u32 v2, v5, 4, v2
    s_lshl_b32 s40, s{sI}, 2
    s_add_u32 s40, s40, s{sW}
    s_mul_i32 s41, s40, {8*1152}''')
    for n in range(9):
        A(f'buffer_load_dwordx4 v[{X+4*n}:{X+4*n+3}], v2, s[8:11], s41 offen offset:{128*n}')
    A(f'''s_mul_i32 s42, s{sW}, 9216
    v_xor_b32 v6, v4, v5
    v_lshlrev_b32 v6, 4, v6
    v_add_u32 v6, s42, v6
    v_lshl_add_u32 v7, v4, 7, v6
    v_lshl_add_u32 v6, v5, 7, v6
    v_lshlrev_b32 v3, 9, v4
    v_lshl_add_u32 v3, v5, 4, v3
    s_mul_i32 s43, s{sI}, 36864
    s_lshl_b32 s44, s{sW}, 7
    s_add_u32 s43, s43, s44
    s_add_u32 s43, s43, {WS_XH}''')
    for n in range(9):
        for d in range(4):
            unpack(A, T + 8 * n + 2 * d, T + 8 * n + 2 * d + 1, X + 4 * n + d)
    a, q = 8, 10

    def sum8(r):
        A(f'v_add_f32_dpp v{r}, v{r}, v{r} quad_perm:[1,0,3,2] row_mask:0xf bank_mask:0xf')
        A(f'v_add_f32_dpp v{r}, v{r}, v{r} quad_perm:[2,3,0,1] row_mask:0xf bank_mask:0xf')
        A(f'v_add_f32_dpp v{r}, v{r}, v{r} row_half_mirror row_mask:0xf bank_mask:0xf')
    A(f'v_pk_add_f32 v[{a}:{a+1}], v[{T}:{T+1}], v[{T+2}:{T+3}]')
    A(f'v_pk_add_f32 v[{q}:{q+1}], v[{T+4}:{T+5}], v[{T+6}:{T+7}]')
    for u in range(4, 36):
        r = a if u & 1 else q
        A(f'v_pk_add_f32 v[{r}:{r+1}], v[{r}:{r+1}], v[{T+2*u}:{T+2*u+1}]')
    A(f'v_pk_add_f32 v[{a}:{a+1}], v[{a}:{a+1}], v[{q}:{q+1}]')
    A(f'v_add_f32 v{a}, v{a}, v{a+1}')
    sum8(a)
    A(f's_mov_b32 s45, {fbits(1.0/576)}\nv_mul_f32 v{a}, s45, v{a}')
    for u in range(36):
        t = T + 2 * u
        A(f'v_pk_add_f32 v[{t}:{t+1}], v[{t}:{t+1}], v[{a}:{a+1}] op_sel_hi:[1,0] neg_lo:[0,1] neg_hi:[0,1]')
    b = 12
    A(f'v_pk_mul_f32 v[{q}:{q+1}], v[{T}:{T+1}], v[{T}:{T+1}]')
    A(f'v_pk_mul_f32 v[{b}:{b+1}], v[{T+2}:{T+3}], v[{T+2}:{T+3}]')
    for u in range(2, 36):
        r = b if u & 1 else q
        t = T + 2 * u
        A(f'v_pk_fma_f32 v[{r}:{r+1}], v[{t}:{t+1}], v[{t}:{t+1}], v[{r}:{r+1}]')
    A(f'v_pk_add_f32 v[{q}:{q+1}], v[{q}:{q+1}], v[{b}:{b+1}]')
    A(f'v_add_f32 v{q}, v{q}, v{q+1}')
    sum8(q)
    A(f'''v_mov_b32 v{q+1}, {fbits(1e-5)}
    v_fmac_f32 v{q+1}, s45, v{q}
    v_rsq_f32 v{a}, v{q+1}''')
    for n in range(9):
        for d in range(4):
            t = T + 8 * n + 2 * d
            A(f'v_pk_mul_f32 v[{t}:{t+1}], v[{t}:{t+1}], v[{a}:{a+1}] op_sel_hi:[1,0]')
        for d in range(4):
            t = T + 8 * n + 2 * d
            A(f'v_cvt_pk_bf16_f32 v{X+4*n+d}, v{t}, v{t+1}')
        A(f'ds_write_b128 v6, v[{X+4*n}:{X+4*n+3}] offset:{1024*n}')
    for n in range(9):
        A(f'ds_read_b128 v[{X+4*n}:{X+4*n+3}], v7 offset:{1024*n}')
    for n in range(9):
        A(f'buffer_store_dwordx4 v[{X+4*n}:{X+4*n+3}], v3, s[16:19], s43 offen')
        if n < 8:
            A('s_add_u32 s43, s43, 4096')


def task_wq(A, sI):
    A.comment('---- prep: qkv weight tiles')
    srd(A, 12, sWQKV, 576 * 3456)
    srd(A, 16, sWS, WS_SIZE)
    A(f'''v_mul_u32_u24 v4, 69, v{vLANE}
    v_lshrrev_b32 v4, 10, v4
    v_mul_u32_u24 v5, 15, v4
    v_sub_u32 v5, v{vLANE}, v5
    v_mul_u32_u24 v6, 13, v5
    v_lshrrev_b32 v6, 6, v6
    v_mul_u32_u24 v7, 5, v6
    v_sub_u32 v7, v5, v7
    v_mul_u32_u24 v4, 3456, v4
    v_mul_u32_u24 v6, 1152, v6
    v_add_u32 v4, v4, v6
    v_lshl_add_u32 v2, v7, 4, v4
    s_lshr_b32 s40, s{sI}, 2
    s_and_b32 s41, s{sI}, 3
    s_lshl_b32 s41, s41, 2
    s_add_u32 s41, s41, s{sW}
    s_mul_i32 s42, s41, 72
    s_and_b32 s42, s42, 0xfffffff0
    s_mul_i32 s43, s40, {16*3456}
    s_add_u32 s42, s42, s43
    s_mul_i32 s44, s{sW}, 3840
    s_mov_b32 exec_hi, 0x0fffffff''')
    for i in range(4):
        A(f's_add_u32 m0, s44, {960*i}')
        A(f's_add_u32 s45, s42, {4*3456*i}')
        A('buffer_load_dwordx4 v2, s[12:15], s45 offen lds')
    A('s_mov_b32 exec_hi, -1')
    A(f'''v_lshrrev_b32 v4, 5, v{vLANE}
    v_bfe_u32 v5, v{vLANE}, 2, 2
    v_and_b32 v6, 3, v{vLANE}
    v_bfe_u32 v7, v{vLANE}, 4, 1
    v_lshlrev_b32 v7, 1, v7
    v_lshrrev_b32 v9, 1, v6
    v_add_u32 v7, v7, v9
    v_lshlrev_b32 v7, 3, v7
    v_and_b32 v8, 1, v6
    v_lshlrev_b32 v8, 2, v8
    s_and_b32 s50, s41, 1
    v_add_u32 v8, s50, v8
    v_lshl_add_u32 v9, v4, 3, v5
    v_mul_u32_u24 v9, 240, v9
    v_add_u32 v9, s44, v9''')
    packs = [t[0] | t[1] << 8 | t[2] << 16 | t[3] << 24 for t in PT]
    for T in range(4):
        A(f'''s_mov_b32 s52, {packs[T]}
        v_bfe_u32 v10, s52, v7, 8
        v_add_u32 v10, v10, v8
        v_lshl_add_u32 v{12+T}, v10, 3, v9''')
    A(f'''v_lshlrev_b32 v3, 4, v{vLANE}
    v_and_b32 v10, 31, v{vLANE}
    v_mul_u32_u24 v11, 24, v4
    v_add_u32 v11, v11, v10
    v_lshlrev_b32 v11, 4, v11
    s_mul_i32 s46, s41, {WQ_J}
    s_mul_i32 s47, s40, 3840
    s_add_u32 s46, s46, s47
    s_add_u32 s46, s46, {WS_WQ}''')
    A.wait_all()
    for T in range(4):
        for rd in range(2):
            A(f'ds_read_b64_tr_b16 v[{16+4*T+2*rd}:{17+4*T+2*rd}], v{12+T} offset:{960*rd}')
    for T in range(3):
        A(f'buffer_store_dwordx4 v[{16+4*T}:{19+4*T}], v3, s[16:19], s46 offen offset:{1024*T}')
    A('s_mov_b32 exec_lo, 0x00ffffff\ns_mov_b32 exec_hi, 0x00ffffff')
    A('buffer_store_dwordx4 v[28:31], v11, s[16:19], s46 offen offset:3072')
    A('s_mov_b64 exec, -1')


def task_wo(A, sI):
    A.comment('---- prep: wo tiles')
    srd(A, 20, sWO, 576 * 1152)
    srd(A, 16, sWS, WS_SIZE)
    A(f'''s_lshl_b32 s40, s{sI}, 2
    s_add_u32 s40, s40, s{sW}
    s_lshr_b32 s41, s40, 3
    s_and_b32 s42, s40, 7
    s_mul_i32 s43, s42, 144
    s_mul_i32 s44, s{sW}, 5120
    v_mul_u32_u24 v4, 57, v{vLANE}
    v_lshrrev_b32 v4, 9, v4
    v_mul_u32_u24 v5, 9, v4
    v_sub_u32 v5, v{vLANE}, v5
    v_lshlrev_b32 v5, 4, v5
    s_lshl_b32 s45, s41, 2
    s_mov_b32 exec_hi, 0x7fffffff''')
    for i in range(5):
        A(f'''v_add_u32 v6, {7*i}, v4
        v_min_u32 v6, 31, v6
        v_lshrrev_b32 v7, 3, v6
        v_and_b32 v6, 7, v6
        v_add_u32 v7, s45, v7
        v_mul_u32_u24 v8, 205, v7
        v_lshrrev_b32 v8, 10, v8
        v_mul_u32_u24 v9, 5, v8
        v_sub_u32 v9, v7, v9
        v_lshrrev_b32 v10, 1, v9
        v_mul_u32_u24 v10, 18, v10
        v_and_b32 v11, 1, v9
        v_lshl_add_u32 v10, v11, 3, v10
        v_lshrrev_b32 v11, 1, v6
        v_cmp_eq_u32 vcc, 0, v11
        v_cndmask_b32 v12, 0, 16, vcc
        v_cmp_eq_u32 vcc, 1, v11
        v_cndmask_b32 v12, v12, 32, vcc
        v_cmp_eq_u32 vcc, 4, v9
        v_cndmask_b32 v10, v10, v12, vcc
        v_add_u32 v10, v10, v6
        v_mad_u32_u24 v10, v8, 36, v10
        v_mul_u32_u24 v10, 1152, v10
        v_add_u32 v{20+i}, v10, v5
        s_add_u32 m0, s44, {1008*i}
        s_nop 0
        buffer_load_dwordx4 v{20+i}, s[20:23], s43 offen lds''')
    A('s_mov_b32 exec_hi, -1')
    A(f'''v_lshrrev_b32 v4, 4, v{vLANE}
    v_bfe_u32 v5, v{vLANE}, 2, 2
    v_lshl_add_u32 v4, v4, 3, v5
    v_mul_u32_u24 v4, 144, v4
    v_and_b32 v5, 3, v{vLANE}
    v_lshl_add_u32 v4, v5, 3, v4
    v_add_u32 v4, s44, v4
    v_lshlrev_b32 v3, 4, v{vLANE}
    s_mul_i32 s46, s42, {WO_C}
    s_mul_i32 s47, s41, 5120
    s_add_u32 s46, s46, s47
    s_add_u32 s46, s46, {WS_WO}
    s_add_u32 s47, s46, 4096''')
    A.wait_all()
    for T in range(5):
        for rd in range(2):
            A(f'ds_read_b64_tr_b16 v[{32+4*T+2*rd}:{33+4*T+2*rd}], v4 offset:{576*rd+32*T}')
    for T in range(4):
        A(f'buffer_store_dwordx4 v[{32+4*T}:{35+4*T}], v3, s[16:19], s46 offen offset:{1024*T}')
    A('buffer_store_dwordx4 v[48:51], v3, s[16:19], s47 offen')


def task_zero(A, sI):
    n = (WS_ZEND - WS_FLAG + N_WO * 4096 - 1) // (N_WO * 4096)
    A(f'''v_mov_b32 v56, 0
    v_mov_b32 v57, 0
    v_mov_b32 v58, 0
    v_mov_b32 v59, 0
    v_lshlrev_b32 v60, 4, v{vTID}
    s_mul_i32 s48, s{sI}, {n*4096}''')
    srd(A, 24, sWS, WS_ZEND - WS_FLAG, off=WS_FLAG)
    for i in range(n):
        A('buffer_store_dwordx4 v[56:59], v60, s[24:27], s48 offen')
        A('s_add_u32 s48, s48, 4096')


NEXT = [None, None]


def ph_prep(A):
    code_prefetch(A, 'L_k0_body', 'L_k0_end-L_k0_body-4', 2, 127, 50, 1)
    A('L_k0_body:')
    ends = []
    lo = 0
    for n, fn in ((N_MOD, lambda A, s: ph_mod(A, s, 0)), (N_XH, task_xhat), (N_WQ, task_wq), (N_WO, None)):
        last = fn is None
        if not last:
            A(f's_cmp_ge_u32 s2, {lo+n}')
            ctx = A.begin_skip('s_cbranch_scc1 {}')
        A(f's_sub_u32 s39, s2, {lo}')
        if last:
            if NEXT[0]:
                A(f's_lshr_b32 s48, s39, 3\ns_lshl_b32 s48, s48, 2\ns_add_u32 s48, s48, s{sW}\ns_lshl_b32 s48, s48, 13')
                code_prefetch(A, NEXT[0], f'{NEXT[1]}-{NEXT[0]}-4', 60, 62, 50, 1, 48)
            task_zero(A, 39)
            task_wo(A, 39)
        else:
            n0 = Stamps.n
            fn(A, 39)
            stamp_end(A, again=True)
            keep = Stamps.n
            A('s_endpgm')
            A.end_skip(ctx)
        lo += n
```

```python
from common import *


def ph_mod(A, sM, lds):
    A.comment('==== phase mod ====')
    srd(A, 8, sWMOD, 576 * 6912)
    srd(A, 12, sC, 1152)
    srd(A, 16, sWS, WS_SIZE)
    A(f'''v_lshrrev_b32 v2, 2, v{vLANE}
    v_and_b32 v3, 3, v{vLANE}
    s_mul_i32 s40, s{sW}, 144
    v_add_u32 v4, s40, v2
    s_movk_i32 s41, 6912
    v_mul_lo_u32 v5, v4, s41
    v_lshl_add_u32 v5, v3, 4, v5
    v_lshlrev_b32 v6, 1, v4
    s_lshl_b32 s41, s{sM}, 6''')
    for i in range(9):
        A(f'buffer_load_ushort v{10+i}, v6, s[12:15], 0 offen offset:{32*i}')
    for i in range(9):
        A(f's_add_u32 s42, s41, {i*16*6912}')
        A(f'buffer_load_dwordx4 v[{20+4*i}:{23+4*i}], v5, s[8:11], s42 offen')
    A(f's_mov_b32 s43, {fbits(-LOG2E)}')
    for i in range(9):
        A(f'v_lshlrev_b32 v{10+i}, 16, v{10+i}')
    for i in range(9):
        A(f'v_mul_f32 v{64+i}, s43, v{10+i}')
    for i in range(9):
        A(f'v_exp_f32 v{64+i}, v{64+i}')
    for i in range(9):
        A(f'v_add_f32 v{64+i}, 1.0, v{64+i}')
    for i in range(9):
        A(f'v_rcp_f32 v{64+i}, v{64+i}')
    for i in range(9):
        A(f'v_mul_f32 v{10+i}, v{10+i}, v{64+i}')
    for i in range(9):
        A(f'v_cvt_pk_bf16_f32 v{10+i}, v{10+i}, v{10+i}')
    for i in range(9):
        A(f'v_and_b32 v{10+i}, s{sMASKHI}, v{10+i}')
    for i in range(9):
        for d in range(4):
            unpack(A, 64 + 2 * d, 65 + 2 * d, 20 + 4 * i + d)
        sp = 10 + (i & ~1)
        for d in range(4):
            if i == 0:
                A(f'v_pk_mul_f32 v[{56+2*d}:{57+2*d}], v[{64+2*d}:{65+2*d}], v[{sp}:{sp+1}] op_sel_hi:[1,0]')
            else:
                m = 'op_sel_hi:[1,0,1]' if i % 2 == 0 else 'op_sel:[0,1,0] op_sel_hi:[1,1,1]'
                A(f'v_pk_fma_f32 v[{56+2*d}:{57+2*d}], v[{64+2*d}:{65+2*d}], v[{sp}:{sp+1}], v[{56+2*d}:{57+2*d}] {m}')
    for rot in (8, 4):
        for d in range(8):
            A(f'v_add_f32_dpp v{56+d}, v{56+d}, v{56+d} row_ror:{rot} row_mask:0xf bank_mask:0xf')
    A(f'''v_lshrrev_b32 v7, 4, v{vLANE}
    s_lshl_b32 s40, s{sW}, 2
    v_add_u32 v7, s40, v7
    v_lshlrev_b32 v7, 7, v7
    v_lshl_add_u32 v7, v3, 5, v7
    s_mov_b32 exec_lo, 0x000f000f
    s_mov_b32 exec_hi, 0x000f000f
    ds_write_b128 v7, v[56:59] offset:{lds}
    ds_write_b128 v7, v[60:63] offset:{lds+16}
    s_mov_b64 exec, -1''')
    A.wait_all(vm=False)
    A('s_barrier')
    A(f's_cmp_lg_u32 s{sW}, 0')
    ctx = A.begin_skip('s_cbranch_scc1 {}')
    A(f'''v_lshrrev_b32 v7, 5, v{vLANE}
    v_and_b32 v8, 31, v{vLANE}
    v_lshlrev_b32 v7, 10, v7
    v_lshl_add_u32 v7, v8, 2, v7''')
    for k in range(8):
        A(f'ds_read_b32 v{56+k}, v7 offset:{lds+128*k}')
    A('''v_add_f32 v56, v56, v57
    v_add_f32 v58, v58, v59
    v_add_f32 v60, v60, v61
    v_add_f32 v62, v62, v63
    v_add_f32 v56, v56, v58
    v_add_f32 v60, v60, v62
    v_add_f32 v56, v56, v60
    v_mov_b32 v57, v56
    v_permlane32_swap_b32 v56, v57
    v_add_f32 v56, v56, v57''')
    A(f'''v_cvt_pk_bf16_f32 v56, v56, v56
    v_and_b32 v56, s{sMASKHI}, v56
    s_mul_i32 s40, s{sM}, 57
    s_lshr_b32 s40, s40, 10
    s_cmp_eq_u32 s40, 1
    s_cselect_b32 s41, 1.0, 0
    s_cmp_eq_u32 s40, 4
    s_cselect_b32 s41, 1.0, s41
    v_add_f32 v56, s41, v56
    v_cvt_pk_bf16_f32 v56, v56, v56
    v_and_b32 v56, s{sMASKHI}, v56
    s_lshl_b32 s40, s{sM}, 7
    v_lshlrev_b32 v8, 2, v8
    s_mov_b32 exec_hi, 0
    buffer_store_dword v56, v8, s[16:19], s40 offen offset:{WS_MOD}
    s_mov_b64 exec, -1''')
    A.end_skip(ctx)


def ph_out(A, npart):
    raise NotImplementedError


def ph_final(A, npart, before_loads=None):
    A.comment('==== phase final ====')
    srd(A, 8, sWS, WS_SIZE)
    srd(A, 12, sOUT, S * D * 2)
    A(f'''s_lshr_b32 s40, s{sJ}, 1
    s_and_b32 s41, s{sJ}, 1
    v_lshrrev_b32 v2, 3, v{vLANE}
    v_and_b32 v3, 7, v{vLANE}
    v_lshlrev_b32 v4, 8, v2
    v_lshl_add_u32 v4, v3, 4, v4
    v_lshlrev_b32 v5, 5, v2
    v_mul_u32_u24 v6, 1152, v3
    v_lshl_add_u32 v6, v2, 4, v6
    s_lshl_b32 s43, s{sG}, 3
    s_add_u32 s43, s43, s40
    s_mul_i32 s44, s43, {T16}
    s_lshl_b32 s45, s41, 7
    s_add_u32 s44, s44, s45
    s_add_u32 s44, s44, {WS_X1}
    s_mul_i32 s46, s{sG}, {npart*8*T16}
    s_mul_i32 s47, s40, {T16}
    s_add_u32 s46, s46, s47
    s_add_u32 s46, s46, s45
    s_add_u32 s46, s46, {WS_PART}
    s_lshl_b32 s47, s43, 4
    s_lshl_b32 s48, s41, 3
    s_add_u32 s47, s47, s48
    s_mul_i32 s47, s47, 1152''')

    def slot(sN, base):
        P = base
        X = P + 4 * npart
        G = X + 4
        A(f's_lshl_b32 s50, s{sN}, 11')
        A(f's_add_u32 s51, s46, s50')
        for p in range(npart):
            A(f'buffer_load_dwordx4 v[{P+4*p}:{P+4*p+3}], v4, s[8:11], s51 offen sc1')
            if p + 1 < npart:
                A(f's_add_u32 s51, s51, {8*T16}')
        A(f's_add_u32 s51, s44, s50')
        A(f'buffer_load_dwordx4 v[{X}:{X+3}], v4, s[8:11], s51 offen sc1')
        A(f's_lshl_b32 s51, s{sN}, 8')
        A(f's_add_u32 s51, s51, {WS_MOD+5*576*4}')
        A(f'buffer_load_dwordx4 v[{G}:{G+3}], v5, s[8:11], s51 offen')
        A(f'buffer_load_dwordx4 v[{G+4}:{G+7}], v5, s[8:11], s51 offen offset:16')
        return P, X, G

    def finish(sN, P, X, G, acc, tmp):
        for p in range(npart):
            dst = acc if p == 0 else tmp
            for d in range(4):
                unpack(A, dst + 2 * d, dst + 2 * d + 1, P + 4 * p + d)
            if p:
                for d in range(4):
                    A(f'v_pk_add_f32 v[{acc+2*d}:{acc+2*d+1}], v[{acc+2*d}:{acc+2*d+1}], v[{tmp+2*d}:{tmp+2*d+1}]')
        for d in range(4):
            unpack(A, tmp + 2 * d, tmp + 2 * d + 1, X + d)
        for d in range(4):
            A(f'v_pk_fma_f32 v[{acc+2*d}:{acc+2*d+1}], v[{acc+2*d}:{acc+2*d+1}], v[{G+2*d}:{G+2*d+1}], v[{tmp+2*d}:{tmp+2*d+1}]')
        for d in range(4):
            A(f'v_cvt_pk_bf16_f32 v{X+d}, v{acc+2*d}, v{acc+2*d+1}')
        A(f's_lshl_b32 s50, s{sN}, 7')
        A(f's_add_u32 s50, s50, s47')
        A(f'buffer_store_dwordx4 v[{X}:{X+3}], v6, s[12:15], s50 offen')

    if before_loads:
        before_loads()
    sz = 4 * npart + 12
    acc, tmp = (8, 16) if npart == 16 else (240, 248)
    b0, b1, b2 = 24, 24 + sz, 24 + 2 * sz
    A(f's_add_u32 s52, s{sW}, 4\ns_mov_b32 s53, 8')
    r0 = slot(sW, b0)
    r1 = slot(52, b1)
    A(f's_cmp_lg_u32 s{sW}, 0')
    ctx = A.begin_skip('s_cbranch_scc1 {}')
    r2 = slot(53, b2)
    finish(sW, *r0, acc, tmp)
    finish(52, *r1, acc, tmp)
    finish(53, *r2, acc, tmp)
    fin = A.label('L_fin')
    A.wait_all()
    A(f's_branch {fin}')
    A.end_skip(ctx)
    finish(sW, *r0, acc, tmp)
    finish(52, *r1, acc, tmp)
    A.wait_all()
    A.fence()
    A(fin + ':')
```

```python
import sys
sys.path.insert(0, 'gen')
from common import *
from ph_small import ph_mod, ph_final
import ph_a, ph_b, ph_c, ph_prep

def kernel(name, fn, nwg, lds, vgpr=512, accum=256, spread=4, sv=14):
    A = Asm()
    end = f'L_end_{name}'
    A.uid = {'k1':6000,'k0':0,'ka':1000,'kb':2000,'kc':3000,'kd':4000}.get(name[:2], 5000)
    prologue(A, nwg, end, spread)
    stamp_begin(A, len(Stamps.names), sv)
    fn(A)
    stamp_end(A)
    A.wait_all()
    A(end + ':')
    A('s_endpgm')
    for x in A.tail:
        A._emit(Ins(x))
    A(f'L_{name[:2]}_end:')
    n = {}
    for i in A.out: n[i.kind] = n.get(i.kind, 0) + 1
    print(name, n, 'nops', A.nops_inserted, 'waits', A.waits_inserted, file=sys.stderr)
    return dict(name=name, grid=nwg, block=256, lds=lds, body=A.text(), vgpr=vgpr, accum=accum)

def multi(spread=4):
    ks = [kernel('k0_kernel', ph_prep.ph_prep, ph_prep.N_PREP, ph_prep.PREP_LDS, 136 if Stamps.on else 128, 136 if Stamps.on else 128, spread, 130),
          kernel('ka_kernel', ph_a.ph_a, 256, ph_a.A_LDS, spread=spread, sv=14),
          kernel('kb_kernel', ph_b.ph_b, 256, ph_b.B_LDS, spread=spread, sv=250),
          kernel('kc_kernel', ph_c.ph_c, 256, ph_c.C_LDS, spread=spread, sv=12),
          kernel('kd_kernel', lambda A: ph_final(A, 8 if ph_c.OPT['pairs'] else 16), 256, 0, 256, 256, spread, 255)]
    return ks

def merged_body(A):
    N = 'merged'
    PF = ph_c.OPT.get('usepf', 1)
    if PF:
        ph_c.OPT['pf'] = [(24, 'gu', 18, 36), (44, 'gu', 36, 45), (60, 'd', 0, 27), (80, 'd', 27, 45)]

    def early():
        ph_c.ph_c_setup_s(A)
        ph_c.pf_setup(A)

    def late():
        if PF:
            for x in ph_c.pf_ops('gu', 0, 18):
                A(x)
    ph_a.ph_a_main(A, early, late)
    bg = ph_b.ph_b_dma(A)
    ph_a.ph_a_attn(A, bg)
    stamp(A, 'attn done')
    flag_base(A, 101, 0, sW)
    A(f's_lshl_b32 s40, s{sJ}, 2\ns_add_u32 s101, s101, s40')
    publish(A, 16, 101, 4)
    A('s_barrier')
    stamp(A, 'o published')
    ph_b.ph_b_pre(A)
    ph_c.ph_c_setup_v(A)
    R = ph_c.Ring(A)
    ph_c.ph_c_prefill(A, R, 0, 3)
    A('s_lshr_b32 s40, s5, 1')
    flag_base(A, 101, 0, 40)
    poll(A, 16, 101, 4, 41)
    stamp(A, 'S1')

    def after_stat():
        A('s_barrier')
        ph_c.ph_c_prefill(A, R, 3, 5)
    ph_b.ph_b_main(A, after_stat)
    A('s_lshr_b32 s40, s5, 1')
    flag_base(A, 101, 1, 40)
    A(f's_lshl_b32 s40, s4, 1\ns_and_b32 s41, s{sW}, 1\ns_add_u32 s40, s40, s41\ns_lshl_b32 s40, s40, 2\ns_add_u32 s101, s101, s40')
    publish(A, 16, 101, 4)
    stamp(A, 'h2 published')
    ph_c.ph_c_prefill(A, R, 5, 8)
    xops = ph_c.ph_c_xload(A)
    flag_base(A, 101, 1, sW)
    poll(A, 16, 101, 4, 40)
    stamp(A, 'S2')
    ph_c.ph_c_stream(A, R, 8, xops)
    flag_base(A, 101, 2, sW)
    A(f's_lshl_b32 s40, s{sJ}, 2\ns_add_u32 s101, s101, s40')
    publish(A, 16, 101, 4)
    stamp(A, 'part published')

    def wait3():
        A(f's_lshr_b32 s52, s{sJ}, 2')
        flag_base(A, 101, 2, 52)
        poll(A, 16, 101, 8, 52)
        stamp(A, 'S3')
    if Stamps.on:
        w3 = wait3
        wait3 = lambda: (w3(), A('v_accvgpr_write_b32 a255, v14'))
    ph_final(A, 8 if ph_c.OPT['pairs'] else 16, wait3)
    if Stamps.on:
        A('v_accvgpr_read_b32 v14, a255')


def two(spread=4):
    ph_prep.NEXT[:] = ['k1_kernel', 'L_k1_end']
    return [kernel('k0_kernel', ph_prep.ph_prep, ph_prep.N_PREP, ph_prep.PREP_LDS, 136 if Stamps.on else 128, 136 if Stamps.on else 128, spread, 130),
            kernel('k1_kernel', merged_body, 256, 163840, spread=spread, sv=14)]


if __name__ == '__main__':
    out = sys.argv[1] if len(sys.argv) > 1 else 'v1.s'
    if 'stamp' in sys.argv:
        Stamps.on = True
    for a in sys.argv[2:]:
        if '=' in a:
            k, v = a.split('=')
            ph_c.OPT[k] = int(v)
    open(out, 'w').write(build(two() if 'two' in sys.argv else multi()))
    if Stamps.on:
        import json
        json.dump(Stamps.names, open(out + '.json', 'w'))
```

```python
import re

TRANS = ('v_exp_f32', 'v_log_f32', 'v_rcp_f32', 'v_rsq_f32', 'v_sqrt_f32', 'v_sin_f32', 'v_cos_f32')
REG_RE = re.compile(r'^(-|\|)?(abs\()?([vas])(\d+|\[(\d+):(\d+)\])\)?\|?$')


def regs_of(tok):
    tok = tok.strip()
    if tok in ('vcc',):
        return [('s', 'vcc_lo'), ('s', 'vcc_hi')]
    if tok in ('vcc_lo', 'vcc_hi'):
        return [('s', tok)]
    if tok == 'exec':
        return [('s', 'exec')]
    if tok in ('exec_lo', 'exec_hi'):
        return [('s', 'exec')]
    if tok == 'm0':
        return [('s', 'm0')]
    m = REG_RE.match(tok)
    if not m:
        return []
    k = m.group(3)
    if m.group(5) is not None:
        return [(k, i) for i in range(int(m.group(5)), int(m.group(6)) + 1)]
    return [(k, int(m.group(4)))]


def split_ops(rest):
    out, cur, d = [], '', 0
    for ch in rest:
        if ch == '[' or ch == '(':
            d += 1
        elif ch == ']' or ch == ')':
            d -= 1
        if ch == ',' and d == 0:
            out.append(cur.strip()); cur = ''
        else:
            cur += ch
    if cur.strip():
        out.append(cur.strip())
    mods = []
    if out:
        parts = out[-1].split()
        out[-1] = parts[0]
        mods = parts[1:]
    return out, mods


class Ins:
    def __init__(self, text):
        self.text = text
        self.defs, self.uses = [], []
        self.kind = 'other'
        self.srcc = []
        self.passes = 0
        self.states = 1
        t = text.strip()
        if t.endswith(':'):
            self.kind = 'softlabel' if t.startswith('L_back') else 'label'; self.op = t; self.states = 0
            return
        if t.startswith('.') or t.startswith(';'):
            self.kind = 'directive'; self.op = t; self.states = 0
            return
        sp = t.split(None, 1)
        op = sp[0]
        self.op = op
        ops, mods = split_ops(sp[1]) if len(sp) > 1 else ([], [])
        self.ops, self.mods = ops, mods
        R = [regs_of(o) for o in ops]
        flat = lambda L: [r for x in L for r in x]
        if op.startswith('v_mfma'):
            self.kind = 'mfma'
            self.defs = R[0]; self.uses = flat(R[1:]); self.srcc = R[3]
            self.srca = R[1] + R[2]
            self.passes = 8 if '32x32' in op else 4
        elif op.startswith('v_'):
            self.kind = 'valu'
            base = op.replace('_e32', '').replace('_e64', '').replace('_dpp', '').replace('_sdwa', '')
            self.base = base
            self.dpp = any(m.startswith(('row_', 'quad_perm', 'wave_')) for m in mods) or op.endswith('_dpp')
            if base.startswith('v_cmpx'):
                raise ValueError('no v_cmpx please')
            if base.startswith('v_permlane') and 'swap' in base:
                self.defs = flat(R[:2]); self.uses = flat(R[:2])
            elif base in ('v_add_co_u32', 'v_sub_co_u32', 'v_subrev_co_u32'):
                self.defs = R[0] + R[1]; self.uses = flat(R[2:])
            elif base in ('v_addc_co_u32', 'v_subb_co_u32'):
                self.defs = R[0] + R[1]; self.uses = flat(R[2:])
            else:
                self.defs = R[0]; self.uses = flat(R[1:])
                if base.startswith(('v_fmac', 'v_dot2c', 'v_pk_fmac', 'v_writelane')) or self.dpp:
                    self.uses = self.uses + R[0]
                if base == 'v_cndmask_b32' and len(ops) == 3:
                    self.uses += regs_of('vcc')
            self.trans = base in TRANS
            self.dl = base.startswith('v_dot')
        elif op.startswith('ds_'):
            if op.startswith('ds_read') or op.startswith(('ds_bpermute', 'ds_permute', 'ds_swizzle')):
                self.kind = 'ds'; self.defs = R[0]; self.uses = flat(R[1:])
            else:
                self.kind = 'ds'; self.uses = flat(R)
        elif op.startswith('buffer_') and op not in ('buffer_wbl2', 'buffer_inv'):
            self.kind = 'vmem'
            if 'lds' in mods:
                self.uses = flat(R) + [('s', 'm0')]; self.dma = True
            elif op.startswith('buffer_load'):
                self.defs = R[0]; self.uses = flat(R[1:])
            elif op.startswith('buffer_store'):
                self.uses = flat(R); self.sdata = R[0]
                self.wide = op.endswith(('x3', 'x4'))
            else:
                self.uses = flat(R)
                if 'sc0' in mods:
                    self.defs = R[0]
        elif op in ('buffer_wbl2', 'buffer_inv'):
            self.kind = 'vmem'
        elif op.startswith('global_'):
            self.kind = 'vmem'
            if op.startswith('global_load'):
                self.defs = R[0]; self.uses = flat(R[1:])
            elif op.startswith('global_store'):
                self.uses = flat(R); self.sdata = R[1]
                self.wide = op.endswith(('x3', 'x4'))
            else:
                raise ValueError(op)
        elif op.startswith('s_load') or op in ('s_memtime', 's_memrealtime'):
            self.kind = 'smem'; self.defs = R[0]; self.uses = flat(R[1:])
        elif op == 's_waitcnt':
            self.kind = 'waitcnt'
            self.vm = self.lgkm = None
            m = re.search(r'vmcnt\((\d+)\)', t)
            if m: self.vm = int(m.group(1))
            m = re.search(r'lgkmcnt\((\d+)\)', t)
            if m: self.lgkm = int(m.group(1))
        elif op == 's_nop':
            self.kind = 'nop'; self.states = int(ops[0]) + 1
        elif op == 's_barrier':
            self.kind = 'barrier'
        elif op.startswith('s_cbranch') or op == 's_branch' or op == 's_endpgm':
            self.kind = 'branch'
        elif op.startswith('s_'):
            self.kind = 'salu'
            if op.startswith(('s_cmp', 's_bitcmp', 's_setprio', 's_sleep', 's_sethalt')):
                self.uses = flat(R)
            elif 'saveexec' in op:
                self.defs = R[0] + [('s', 'exec')]; self.uses = flat(R[1:]) + [('s', 'exec')]
            else:
                self.defs = R[0]; self.uses = flat(R[1:])
                if op.startswith(('s_addk', 's_mulk', 's_cmov')):
                    self.uses += R[0]
        else:
            raise ValueError('unknown instruction: ' + text)


def need_states(p, c):
    n = 0
    pd = set(p.defs)
    if p.kind == 'valu':
        vd = {r for r in pd if r[0] in 'va'}
        sd = {r for r in pd if r[0] == 's'}
        if c.kind == 'mfma' and vd & set(c.uses):
            n = max(n, 2)
        if c.kind == 'valu':
            cu = set(c.uses)
            if p.trans and not c.trans and vd & cu:
                n = max(n, 1)
            if c.base.startswith('v_permlane') and vd & cu:
                n = max(n, 2)
            if c.dpp and vd & cu:
                n = max(n, 2)
            if c.base in ('v_readlane_b32', 'v_readfirstlane_b32') and vd & cu:
                n = max(n, 1)
            if sd & cu:
                n = max(n, 4 if c.base in ('v_readlane_b32', 'v_writelane_b32') else 2)
            if p.dl and (vd & cu or vd & set(c.defs)):
                same_c = c.dl and c.base == p.base and not (vd & set(regs_of(c.ops[1]) + regs_of(c.ops[2])))
                if not same_c:
                    n = max(n, 3)
        if c.kind == 'vmem' and sd & set(c.uses):
            n = max(n, 5)
        if c.kind in ('salu', 'smem') and sd & set(c.uses):
            n = max(n, 1)
        if p.dl and c.kind in ('vmem', 'ds', 'mfma') and vd & set(c.uses):
            n = max(n, 3)
    elif p.kind == 'mfma':
        big = p.passes == 8
        if c.kind == 'mfma':
            if pd & set(c.srca):
                n = max(n, 12 if big else 8)
            if pd & set(c.srcc):
                if not (c.srcc == p.defs and c.passes == p.passes):
                    n = max(n, 10 if big else 6)
            elif pd & set(c.defs):
                n = max(n, 10 if big else 6)
        elif c.kind in ('valu', 'vmem', 'ds'):
            if pd & (set(c.uses) | set(c.defs)):
                n = max(n, 12 if big else 8)
            if c.kind == 'valu' and set(p.srcc) & set(c.defs):
                n = max(n, 7 if big else 3)
            if c.kind != 'valu' and set(p.srcc) & set(c.defs):
                n = max(n, 7 if big else 3)
    elif p.kind == 'salu':
        if ('s', 'm0') in pd and c.kind == 'vmem' and ('s', 'm0') in c.uses:
            n = max(n, 1)
    elif p.kind == 'vmem' and getattr(p, 'wide', False):
        if set(p.sdata) & set(c.defs):
            n = max(n, 2 if c.kind == 'valu' else 1)
    return n


class Asm:
    LOOKBACK = 16

    def __init__(self):
        self.out = []
        self.vmq = []
        self.lgq = []
        self.vm_issued = 0
        self.lg_issued = 0
        self.nops_inserted = 0
        self.waits_inserted = 0
        self.uid = 0
        self.junk = None
        self.tail = []

    def label(self, base):
        self.uid += 1
        return f'{base}_{self.uid}'

    def _emit(self, ins):
        self.out.append(ins)

    def _hazard(self, c):
        need = 0
        dist = 0
        for p in reversed(self.out):
            if p.kind in ('label',):
                break
            if p.states == 0:
                continue
            n = need_states(p, c)
            if n > dist:
                need = max(need, n - dist)
            dist += p.states
            if dist >= self.LOOKBACK:
                break
        while need > 0:
            k = min(need, 16)
            self._emit(Ins(f's_nop {k-1}'))
            self.nops_inserted += k
            need -= k

    def _apply_wait(self, vm, lgkm):
        if vm is not None:
            self.vmq = self.vmq[len(self.vmq) - vm:] if vm < len(self.vmq) and vm > 0 else ([] if vm == 0 else self.vmq)
        if lgkm is not None:
            if lgkm == 0:
                self.lgq = []
            elif not any(e['smem'] for e in self.lgq) and lgkm < len(self.lgq):
                self.lgq = self.lgq[len(self.lgq) - lgkm:]

    def _needed(self, regs):
        regs = set(regs)
        vm = lg = None
        for i, e in enumerate(self.vmq):
            if e['defs'] & regs:
                vm = len(self.vmq) - 1 - i
        for i, e in enumerate(self.lgq):
            if e['defs'] & regs:
                lg = len(self.lgq) - 1 - i
        if lg is not None and any(e['smem'] for e in self.lgq):
            lg = 0
        return vm, lg

    def _wait(self, vm, lg):
        if vm is None and lg is None:
            return
        if vm is not None: vm = min(vm, 63)
        if lg is not None: lg = min(lg, 15)
        s = 's_waitcnt'
        if vm is not None: s += f' vmcnt({vm})'
        if lg is not None: s += f' lgkmcnt({lg})'
        self._emit(Ins(s))
        self.waits_inserted += 1
        self._apply_wait(vm, lg)

    def wait_regs(self, regs):
        self._wait(*self._needed(regs))

    def mark(self):
        return self.vm_issued

    def wait_vm_mark(self, mark):
        n = self.vm_issued - mark
        if len(self.vmq) > n:
            self._wait(n, None)

    def wait_all(self, vm=True, lgkm=True):
        v = 0 if (vm and self.vmq) else None
        l = 0 if (lgkm and self.lgq) else None
        self._wait(v, l)

    def one(self, text):
        ins = Ins(text)
        if ins.kind in ('label', 'softlabel', 'directive'):
            self._emit(ins); return
        if ins.kind == 'waitcnt':
            self._emit(ins); self._apply_wait(ins.vm, ins.lgkm); return
        if self.junk is not None:
            if ins.kind == 'vmem' and ins.defs == [self.junk]:
                self.junk_owner = True
                ins.defs = []
            else:
                assert self.junk not in ins.defs and self.junk not in ins.uses, text
        touched = set(ins.defs) | set(ins.uses)
        self._wait(*self._needed(touched))
        self._hazard(ins)
        self._emit(ins)
        if ins.kind == 'vmem':
            self.vmq.append({'defs': set(ins.defs)})
            self.vm_issued += 1
            assert len(self.vmq) <= 63, 'vmcnt overflow'
        elif ins.kind == 'ds':
            self.lgq.append({'defs': set(ins.defs), 'smem': False})
            self.lg_issued += 1
        elif ins.kind == 'smem':
            self.lgq.append({'defs': set(ins.defs), 'smem': True})
            self.lg_issued += 1

    def __call__(self, text):
        for line in text.split('\n'):
            line = line.split(';')[0].strip() if not line.strip().startswith(';') else line.strip()
            if line:
                self.one(line)

    def comment(self, s):
        self._emit(Ins('; ' + s))

    def fence(self):
        need = 0
        dist = 0
        for p in reversed(self.out):
            if p.kind == 'label':
                break
            if p.states == 0:
                continue
            n = {'mfma': 12 if p.passes == 8 else 8, 'valu': 5, 'salu': 1, 'vmem': 2}.get(p.kind, 0)
            need = max(need, n - dist)
            dist += p.states
            if dist >= self.LOOKBACK:
                break
        if need > 0:
            self._emit(Ins(f's_nop {need-1}'))

    def begin_skip(self, branch_text_fmt):
        lab = self.label('L_skip')
        self.fence()
        self.one(branch_text_fmt.format(lab))
        return (lab, list(self.vmq), list(self.lgq), self.vm_issued, self.lg_issued)

    def end_skip(self, ctx):
        lab, vmq, lgq, issued, lgissued = ctx
        new_vm = self.vm_issued != issued
        new_lg = self.lg_issued != lgissued
        self._wait(0 if (new_vm and self.vmq) else None, 0 if (new_lg and self.lgq) else None)
        self.fence()
        self.one(lab + ':')
        self.vmq, self.lgq, self.vm_issued, self.lg_issued = vmq, lgq, issued, lgissued

    def text(self):
        res = []
        for i in self.out:
            res.append(i.text if i.kind in ('label', 'softlabel') else '    ' + i.text)
        return '\n'.join(res)


def vr(b, n=1, k='v'):
    return f'{k}{b}' if n == 1 else f'{k}[{b}:{b+n-1}]'


def ar(b, n=1):
    return vr(b, n, 'a')


def sr(b, n=1):
    return vr(b, n, 's')


def rl(k, b, n):
    return [(k, i) for i in range(b, b + n)]
```

```python
from asmgen import *

S, D, F = 2048, 576, 4608
WS_MOD = 0
WS_FLAG = 0x4000
WS_PF = WS_FLAG + 4 * 4096
WS_ST = WS_PF + 16384
WS_ZEND = WS_ST + 128 * 2048
WS_XH = 0x50000
WS_WQ = WS_XH + 64 * 36864
WQ_J = 36 * 3840
WS_WO = WS_WQ + 16 * WQ_J + 1024
WO_C = 100 * 1024
WS_O = WS_WO + 8 * WO_C
O_G = 8 * 80 * 256
WS_X1 = WS_O + 16 * O_G
T16 = 72 * 256
WS_H2 = WS_X1 + 128 * T16
WS_XT = WS_H2 + 128 * T16
WS_PART = WS_XT + 128 * T16
WS_HX = WS_PART + 128 * 8 * T16
WS_END = WS_HX + 256 * 4 * 18432
assert WS_ZEND <= WS_XH
WS_SIZE = 268435456

sX, sWQKV, sWO, sWG, sWU, sWD, sC = 64, 66, 68, 72, 74, 76, 78
sWMOD, sOUT, sDBG, sWS = 80, 82, 84, 86
sG, sJ, sW = 32, 33, 34
sMASKHI = 35
sHALF = 36
vTID, vLANE = 0, 1

LOG2E = 1.4426950408889634


def fbits(x):
    import struct
    return '0x%08x' % struct.unpack('<I', struct.pack('<f', x))[0]


def prologue(A, nwg, endlabel, xcd_spread=4):
    A(f's_cmp_ge_u32 s2, {nwg}')
    A(f's_cbranch_scc1 {endlabel}')
    A('s_load_dwordx16 s[64:79], s[0:1], 0')
    A('s_load_dwordx8 s[80:87], s[0:1], 64')
    A(f'v_lshrrev_b32 v2, 6, v{vTID}')
    A(f'v_and_b32 v{vLANE}, 63, v{vTID}')
    A(f'v_readfirstlane_b32 s{sW}, v2')
    mapping(A, xcd_spread)
    A(f's_mov_b32 s{sMASKHI}, 0xffff0000')
    A(f's_mov_b32 s{sHALF}, 0')
    A(f's_mov_b32 s{sHALF+1}, -1')


def mapping(A, n):
    if n == 8:
        A(f's_lshr_b32 s{sG}, s2, 4\ns_and_b32 s{sJ}, s2, 15')
    elif n == 4:
        A(f'''s_and_b32 s40, s2, 7
        s_lshr_b32 s{sG}, s40, 2
        s_lshr_b32 s41, s2, 5
        s_lshl_b32 s41, s41, 1
        s_add_u32 s{sG}, s{sG}, s41
        s_and_b32 s{sJ}, s40, 3
        s_lshl_b32 s{sJ}, s{sJ}, 2
        s_lshr_b32 s41, s2, 3
        s_and_b32 s41, s41, 3
        s_add_u32 s{sJ}, s{sJ}, s41''')
    elif n == 2:
        A(f'''s_and_b32 s40, s2, 7
        s_lshr_b32 s{sG}, s40, 1
        s_lshr_b32 s41, s2, 6
        s_lshl_b32 s41, s41, 2
        s_add_u32 s{sG}, s{sG}, s41
        s_and_b32 s{sJ}, s40, 1
        s_lshl_b32 s{sJ}, s{sJ}, 3
        s_lshr_b32 s41, s2, 3
        s_and_b32 s41, s41, 7
        s_add_u32 s{sJ}, s{sJ}, s41''')
    elif n == 1:
        A(f'''s_and_b32 s{sG}, s2, 7
        s_lshl_b32 s{sG}, s{sG}, 1
        s_lshr_b32 s41, s2, 3
        s_and_b32 s41, s41, 1
        s_add_u32 s{sG}, s{sG}, s41
        s_lshr_b32 s{sJ}, s2, 4''')
    else:
        raise ValueError


def srd(A, q, ptr, size, off=0, bias=0):
    d = off - bias
    if d == 0:
        A(f's_mov_b32 s{q}, s{ptr}\ns_mov_b32 s{q+1}, s{ptr+1}')
    elif d > 0:
        A(f's_add_u32 s{q}, s{ptr}, {d}\ns_addc_u32 s{q+1}, s{ptr+1}, 0')
    else:
        A(f's_sub_u32 s{q}, s{ptr}, {-d}\ns_subb_u32 s{q+1}, s{ptr+1}, 0')
    A(f's_mov_b32 s{q+2}, {size + bias}\ns_mov_b32 s{q+3}, 0x20000')


def unpack(A, lo, hi, src):
    A(f'v_lshlrev_b32 v{lo}, 16, v{src}')
    A(f'v_and_b32 v{hi}, s{sMASKHI}, v{src}')


HDR = open('adaLN_cond__sliding_local_dilated__glu_gated_glu__prompt.s.ref').read().split('\n')[:13]


def kd(name, vgpr, accum, sgpr=102):
    return f""".p2align 6
.amdhsa_kernel {name}
  .amdhsa_next_free_vgpr {vgpr}
  .amdhsa_next_free_sgpr {sgpr}
  .amdhsa_accum_offset {accum}
  .amdhsa_group_segment_fixed_size 0
  .amdhsa_kernarg_size 96
  .amdhsa_user_sgpr_count 2
  .amdhsa_user_sgpr_kernarg_segment_ptr 1
  .amdhsa_system_sgpr_workgroup_id_x 1
  .amdhsa_float_denorm_mode_32 3
.end_amdhsa_kernel"""


def build(kernels):
    out = list(HDR)
    for k in kernels:
        out.append(f"; @launch kernel={k['name']} grid=({k['grid']},1,1) block=({k['block']},1,1) lds={k['lds']}")
    out.append('.amdgcn_target "amdgcn-amd-amdhsa--gfx950"')
    out.append('.text')
    seen = set()
    for k in kernels:
        if k['name'] in seen:
            continue
        seen.add(k['name'])
        out.append(f".globl {k['name']}\n.p2align 8\n.type {k['name']},@function\n{k['name']}:")
        out.append(k['body'])
        out.append('')
    out.append('.section .rodata,"a"')
    seen = set()
    for k in kernels:
        if k['name'] in seen:
            continue
        seen.add(k['name'])
        out.append(kd(k['name'], k.get('vgpr', 512), k.get('accum', 256), k.get('sgpr', 102)))
    return '\n'.join(out) + '\n'


WS_STAMP = 0x8000000
class Stamps:
    on = False
    vreg = 14
    n = 0
    names = []
    kidx = 0


def stamp_begin(A, kidx, vreg):
    Stamps.n = 0; Stamps.kidx = kidx; Stamps.vreg = vreg
    Stamps.names.append([])
    if not Stamps.on:
        return
    A(f'v_mov_b32 v{vreg}, 0')
    A('s_memrealtime s[88:89]')
    A(f'v_writelane_b32 v{vreg}, s88, 62')
    stamp(A, 'start')


def stamp(A, name):
    if not Stamps.on:
        return
    A('s_memtime s[88:89]')
    A(f'v_writelane_b32 v{Stamps.vreg}, s88, {Stamps.n}')
    Stamps.names[-1].append(name)
    Stamps.n += 1


def stamp_end(A, again=False):
    if not Stamps.on:
        return
    A.wait_all()
    stamp(A, 'end')
    if again:
        Stamps.names[-1].pop(); Stamps.n -= 1
    A('s_memrealtime s[88:89]')
    A(f'v_writelane_b32 v{Stamps.vreg}, s88, 63')
    srd(A, 8, sWS, WS_SIZE)
    A(f'''s_lshl_b32 s88, s2, 2
    s_add_u32 s88, s88, s{sW}
    s_lshl_b32 s88, s88, 8
    s_add_u32 s88, s88, {WS_STAMP + Stamps.kidx * 0x80000}
    v_lshlrev_b32 v2, 2, v{vLANE}
    buffer_store_dword v{Stamps.vreg}, v2, s[8:11], s88 offen''')


SPIN_MAX = 400000


def flag_base(A, sD, stage, sCls):
    A(f'''s_lshl_b32 s{sD}, s{sG}, 2
    s_add_u32 s{sD}, s{sD}, s{sCls}
    s_lshl_b32 s{sD}, s{sD}, 6
    s_add_u32 s{sD}, s{sD}, {WS_FLAG + stage*4096}''')


def publish(A, srdq, sOff, v0, val=1):
    A('s_waitcnt vmcnt(0)')
    A(f'v_mov_b32 v{v0}, {val}\nv_mov_b32 v{v0+1}, 0\ns_mov_b64 exec, 1')
    A(f'buffer_store_dword v{v0}, v{v0+1}, s[{srdq}:{srdq+3}], s{sOff} offen sc1')
    A('s_mov_b64 exec, -1')


def poll(A, srdq, sOff, v0, sCnt, val=1):
    lab = A.label('L_poll'); done = A.label('L_polled')
    A(f'v_and_b32 v{v0}, 15, v{vLANE}\nv_lshlrev_b32 v{v0}, 2, v{v0}\ns_mov_b32 s{sCnt}, 0')
    A.fence()
    A(lab + ':')
    A(f'buffer_load_dword v{v0+1}, v{v0}, s[{srdq}:{srdq+3}], s{sOff} offen sc1')
    A(f's_add_u32 s{sCnt}, s{sCnt}, 1\ns_cmp_gt_u32 s{sCnt}, {SPIN_MAX}')
    A(f's_cbranch_scc1 {done}')
    A(f'v_cmp_gt_u32 vcc, {val}, v{v0+1}')
    A(f's_cbranch_vccnz {lab}')
    A(done + ':')
    A('s_waitcnt vmcnt(0)')


def code_prefetch(A, label, nbytes_expr, vOff, vDst, sq, ninstr, sBase=None):
    here = A.label('L_pc')
    A(f's_getpc_b64 s[{sq}:{sq+1}]')
    A(here + ':')
    A(f's_add_u32 s{sq}, s{sq}, {label}-{here}')
    A(f's_addc_u32 s{sq+1}, s{sq+1}, (({label}-{here})>>63)&0xffffffff' if False else f's_addc_u32 s{sq+1}, s{sq+1}, 0')
    A(f'v_lshlrev_b32 v{vOff}, 7, v{vLANE}')
    if sBase is not None:
        A(f'v_add_u32 v{vOff}, s{sBase}, v{vOff}')
    for i in range(ninstr):
        if i:
            A(f'v_add_u32 v{vOff}, 8192, v{vOff}')
        A(f'v_min_u32 v{vOff+1}, {nbytes_expr}, v{vOff}')
        A(f'global_load_dword v{vDst+i}, v{vOff+1}, s[{sq}:{sq+1}]')


sPC = 92


def itouch_setup(A, vLine):
    A('s_getpc_b64 s[92:93]')
    A('L_back_pc0:')
    A(f'v_lshlrev_b32 v{vLine}, 7, v{vLANE}')


def itouch(label, vLine, aDst):
    return [f's_add_u32 s94, s92, {label}-L_back_pc0', 's_addc_u32 s95, s93, 0',
            f'global_load_dword {aDst}, v{vLine}, s[94:95]']
```

```python
from common import *

A_WIMG = 0
A_HH = 138240
A_VT = A_HH + 18432
A_LDS = A_VT + 5120
A_KREC = 0
A_VREC = 13824

QLOC = [(0, 0), (0, 1), (0, 2), (0, 3), (1, 0)]
KLOC = [(1, 2), (1, 3), (2, 0), (1, 1), (2, 2)]
VLOC = [(3, 0), (2, 1), (3, 2), (2, 3), (3, 1)]

XB = 16
TAB = 160
CB = 178
TB = 196
HB = 204
vA = 224
vA3 = 227
vAH = 230
vHB = 233
vL16 = 234
vCT = 235
HT = 236
aACC = 0
aHACC = 64
aFR = 80
aHBF = 120
NWI = 34


def mod_table(A, vt, col_b, col_s, srdq=16, V=192):
    A(f'''v_lshlrev_b32 v8, 2, v{vTID}
    v_lshlrev_b32 v9, 2, v{vLANE}
    s_mov_b32 s96, {WS_MOD + 4*col_s}
    s_mov_b32 s97, {WS_MOD + 4*col_b}
    buffer_load_dword v{V}, v8, s[{srdq}:{srdq+3}], s96 offen sc1
    buffer_load_dword v{V+1}, v8, s[{srdq}:{srdq+3}], s96 offen offset:1024 sc1
    buffer_load_dword v{V+2}, v9, s[{srdq}:{srdq+3}], s96 offen offset:2048 sc1
    buffer_load_dword v{V+3}, v8, s[{srdq}:{srdq+3}], s97 offen sc1
    buffer_load_dword v{V+4}, v8, s[{srdq}:{srdq+3}], s97 offen offset:1024 sc1
    buffer_load_dword v{V+5}, v9, s[{srdq}:{srdq+3}], s97 offen offset:2048 sc1
    v_lshrrev_b32 v8, 3, v{vTID}
    v_lshlrev_b32 v8, 6, v8
    v_and_b32 v9, 7, v{vTID}
    v_lshl_add_u32 v8, v9, 2, v8
    v_add_u32 v8, {vt}, v8
    v_lshrrev_b32 v7, 3, v{vLANE}
    v_lshlrev_b32 v7, 6, v7
    v_lshl_add_u32 v9, v9, 2, v7
    v_add_u32 v9, {vt}, v9''')

    def write():
        A(f'''ds_write_b32 v8, v{V}
        ds_write_b32 v8, v{V+1} offset:2048
        ds_write_b32 v9, v{V+2} offset:4096
        ds_write_b32 v8, v{V+3} offset:32
        ds_write_b32 v8, v{V+4} offset:2080
        ds_write_b32 v9, v{V+5} offset:4128''')
    return write


def ph_a_main(A, early=None, late=None):
    A.comment('==== phase A ====')
    srd(A, 16, sWS, WS_SIZE)
    A(f'''v_lshlrev_b32 v{vL16}, 4, v{vLANE}
    s_lshl_b32 s40, s{sG}, 2
    s_add_u32 s40, s40, s{sW}
    s_mul_i32 s40, s40, 36864
    s_add_u32 s40, s40, {WS_XH}
    s_mul_i32 s41, s{sG}, {4*36864}
    s_add_u32 s41, s41, {WS_XH - 36864 + 256}
    s_cmp_eq_u32 s{sG}, 0
    s_cselect_b32 s41, {WS_XH + 256}, s41
    s_lshl_b32 s42, s{sW}, 11
    s_add_u32 s41, s41, s42
    v_lshrrev_b32 v4, 4, v{vLANE}
    v_and_b32 v5, 15, v{vLANE}
    v_lshlrev_b32 v6, 9, v4
    v_lshl_add_u32 v6, v5, 4, v6
    s_mul_i32 s42, s{sJ}, {WQ_J}
    s_lshl_b32 s43, s{sW}, 10
    s_add_u32 s42, s42, s43
    s_add_u32 s42, s42, {WS_WQ}''')
    xq = list(range(36))
    wq = list(range(NWI))
    marks = {}

    def xload():
        s = xq.pop(0)
        if s % 4 == 0:
            A(f's_add_u32 s3, s40, {4096*(s//4)}')
        A(f'buffer_load_dwordx4 v[{XB+4*s}:{XB+4*s+3}], v{vL16}, s[16:19], s3 offen offset:{1024*(s%4)}')

    def issue_w():
        i = wq.pop(0)
        if i == NWI - 1:
            A(f's_min_u32 s5, s{sW}, 2\ns_lshl_b32 s5, s5, 10\ns_sub_u32 s4, s42, s43\ns_add_u32 s4, s4, s5')
            A(f's_add_u32 m0, s5, {4096*i}\ns_add_u32 s4, s4, {4096*i}')
        else:
            A(f's_add_u32 m0, s43, {4096*i}\ns_add_u32 s4, s42, {4096*i}')
        A(f'buffer_load_dwordx4 v{vL16}, s[16:19], s4 offen lds')
        marks[i] = A.mark()

    def halo_load(i):
        if i < 4:
            A(f's_add_u32 s6, s41, {8192*i}')
        else:
            A(f's_min_u32 s4, s{sW}, 1\ns_sub_u32 s4, s4, s{sW}\ns_lshl_b32 s4, s4, 11')
            A(f's_add_u32 s6, s41, s4\ns_add_u32 s6, s6, {8192*4}')
        A(f'buffer_load_dwordx4 v[{HB+4*i}:{HB+4*i+3}], v6, s[16:19], s6 offen')

    A(f's_add_u32 m0, s43, {A_VT}\ns_add_u32 s4, s43, {WS_MOD}')
    A(f'buffer_load_dwordx4 v{vL16}, s[16:19], s4 offen lds')
    A(f's_mov_b32 m0, {A_VT + 4096}\ns_mov_b32 s4, {WS_MOD + 4096}')
    A(f'buffer_load_dwordx4 v{vL16}, s[16:19], s4 offen lds')
    mkt = A.mark()
    xload()
    for i in range(5):
        halo_load(i)
    for k in range(3):
        issue_w()
    mk0 = A.mark()
    for k in range(3):
        xload()
    for k in range(4):
        issue_w()
    if early:
        early()
    A(f'''v_lshrrev_b32 v7, 5, v{vLANE}
    v_and_b32 v10, 31, v{vLANE}
    v_min_u32 v11, 23, v10
    v_mul_u32_u24 v12, 24, v7
    v_add_u32 v11, v11, v12
    v_lshlrev_b32 v11, 4, v11
    v_add_u32 v11, 3072, v11
    v_add_u32 v12, s43, v{vL16}
    s_cmp_eq_u32 s{sW}, 3
    s_cselect_b64 vcc, -1, 0
    v_cndmask_b32 v12, v12, v11, vcc''')
    for wd in range(3):
        A(f'v_add_u32 v{vA+wd}, {61440*wd}, v{vL16}')
        A(f'v_add_u32 v{vA3+wd}, {61440*wd}, v11')
        A(f'v_add_u32 v{vAH+wd}, {61440*wd}, v12')
    A(f'''v_and_b32 v10, 15, v{vLANE}
    v_lshlrev_b32 v10, 4, v10
    v_lshl_add_u32 v10, v7, 8, v10
    v_add_u32 v{vHB}, {A_HH}, v10
    v_and_b32 v10, 7, v5
    v_lshlrev_b32 v10, 2, v10
    v_lshrrev_b32 v11, 3, v5
    v_lshl_add_u32 v8, v11, 6, v10
    v_lshl_add_u32 v8, v7, 5, v8
    v_add_u32 v8, {A_VT + 2304}, v8
    v_lshlrev_b32 v{vCT}, 5, v7
    v_add_u32 v{vCT}, {A_VT}, v{vCT}
    s_lshl_b32 s4, s{sW}, 7
    s_add_u32 s4, s4, {A_VT}
    v_lshlrev_b32 v9, 5, v4
    v_add_u32 v9, s4, v9
    v_add_u32 v10, v9, v10
    v_add_u32 v5, s43, v{vL16}
    v_add_u32 v5, {A_HH}, v5
    s_min_u32 s5, s{sW}, 1
    s_sub_u32 s5, s5, s{sW}
    s_lshl_b32 s6, s5, 7
    v_add_u32 v6, s6, v9
    v_add_u32 v11, s6, v10
    s_lshl_b32 s6, s5, 10
    v_add_u32 v7, s6, v5''')
    A.wait_vm_mark(mkt)
    A('s_barrier')
    stamp(A, 'table')

    def bread(s, z):
        c = CB + 8 * (s & 1) + 4 * z
        return f'ds_read_b128 v[{c}:{c+3}], v{vCT} offset:{64*s+16*z}'
    A(f'ds_read_b32 v{TAB}, v8')
    A(bread(0, 0)); A(bread(0, 1))
    HC = XB + 64
    for i in range(5):
        A(f'ds_read_b32 v{HT+i}, v{10 if i < 4 else 11} offset:{2304+512*i}')
        for z in range(2):
            A(f'ds_read_b128 v[{HC+8*i+4*z}:{HC+8*i+4*z+3}], v{9 if i < 4 else 6} offset:{512*i+16*z}')
    A(bread(1, 0)); A(bread(1, 1))
    for t in range(1, 18):
        A(f'ds_read_b32 v{TAB+t}, v8 offset:{128*t}')

    def norm_ops(r, tab, lane0, c):
        ops = []
        for d in range(4):
            ops.append(f'v_lshlrev_b32 v{TB+2*d}, 16, v{r+d}')
            ops.append(f'v_and_b32 v{TB+2*d+1}, s{sMASKHI}, v{r+d}')
        for e in range(8):
            ops.append(f'v_fmac_f32_dpp v{c+e}, v{tab}, v{TB+e} row_newbcast:{lane0+e} row_mask:0xf bank_mask:0xf')
        for d in range(4):
            ops.append(f'v_cvt_pk_bf16_f32 v{r+d}, v{c+2*d}, v{c+2*d+1}')
        return ops

    def norm_main(s):
        return norm_ops(XB + 4 * s, TAB + s // 2, 8 * (s & 1), CB + 8 * (s & 1))
    for x in norm_main(0):
        A(x)
    for i in range(5):
        for x in norm_ops(HB + 4 * i, HT + i, 0, HC + 8 * i):
            A(x)
        A(f'ds_write_b128 v{5 if i < 4 else 7}, v[{HB+4*i}:{HB+4*i+3}] offset:{4096*i}')
        if i < 2:
            issue_w()
        else:
            xload()

    def aread(m):
        s, T = divmod(m, 5)
        f = aFR + 4 * (m % 10)
        wd, sl = divmod(s, 16)
        if T < 3:
            return f'ds_read_b128 a[{f}:{f+3}], v{vA+wd} offset:{3840*sl+1024*T}'
        return f'ds_read_b128 a[{f}:{f+3}], v{(vA3 if T == 3 else vAH)+wd} offset:{3840*sl}'

    def hread(s):
        f = aHBF + 4 * (s & 1)
        return f'ds_read_b128 a[{f}:{f+3}], v{vHB} offset:{512*s}'

    BS = (0, 3, 6, 10, 14, 18, 22, 26, 30, 33, 36)
    NEED = {BS[q]: (3840 * BS[q + 1] - 1) // 4096 for q in range(len(BS) - 1)}

    def boundary(s):
        A.wait_vm_mark(mk0 if s == 0 else marks[NEED[s]])
        if s == 0:
            A.wait_all(vm=False)
        A('s_barrier')
    boundary(0)
    stamp(A, 'first data')
    for m in range(5):
        A(aread(m))
    A(hread(0))
    for s in range(36):
        nops = norm_main(s + 1) if s + 1 < 36 else []
        for T in range(5):
            m = 5 * s + T
            f = aFR + 4 * (m % 10)
            if T < 4:
                acc = aACC + 16 * T
                b = f'v[{XB+4*s}:{XB+4*s+3}]'
            else:
                acc = aHACC
                b = f'a[{aHBF+4*(s&1)}:{aHBF+4*(s&1)+3}]'
            cin = '0' if s == 0 else f'a[{acc}:{acc+15}]'
            if T in (0, 2):
                regs = rl('a', f, 4) + rl('a', aFR + 4 * ((m + 1) % 10), 4)
                if T == 2:
                    regs += rl('a', aFR + 4 * ((m + 2) % 10), 4) + rl('a', aHBF + 4 * (s & 1), 4)
                A.wait_regs(regs)
            A(f'v_mfma_f32_32x32x16_bf16 a[{acc}:{acc+15}], a[{f}:{f+3}], {b}, {cin}')
            if m + 5 < 180:
                if T == 0 and s + 1 in NEED:
                    boundary(s + 1)
                A(aread(m + 5))
            if T == 0 and s + 1 < 36:
                A(hread(s + 1))
            if T in (1, 2) and s + 2 < 36:
                A(bread(s + 2, T - 1))
            for x in nops[(0, 4, 8, 12, 16)[T]:(4, 8, 12, 16, 20)[T]]:
                A(x)
            if T == 0 and xq:
                xload()
            if T == 3 and wq:
                issue_w()
            if late and T == 3 and s == 30:
                late()


def ph_a_attn(A, bg=()):
    bg = list(bg)

    def idle(n=1):
        for _ in range(n):
            if bg:
                A(bg.pop(0))

    stamp(A, 'gemm done')
    Q, KO, TM, KN, VN, OA, L = 16, 28, 40, 60, 144, 224, 244
    vK, vV, vO, vKh, vVh, vTok = 252, 253, 9, 10, 2, 3
    A(f'''v_lshrrev_b32 v4, 5, v{vLANE}
    v_and_b32 v5, 31, v{vLANE}
    v_mul_u32_u24 v6, 144, v4
    v_add_u32 v6, v6, v5
    v_mul_u32_u24 v{vKh}, 48, v6
    v_mul_u32_u24 v{vVh}, 80, v6
    v_add_u32 v{vVh}, {A_VREC}, v{vVh}
    s_mul_i32 s96, s{sW}, {32*48}
    s_add_u32 s96, s96, 96
    v_add_u32 v{vK}, s96, v{vKh}
    s_mul_i32 s96, s{sW}, {32*80}
    s_add_u32 s96, s96, 160
    v_add_u32 v{vV}, s96, v{vVh}
    s_lshl_b32 s96, s{sG}, 2
    s_add_u32 s96, s96, s{sW}
    s_lshl_b32 s96, s96, 5
    v_add_u32 v{vTok}, s96, v5''')
    for m in range(5):
        T, i = KLOC[m]
        for jj in range(4):
            A(f'v_accvgpr_read_b32 v{TM+4*m+jj}, a{aACC+16*T+4*i+jj}')
    for d in range(10):
        A(f'v_cvt_pk_bf16_f32 v{KO+d}, v{TM+2*d}, v{TM+2*d+1}')
    A(f'v_mov_b32 v{KO+10}, 0\nv_mov_b32 v{KO+11}, 0')
    A('s_barrier')
    for z in range(3):
        A(f'ds_write_b128 v{vK}, v[{KO+4*z}:{KO+4*z+3}] offset:{14*48+16*z}')
    for m in range(5):
        T, i = VLOC[m]
        r = aACC + 16 * T + 4 * i
        A(f'ds_write_b128 v{vV}, a[{r}:{r+3}] offset:{14*80+16*m}')
    idle(3)
    for w in (1, 2, 3):
        A(f's_cmp_lg_u32 s{sW}, {w}')
        ctx = A.begin_skip('s_cbranch_scc1 {}')
        A('s_mov_b32 exec_lo, 0xffff\ns_mov_b32 exec_hi, 0xffff')
        for m in range(5):
            T, i = KLOC[m]
            if T == w:
                for jj in range(4):
                    A(f'v_accvgpr_read_b32 v{TM+jj}, a{aHACC+4*i+jj}')
                A(f'v_cvt_pk_bf16_f32 v{TM+4}, v{TM}, v{TM+1}\nv_cvt_pk_bf16_f32 v{TM+5}, v{TM+2}, v{TM+3}')
                A(f'ds_write_b64 v{vKh}, v[{TM+4}:{TM+5}] offset:{8*m}')
                A('s_nop 1')
            T, i = VLOC[m]
            if T == w:
                A(f'ds_write_b128 v{vVh}, a[{aHACC+4*i}:{aHACC+4*i+3}] offset:{16*m}')
        A('s_mov_b64 exec, -1')
        A.end_skip(ctx)
    for m in range(5):
        T, i = QLOC[m]
        for jj in range(4):
            A(f'v_accvgpr_read_b32 v{TM+4*m+jj}, a{aACC+16*T+4*i+jj}')
    for e in (0, 1):
        A(f'v_cndmask_b32 v{TM+e}, v{TM+e}, 0, s[{sHALF}:{sHALF+1}]')
        A(f'v_cndmask_b32 v{TM+18+e}, 0, v{TM+18+e}, s[{sHALF}:{sHALF+1}]')
    for d in range(10):
        A(f'v_cvt_pk_bf16_f32 v{Q+d}, v{TM+2*d}, v{TM+2*d+1}')
    for m in range(5):
        T, i = VLOC[m]
        for jj in range(4):
            A(f'v_accvgpr_read_b32 v{OA+4*m+jj}, a{aACC+16*T+4*i+jj}')
    idle(3)
    A.wait_all(vm=False)
    A('s_barrier')
    for w in range(1, 8):
        for z in range(3):
            r = KN + 12 * (w - 1) + 4 * z
            A(f'ds_read_b128 v[{r}:{r+3}], v{vK} offset:{(14-2*w)*48+16*z}')

    def vread(w, base):
        for z in range(5):
            A(f'ds_read_b128 v[{base+4*z}:{base+4*z+3}], v{vV} offset:{(14-2*w)*80+16*z}')
    vb = {w: VN + 20 * (w - 1) for w in range(1, 5)}
    vb.update({w: KN + 20 * (w - 5) for w in range(5, 8)})
    for ws in ((0, 1, 2, 3), (4, 5, 6, 7)):
        for d in range(10):
            for w in ws:
                k = (KO if w == 0 else KN + 12 * (w - 1)) + d
                c = '0' if d == 0 else f'v{L+w}'
                A(f'v_dot2_f32_bf16 v{L+w}, v{Q+d}, v{k}, {c}')
            if d % 3 == 0:
                idle()
        if ws[0] == 0:
            for w in range(1, 5):
                vread(w, vb[w])
    for w in range(5, 8):
        vread(w, vb[w])
    A(f's_mov_b32 s96, {fbits(18 ** -0.5 * LOG2E)}')
    A(f's_mov_b32 s97, {fbits(-1e9)}')
    for w in range(8):
        A(f'v_mul_f32 v{L+w}, s96, v{L+w}')
    A(f'v_mov_b32 v4, s97')
    for w in range(1, 8):
        A(f'v_cmp_le_u32 vcc, {2*w}, v{vTok}')
        A(f'v_cndmask_b32 v{L+w}, v4, v{L+w}, vcc')
    A(f'''v_max3_f32 v4, v{L}, v{L+1}, v{L+2}
    v_max3_f32 v5, v{L+3}, v{L+4}, v{L+5}
    v_max3_f32 v4, v4, v{L+6}, v{L+7}
    v_max_f32 v4, v4, v5''')
    for w in range(8):
        A(f'v_sub_f32 v{L+w}, v{L+w}, v4')
    for w in range(8):
        A(f'v_exp_f32 v{L+w}, v{L+w}')
    A(f'''v_add_f32 v4, v{L}, v{L+1}
    v_add_f32 v5, v{L+2}, v{L+3}
    v_add_f32 v6, v{L+4}, v{L+5}
    v_add_f32 v7, v{L+6}, v{L+7}
    v_add_f32 v4, v4, v5
    v_add_f32 v6, v6, v7
    v_add_f32 v4, v4, v6
    v_rcp_f32 v4, v4''')
    for w in range(8):
        A(f'v_mul_f32 v{L+w}, v{L+w}, v4')
    idle(3)
    for w in range(8):
        idle()
        lp = L + (w & ~1)
        for d in range(10):
            o = OA + 2 * d
            if w == 0:
                A(f'v_pk_mul_f32 v[{o}:{o+1}], v[{o}:{o+1}], v[{lp}:{lp+1}] op_sel_hi:[1,0]')
            else:
                m = 'op_sel_hi:[1,0,1]' if w % 2 == 0 else 'op_sel:[0,1,0] op_sel_hi:[1,1,1]'
                v = vb[w] + 2 * d
                A(f'v_pk_fma_f32 v[{o}:{o+1}], v[{v}:{v+1}], v[{lp}:{lp+1}], v[{o}:{o+1}] {m}')
    for d in range(10):
        A(f'v_cvt_pk_bf16_f32 v{TM+d}, v{OA+2*d}, v{OA+2*d+1}')
    idle(100)
    OUT, E = 16, 24
    for d in range(9):
        A(f'v_cndmask_b32 v{OUT+d}, v{TM+d}, v{TM+d+1}, s[{sHALF}:{sHALF+1}]')
    A(f'''v_mov_b32 v{E+1}, v{E}
    v_mov_b32 v{E+2}, 0
    v_mov_b32 v{E+3}, 0
    v_permlane32_swap_b32 v{E}, v{E+1}''')
    A(f'''v_bfe_u32 v4, v{vLANE}, 4, 1
    v_mul_u32_u24 v4, 20480, v4
    v_and_b32 v5, 15, v{vLANE}
    v_lshl_add_u32 v4, v5, 4, v4
    v_lshrrev_b32 v5, 5, v{vLANE}
    v_lshl_add_u32 v{vO}, v5, 9, v4
    s_mul_i32 s96, s{sG}, {O_G}
    s_mul_i32 s97, s{sW}, 40960
    s_add_u32 s96, s96, s97
    s_mul_i32 s97, s{sJ}, 1280
    s_add_u32 s96, s96, s97
    s_add_u32 s96, s96, {WS_O}
    buffer_store_dwordx4 v[{OUT}:{OUT+3}], v{vO}, s[16:19], s96 offen sc1
    buffer_store_dwordx4 v[{OUT+4}:{OUT+7}], v{vO}, s[16:19], s96 offen offset:256 sc1
    s_mov_b32 exec_hi, 0
    buffer_store_dwordx4 v[{E}:{E+3}], v{vO}, s[16:19], s96 offen offset:1024 sc1
    s_mov_b32 exec_hi, -1''')


def ph_a(A):
    ph_a_main(A)
    ph_a_attn(A)
```

```python
from common import *

B_IMG = 61440
B_LDS = B_IMG + WO_C


def ph_b_dma(A, srdq=16):
    A.comment('==== phase B: wo image ====')
    A(f'''s_and_b32 s40, s{sJ}, 7
    s_mul_i32 s40, s40, {WO_C}
    s_lshl_b32 s41, s{sW}, 10
    s_add_u32 s40, s40, s41
    s_add_u32 s40, s40, {WS_WO}
    s_add_u32 s41, s41, {B_IMG}
    v_lshlrev_b32 v8, 4, v{vLANE}''')
    return [f's_add_u32 m0, s41, {4096*i}\ns_add_u32 s42, s40, {4096*i}\nbuffer_load_dwordx4 v8, s[{srdq}:{srdq+3}], s42 offen lds' for i in range(25)]


OB, XR, GA, SC, SH, ACC, TM = 16, 96, 108, 128, 148, 168, 188
PK = 240
vL16, vX1, vST, vA, vVEC = 238, 239, 252, 253, 12
B_VEC = 49152
sgX = 28


def ph_b_pre(A):
    A(f'''s_lshr_b32 s3, s{sJ}, 3
    s_and_b32 s4, s{sJ}, 7
    v_lshlrev_b32 v{vL16}, 4, v{vLANE}
    s_lshl_b32 s5, s3, 2
    s_add_u32 s5, s5, s{sW}
    s_mul_i32 s6, s5, 20480
    s_mul_i32 s7, s{sG}, {O_G}
    s_add_u32 s6, s6, s7
    s_add_u32 s6, s6, {WS_O}
    v_and_b32 v4, 15, v{vLANE}
    v_lshrrev_b32 v5, 4, v{vLANE}
    v_and_b32 v8, 1, v5
    v_lshlrev_b32 v8, 1, v8
    v_lshrrev_b32 v9, 1, v5
    v_or_b32 v8, v8, v9
    v_lshlrev_b32 v8, 8, v8
    v_lshl_add_u32 v{vX1}, v4, 4, v8
    v_lshlrev_b32 v{vST}, 4, v4
    s_lshl_b32 s39, s{sG}, 3
    s_add_u32 s39, s39, s5
    s_mul_i32 s96, s39, {T16}
    s_mul_i32 s97, s4, 2304
    s_add_u32 s96, s96, s97
    s_add_u32 s7, s96, {WS_XT}
    s_add_u32 s96, s96, {WS_X1}
    v_mul_u32_u24 v6, 57, v{vLANE}
    v_lshrrev_b32 v6, 10, v6
    v_mul_u32_u24 v6, {2304-288}, v6
    v_add_u32 v6, v6, v{vL16}
    s_mul_i32 s38, s4, 288
    s_add_u32 s38, s38, {WS_MOD + 4*1152}
    s_mov_b32 m0, {B_VEC}
    s_mov_b32 exec_hi, 0x3fffff
    buffer_load_dwordx4 v6, s[16:19], s38 offen lds
    s_mov_b32 exec_hi, -1''')
    mk = A.mark()
    for z in range(3):
        A(f'buffer_load_dwordx4 v[{XR+4*z}:{XR+4*z+3}], v{vX1}, s[16:19], s7 offen offset:{1024*z}')
    A(f'''v_add_u32 v{vA}, {B_IMG}, v{vL16}
    v_lshlrev_b32 v{vVEC}, 4, v5
    v_add_u32 v{vVEC}, {B_VEC}, v{vVEC}
    s_lshl_b32 s97, s39, 11
    s_add_u32 s97, s97, {WS_ST}
    s_lshl_b32 s98, s4, 8
    s_add_u32 s98, s98, s97''')
    return mk


def ph_b_vec(A):
    for base, off in ((GA, 0), (SH, 288), (SC, 576)):
        for T in range(5):
            A(f'ds_read_b128 v[{base+4*T}:{base+4*T+3}], v{vVEC} offset:{off+64*T}')
    for bb in (0, 4, 8):
        A(f'v_permlane16_swap_b32 v{XR+bb}, v{XR+bb+2}')
        A(f'v_permlane16_swap_b32 v{XR+bb+1}, v{XR+bb+3}')
    A(f's_mov_b32 s99, {fbits(-LOG2E)}')
    for e in range(20):
        A(f'v_mul_f32 v{SH+e}, s99, v{SH+e}')


def ph_b_main(A, after_stat=None):
    A.comment('==== phase B ====')
    aFR = 0
    for k in range(20):
        A(f'buffer_load_dwordx4 v[{OB+4*k}:{OB+4*k+3}], v{vL16}, s[16:19], s6 offen offset:{1024*(k%4)} sc1')
        if k % 4 == 3 and k < 19:
            A('s_add_u32 s6, s6, 4096')
    NB, LA = 8, 6

    def read(m):
        f = aFR + 4 * (m % NB)
        if m == 60:
            A(f'v_add_u32 v{vA}, 61440, v{vA}')
        return f'ds_read_b128 a[{f}:{f+3}], v{vA} offset:{(m % 60)*1024}'
    for m in range(LA):
        A(read(m))
    for m in range(100):
        k, T = divmod(m, 5)
        f = aFR + 4 * (m % NB)
        acc = ACC + 4 * T
        cin = '0' if k == 0 else f'v[{acc}:{acc+3}]'
        if m % 2 == 0:
            A.wait_regs(rl('a', f, 4) + rl('a', aFR + 4 * ((m + 1) % NB), 4))
        A(f'v_mfma_f32_16x16x32_bf16 v[{acc}:{acc+3}], a[{f}:{f+3}], v[{OB+4*k}:{OB+4*k+3}], {cin}')
        if m + LA < 100:
            A(read(m + LA))
        if m < 10:
            unpack(A, TM + 2 * m, TM + 2 * m + 1, XR + m)
    stamp(A, 'gemm done')
    for u in range(10):
        t = TM + 2 * u
        A(f'v_pk_fma_f32 v[{t}:{t+1}], v[{ACC+2*u}:{ACC+2*u+1}], v[{GA+2*u}:{GA+2*u+1}], v[{t}:{t+1}]')
    for u in range(10):
        A(f'v_cvt_pk_bf16_f32 v{PK+u}, v{TM+2*u}, v{TM+2*u+1}')
    for u in range(10):
        unpack(A, TM + 2 * u, TM + 2 * u + 1, PK + u)
    a, b = 8, 40

    def allsum(r, t):
        A(f'''v_mov_b32 v{t}, v{r}
        v_permlane16_swap_b32 v{r}, v{t}
        v_add_f32 v{r}, v{r}, v{t}
        v_mov_b32 v{t}, v{r}
        v_permlane32_swap_b32 v{r}, v{t}
        v_add_f32 v{r}, v{r}, v{t}''')
    A(f'v_pk_add_f32 v[{a}:{a+1}], v[{TM}:{TM+1}], v[{TM+2}:{TM+3}]')
    for u in range(2, 10):
        if u == 8:
            A('s_mov_b32 exec_hi, 0')
        A(f'v_pk_add_f32 v[{a}:{a+1}], v[{a}:{a+1}], v[{TM+2*u}:{TM+2*u+1}]')
    A('s_mov_b32 exec_hi, -1')
    A(f'v_add_f32 v{a}, v{a}, v{a+1}')
    allsum(a, a + 1)
    A(f's_mov_b32 s99, {fbits(1.0/72)}\nv_mul_f32 v{a}, s99, v{a}')
    DV = ACC
    for u in range(10):
        A(f'v_pk_add_f32 v[{DV+2*u}:{DV+2*u+1}], v[{TM+2*u}:{TM+2*u+1}], v[{a}:{a+1}] op_sel_hi:[1,0] neg_lo:[0,1] neg_hi:[0,1]')
    A(f'v_pk_mul_f32 v[{b}:{b+1}], v[{DV}:{DV+1}], v[{DV}:{DV+1}]')
    for u in range(1, 10):
        if u == 8:
            A('s_mov_b32 exec_hi, 0')
        t = DV + 2 * u
        A(f'v_pk_fma_f32 v[{b}:{b+1}], v[{t}:{t+1}], v[{t}:{t+1}], v[{b}:{b+1}]')
    A('s_mov_b32 exec_hi, -1')
    A(f'v_add_f32 v{b}, v{b}, v{b+1}')
    allsum(b, b + 1)
    A(f'v_mov_b32 v{a+1}, v{b}\nv_mov_b32 v{a+2}, 1\nv_mov_b32 v{a+3}, 0')
    A('s_mov_b64 exec, 0xffff')
    A(f'buffer_store_dwordx4 v[{a}:{a+3}], v{vST}, s[16:19], s98 offen sc1')
    A('s_mov_b64 exec, -1')
    if after_stat:
        after_stat()

    def swap_store(P, sOff):
        A(f'v_mov_b32 v{P+10}, v{P+8}\nv_mov_b32 v{P+11}, v{P+9}')
        for bb in (0, 4, 8):
            A(f'v_permlane16_swap_b32 v{P+bb}, v{P+bb+2}')
            A(f'v_permlane16_swap_b32 v{P+bb+1}, v{P+bb+3}')
        A(f'buffer_store_dwordx4 v[{P}:{P+3}], v{vX1}, s[16:19], s{sOff} offen sc1')
        A(f'buffer_store_dwordx4 v[{P+4}:{P+7}], v{vX1}, s[16:19], s{sOff} offen offset:1024 sc1')
        A('s_mov_b64 exec, 0xffff')
        A(f'buffer_store_dwordx4 v[{P+8}:{P+11}], v{vX1}, s[16:19], s{sOff} offen offset:2048 sc1')
        A('s_mov_b64 exec, -1')
    G0, G1 = 32, 36
    lab = A.label('L_stat'); done = A.label('L_statd')
    A('s_mov_b32 s100, 0')
    A.fence()
    A(lab + ':')
    A(f'buffer_load_dwordx4 v[{G0}:{G0+3}], v{vL16}, s[16:19], s97 offen sc1')
    A(f'buffer_load_dwordx4 v[{G1}:{G1+3}], v{vL16}, s[16:19], s97 offen offset:1024 sc1')
    A(f's_add_u32 s100, s100, 1\ns_cmp_gt_u32 s100, {SPIN_MAX}')
    A(f's_cbranch_scc1 {done}')
    A(f'v_and_b32 v4, v{G0+2}, v{G1+2}')
    A('v_cmp_eq_u32 vcc, 0, v4')
    A(f's_cbranch_vccnz {lab}')
    A(done + ':')
    A('s_waitcnt vmcnt(0)')
    stamp(A, 'stats in')
    swap_store(PK, 96)
    A(f'v_add_f32 v{a}, v{G0}, v{G1}')
    allsum(a, a + 1)
    A(f'''v_mul_f32 v{a}, {fbits(0.125)}, v{a}
    v_sub_f32 v{G0}, v{G0}, v{a}
    v_sub_f32 v{G1}, v{G1}, v{a}
    v_mul_f32 v{G0}, v{G0}, v{G0}
    v_fmac_f32 v{G0}, v{G1}, v{G1}
    v_add_f32 v{b}, v{G0+1}, v{G1+1}
    s_mov_b32 s99, {fbits(72.0)}
    v_fmac_f32 v{b}, s99, v{G0}''')
    allsum(b, b + 1)
    A(f'''s_mov_b32 s99, {fbits(1.0/576)}
    v_mov_b32 v{b+1}, {fbits(1e-5)}
    v_fmac_f32 v{b+1}, s99, v{b}
    v_rsq_f32 v{b}, v{b+1}''')
    for u in range(10):
        t = TM + 2 * u
        A(f'v_pk_add_f32 v[{t}:{t+1}], v[{t}:{t+1}], v[{a}:{a+1}] op_sel_hi:[1,0] neg_lo:[0,1] neg_hi:[0,1]')
    A(f's_mov_b32 s99, {fbits(-LOG2E)}\nv_mul_f32 v{b}, s99, v{b}')
    for u in range(10):
        t = TM + 2 * u
        A(f'v_pk_mul_f32 v[{t}:{t+1}], v[{t}:{t+1}], v[{b}:{b+1}] op_sel_hi:[1,0]')
    for u in range(10):
        t = TM + 2 * u
        A(f'v_pk_fma_f32 v[{t}:{t+1}], v[{t}:{t+1}], v[{SC+2*u}:{SC+2*u+1}], v[{SH+2*u}:{SH+2*u+1}]')
    P2 = OB
    for u in range(10):
        A(f'v_cvt_pk_bf16_f32 v{P2+u}, v{TM+2*u}, v{TM+2*u+1}')
    A(f's_add_u32 s96, s96, {WS_H2 - WS_X1}')
    swap_store(P2, 96)


def ph_b(A):
    srd(A, 16, sWS, WS_SIZE)
    for x in ph_b_dma(A):
        A(x)
    ph_b_pre(A)
    A.wait_all()
    A('s_barrier')
    ph_b_vec(A)
    stamp(A, 'img landed')
    ph_b_main(A)
```

```python
from common import *
import sys

NS = 10
WIN = 4
C_LDS = NS * 16384
BIAS = 4096

ACC = 16
HB = 144
vF = 216
vH = 228
vDG, vDH, vDD, vDE = 234, 235, 236, 237
vL16, vOUT = 238, 239
TMP = 240
OUTT = 248
aX = 0
aPH = 144
aFR = 216
sgG, sgU, sgGH, sgD, sgWS = 8, 12, 20, 24, 16

vT1, vT2 = 4, 5
OPT = dict(dma=True, fill=True, barrier=True, reads=True, pairs=False, NB=10, LA=6, wstep=4, bper=2, xburst=8, xpace=5, dlag=16, prefill=6,
           rush={0: 70, 1: 106, 2: 142, 3: 162, 4: 172}, pubdelay=64, pub3delay=128, pub3=1, sched=0, pf=[], touch=[], itouch=[], hxst=1, hxpub=1, hxld=1, outst=1,
           checks=[(1, (0, 1), 122, 128), (2, (2,), 154, 159), (3, (3,), 176, 182), (4, (4,), 184, 189)])


def steps():
    st = []
    for p in range(4):
        for k in range(18):
            st.append(dict(kind='g', p=p, k=k))
            st.append(dict(kind='u', p=p, k=k))
    for k in range(18):
        st.append(dict(kind='gh', p=4, k=k))

    def dn(db, ks, who=0):
        for a in ks:
            st.append(dict(kind='dn', p=db, a=a, who=who))
    if not OPT['pairs']:
        ND = 3
        for db in range(ND):
            dn(db, range(6))
        for db in range(ND):
            dn(db, range(6, 9))
        for db in range(ND, 9):
            dn(db, range(9))
    else:
        dn(0, range(6)); dn(0, range(6), 1)
        dn(1, range(6)); dn(1, range(6), 1)
        dn(0, range(6, 9)); dn(1, range(6, 9))
        if OPT['sched'] == 0:
            dn(0, range(6, 9), 1); dn(1, range(6, 9), 1)
            dn(2, range(9)); dn(2, range(9), 1)
        else:
            dn(2, range(OPT['sched']))
            dn(0, range(6, 9), 1); dn(1, range(6, 9), 1)
            dn(2, range(OPT['sched'], 9)); dn(2, range(9), 1)
        dn(3, range(9)); dn(3, range(9), 1)
        for u in range(9):
            st.append(dict(kind='dh', p=4, u=u))
    seen = set()
    for e in st:
        if e['kind'] in ('dn', 'dh'):
            e['first'] = e['p'] not in seen
            seen.add(e['p'])
    seen = set()
    for e in reversed(st):
        if e['kind'] in ('dn', 'dh'):
            e['last'] = e['p'] not in seen
            seen.add(e['p'])
    return st


def down_acc(db):
    if not OPT['pairs']:
        tab = {0: ('a', aX), 1: ('a', aX + 32), 2: ('a', aX + 64)}
        return tab.get(db, ('v', ACC + 32 * ((db + 1) % 4)))
    return {0: ('a', aX), 1: ('a', aX + 32), 2: ('v', ACC), 3: ('v', ACC + 32), 4: ('v', ACC + 64)}[db]


def ph_c_setup_s(A):
    A.comment('==== phase C: setup ====')
    srd(A, sgG, sWG, 576 * 9216, bias=BIAS)
    srd(A, sgU, sWU, 576 * 9216, bias=BIAS + 1024)
    A(f'''s_cmp_lt_u32 s{sW}, 2
    s_cselect_b32 s96, s{sWG}, s{sWU}
    s_cselect_b32 s97, s{sWG+1}, s{sWU+1}''')
    srd(A, sgGH, 96, 576 * 9216, bias=BIAS)
    srd(A, sgD, sWD, F * 1152, bias=BIAS)
    A(f'''s_and_b32 s96, s{sJ}, 1
    s_mul_i32 s97, s{sJ}, 288
    s_lshl_b32 s98, s96, 5
    s_add_u32 s98, s98, s97
    s_lshl_b32 s56, s98, 1
    s_mul_i32 s58, s98, 1152
    s_cmp_eq_u32 s96, 0
    s_cselect_b32 s98, 256, 0
    s_add_u32 s98, s98, s97
    s_lshl_b32 s57, s98, 1
    s_mul_i32 s59, s98, 1152
    s_lshl_b32 s60, s{sW}, 12''')
    if OPT['pairs']:
        A(f'''s_cmp_eq_u32 s96, 0
        s_mov_b32 s98, {-288*1152 & 0xffffffff}
        s_cmov_b32 s98, {320*1152}
        s_mov_b32 s99, {-32*1152 & 0xffffffff}
        s_cmov_b32 s99, {288*1152}
        s_cselect_b32 s52, 0, 640
        s_movk_i32 s53, 576
        s_cmov_b32 s53, 512
        s_mul_i32 s100, s97, 1152
        s_add_u32 s50, s100, s98
        s_add_u32 s51, s100, s99
        s_add_u32 s50, s50, s52
        s_add_u32 s51, s51, s52
        s_add_u32 s48, s59, s53
        s_add_u32 s49, s51, s53
        s_sub_u32 s49, s49, s52
        s_add_u32 s46, s58, s53
        s_add_u32 s47, s50, s53
        s_sub_u32 s47, s47, s52
        s_add_u32 s58, s58, s52
        s_add_u32 s59, s59, s52
        s_lshr_b32 s45, s{sW}, 1
        s_mul_i32 s45, s45, {32*1152}''')
    np_ = 8 if OPT['pairs'] else 16
    A(f'''s_mul_i32 s96, s{sG}, {np_}
    s_lshr_b32 s97, s{sJ}, {1 if OPT['pairs'] else 0}
    s_add_u32 s96, s96, s97
    s_lshl_b32 s96, s96, 3
    s_lshl_b32 s97, s{sW}, 1
    s_add_u32 s96, s96, s97
    s_mul_i32 s55, s96, {T16}
    s_add_u32 s55, s55, {WS_PART}
    s_mov_b32 s62, {fbits(-LOG2E)}''')
    if OPT['pairs']:
        A(f'''s_lshl_b32 s96, s53, 4
        s_add_u32 s54, s55, s96
        s_lshl_b32 s96, s52, 4
        s_add_u32 s55, s55, s96''')


sPFB = 91
vPG, vPD, aJ = 254, 255, 128
aJC = None


def pf_setup(A):
    A(f'''v_mul_u32_u24 v160, 57, v{vLANE}
    v_lshrrev_b32 v160, 9, v160
    v_mul_u32_u24 v161, 9, v160
    v_sub_u32 v161, v{vLANE}, v161
    s_lshl_b32 s96, s{sG}, 2
    s_add_u32 s96, s96, s{sW}
    s_mul_i32 s96, s96, 9
    v_add_u32 v161, s96, v161
    s_movk_i32 s97, 9216
    v_mul_lo_u32 v162, v161, s97
    v_lshlrev_b32 v163, 7, v160
    v_add_u32 v164, s56, v163
    v_mov_b32 v165, s57
    v_cmp_eq_u32 vcc, 4, v160
    v_cndmask_b32 v164, v164, v165, vcc
    v_add_u32 v{vPG}, v162, v164
    s_lshr_b32 s96, s{sJ}, 1
    s_mul_i32 s96, s96, 576
    v_add_u32 v161, s96, v161
    v_mul_u32_u24 v161, 1152, v161
    s_and_b32 s96, s{sJ}, 1
    s_lshl_b32 s96, s96, 9
    v_add_u32 v163, s96, v163
    v_add_u32 v{vPD}, v161, v163
    s_movk_i32 s{sPFB}, {BIAS}''')


def pf_ops(mats, lo, hi, dst='v13'):
    m = ((1 << hi) - 1) ^ ((1 << lo) - 1)
    r = [f's_mov_b32 exec_lo, {m & 0xffffffff}', f's_mov_b32 exec_hi, {m >> 32}']
    for q, c in enumerate(mats):
        sg, v = {'g': (sgG, vPG), 'u': (sgU, vPG), 'd': (sgD, vPD)}[c]
        o = ' offset:1024' if c == 'u' else ''
        r.append(f'buffer_load_dword {dst}, v{v}, s[{sg}:{sg+3}], s{sPFB} offen{o}')
    r.append('s_mov_b64 exec, -1')
    return r


def ph_c_setup_v(A):
    A(f'''v_lshrrev_b32 v4, 3, v{vLANE}
    v_and_b32 v5, 7, v{vLANE}
    v_bfe_u32 v6, v{vLANE}, 4, 1
    s_and_b32 s40, s{sW}, 1
    s_lshr_b32 s41, s{sW}, 1
    s_lshl_b32 s42, s40, 1
    v_add_u32 v6, s42, v6
    v_lshlrev_b32 v6, 1, v6
    v_xor_b32 v5, v5, v6
    v_lshlrev_b32 v5, 4, v5
    s_lshl_b32 s42, s{sW}, 3
    v_add_u32 v6, s42, v4
    s_movk_i32 s43, 9216
    v_mul_lo_u32 v6, v6, s43
    v_add_u32 v{vDG}, v6, v5
    v_lshrrev_b32 v6, 2, v4
    v_lshlrev_b32 v6, 4, v6
    v_and_b32 v7, 3, v4
    v_add_u32 v6, v6, v7
    s_lshl_b32 s42, s{sW}, 2
    v_add_u32 v6, s42, v6
    v_mul_u32_u24 v6, 1152, v6
    v_add_u32 v{vDD}, v6, v5''')
    A(f'''v_lshrrev_b32 v4, 2, v{vLANE}
    v_and_b32 v5, 3, v{vLANE}
    v_lshrrev_b32 v6, 5, v{vLANE}
    v_lshlrev_b32 v7, 1, v6
    v_xor_b32 v5, v5, v7
    v_lshlrev_b32 v5, 4, v5
    s_lshl_b32 s42, s40, 4
    v_add_u32 v7, s42, v4
    v_mul_lo_u32 v7, v7, s43
    v_add_u32 v{vDH}, v7, v5
    v_bfe_u32 v7, v4, 2, 1
    v_lshlrev_b32 v7, 4, v7
    v_lshl_add_u32 v7, v6, 2, v7
    v_and_b32 v8, 3, v4
    v_add_u32 v7, v7, v8
    s_lshl_b32 s42, s40, 3
    v_add_u32 v7, s42, v7
    v_mul_u32_u24 v7, 1152, v7
    v_add_u32 v{vDE}, v7, v5''')
    A(f'''v_lshrrev_b32 v4, 4, v{vLANE}
    v_bfe_u32 v5, v{vLANE}, 2, 2
    v_bfe_u32 v6, v{vLANE}, 1, 1
    v_and_b32 v7, 1, v{vLANE}
    v_lshlrev_b32 v7, 3, v7
    v_lshl_add_u32 v7, v6, 4, v7
    v_and_b32 v8, 1, v4
    v_lshlrev_b32 v9, 1, v8
    v_lshrrev_b32 v10, 1, v5
    v_add_u32 v9, v9, v10
    v_lshlrev_b32 v9, 5, v9
    v_xor_b32 v9, v9, v7
    v_lshl_add_u32 v9, v5, 7, v9
    v_lshl_add_u32 v9, v4, 12, v9
    v_lshlrev_b32 v10, 5, v8
    v_xor_b32 v10, v10, v7
    v_lshl_add_u32 v10, v5, 6, v10
    v_lshl_add_u32 v10, v8, 9, v10
    v_lshrrev_b32 v11, 1, v4
    v_lshl_add_u32 v10, v11, 12, v10''')
    for wd in range(3):
        A(f'v_add_u32 v{vF+4*wd}, {WIN*16384*wd}, v9')
        for ft in range(1, 4):
            A(f'v_xor_b32 v{vF+4*wd+ft}, {32*ft}, v{vF+4*wd}')
        A(f'v_add_u32 v{vH+2*wd}, {WIN*16384*wd}, v10')
        A(f'v_xor_b32 v{vH+2*wd+1}, 32, v{vH+2*wd}')
    A(f'''v_lshlrev_b32 v{vL16}, 4, v{vLANE}
    v_lshlrev_b32 v8, 1, v8
    v_or_b32 v8, v8, v11
    v_lshlrev_b32 v8, 8, v8
    v_and_b32 v9, 15, v{vLANE}
    v_lshl_add_u32 v{vOUT}, v9, 4, v8''')


def ph_c_setup(A):
    ph_c_setup_s(A)
    ph_c_setup_v(A)


def dma_ops(st, n):
    if n >= len(st) or (not OPT['dma'] and n >= 28):
        return []
    e = st[n]
    slot, z = divmod(n, 4)
    r = []
    if z == 0:
        r.append(f's_add_u32 m0, s60, {(slot % NS) * 16384}')
    comp = BIAS - 1024 * z
    k = e['kind']
    if k in 'gu':
        if k == 'g':
            r.append(f's_add_u32 s61, s56, {comp + e["p"]*128 + e["k"]*32*9216}')
        else:
            assert z & 1 and st[n - 1]['kind'] == 'g'
        q, v = (sgG if k == 'g' else sgU), vDG
    elif k == 'gh':
        r.append(f's_add_u32 s61, s57, {comp + e["k"]*32*9216}')
        q, v = sgGH, vDH
    elif k == 'dn':
        full, half = ((58, 59), (50, 51))[e['who']]
        if e['a'] < 8:
            r.append(f's_add_u32 s61, s{full}, {comp + e["p"]*128 + e["a"]*32*1152}')
        else:
            r.append(f's_add_u32 s61, s{half}, {comp + e["p"]*128}')
        q, v = sgD, vDD
    else:
        offs = []
        for par in range(2):
            who, a = divmod(2 * e['u'] + par, 9)
            sreg = ((46, 48), (47, 49))[who][a == 8]
            offs.append((sreg, comp + (a % 8) * 32 * 1152))
        if offs[0][0] == offs[1][0]:
            r.append(f's_add_u32 s61, s{offs[0][0]}, s45')
            r.append(f's_add_u32 s61, s61, {offs[0][1]}')
        else:
            r.append(f's_add_u32 s61, s{offs[0][0]}, {offs[0][1]}')
            r.append(f's_add_u32 s44, s{offs[1][0]}, {offs[1][1]}')
            r.append(f's_cmp_lt_u32 s{sW}, 2')
            r.append('s_cselect_b32 s61, s61, s44')
        q, v = sgD, vDE
    r.append(f'buffer_load_dwordx4 v{v}, s[{q}:{q+3}], s61 offen offset:{1024*z} lds')
    return r


def mf_info(st, mu):
    n, e8 = divmod(mu, 8)
    fl, tt = divmod(e8, 2)
    e = st[n]
    slot, z = divmod(n, 4)
    win, sl = divmod(slot % NS, WIN)
    base = sl * 16384 + z * 1024
    k = e['kind']
    if k in 'gu':
        acc = ('v', ACC + 64 * (e['p'] & 1) + (32 if k == 'u' else 0) + 8 * fl + 4 * tt)
        b = ('a', aX + 72 * tt + 4 * e['k'])
        return acc, b, e['k'] == 0, vF + 4 * win + fl, [base + rd * 512 for rd in range(2)]
    if k == 'gh':
        mat, ft = divmod(fl, 2)
        acc = ('v', ACC + 32 * mat + 8 * ft + 4 * tt)
        b = ('a', aX + 72 * tt + 4 * e['k'])
        return acc, b, e['k'] == 0, vH + 2 * win + ft, [base + mat * 8192 + rd * 256 for rd in range(2)]
    ak, ab = down_acc(e['p'])
    if k == 'dn':
        acc = (ak, ab + 8 * fl + 4 * tt)
        b = ('v', HB + 8 * e['a'] + 4 * tt) if e['who'] == 0 else ('a', aPH + 8 * e['a'] + 4 * tt)
        return acc, b, e['first'], vF + 4 * win + fl, [base + rd * 512 for rd in range(2)]
    par, dt = divmod(fl, 2)
    who, a = divmod(2 * e['u'] + par, 9)
    acc = (ak, ab + 8 * dt + 4 * tt)
    b = ('v', HB + 8 * a + 4 * tt) if who == 0 else ('a', aPH + 8 * a + 4 * tt)
    return acc, b, e['first'] and par == 0, vH + 2 * win + dt, [base + par * 8192 + rd * 256 for rd in range(2)]


def act_ops(p):
    ops = []
    s = ACC + 64 * (p & 1)
    for ft in range(4 if p < 4 else 2):
        for tt in range(2):
            g = s + 8 * ft + 4 * tt
            u = g + 32
            h = HB + 8 * (2 * p + ft // 2) + 4 * tt + 2 * (ft & 1)
            T = TMP + 4 * tt
            r = range(4)
            ops += [(f'v_exp_f32 v{T+e}, v{g+e}', 2) for e in r]
            ops += [(f'v_add_f32 v{T+e}, 1.0, v{T+e}', 1) for e in r]
            ops += [(f'v_rcp_f32 v{T+e}, v{T+e}', 2) for e in r]
            ops += [(f'v_mul_f32 v{T+e}, v{u+e}, v{T+e}', 1) for e in r]
            ops += [(f'v_cvt_pk_bf16_f32 v{h+d}, v{T+2*d}, v{T+2*d+1}', 1) for d in range(2)]
    return ops


def out_ops(db, half=False):
    ops = []
    ak, ab = down_acc(db)
    for tt in range(2):
        for pr in range(1 if half else 2):
            P = OUTT + 4 * (pr & 1)
            for d in range(2):
                src = ab + 8 * (2 * pr + d) + 4 * tt
                if ak == 'a':
                    ops += [(f'v_accvgpr_read_b32 v{TMP+e}, a{src+e}', 1) for e in range(4)]
                    src = TMP
                ops += [(f'v_cvt_pk_bf16_f32 v{P+2*d+c}, v{src+2*c}, v{src+2*c+1}', 1) for c in range(2)]
            if pr == 0:
                off = tt * T16 + (0 if half else db * 2048)
                ops.append((f's_add_u32 s63, s{54 if half else 55}, {off}', 1))
            ops += [(f'v_permlane16_swap_b32 v{P}, v{P+2}', 2), (f'v_permlane16_swap_b32 v{P+1}, v{P+3}', 2)]
            if OPT['outst']:
              ops.append((f'buffer_store_dwordx4 v[{P}:{P+3}], v{vOUT}, s[{sgWS}:{sgWS+3}], s63 offen offset:{pr*1024} sc1', 2))
    return ops


sHXO, sHXP, sPFO, sPFP, sT = 52, 53, 7, 38, 39
vPF, vPV, vZ, vIL = 2, 3, 15, 12


def pair_setup(A):
    A(f'''s_lshl_b32 s40, s{sG}, 4
    s_add_u32 s40, s40, s{sJ}
    s_lshl_b32 s40, s40, 2
    s_add_u32 s40, s40, s{sW}
    s_xor_b32 s43, s40, 4
    s_mul_i32 s{sHXO}, s40, 18432
    s_add_u32 s{sHXO}, s{sHXO}, {WS_HX}
    s_mul_i32 s{sHXP}, s43, 18432
    s_add_u32 s{sHXP}, s{sHXP}, {WS_HX}
    s_lshl_b32 s{sPFO}, s40, 4
    s_add_u32 s{sPFO}, s{sPFO}, {WS_PF}
    s_lshl_b32 s{sPFP}, s43, 4
    s_add_u32 s{sPFP}, s{sPFP}, {WS_PF}
    v_mov_b32 v{vZ}, 0''')


sS3O, sS3C, sTB = 3, 4, 5
vT1, vT2, vFA, vFV = 4, 5, 6, 7


def tail_setup(A):
    flag_base(A, sS3O, 2, sW)
    A(f's_lshl_b32 s40, s{sJ}, 2\ns_add_u32 s{sS3O}, s{sS3O}, s40\ns_lshr_b32 s40, s{sJ}, 2')
    flag_base(A, sS3C, 2, 40)
    A(f'''s_mul_i32 s{sTB}, s{sG}, {64*T16}
    s_lshr_b32 s40, s{sJ}, 1
    s_mul_i32 s40, s40, {T16}
    s_add_u32 s{sTB}, s{sTB}, s40
    s_and_b32 s40, s{sJ}, 1
    s_lshl_b32 s40, s40, 7
    s_add_u32 s{sTB}, s{sTB}, s40
    s_mul_i32 s40, s{sW}, {16*T16}
    s_add_u32 s{sTB}, s{sTB}, s40
    s_add_u32 s{sTB}, s{sTB}, {WS_PART}
    v_and_b32 v{vFA}, 15, v{vLANE}
    v_lshrrev_b32 v8, 5, v{vLANE}
    v_mul_u32_u24 v8, {8*T16}, v8
    v_bfe_u32 v9, v{vLANE}, 4, 1
    v_mul_u32_u24 v10, 24, v9
    v_and_b32 v11, 31, v{vLANE}
    v_add_u32 v10, v10, v11
    v_lshl_add_u32 v{vT1}, v10, 8, v8
    v_mul_u32_u24 v8, {8*T16}, v9
    v_bfe_u32 v9, v{vLANE}, 3, 1
    v_lshlrev_b32 v9, 5, v9
    v_add3_u32 v9, v9, v{vFA}, 16
    v_lshl_add_u32 v{vT2}, v9, 8, v8
    v_lshlrev_b32 v{vFA}, 2, v{vFA}''')


def hx_store_ops(p):
    n = 4 if p < 4 else 2
    ops = [(f's_add_u32 s{sT}, s{sHXO}, {4096*p}', 1)]
    for q in range(n):
        r = HB + 16 * p + 4 * q
        ops.append((f'buffer_store_dwordx4 v[{r}:{r+3}], v{vL16}, s[{sgWS}:{sgWS+3}], s{sT} offen offset:{1024*q} sc1', 2))
    return ops


def hx_load_ops(p):
    n = 4 if p < 4 else 2
    ops = [f's_add_u32 s43, s{sHXP}, {4096*p}']
    for q in range(n):
        r = aPH + 16 * p + 4 * q
        ops.append(f'buffer_load_dwordx4 a[{r}:{r+3}], v{vL16}, s[{sgWS}:{sgWS+3}], s43 offen offset:{1024*q} sc1')
    return ops


class Ring:
    def __init__(self, A):
        self.A = A
        self.st = steps()
        self.marks = {}

    def issue(self, n):
        for x in dma_ops(self.st, n):
            self.A(x)
        if n % 4 == 3 or n == len(self.st) - 1:
            self.marks[n // 4] = self.A.mark()


def ph_c_prefill(A, R, s0, s1):
    for n in range(4 * s0, 4 * s1):
        R.issue(n)


def ph_c_xload(A):
    A(f'''s_lshl_b32 s40, s{sG}, 3
    s_lshl_b32 s41, s{sW}, 1
    s_add_u32 s40, s40, s41
    s_mul_i32 s41, s40, {T16}
    s_add_u32 s41, s41, {WS_H2}
    s_add_u32 s42, s41, {T16}''')
    ops = []
    for k in range(18):
        for tt in range(2):
            r = aX + 72 * tt + 4 * k
            ops.append(f'buffer_load_dwordx4 a[{r}:{r+3}], v{vL16}, s[{sgWS}:{sgWS+3}], s{41+tt} offen offset:{1024*(k%4)} sc1')
        if k % 4 == 3:
            ops.append('s_add_u32 s41, s41, 4096')
            ops.append('s_add_u32 s42, s42, 4096')
    return ops


def ph_c_stream(A, R, prefilled, xops):
    st = R.st
    NST = len(st)
    NM = 8 * NST
    NF = 4 * NST
    info = [mf_info(st, mu) for mu in range(NM)]
    NB, LA, WS_ = OPT['NB'], OPT['LA'], OPT['wstep']
    global aFR
    aFR = 256 - 4 * NB

    def reads(phi):
        if not OPT['reads'] and phi >= 8:
            return [None, None]
        acc, b, first, va, offs = info[2 * phi]
        f = aFR + 4 * (phi % NB)
        return [f'ds_read_b64_tr_b16 a[{f+2*rd}:{f+2*rd+1}], v{va} offset:{offs[rd]}' for rd in range(2)]

    BP = OPT['bper']

    def boundary(slot):
        A.wait_vm_mark(R.marks[min(slot + BP - 1, (NST - 1) // 4)])
        if OPT['barrier']:
            A('s_barrier')

    def deadline(ins, mu0):
        d, u = set(ins.defs), set(ins.uses)
        for mu in range(mu0, NM):
            acc, b, first, va, offs = info[mu]
            if d & set(rl(b[0], b[1], 4)):
                return mu
            if first and u & set(rl(acc[0], acc[1], 4)):
                return mu
        return NM + 40

    xq = list(xops)

    def xissue():
        while xq[0].startswith('s_'):
            A(xq.pop(0))
        A(xq.pop(0))
        while xq and xq[0].startswith('s_'):
            A(xq.pop(0))
    for k in range(OPT['xburst']):
        xissue()
    boundary(0)
    stamp(A, 'slot0 landed')
    for phi in range(LA):
        for x in reads(phi):
            A(x)
    pairs = OPT['pairs'] and OPT['fill']
    events = []
    hxq = []
    got = set()

    def ev_publish(val, mark):
        def f():
            A.wait_vm_mark(mark())
            A(f'v_mov_b32 v{vPV}, {val}\ns_mov_b64 exec, 1')
            A(f'buffer_store_dword v{vPV}, v{vZ}, s[{sgWS}:{sgWS+3}], s{sPFO} offen sc1')
            A('s_mov_b64 exec, -1')
        return f

    def ev_flagload():
        A(f'buffer_load_dword v{vPF}, v{vZ}, s[{sgWS}:{sgWS+3}], s{sPFP} offen sc1')

    def ev_check(val, blocks):
        def f():
            slow, back, again = A.label('L_slow'), A.label('L_back'), A.label('L_again')
            A(f'v_readfirstlane_b32 s40, v{vPF}')
            A(f's_cmp_ge_u32 s40, {val}')
            if Stamps.on:
                A(f's_cselect_b32 s88, 1, 0\nv_writelane_b32 v14, s88, {50+val}')
            A(f's_cbranch_scc0 {slow}')
            A(back + ':')
            A.tail += [slow + ':', 's_mov_b32 s44, 0', again + ':',
                       f'buffer_load_dword v{vPF}, v{vZ}, s[{sgWS}:{sgWS+3}], s{sPFP} offen sc1',
                       's_add_u32 s44, s44, 1', f's_cmp_gt_u32 s44, {SPIN_MAX}', f's_cbranch_scc1 {back}',
                       's_waitcnt vmcnt(0)', f'v_readfirstlane_b32 s40, v{vPF}', 's_nop 1', f's_cmp_ge_u32 s40, {val}',
                       f's_cbranch_scc0 {again}', f's_branch {back}']
            for p in blocks:
                if OPT['hxld']:
                    hxq.extend(hx_load_ops(p))
        return f
    def ev_pub3(val, mark):
        def f():
            A.wait_vm_mark(mark())
            A(f'v_mov_b32 v{vPV}, {val}\ns_mov_b64 exec, 1')
            A(f'buffer_store_dword v{vPV}, v{vZ}, s[{sgWS}:{sgWS+3}], s{sS3O} offen sc1')
            A('s_mov_b64 exec, -1')
        f.optional = True
        return f

    def ev_flag3():
        A(f'buffer_load_dword v{vFV}, v{vFA}, s[{sgWS}:{sgWS+3}], s{sS3C} offen sc1')

    def ev_touch(val, v, half):
        def f():
            A(f'v_cmp_gt_u32 vcc, {val}, v{vFV}')
            A('s_cmp_eq_u64 vcc, 0')
            A(f's_cselect_b32 s6, s{sTB}, {WS_XH}')
            if Stamps.on:
                A(f's_cselect_b32 s88, 1, 0\nv_writelane_b32 v14, s88, {40+val}')
            if half:
                A('s_mov_b32 exec_hi, 0')
            A(f'buffer_load_dword v13, v{v}, s[{sgWS}:{sgWS+3}], s6 offen sc1')
            if half:
                A('s_mov_b32 exec_hi, -1')
        return f
    if pairs and OPT['touch']:
        for (val, v, half, nload, ncheck) in OPT['touch']:
            events.append([8 * nload + 2, ev_flag3])
            events.append([8 * ncheck + 3, ev_touch(val, v, half)])
    for (n_, tgt) in OPT['itouch']:
        events.append([8 * n_ + 4, (lambda tgt=tgt: [A(x) for x in itouch(f'L_back_step{tgt}', vIL, 'v13')])])
    for (n_, mats, lo, hi) in OPT['pf']:
        events.append([8 * n_ + 6, (lambda mats=mats, lo=lo, hi=hi: [A(x) for x in pf_ops(mats, lo, hi)])])
    if pairs and OPT['hxpub']:
        for (val, blocks, nload, ncheck) in OPT['checks']:
            events.append([8 * nload + 2, ev_flagload])
            events.append([8 * ncheck + 3, ev_check(val, blocks)])
    fill = []
    misc = []
    pend = list(range(4 * prefilled, 4 * (NS - 1)))
    credit = 0.0
    forced = 0
    for mu in range(NM):
        n, e8 = divmod(mu, 8)
        e = st[n]
        phi, tt = divmod(mu, 2)
        acc, b, first, va, offs = info[mu]
        f = aFR + 4 * (phi % NB)
        if e8 == 0:
            A(f'L_back_step{n}:')
        if e8 == 0 and n in (36, 72, 108, 144, 162, 180, 198, 216, 234):
            stamp(A, f'step {n}')
        if e8 == 4 and n > 0 and OPT['fill']:
            pe = st[n - 1]
            new = []
            if pe['kind'] == 'u' and pe['k'] == 17 or pe['kind'] == 'gh' and pe['k'] == 17:
                new = act_ops(pe['p'])
            elif pe['kind'] in ('dn', 'dh') and pe['last']:
                new = out_ops(pe['p'], pe['kind'] == 'dh')
                if pairs and OPT['pub3'] and (pe['p'] == 2 or (pe['p'] == 1 and OPT['touch'])):
                    new.append((('pub3', pe['p']), 0))
            rush = NM + 40
            if new and pairs and pe['kind'] in ('u', 'gh'):
                p = pe['p']
                if OPT['hxst']:
                    new = new + hx_store_ops(p)
                rush = 8 * OPT['rush'][p]
                if p >= 1 and OPT['hxpub']:
                    new.append((('pub', p), 0))
            for x, c in new:
                fill.append([x, c, min(rush, deadline(Ins(x), mu + 1)) if c else rush])
            for q in range(len(fill) - 2, -1, -1):
                fill[q][2] = min(fill[q][2], fill[q + 1][2])
        def emit_fill():
            x, c, d = fill.pop(0)
            if isinstance(x, tuple):
                mk = A.mark()
                events.append([mu + OPT['pubdelay' if x[0] == 'pub' else 'pub3delay'], (ev_publish if x[0] == 'pub' else ev_pub3)(x[1], lambda: mk)])
            else:
                A(x)
            return c
        while fill and fill[0][2] <= mu:
            emit_fill(); forced += 1
        if pairs and OPT['hxld'] and OPT['hxpub'] and b[0] == 'a' and b[1] >= aPH:
            assert b[1] in got, ('partner fragment not loaded yet', mu // 8, b)
        cin = '0' if first else f'{acc[0]}[{acc[1]}:{acc[1]+3}]'
        A(f'v_mfma_f32_16x16x32_bf16 {acc[0]}[{acc[1]}:{acc[1]+3}], a[{f}:{f+3}], {b[0]}[{b[1]}:{b[1]+3}], {cin}')
        used = 0
        p2 = phi + LA
        if p2 < NF:
            if tt == 0 and p2 % (16 * BP) == 0:
                slot = p2 // 16
                boundary(slot); used += 2
                for q in range(slot - 1 - BP + NS, slot - 1 + NS):
                    pend += [4 * q + z for z in range(4)]
            x = reads(p2)[tt]
            if x:
                A(x); used += 1
        wait_next = tt == 1 and (phi + 1) % WS_ == 0 and phi + 1 < NF
        if wait_next:
            used += 1
        free = 2 - used
        for ev in [ev for ev in events if ev[0] <= mu]:
            events.remove(ev)
            ev[1](); free -= 2
        if hxq and mu % OPT['xpace'] == 0:
            if hxq[0].startswith('s_'):
                A(hxq.pop(0))
            got.add(Ins(hxq[0]).defs[0][1])
            A(hxq.pop(0)); free -= 1
        if xq and mu % OPT['xpace'] == 0:
            xissue(); free -= 1
        if not misc and pend and (not xq or len(pend) > OPT['dlag']) and (e8 == 0 or (e8 in (3, 5) and len(pend) > 4 * BP)):
            nd = pend.pop(0)
            misc = dma_ops(st, nd)
            if nd % 4 == 3 or nd == NST - 1:
                misc.append(('mark', nd // 4))
        while misc and isinstance(misc[0], tuple):
            R.marks[misc.pop(0)[1]] = A.mark()
        if misc and free > 0:
            A(misc.pop(0)); free -= 1
            while misc and isinstance(misc[0], tuple):
                R.marks[misc.pop(0)[1]] = A.mark()
        if fill:
            rate = max((q + 1) / max(1, d - mu) for q, (x, c, d) in enumerate(fill))
            credit += rate
            while fill and (free > 0 or credit >= 1.0):
                free -= emit_fill()
                credit = max(0.0, credit - 1.0)
        else:
            credit = 0.0
        if wait_next:
            A.wait_regs([r for q in range(WS_) for r in rl('a', aFR + 4 * ((phi + 1 + q) % NB), 4)])
    stamp(A, 'mfma done')
    last = st[-1]
    assert not hxq and all(getattr(ev[1], 'optional', False) for ev in events)
    for x, c, d in fill:
        A(x)
    for x, c in out_ops(last['p'], last['kind'] == 'dh'):
        A(x)
    print('phase C: forced', forced, 'tail', len(fill), file=sys.stderr)


def ph_c(A):
    A.junk = ('v', 13)
    srd(A, sgWS, sWS, WS_SIZE)
    ph_c_setup(A)
    R = Ring(A)
    ph_c_prefill(A, R, 0, OPT['prefill'])
    xops = ph_c_xload(A)
    if OPT['pairs']:
        pair_setup(A)
        tail_setup(A)
    stamp(A, 'prologue')
    ph_c_stream(A, R, OPT['prefill'], xops)
```

```python
from common import *
from ph_small import ph_mod
from ph_a import mod_table

PT = [(0, 1, 2, 3), (4, 13, 10, 11), (12, 21, 14, 23), (20, 24, 22, 22)]
N_MOD, N_XH, N_WQ, N_WO = 108, 64, 144, 40
N_PREP = N_MOD + N_XH + N_WQ + N_WO
PREP_LDS = 4 * 9216


def task_xhat(A, sI):
    A.comment('---- prep: xhat')
    X, T, P = 16, 56, 136
    srd(A, 8, sX, S * D * 2)
    srd(A, 16, sWS, WS_SIZE)
    A(f'''v_lshrrev_b32 v4, 3, v{vLANE}
    v_and_b32 v5, 7, v{vLANE}
    v_mul_u32_u24 v2, 1152, v4
    v_lshl_add_u32 v2, v5, 4, v2
    s_lshl_b32 s40, s{sI}, 2
    s_add_u32 s40, s40, s{sW}
    s_mul_i32 s41, s40, {8*1152}''')
    for n in range(9):
        A(f'buffer_load_dwordx4 v[{X+4*n}:{X+4*n+3}], v2, s[8:11], s41 offen offset:{128*n}')
    A(f'''s_mul_i32 s42, s{sW}, 9216
    v_xor_b32 v6, v4, v5
    v_lshlrev_b32 v6, 4, v6
    v_add_u32 v6, s42, v6
    v_lshl_add_u32 v7, v4, 7, v6
    v_lshl_add_u32 v6, v5, 7, v6
    v_lshlrev_b32 v3, 9, v4
    v_lshl_add_u32 v3, v5, 4, v3
    s_mul_i32 s43, s{sI}, 36864
    s_lshl_b32 s44, s{sW}, 7
    s_add_u32 s43, s43, s44
    s_add_u32 s43, s43, {WS_XH}''')
    A(f'''s_lshr_b32 s46, s40, 1
    s_mul_i32 s46, s46, {T16}
    s_and_b32 s47, s{sW}, 1
    s_lshl_b32 s47, s47, 7
    s_add_u32 s46, s46, s47
    s_add_u32 s46, s46, {WS_XT}
    v_lshlrev_b32 v15, 8, v4
    v_lshl_add_u32 v15, v5, 4, v15''')
    for n in range(9):
        A(f'ds_write_b128 v6, v[{X+4*n}:{X+4*n+3}] offset:{1024*n}')
        for d in range(4):
            unpack(A, T + 8 * n + 2 * d, T + 8 * n + 2 * d + 1, X + 4 * n + d)
    for n in range(9):
        A(f'ds_read_b128 v[{X+4*n}:{X+4*n+3}], v7 offset:{1024*n}')
    a, q = 8, 10

    def sum8(r):
        A(f'v_add_f32_dpp v{r}, v{r}, v{r} quad_perm:[1,0,3,2] row_mask:0xf bank_mask:0xf')
        A(f'v_add_f32_dpp v{r}, v{r}, v{r} quad_perm:[2,3,0,1] row_mask:0xf bank_mask:0xf')
        A(f'v_add_f32_dpp v{r}, v{r}, v{r} row_half_mirror row_mask:0xf bank_mask:0xf')
    A(f'v_pk_add_f32 v[{a}:{a+1}], v[{T}:{T+1}], v[{T+2}:{T+3}]')
    A(f'v_pk_add_f32 v[{q}:{q+1}], v[{T+4}:{T+5}], v[{T+6}:{T+7}]')
    for u in range(4, 36):
        r = a if u & 1 else q
        A(f'v_pk_add_f32 v[{r}:{r+1}], v[{r}:{r+1}], v[{T+2*u}:{T+2*u+1}]')
    A(f'v_pk_add_f32 v[{a}:{a+1}], v[{a}:{a+1}], v[{q}:{q+1}]')
    A(f'v_add_f32 v{a}, v{a}, v{a+1}')
    sum8(a)
    for n in range(9):
        A(f'buffer_store_dwordx4 v[{X+4*n}:{X+4*n+3}], v15, s[16:19], s46 offen offset:{2048*(n&1)}')
        if n & 1:
            A('s_add_u32 s46, s46, 4096')
    A(f's_mov_b32 s45, {fbits(1.0/576)}\nv_mul_f32 v{a}, s45, v{a}')
    for u in range(36):
        t = T + 2 * u
        A(f'v_pk_add_f32 v[{t}:{t+1}], v[{t}:{t+1}], v[{a}:{a+1}] op_sel_hi:[1,0] neg_lo:[0,1] neg_hi:[0,1]')
    b = 12
    A(f'v_pk_mul_f32 v[{q}:{q+1}], v[{T}:{T+1}], v[{T}:{T+1}]')
    A(f'v_pk_mul_f32 v[{b}:{b+1}], v[{T+2}:{T+3}], v[{T+2}:{T+3}]')
    for u in range(2, 36):
        r = b if u & 1 else q
        t = T + 2 * u
        A(f'v_pk_fma_f32 v[{r}:{r+1}], v[{t}:{t+1}], v[{t}:{t+1}], v[{r}:{r+1}]')
    A(f'v_pk_add_f32 v[{q}:{q+1}], v[{q}:{q+1}], v[{b}:{b+1}]')
    A(f'v_add_f32 v{q}, v{q}, v{q+1}')
    sum8(q)
    A(f'''v_mov_b32 v{q+1}, {fbits(1e-5)}
    v_fmac_f32 v{q+1}, s45, v{q}
    v_rsq_f32 v{a}, v{q+1}''')
    for n in range(9):
        for d in range(4):
            t = T + 8 * n + 2 * d
            A(f'v_pk_mul_f32 v[{t}:{t+1}], v[{t}:{t+1}], v[{a}:{a+1}] op_sel_hi:[1,0]')
        for d in range(4):
            t = T + 8 * n + 2 * d
            A(f'v_cvt_pk_bf16_f32 v{X+4*n+d}, v{t}, v{t+1}')
        A(f'ds_write_b128 v6, v[{X+4*n}:{X+4*n+3}] offset:{1024*n}')
    for n in range(9):
        A(f'ds_read_b128 v[{X+4*n}:{X+4*n+3}], v7 offset:{1024*n}')
    for n in range(9):
        A(f'buffer_store_dwordx4 v[{X+4*n}:{X+4*n+3}], v3, s[16:19], s43 offen')
        if n < 8:
            A('s_add_u32 s43, s43, 4096')


def task_wq(A, sI):
    A.comment('---- prep: qkv weight tiles')
    srd(A, 12, sWQKV, 576 * 3456)
    srd(A, 16, sWS, WS_SIZE)
    A(f'''v_mul_u32_u24 v4, 69, v{vLANE}
    v_lshrrev_b32 v4, 10, v4
    v_mul_u32_u24 v5, 15, v4
    v_sub_u32 v5, v{vLANE}, v5
    v_mul_u32_u24 v6, 13, v5
    v_lshrrev_b32 v6, 6, v6
    v_mul_u32_u24 v7, 5, v6
    v_sub_u32 v7, v5, v7
    v_mul_u32_u24 v4, 3456, v4
    v_mul_u32_u24 v6, 1152, v6
    v_add_u32 v4, v4, v6
    v_lshl_add_u32 v2, v7, 4, v4
    s_lshr_b32 s40, s{sI}, 2
    s_and_b32 s41, s{sI}, 3
    s_lshl_b32 s41, s41, 2
    s_add_u32 s41, s41, s{sW}
    s_mul_i32 s42, s41, 72
    s_and_b32 s42, s42, 0xfffffff0
    s_mul_i32 s43, s40, {16*3456}
    s_add_u32 s42, s42, s43
    s_mul_i32 s44, s{sW}, 3840
    s_mov_b32 exec_hi, 0x0fffffff''')
    for i in range(4):
        A(f's_add_u32 m0, s44, {960*i}')
        A(f's_add_u32 s45, s42, {4*3456*i}')
        A('buffer_load_dwordx4 v2, s[12:15], s45 offen lds')
    A('s_mov_b32 exec_hi, -1')
    A(f'''v_lshrrev_b32 v4, 5, v{vLANE}
    v_bfe_u32 v5, v{vLANE}, 2, 2
    v_and_b32 v6, 3, v{vLANE}
    v_bfe_u32 v7, v{vLANE}, 4, 1
    v_lshlrev_b32 v7, 1, v7
    v_lshrrev_b32 v9, 1, v6
    v_add_u32 v7, v7, v9
    v_lshlrev_b32 v7, 3, v7
    v_and_b32 v8, 1, v6
    v_lshlrev_b32 v8, 2, v8
    s_and_b32 s50, s41, 1
    v_add_u32 v8, s50, v8
    v_lshl_add_u32 v9, v4, 3, v5
    v_mul_u32_u24 v9, 240, v9
    v_add_u32 v9, s44, v9''')
    packs = [t[0] | t[1] << 8 | t[2] << 16 | t[3] << 24 for t in PT]
    for T in range(4):
        A(f'''s_mov_b32 s52, {packs[T]}
        v_bfe_u32 v10, s52, v7, 8
        v_add_u32 v10, v10, v8
        v_lshl_add_u32 v{12+T}, v10, 3, v9''')
    A(f'''v_lshlrev_b32 v3, 4, v{vLANE}
    v_and_b32 v10, 31, v{vLANE}
    v_mul_u32_u24 v11, 24, v4
    v_add_u32 v11, v11, v10
    v_lshlrev_b32 v11, 4, v11
    s_mul_i32 s46, s41, {WQ_J}
    s_mul_i32 s47, s40, 3840
    s_add_u32 s46, s46, s47
    s_add_u32 s46, s46, {WS_WQ}''')
    A.wait_all()
    for T in range(4):
        for rd in range(2):
            A(f'ds_read_b64_tr_b16 v[{16+4*T+2*rd}:{17+4*T+2*rd}], v{12+T} offset:{960*rd}')
    for T in range(3):
        A(f'buffer_store_dwordx4 v[{16+4*T}:{19+4*T}], v3, s[16:19], s46 offen offset:{1024*T}')
    A('s_mov_b32 exec_lo, 0x00ffffff\ns_mov_b32 exec_hi, 0x00ffffff')
    A('buffer_store_dwordx4 v[28:31], v11, s[16:19], s46 offen offset:3072')
    A('s_mov_b64 exec, -1')


def task_wo(A, sI):
    A.comment('---- prep: wo tiles')
    srd(A, 20, sWO, 576 * 1152)
    srd(A, 16, sWS, WS_SIZE)
    A(f'''s_lshl_b32 s40, s{sI}, 2
    s_add_u32 s40, s40, s{sW}
    s_lshr_b32 s41, s40, 3
    s_and_b32 s42, s40, 7
    s_mul_i32 s43, s42, 144
    s_mul_i32 s44, s{sW}, 5120
    v_mul_u32_u24 v4, 57, v{vLANE}
    v_lshrrev_b32 v4, 9, v4
    v_mul_u32_u24 v5, 9, v4
    v_sub_u32 v5, v{vLANE}, v5
    v_lshlrev_b32 v5, 4, v5
    s_lshl_b32 s45, s41, 2
    s_mov_b32 exec_hi, 0x7fffffff''')
    for i in range(5):
        A(f'''v_add_u32 v6, {7*i}, v4
        v_min_u32 v6, 31, v6
        v_lshrrev_b32 v7, 3, v6
        v_and_b32 v6, 7, v6
        v_add_u32 v7, s45, v7
        v_mul_u32_u24 v8, 205, v7
        v_lshrrev_b32 v8, 10, v8
        v_mul_u32_u24 v9, 5, v8
        v_sub_u32 v9, v7, v9
        v_lshrrev_b32 v10, 1, v9
        v_mul_u32_u24 v10, 18, v10
        v_and_b32 v11, 1, v9
        v_lshl_add_u32 v10, v11, 3, v10
        v_lshrrev_b32 v11, 1, v6
        v_cmp_eq_u32 vcc, 0, v11
        v_cndmask_b32 v12, 0, 16, vcc
        v_cmp_eq_u32 vcc, 1, v11
        v_cndmask_b32 v12, v12, 32, vcc
        v_cmp_eq_u32 vcc, 4, v9
        v_cndmask_b32 v10, v10, v12, vcc
        v_add_u32 v10, v10, v6
        v_mad_u32_u24 v10, v8, 36, v10
        v_mul_u32_u24 v10, 1152, v10
        v_add_u32 v{20+i}, v10, v5
        s_add_u32 m0, s44, {1008*i}
        s_nop 0
        buffer_load_dwordx4 v{20+i}, s[20:23], s43 offen lds''')
    A('s_mov_b32 exec_hi, -1')
    A(f'''v_lshrrev_b32 v4, 4, v{vLANE}
    v_bfe_u32 v5, v{vLANE}, 2, 2
    v_lshl_add_u32 v4, v4, 3, v5
    v_mul_u32_u24 v4, 144, v4
    v_and_b32 v5, 3, v{vLANE}
    v_lshl_add_u32 v4, v5, 3, v4
    v_add_u32 v4, s44, v4
    v_lshlrev_b32 v3, 4, v{vLANE}
    s_mul_i32 s46, s42, {WO_C}
    s_mul_i32 s47, s41, 5120
    s_add_u32 s46, s46, s47
    s_add_u32 s46, s46, {WS_WO}
    s_add_u32 s47, s46, 4096''')
    A.wait_all()
    for T in range(5):
        for rd in range(2):
            A(f'ds_read_b64_tr_b16 v[{32+4*T+2*rd}:{33+4*T+2*rd}], v4 offset:{576*rd+32*T}')
    for T in range(4):
        A(f'buffer_store_dwordx4 v[{32+4*T}:{35+4*T}], v3, s[16:19], s46 offen offset:{1024*T}')
    A('buffer_store_dwordx4 v[48:51], v3, s[16:19], s47 offen')


def task_zero(A, sI):
    n = (WS_ZEND - WS_FLAG + N_WO * 4096 - 1) // (N_WO * 4096)
    A(f'''v_mov_b32 v56, 0
    v_mov_b32 v57, 0
    v_mov_b32 v58, 0
    v_mov_b32 v59, 0
    v_lshlrev_b32 v60, 4, v{vTID}
    s_mul_i32 s48, s{sI}, {n*4096}''')
    srd(A, 24, sWS, WS_ZEND - WS_FLAG, off=WS_FLAG)
    for i in range(n):
        A('buffer_store_dwordx4 v[56:59], v60, s[24:27], s48 offen')
        A('s_add_u32 s48, s48, 4096')


NEXT = [None, None]


def ph_prep(A):
    code_prefetch(A, 'L_k0_body', 'L_k0_end-L_k0_body-4', 2, 127, 50, 1)
    A('L_k0_body:')
    ends = []
    lo = 0
    for n, fn in ((N_MOD, lambda A, s: ph_mod(A, s, 0)), (N_XH, task_xhat), (N_WQ, task_wq), (N_WO, None)):
        last = fn is None
        if not last:
            A(f's_cmp_ge_u32 s2, {lo+n}')
            ctx = A.begin_skip('s_cbranch_scc1 {}')
        A(f's_sub_u32 s39, s2, {lo}')
        if last:
            if NEXT[0]:
                A(f's_lshr_b32 s48, s39, 3\ns_lshl_b32 s48, s48, 2\ns_add_u32 s48, s48, s{sW}\ns_lshl_b32 s48, s48, 13')
                code_prefetch(A, NEXT[0], f'{NEXT[1]}-{NEXT[0]}-4', 60, 62, 50, 1, 48)
            task_zero(A, 39)
            task_wo(A, 39)
        else:
            n0 = Stamps.n
            fn(A, 39)
            stamp_end(A, again=True)
            keep = Stamps.n
            A('s_endpgm')
            A.end_skip(ctx)
        lo += n
```

```python
from common import *


def ph_mod(A, sM, lds):
    A.comment('==== phase mod ====')
    srd(A, 8, sWMOD, 576 * 6912)
    srd(A, 12, sC, 1152)
    srd(A, 16, sWS, WS_SIZE)
    A(f'''v_lshrrev_b32 v2, 2, v{vLANE}
    v_and_b32 v3, 3, v{vLANE}
    s_mul_i32 s40, s{sW}, 144
    v_add_u32 v4, s40, v2
    s_movk_i32 s41, 6912
    v_mul_lo_u32 v5, v4, s41
    v_lshl_add_u32 v5, v3, 4, v5
    v_lshlrev_b32 v6, 1, v4
    s_lshl_b32 s41, s{sM}, 6''')
    for i in range(9):
        A(f'buffer_load_ushort v{10+i}, v6, s[12:15], 0 offen offset:{32*i}')
    for i in range(9):
        A(f's_add_u32 s42, s41, {i*16*6912}')
        A(f'buffer_load_dwordx4 v[{20+4*i}:{23+4*i}], v5, s[8:11], s42 offen')
    A(f's_mov_b32 s43, {fbits(-LOG2E)}')
    for i in range(9):
        A(f'v_lshlrev_b32 v{10+i}, 16, v{10+i}')
    for i in range(9):
        A(f'v_mul_f32 v{64+i}, s43, v{10+i}')
    for i in range(9):
        A(f'v_exp_f32 v{64+i}, v{64+i}')
    for i in range(9):
        A(f'v_add_f32 v{64+i}, 1.0, v{64+i}')
    for i in range(9):
        A(f'v_rcp_f32 v{64+i}, v{64+i}')
    for i in range(9):
        A(f'v_mul_f32 v{10+i}, v{10+i}, v{64+i}')
    for i in range(9):
        A(f'v_cvt_pk_bf16_f32 v{10+i}, v{10+i}, v{10+i}')
    for i in range(9):
        A(f'v_and_b32 v{10+i}, s{sMASKHI}, v{10+i}')
    for i in range(9):
        for d in range(4):
            unpack(A, 64 + 2 * d, 65 + 2 * d, 20 + 4 * i + d)
        sp = 10 + (i & ~1)
        for d in range(4):
            if i == 0:
                A(f'v_pk_mul_f32 v[{56+2*d}:{57+2*d}], v[{64+2*d}:{65+2*d}], v[{sp}:{sp+1}] op_sel_hi:[1,0]')
            else:
                m = 'op_sel_hi:[1,0,1]' if i % 2 == 0 else 'op_sel:[0,1,0] op_sel_hi:[1,1,1]'
                A(f'v_pk_fma_f32 v[{56+2*d}:{57+2*d}], v[{64+2*d}:{65+2*d}], v[{sp}:{sp+1}], v[{56+2*d}:{57+2*d}] {m}')
    for rot in (8, 4):
        for d in range(8):
            A(f'v_add_f32_dpp v{56+d}, v{56+d}, v{56+d} row_ror:{rot} row_mask:0xf bank_mask:0xf')
    A(f'''v_lshrrev_b32 v7, 4, v{vLANE}
    s_lshl_b32 s40, s{sW}, 2
    v_add_u32 v7, s40, v7
    v_lshlrev_b32 v7, 7, v7
    v_lshl_add_u32 v7, v3, 5, v7
    s_mov_b32 exec_lo, 0x000f000f
    s_mov_b32 exec_hi, 0x000f000f
    ds_write_b128 v7, v[56:59] offset:{lds}
    ds_write_b128 v7, v[60:63] offset:{lds+16}
    s_mov_b64 exec, -1''')
    A.wait_all(vm=False)
    A('s_barrier')
    A(f's_cmp_lg_u32 s{sW}, 0')
    ctx = A.begin_skip('s_cbranch_scc1 {}')
    A(f'''v_lshrrev_b32 v7, 5, v{vLANE}
    v_and_b32 v8, 31, v{vLANE}
    v_lshlrev_b32 v7, 10, v7
    v_lshl_add_u32 v7, v8, 2, v7''')
    for k in range(8):
        A(f'ds_read_b32 v{56+k}, v7 offset:{lds+128*k}')
    A('''v_add_f32 v56, v56, v57
    v_add_f32 v58, v58, v59
    v_add_f32 v60, v60, v61
    v_add_f32 v62, v62, v63
    v_add_f32 v56, v56, v58
    v_add_f32 v60, v60, v62
    v_add_f32 v56, v56, v60
    v_mov_b32 v57, v56
    v_permlane32_swap_b32 v56, v57
    v_add_f32 v56, v56, v57''')
    A(f'''v_cvt_pk_bf16_f32 v56, v56, v56
    v_and_b32 v56, s{sMASKHI}, v56
    s_mul_i32 s40, s{sM}, 57
    s_lshr_b32 s40, s40, 10
    s_cmp_eq_u32 s40, 1
    s_cselect_b32 s41, 1.0, 0
    s_cmp_eq_u32 s40, 4
    s_cselect_b32 s41, 1.0, s41
    v_add_f32 v56, s41, v56
    v_cvt_pk_bf16_f32 v56, v56, v56
    v_and_b32 v56, s{sMASKHI}, v56
    s_lshl_b32 s40, s{sM}, 7
    v_lshlrev_b32 v8, 2, v8
    s_mov_b32 exec_hi, 0
    buffer_store_dword v56, v8, s[16:19], s40 offen offset:{WS_MOD}
    s_mov_b64 exec, -1''')
    A.end_skip(ctx)


def ph_out(A, npart):
    raise NotImplementedError


def ph_final_setup(A):
    A.comment('==== phase final ====')
    srd(A, 12, sOUT, S * D * 2)
    A(f'''s_lshr_b32 s40, s{sJ}, 1
    s_and_b32 s41, s{sJ}, 1
    v_lshrrev_b32 v2, 3, v{vLANE}
    v_and_b32 v3, 7, v{vLANE}
    v_lshlrev_b32 v4, 8, v2
    v_lshl_add_u32 v4, v3, 4, v4
    v_lshlrev_b32 v5, 5, v2
    v_mul_u32_u24 v10, 1152, v3
    v_lshl_add_u32 v10, v2, 4, v10
    s_lshl_b32 s43, s{sG}, 3
    s_add_u32 s43, s43, s40
    s_mul_i32 s44, s43, {T16}
    s_lshl_b32 s45, s41, 7
    s_add_u32 s44, s44, s45
    s_add_u32 s44, s44, {WS_X1}
    s_mul_i32 s46, s{sG}, {64*T16}
    s_mul_i32 s47, s40, {T16}
    s_add_u32 s46, s46, s47
    s_add_u32 s46, s46, s45
    s_add_u32 s46, s46, {WS_PART}
    s_lshl_b32 s47, s43, 4
    s_lshl_b32 s48, s41, 3
    s_add_u32 s47, s47, s48
    s_mul_i32 s47, s47, 1152
    s_lshl_b32 s48, s{sW}, 2
    s_lshr_b32 s52, 0x7620, s48
    s_and_b32 s52, s52, 15
    s_lshr_b32 s53, 0x0051, s48
    s_and_b32 s53, s53, 15
    s_lshr_b32 s54, 0x4308, s48
    s_and_b32 s54, s54, 15
    s_movk_i32 s56, 0x3f80
    s_mov_b32 s57, 0x3f800000
    s_mov_b32 s55, {fbits(-1.0 / LOG2E)}''')


def ph_final(A, wait_early, wait_late, probe_late):
    npart = 8

    def side(sN, X):
        G = X + 4
        A(f's_lshl_b32 s50, s{sN}, 11\ns_add_u32 s51, s44, s50')
        A(f'buffer_load_dwordx4 v[{X}:{X+3}], v4, s[16:19], s51 offen sc1')
        A(f's_lshl_b32 s51, s{sN}, 8\ns_add_u32 s51, s51, {WS_MOD+5*576*4}')
        A(f'buffer_load_dwordx4 v[{G}:{G+3}], v5, s[16:19], s51 offen')
        A(f'buffer_load_dwordx4 v[{G+4}:{G+7}], v5, s[16:19], s51 offen offset:16')

    def parts(sN, P):
        A(f's_lshl_b32 s50, s{sN}, 11\ns_add_u32 s51, s46, s50')
        for p in range(npart):
            A(f'buffer_load_dwordx4 v[{P+4*p}:{P+4*p+3}], v4, s[16:19], s51 offen sc1')
            if p + 1 < npart:
                A(f's_add_u32 s51, s51, {8*T16}')

    def finish(sN, P, X, acc, tmp):
        G = X + 4
        for d in range(4):
            A(f'v_pk_mul_f32 v[{G+2*d}:{G+2*d+1}], v[{G+2*d}:{G+2*d+1}], s[54:55] op_sel:[0,1] op_sel_hi:[1,1]')
        for p in range(npart):
            for d in range(4):
                for h in range(2):
                    c = '0' if p == 0 else f'v{acc+2*d+h}'
                    A(f'v_dot2_f32_bf16 v{acc+2*d+h}, v{P+4*p+d}, s{56+h}, {c}')
        for d in range(4):
            unpack(A, tmp + 2 * d, tmp + 2 * d + 1, X + d)
        for d in range(4):
            A(f'v_pk_fma_f32 v[{acc+2*d}:{acc+2*d+1}], v[{acc+2*d}:{acc+2*d+1}], v[{G+2*d}:{G+2*d+1}], v[{tmp+2*d}:{tmp+2*d+1}]')
        for d in range(4):
            A(f'v_cvt_pk_bf16_f32 v{X+d}, v{acc+2*d}, v{acc+2*d+1}')
        A(f's_lshl_b32 s50, s{sN}, 7\ns_add_u32 s50, s50, s47')
        A(f'buffer_store_dwordx4 v[{X}:{X+3}], v10, s[12:15], s50 offen')

    P0, P1, P2, X0, X1, X2, acc, tmp = 144, 176, 16, 48, 60, 72, 84, 92
    wait_early()
    parts(52, P0)
    side(52, X0)
    side(54, X2)
    fin = A.label('L_fin')

    def early_b(load):
        A(f's_cmp_ge_u32 s{sW}, 2')
        ctx = A.begin_skip('s_cbranch_scc1 {}')
        if load:
            parts(53, P1)
            side(53, X1)
        else:
            finish(53, P1, X1, acc, tmp)
        return ctx
    A(f's_cmp_ge_u32 s{sW}, 2')
    pa, pb = A.label('L_fa'), A.label('L_fb')
    A(f's_cbranch_scc1 {pa}')
    st0 = (list(A.vmq), list(A.lgq), A.vm_issued, A.lg_issued)

    def tail(two):
        slow = A.label('L_fslow')
        ready = probe_late()
        A(f's_cbranch_scc0 {slow}')
        st = (list(A.vmq), list(A.lgq), A.vm_issued, A.lg_issued)
        parts(54, P2)
        if two:
            finish(53, P1, X1, acc, tmp)
        finish(52, P0, X0, acc, tmp)
        finish(54, P2, X2, acc, tmp)
        A.wait_all()
        A(f's_branch {fin}')
        A(slow + ':')
        A.vmq, A.lgq, A.vm_issued, A.lg_issued = st
        if two:
            finish(53, P1, X1, acc, tmp)
        finish(52, P0, X0, acc, tmp)
        wait_late()
        parts(54, P2)
        finish(54, P2, X2, acc, tmp)
        A.wait_all()
        A(f's_branch {fin}')
    parts(53, P1)
    side(53, X1)
    A(f's_cmp_eq_u32 s{sW}, 1')
    A(f's_cbranch_scc0 {pb}')
    finish(53, P1, X1, acc, tmp)
    finish(52, P0, X0, acc, tmp)
    A.wait_all()
    A(f's_branch {fin}')
    A(pb + ':')
    A.vmq, A.lgq, A.vm_issued, A.lg_issued = list(st0[0]), list(st0[1]), st0[2], st0[3]
    for p in range(npart + 1):
        A.vmq.append({'defs': set(rl('v', P1 + 4 * p, 4)) if p < npart else set(rl('v', X1, 4))}); A.vm_issued += 1
    for z in range(2):
        A.vmq.append({'defs': set(rl('v', X1 + 4 + 4 * z, 4))}); A.vm_issued += 1
    tail(True)
    A(pa + ':')
    A.vmq, A.lgq, A.vm_issued, A.lg_issued = list(st0[0]), list(st0[1]), st0[2], st0[3]
    tail(False)
    A(fin + ':')
    A.vmq, A.lgq = [], []
```

```python
import sys
sys.path.insert(0, 'gen')
from common import *
from ph_small import ph_mod, ph_final, ph_final_setup
import ph_a, ph_b, ph_c, ph_prep

def kernel(name, fn, nwg, lds, vgpr=512, accum=256, spread=4, sv=14):
    A = Asm()
    end = f'L_end_{name}'
    A.uid = {'k1':6000,'k0':0,'ka':1000,'kb':2000,'kc':3000,'kd':4000}.get(name[:2], 5000)
    prologue(A, nwg, end, spread)
    stamp_begin(A, len(Stamps.names), sv)
    fn(A)
    stamp_end(A)
    A.wait_all()
    A(end + ':')
    A('s_endpgm')
    for x in A.tail:
        A._emit(Ins(x))
    A(f'L_{name[:2]}_end:')
    n = {}
    for i in A.out: n[i.kind] = n.get(i.kind, 0) + 1
    print(name, n, 'nops', A.nops_inserted, 'waits', A.waits_inserted, file=sys.stderr)
    return dict(name=name, grid=nwg, block=256, lds=lds, body=A.text(), vgpr=vgpr, accum=accum)

def multi(spread=4):
    ks = [kernel('k0_kernel', ph_prep.ph_prep, ph_prep.N_PREP, ph_prep.PREP_LDS, 136 if Stamps.on else 128, 136 if Stamps.on else 128, spread, 130),
          kernel('ka_kernel', ph_a.ph_a, 256, ph_a.A_LDS, spread=spread, sv=14),
          kernel('kb_kernel', ph_b.ph_b, 256, ph_b.B_LDS, spread=spread, sv=250),
          kernel('kc_kernel', ph_c.ph_c, 256, ph_c.C_LDS, spread=spread, sv=12),
          ]
    return ks

def merged_body(A):
    A.junk = ('v', 13)
    PF = ph_c.OPT.get('usepf', 1)
    if PF:
        if PF == 1:
            ph_c.OPT['pf'] = [(24, 'gu', 18, 36), (44, 'gu', 36, 45), (60, 'd', 0, 27), (80, 'd', 27, 45)]
        elif PF == 2:
            ph_c.OPT['pf'] = [(8, 'g', 18, 27), (16, 'u', 18, 27), (30, 'g', 27, 36), (40, 'u', 27, 36), (52, 'g', 36, 45), (62, 'u', 36, 45)] + \
                [(74 + 10 * q, 'd', 9 * q, 9 * q + 9) for q in range(5)]
        elif PF == 4:
            ph_c.OPT['pf'] = [(30, 'gu', 27, 45), (60, 'd', 0, 45)]
        elif PF == 5:
            ph_c.OPT['pf'] = [(40, 'd', 0, 45)]
        elif PF in (6, 7):
            ph_c.OPT['pf'] = []
        elif PF == 3:
            ph_c.OPT['pf'] = [(20, 'g', 18, 27), (28, 'u', 18, 27), (40, 'g', 27, 36), (50, 'u', 27, 36), (60, 'g', 36, 45), (70, 'u', 36, 45)] + \
                [(80 + 9 * q, 'd', 9 * q, 9 * q + 9) for q in range(5)]

    def early():
        ph_c.ph_c_setup_s(A)
        ph_c.pf_setup(A)

    def late():
        if PF:
            for x in ph_c.pf_ops('gud' if PF == 6 else 'gu', 0, {4: 27, 5: 45, 6: 45}.get(PF, 18)):
                A(x)
    ph_a.ph_a_main(A, early, late)
    bg = ph_b.ph_b_dma(A)
    ph_a.ph_a_attn(A, bg)
    stamp(A, 'attn done')
    flag_base(A, 101, 0, sW)
    A(f's_lshl_b32 s40, s{sJ}, 2\ns_add_u32 s101, s101, s40')
    publish(A, 16, 101, 4)
    A('s_barrier')
    stamp(A, 'o published')
    mk = ph_b.ph_b_pre(A)
    ph_c.ph_c_setup_v(A)
    R = ph_c.Ring(A)
    ph_c.ph_c_prefill(A, R, 0, 3)
    A.wait_vm_mark(mk)
    ph_b.ph_b_vec(A)
    A('s_lshr_b32 s40, s5, 1')
    flag_base(A, 101, 0, 40)
    poll(A, 16, 101, 4, 41)
    stamp(A, 'S1')

    def after_stat():
        A('s_barrier')
        ph_c.ph_c_prefill(A, R, 3, 5)
    ph_b.ph_b_main(A, after_stat)
    A('s_lshr_b32 s40, s5, 1')
    flag_base(A, 101, 1, 40)
    A(f's_lshl_b32 s40, s4, 1\ns_and_b32 s41, s{sW}, 1\ns_add_u32 s40, s40, s41\ns_lshl_b32 s40, s40, 2\ns_add_u32 s101, s101, s40')
    publish(A, 16, 101, 4)
    stamp(A, 'h2 published')
    ph_c.ph_c_prefill(A, R, 5, 9)
    xops = ph_c.ph_c_xload(A)
    if ph_c.OPT['itouch']:
        itouch_setup(A, ph_c.vIL)
        for x in itouch('L_back_step0', ph_c.vIL, 'v13'):
            A(x)
    if ph_c.OPT['pairs']:
        ph_c.pair_setup(A)
        ph_c.tail_setup(A)
    flag_base(A, 101, 1, sW)
    poll(A, 16, 101, 8, 40)
    stamp(A, 'S2')
    ph_c.ph_c_stream(A, R, 9, xops)
    ph_final_setup(A)

    def wait_early():
        publish(A, 16, ph_c.sS3O, 8, 3)
        stamp(A, 'part published')
        poll(A, 16, ph_c.sS3C, 8, 43, 2)
        stamp(A, 'S3 early')

    def wait_late():
        poll(A, 16, ph_c.sS3C, 8, 43, 3)
        if Stamps.on:
            A('s_memtime s[88:89]\nv_writelane_b32 v14, s88, 45')

    def probe_late():
        A(f'buffer_load_dword v9, v8, s[16:19], s{ph_c.sS3C} offen sc1')
        A('v_cmp_gt_u32 vcc, 3, v9')
        A('s_cmp_eq_u64 vcc, 0')
    ph_final(A, wait_early, wait_late, probe_late)


def two(spread=4):
    ph_prep.NEXT[:] = ['k1_kernel', 'L_k1_end']
    ph_prep.POPT['tlb'] = ph_c.OPT.get('tlb', 0); ph_prep.POPT['pf'] = ph_c.OPT.get('k0pf', 0)
    return [kernel('k0_kernel', ph_prep.ph_prep, ph_prep.n_prep(), ph_prep.PREP_LDS, 136 if Stamps.on else 128, 136 if Stamps.on else 128, spread, 130),
            kernel('k1_kernel', merged_body, 256, 163840, spread=spread, sv=14)]


if __name__ == '__main__':
    out = sys.argv[1] if len(sys.argv) > 1 else 'v1.s'
    if 'stamp' in sys.argv:
        Stamps.on = True
    for a in sys.argv[2:]:
        if '=' in a:
            k, v = a.split('=')
            ph_c.OPT[k] = int(v)
    open(out, 'w').write(build(two() if 'two' in sys.argv else multi()))
    if Stamps.on:
        import json
        json.dump(Stamps.names, open(out + '.json', 'w'))
```

```python
from common import *
from ph_small import ph_mod
from ph_a import mod_table

PT = [(0, 1, 2, 3), (4, 13, 10, 11), (12, 21, 14, 23), (20, 24, 22, 22)]
N_MOD, N_XH, N_WQ, N_WO = 108, 64, 144, 40
N_PREP = N_MOD + N_XH + N_WQ + N_WO
PREP_LDS = 4 * 9216


def task_xhat(A, sI):
    A.comment('---- prep: xhat')
    X, T, P = 16, 56, 136
    srd(A, 8, sX, S * D * 2)
    srd(A, 16, sWS, WS_SIZE)
    A(f'''v_lshrrev_b32 v4, 3, v{vLANE}
    v_and_b32 v5, 7, v{vLANE}
    v_mul_u32_u24 v2, 1152, v4
    v_lshl_add_u32 v2, v5, 4, v2
    s_lshl_b32 s40, s{sI}, 2
    s_add_u32 s40, s40, s{sW}
    s_mul_i32 s41, s40, {8*1152}''')
    for n in range(9):
        A(f'buffer_load_dwordx4 v[{X+4*n}:{X+4*n+3}], v2, s[8:11], s41 offen offset:{128*n}')
    A(f'''s_mul_i32 s42, s{sW}, 9216
    v_xor_b32 v6, v4, v5
    v_lshlrev_b32 v6, 4, v6
    v_add_u32 v6, s42, v6
    v_lshl_add_u32 v7, v4, 7, v6
    v_lshl_add_u32 v6, v5, 7, v6
    v_lshlrev_b32 v3, 9, v4
    v_lshl_add_u32 v3, v5, 4, v3
    s_mul_i32 s43, s{sI}, 36864
    s_lshl_b32 s44, s{sW}, 7
    s_add_u32 s43, s43, s44
    s_add_u32 s43, s43, {WS_XH}''')
    A(f'''s_lshr_b32 s46, s40, 1
    s_mul_i32 s46, s46, {T16}
    s_and_b32 s47, s{sW}, 1
    s_lshl_b32 s47, s47, 7
    s_add_u32 s46, s46, s47
    s_add_u32 s46, s46, {WS_XT}
    v_lshlrev_b32 v15, 8, v4
    v_lshl_add_u32 v15, v5, 4, v15''')
    for n in range(9):
        A(f'ds_write_b128 v6, v[{X+4*n}:{X+4*n+3}] offset:{1024*n}')
        for d in range(4):
            unpack(A, T + 8 * n + 2 * d, T + 8 * n + 2 * d + 1, X + 4 * n + d)
    for n in range(9):
        A(f'ds_read_b128 v[{X+4*n}:{X+4*n+3}], v7 offset:{1024*n}')
    a, q = 8, 10

    def sum8(r):
        A(f'v_add_f32_dpp v{r}, v{r}, v{r} quad_perm:[1,0,3,2] row_mask:0xf bank_mask:0xf')
        A(f'v_add_f32_dpp v{r}, v{r}, v{r} quad_perm:[2,3,0,1] row_mask:0xf bank_mask:0xf')
        A(f'v_add_f32_dpp v{r}, v{r}, v{r} row_half_mirror row_mask:0xf bank_mask:0xf')
    A(f'v_pk_add_f32 v[{a}:{a+1}], v[{T}:{T+1}], v[{T+2}:{T+3}]')
    A(f'v_pk_add_f32 v[{q}:{q+1}], v[{T+4}:{T+5}], v[{T+6}:{T+7}]')
    for u in range(4, 36):
        r = a if u & 1 else q
        A(f'v_pk_add_f32 v[{r}:{r+1}], v[{r}:{r+1}], v[{T+2*u}:{T+2*u+1}]')
    A(f'v_pk_add_f32 v[{a}:{a+1}], v[{a}:{a+1}], v[{q}:{q+1}]')
    A(f'v_add_f32 v{a}, v{a}, v{a+1}')
    sum8(a)
    for n in range(9):
        A(f'buffer_store_dwordx4 v[{X+4*n}:{X+4*n+3}], v15, s[16:19], s46 offen offset:{2048*(n&1)}')
        if n & 1:
            A('s_add_u32 s46, s46, 4096')
    A(f's_mov_b32 s45, {fbits(1.0/576)}\nv_mul_f32 v{a}, s45, v{a}')
    for u in range(36):
        t = T + 2 * u
        A(f'v_pk_add_f32 v[{t}:{t+1}], v[{t}:{t+1}], v[{a}:{a+1}] op_sel_hi:[1,0] neg_lo:[0,1] neg_hi:[0,1]')
    b = 12
    A(f'v_pk_mul_f32 v[{q}:{q+1}], v[{T}:{T+1}], v[{T}:{T+1}]')
    A(f'v_pk_mul_f32 v[{b}:{b+1}], v[{T+2}:{T+3}], v[{T+2}:{T+3}]')
    for u in range(2, 36):
        r = b if u & 1 else q
        t = T + 2 * u
        A(f'v_pk_fma_f32 v[{r}:{r+1}], v[{t}:{t+1}], v[{t}:{t+1}], v[{r}:{r+1}]')
    A(f'v_pk_add_f32 v[{q}:{q+1}], v[{q}:{q+1}], v[{b}:{b+1}]')
    A(f'v_add_f32 v{q}, v{q}, v{q+1}')
    sum8(q)
    A(f'''v_mov_b32 v{q+1}, {fbits(1e-5)}
    v_fmac_f32 v{q+1}, s45, v{q}
    v_rsq_f32 v{a}, v{q+1}''')
    for n in range(9):
        for d in range(4):
            t = T + 8 * n + 2 * d
            A(f'v_pk_mul_f32 v[{t}:{t+1}], v[{t}:{t+1}], v[{a}:{a+1}] op_sel_hi:[1,0]')
        for d in range(4):
            t = T + 8 * n + 2 * d
            A(f'v_cvt_pk_bf16_f32 v{X+4*n+d}, v{t}, v{t+1}')
        A(f'ds_write_b128 v6, v[{X+4*n}:{X+4*n+3}] offset:{1024*n}')
    for n in range(9):
        A(f'ds_read_b128 v[{X+4*n}:{X+4*n+3}], v7 offset:{1024*n}')
    for n in range(9):
        A(f'buffer_store_dwordx4 v[{X+4*n}:{X+4*n+3}], v3, s[16:19], s43 offen')
        if n < 8:
            A('s_add_u32 s43, s43, 4096')


def task_wq(A, sI):
    A.comment('---- prep: qkv weight tiles')
    srd(A, 12, sWQKV, 576 * 3456)
    srd(A, 16, sWS, WS_SIZE)
    A(f'''v_mul_u32_u24 v4, 69, v{vLANE}
    v_lshrrev_b32 v4, 10, v4
    v_mul_u32_u24 v5, 15, v4
    v_sub_u32 v5, v{vLANE}, v5
    v_mul_u32_u24 v6, 13, v5
    v_lshrrev_b32 v6, 6, v6
    v_mul_u32_u24 v7, 5, v6
    v_sub_u32 v7, v5, v7
    v_mul_u32_u24 v4, 3456, v4
    v_mul_u32_u24 v6, 1152, v6
    v_add_u32 v4, v4, v6
    v_lshl_add_u32 v2, v7, 4, v4
    s_lshr_b32 s40, s{sI}, 2
    s_and_b32 s41, s{sI}, 3
    s_lshl_b32 s41, s41, 2
    s_add_u32 s41, s41, s{sW}
    s_mul_i32 s42, s41, 72
    s_and_b32 s42, s42, 0xfffffff0
    s_mul_i32 s43, s40, {16*3456}
    s_add_u32 s42, s42, s43
    s_mul_i32 s44, s{sW}, 3840
    s_mov_b32 exec_hi, 0x0fffffff''')
    for i in range(4):
        A(f's_add_u32 m0, s44, {960*i}')
        A(f's_add_u32 s45, s42, {4*3456*i}')
        A('buffer_load_dwordx4 v2, s[12:15], s45 offen lds')
    A('s_mov_b32 exec_hi, -1')
    A(f'''v_lshrrev_b32 v4, 5, v{vLANE}
    v_bfe_u32 v5, v{vLANE}, 2, 2
    v_and_b32 v6, 3, v{vLANE}
    v_bfe_u32 v7, v{vLANE}, 4, 1
    v_lshlrev_b32 v7, 1, v7
    v_lshrrev_b32 v9, 1, v6
    v_add_u32 v7, v7, v9
    v_lshlrev_b32 v7, 3, v7
    v_and_b32 v8, 1, v6
    v_lshlrev_b32 v8, 2, v8
    s_and_b32 s50, s41, 1
    v_add_u32 v8, s50, v8
    v_lshl_add_u32 v9, v4, 3, v5
    v_mul_u32_u24 v9, 240, v9
    v_add_u32 v9, s44, v9''')
    packs = [t[0] | t[1] << 8 | t[2] << 16 | t[3] << 24 for t in PT]
    for T in range(4):
        A(f'''s_mov_b32 s52, {packs[T]}
        v_bfe_u32 v10, s52, v7, 8
        v_add_u32 v10, v10, v8
        v_lshl_add_u32 v{12+T}, v10, 3, v9''')
    A(f'''v_lshlrev_b32 v3, 4, v{vLANE}
    v_and_b32 v10, 31, v{vLANE}
    v_mul_u32_u24 v11, 24, v4
    v_add_u32 v11, v11, v10
    v_lshlrev_b32 v11, 4, v11
    s_mul_i32 s46, s41, {WQ_J}
    s_mul_i32 s47, s40, 3840
    s_add_u32 s46, s46, s47
    s_add_u32 s46, s46, {WS_WQ}''')
    A.wait_all()
    for T in range(4):
        for rd in range(2):
            A(f'ds_read_b64_tr_b16 v[{16+4*T+2*rd}:{17+4*T+2*rd}], v{12+T} offset:{960*rd}')
    for T in range(3):
        A(f'buffer_store_dwordx4 v[{16+4*T}:{19+4*T}], v3, s[16:19], s46 offen offset:{1024*T}')
    A('s_mov_b32 exec_lo, 0x00ffffff\ns_mov_b32 exec_hi, 0x00ffffff')
    A('buffer_store_dwordx4 v[28:31], v11, s[16:19], s46 offen offset:3072')
    A('s_mov_b64 exec, -1')


def task_wo(A, sI):
    A.comment('---- prep: wo tiles')
    srd(A, 20, sWO, 576 * 1152)
    srd(A, 16, sWS, WS_SIZE)
    A(f'''s_lshl_b32 s40, s{sI}, 2
    s_add_u32 s40, s40, s{sW}
    s_lshr_b32 s41, s40, 3
    s_and_b32 s42, s40, 7
    s_mul_i32 s43, s42, 144
    s_mul_i32 s44, s{sW}, 5120
    v_mul_u32_u24 v4, 57, v{vLANE}
    v_lshrrev_b32 v4, 9, v4
    v_mul_u32_u24 v5, 9, v4
    v_sub_u32 v5, v{vLANE}, v5
    v_lshlrev_b32 v5, 4, v5
    s_lshl_b32 s45, s41, 2
    s_mov_b32 exec_hi, 0x7fffffff''')
    for i in range(5):
        A(f'''v_add_u32 v6, {7*i}, v4
        v_min_u32 v6, 31, v6
        v_lshrrev_b32 v7, 3, v6
        v_and_b32 v6, 7, v6
        v_add_u32 v7, s45, v7
        v_mul_u32_u24 v8, 205, v7
        v_lshrrev_b32 v8, 10, v8
        v_mul_u32_u24 v9, 5, v8
        v_sub_u32 v9, v7, v9
        v_lshrrev_b32 v10, 1, v9
        v_mul_u32_u24 v10, 18, v10
        v_and_b32 v11, 1, v9
        v_lshl_add_u32 v10, v11, 3, v10
        v_lshrrev_b32 v11, 1, v6
        v_cmp_eq_u32 vcc, 0, v11
        v_cndmask_b32 v12, 0, 16, vcc
        v_cmp_eq_u32 vcc, 1, v11
        v_cndmask_b32 v12, v12, 32, vcc
        v_cmp_eq_u32 vcc, 4, v9
        v_cndmask_b32 v10, v10, v12, vcc
        v_add_u32 v10, v10, v6
        v_mad_u32_u24 v10, v8, 36, v10
        v_mul_u32_u24 v10, 1152, v10
        v_add_u32 v{20+i}, v10, v5
        s_add_u32 m0, s44, {1008*i}
        s_nop 0
        buffer_load_dwordx4 v{20+i}, s[20:23], s43 offen lds''')
    A('s_mov_b32 exec_hi, -1')
    A(f'''v_lshrrev_b32 v4, 4, v{vLANE}
    v_bfe_u32 v5, v{vLANE}, 2, 2
    v_lshl_add_u32 v4, v4, 3, v5
    v_mul_u32_u24 v4, 144, v4
    v_and_b32 v5, 3, v{vLANE}
    v_lshl_add_u32 v4, v5, 3, v4
    v_add_u32 v4, s44, v4
    v_lshlrev_b32 v3, 4, v{vLANE}
    s_mul_i32 s46, s42, {WO_C}
    s_mul_i32 s47, s41, 5120
    s_add_u32 s46, s46, s47
    s_add_u32 s46, s46, {WS_WO}
    s_add_u32 s47, s46, 4096''')
    A.wait_all()
    for T in range(5):
        for rd in range(2):
            A(f'ds_read_b64_tr_b16 v[{32+4*T+2*rd}:{33+4*T+2*rd}], v4 offset:{576*rd+32*T}')
    for T in range(4):
        A(f'buffer_store_dwordx4 v[{32+4*T}:{35+4*T}], v3, s[16:19], s46 offen offset:{1024*T}')
    A('buffer_store_dwordx4 v[48:51], v3, s[16:19], s47 offen')


def task_zero(A, sI):
    n = (WS_ZEND - WS_FLAG + N_WO * 4096 - 1) // (N_WO * 4096)
    A(f'''v_mov_b32 v56, 0
    v_mov_b32 v57, 0
    v_mov_b32 v58, 0
    v_mov_b32 v59, 0
    v_lshlrev_b32 v60, 4, v{vTID}
    s_mul_i32 s48, s{sI}, {n*4096}''')
    srd(A, 24, sWS, WS_ZEND - WS_FLAG, off=WS_FLAG)
    for i in range(n):
        A('buffer_store_dwordx4 v[56:59], v60, s[24:27], s48 offen')
        A('s_add_u32 s48, s48, 4096')


POPT = dict(tlb=0, pf=0)
N_PF = 128


def task_tlb(A, sI, shift):
    bufs = [(sWG, 576 * 9216, 0), (sWU, 576 * 9216, 0), (sWD, F * 1152, 0), (sOUT, S * D * 2, 0), (sWS, WS_END, 0)]
    A(f's_lshr_b32 s48, s{sI}, 3\ns_lshl_b32 s48, s48, 2\ns_add_u32 s48, s48, s{sW}')
    A(f'v_lshlrev_b32 v56, {shift}, v{vLANE}')
    q = 0
    for ptr, size, off in bufs:
        srd(A, 24, ptr, size)
        n = -(-size // (64 << shift))
        for i in range(n):
            if q % 20 or True:
                A(f's_cmp_eq_u32 s48, {q % 20}')
                A(f's_cselect_b32 s49, {i * (64 << shift)}, s47') if False else None
                A(f's_mov_b32 s49, 0x80000000\ns_cmov_b32 s49, {i * (64 << shift)}')
                A(f'buffer_load_dword v57, v56, s[24:27], s49 offen')
            q += 1
            if q % 40 == 0:
                A('s_waitcnt vmcnt(0)')


def task_pf(A, sI):
    A(f's_lshl_b32 s40, s{sI}, 2\ns_add_u32 s40, s40, s{sW}\nv_lshlrev_b32 v2, 7, v{vLANE}')
    per = 576 * 9216 // (4 * N_PF)
    assert per % 128 == 0
    A(f's_mul_i32 s41, s40, {per}')
    for ptr in (sWG, sWU, sWD):
        srd(A, 8, ptr, 576 * 9216)
        A(f's_mov_b32 s42, s41')
        n = per // 128
        k = 0
        while n > 0:
            if n < 64:
                m = (1 << n) - 1
                A(f's_mov_b32 exec_lo, {m & 0xffffffff}\ns_mov_b32 exec_hi, {m >> 32}')
            A(f'buffer_load_dword v{8+k}, v2, s[8:11], s42 offen\ns_add_u32 s42, s42, 8192')
            n -= 64; k += 1
        A('s_mov_b64 exec, -1')


NEXT = [None, None]


def n_prep():
    return N_PREP + (N_PF if POPT['pf'] else 0)


def ph_prep(A):
    code_prefetch(A, 'L_k0_body', 'L_k0_end-L_k0_body-4', 2, 127, 50, 1)
    A('L_k0_body:')
    ends = []
    lo = 0
    roles = [(N_MOD, lambda A, s: ph_mod(A, s, 0)), (N_XH, task_xhat), (N_WQ, task_wq)]
    if POPT['pf']:
        roles.append((N_PF, task_pf))
    for n, fn in roles + [(N_WO, None)]:
        last = fn is None
        if not last:
            A(f's_cmp_ge_u32 s2, {lo+n}')
            ctx = A.begin_skip('s_cbranch_scc1 {}')
        A(f's_sub_u32 s39, s2, {lo}')
        if last:
            if NEXT[0]:
                A(f's_lshr_b32 s48, s39, 3\ns_lshl_b32 s48, s48, 2\ns_add_u32 s48, s48, s{sW}\ns_lshl_b32 s48, s48, 13')
                code_prefetch(A, NEXT[0], f'{NEXT[1]}-{NEXT[0]}-4', 60, 62, 50, 1, 48)
            if POPT['tlb']:
                task_tlb(A, 39, POPT['tlb'])
            task_zero(A, 39)
            task_wo(A, 39)
        else:
            n0 = Stamps.n
            fn(A, 39)
            stamp_end(A, again=True)
            keep = Stamps.n
            A('s_endpgm')
            A.end_skip(ctx)
        lo += n
```

```python
from asmgen import *

S, D, F = 2048, 576, 4608
WS_MOD = 0
WS_ST = 0x4000
WS_ZEND = WS_ST + 128 * 2048
FSC = [7, 7]
WS_FLAG = WS_ZEND
WS_PF = WS_FLAG + (3 * 1024 << 7)
WS_XH = WS_PF + (1024 << 7)
WS_WQ = WS_XH + 64 * 36864
WQ_J = 36 * 3840
WS_WO = WS_WQ + 16 * WQ_J + 1024
WO_C = 100 * 1024
WS_O = WS_WO + 8 * WO_C
O_G = 8 * 80 * 256
WS_X1 = WS_O + 16 * O_G
T16 = 72 * 256
WS_H2 = WS_X1 + 128 * T16
WS_XT = WS_H2 + 128 * T16
WS_PART = WS_XT + 128 * T16
WS_HX = WS_PART + 128 * 8 * T16
WS_END = WS_HX + 256 * 4 * 18432
WS_SIZE = 268435456

sX, sWQKV, sWO, sWG, sWU, sWD, sC = 64, 66, 68, 72, 74, 76, 78
sWMOD, sOUT, sDBG, sWS = 80, 82, 84, 86
sG, sJ, sW = 32, 33, 34
sMASKHI = 35
sHALF = 36
vTID, vLANE = 0, 1

LOG2E = 1.4426950408889634


def fbits(x):
    import struct
    return '0x%08x' % struct.unpack('<I', struct.pack('<f', x))[0]


def prologue(A, nwg, endlabel, xcd_spread=4):
    A(f's_cmp_ge_u32 s2, {nwg}')
    A(f's_cbranch_scc1 {endlabel}')
    A('s_load_dwordx16 s[64:79], s[0:1], 0')
    A('s_load_dwordx8 s[80:87], s[0:1], 64')
    A(f'v_lshrrev_b32 v2, 6, v{vTID}')
    A(f'v_and_b32 v{vLANE}, 63, v{vTID}')
    A(f'v_readfirstlane_b32 s{sW}, v2')
    mapping(A, xcd_spread)
    A(f's_mov_b32 s{sMASKHI}, 0xffff0000')
    A(f's_mov_b32 s{sHALF}, 0')
    A(f's_mov_b32 s{sHALF+1}, -1')


def mapping(A, n):
    if n == 8:
        A(f's_lshr_b32 s{sG}, s2, 4\ns_and_b32 s{sJ}, s2, 15')
    elif n == 4:
        A(f'''s_and_b32 s40, s2, 7
        s_lshr_b32 s{sG}, s40, 2
        s_lshr_b32 s41, s2, 5
        s_lshl_b32 s41, s41, 1
        s_add_u32 s{sG}, s{sG}, s41
        s_and_b32 s{sJ}, s40, 3
        s_lshl_b32 s{sJ}, s{sJ}, 2
        s_lshr_b32 s41, s2, 3
        s_and_b32 s41, s41, 3
        s_add_u32 s{sJ}, s{sJ}, s41''')
    elif n == 2:
        A(f'''s_and_b32 s40, s2, 7
        s_lshr_b32 s{sG}, s40, 1
        s_lshr_b32 s41, s2, 6
        s_lshl_b32 s41, s41, 2
        s_add_u32 s{sG}, s{sG}, s41
        s_and_b32 s{sJ}, s40, 1
        s_lshl_b32 s{sJ}, s{sJ}, 3
        s_lshr_b32 s41, s2, 3
        s_and_b32 s41, s41, 7
        s_add_u32 s{sJ}, s{sJ}, s41''')
    elif n == 1:
        A(f'''s_and_b32 s{sG}, s2, 7
        s_lshl_b32 s{sG}, s{sG}, 1
        s_lshr_b32 s41, s2, 3
        s_and_b32 s41, s41, 1
        s_add_u32 s{sG}, s{sG}, s41
        s_lshr_b32 s{sJ}, s2, 4''')
    else:
        raise ValueError


def srd(A, q, ptr, size, off=0, bias=0):
    d = off - bias
    if d == 0:
        A(f's_mov_b32 s{q}, s{ptr}\ns_mov_b32 s{q+1}, s{ptr+1}')
    elif d > 0:
        A(f's_add_u32 s{q}, s{ptr}, {d}\ns_addc_u32 s{q+1}, s{ptr+1}, 0')
    else:
        A(f's_sub_u32 s{q}, s{ptr}, {-d}\ns_subb_u32 s{q+1}, s{ptr+1}, 0')
    A(f's_mov_b32 s{q+2}, {size + bias}\ns_mov_b32 s{q+3}, 0x20000')


def unpack(A, lo, hi, src):
    A(f'v_lshlrev_b32 v{lo}, 16, v{src}')
    A(f'v_and_b32 v{hi}, s{sMASKHI}, v{src}')


HDR = open('adaLN_cond__sliding_local_dilated__glu_gated_glu__prompt.s.ref').read().split('\n')[:13]


def kd(name, vgpr, accum, sgpr=102):
    return f""".p2align 6
.amdhsa_kernel {name}
  .amdhsa_next_free_vgpr {vgpr}
  .amdhsa_next_free_sgpr {sgpr}
  .amdhsa_accum_offset {accum}
  .amdhsa_group_segment_fixed_size 0
  .amdhsa_kernarg_size 96
  .amdhsa_user_sgpr_count 2
  .amdhsa_user_sgpr_kernarg_segment_ptr 1
  .amdhsa_system_sgpr_workgroup_id_x 1
  .amdhsa_float_denorm_mode_32 3
.end_amdhsa_kernel"""


def build(kernels):
    out = list(HDR)
    for k in kernels:
        out.append(f"; @launch kernel={k['name']} grid=({k['grid']},1,1) block=({k['block']},1,1) lds={k['lds']}")
    out.append('.amdgcn_target "amdgcn-amd-amdhsa--gfx950"')
    out.append('.text')
    seen = set()
    for k in kernels:
        if k['name'] in seen:
            continue
        seen.add(k['name'])
        out.append(f".globl {k['name']}\n.p2align 8\n.type {k['name']},@function\n{k['name']}:")
        out.append(k['body'])
        out.append('')
    out.append('.section .rodata,"a"')
    seen = set()
    for k in kernels:
        if k['name'] in seen:
            continue
        seen.add(k['name'])
        out.append(kd(k['name'], k.get('vgpr', 512), k.get('accum', 256), k.get('sgpr', 102)))
    return '\n'.join(out) + '\n'


WS_STAMP = 0x8000000
class Stamps:
    on = False
    vreg = 14
    n = 0
    names = []
    kidx = 0


def stamp_begin(A, kidx, vreg):
    Stamps.n = 0; Stamps.kidx = kidx; Stamps.vreg = vreg
    Stamps.names.append([])
    if not Stamps.on:
        return
    A(f'v_mov_b32 v{vreg}, 0')
    A('s_memrealtime s[88:89]')
    A(f'v_writelane_b32 v{vreg}, s88, 62')
    stamp(A, 'start')


def stamp(A, name):
    if not Stamps.on:
        return
    A('s_memtime s[88:89]')
    A(f'v_writelane_b32 v{Stamps.vreg}, s88, {Stamps.n}')
    Stamps.names[-1].append(name)
    Stamps.n += 1


def stamp_end(A, again=False):
    if not Stamps.on:
        return
    A.wait_all()
    stamp(A, 'end')
    if again:
        Stamps.names[-1].pop(); Stamps.n -= 1
    A('s_memrealtime s[88:89]')
    A(f'v_writelane_b32 v{Stamps.vreg}, s88, 63')
    srd(A, 8, sWS, WS_SIZE)
    A(f'''s_lshl_b32 s88, s2, 2
    s_add_u32 s88, s88, s{sW}
    s_lshl_b32 s88, s88, 8
    s_add_u32 s88, s88, {WS_STAMP + Stamps.kidx * 0x80000}
    v_lshlrev_b32 v2, 2, v{vLANE}
    buffer_store_dword v{Stamps.vreg}, v2, s[8:11], s88 offen''')


SPIN_MAX = 400000
SLEEP = [2]


def flag_base(A, sD, stage, sCls):
    A(f'''s_lshl_b32 s{sD}, s{sG}, 2
    s_add_u32 s{sD}, s{sD}, s{sCls}
    s_lshl_b32 s{sD}, s{sD}, {4 + FSC[0]}
    s_add_u32 s{sD}, s{sD}, {WS_FLAG + (stage*1024 << FSC[0])}''')


def publish(A, srdq, sOff, v0, val=1):
    A('s_waitcnt vmcnt(0)')
    A(f'v_mov_b32 v{v0}, {val}\nv_mov_b32 v{v0+1}, 0\ns_mov_b64 exec, 1')
    A(f'buffer_store_dword v{v0}, v{v0+1}, s[{srdq}:{srdq+3}], s{sOff} offen sc1')
    A('s_mov_b64 exec, -1')


def poll(A, srdq, sOff, v0, sCnt, val=1):
    lab = A.label('L_poll'); done = A.label('L_polled')
    A(f'v_and_b32 v{v0}, 15, v{vLANE}\nv_lshlrev_b32 v{v0}, {FSC[0]}, v{v0}\ns_mov_b32 s{sCnt}, 0')
    A.fence()
    A(lab + ':')
    A(f's_sleep {SLEEP[0]}')
    A(f'buffer_load_dword v{v0+1}, v{v0}, s[{srdq}:{srdq+3}], s{sOff} offen sc1')
    A(f's_add_u32 s{sCnt}, s{sCnt}, 1\ns_cmp_gt_u32 s{sCnt}, {SPIN_MAX}')
    A(f's_cbranch_scc1 {done}')
    A(f'v_cmp_gt_u32 vcc, {val}, v{v0+1}')
    A(f's_cbranch_vccnz {lab}')
    A(done + ':')
    A('s_waitcnt vmcnt(0)')


def code_prefetch(A, label, nbytes_expr, vOff, vDst, sq, ninstr, sBase=None):
    here = A.label('L_pc')
    A(f's_getpc_b64 s[{sq}:{sq+1}]')
    A(here + ':')
    A(f's_add_u32 s{sq}, s{sq}, {label}-{here}')
    A(f's_addc_u32 s{sq+1}, s{sq+1}, (({label}-{here})>>63)&0xffffffff' if False else f's_addc_u32 s{sq+1}, s{sq+1}, 0')
    A(f'v_lshlrev_b32 v{vOff}, 7, v{vLANE}')
    if sBase is not None:
        A(f'v_add_u32 v{vOff}, s{sBase}, v{vOff}')
    for i in range(ninstr):
        if i:
            A(f'v_add_u32 v{vOff}, 8192, v{vOff}')
        A(f'v_min_u32 v{vOff+1}, {nbytes_expr}, v{vOff}')
        A(f'global_load_dword v{vDst+i}, v{vOff+1}, s[{sq}:{sq+1}]')


sPC = 92


def itouch_setup(A, vLine):
    A('s_getpc_b64 s[92:93]')
    A('L_back_pc0:')
    A(f'v_lshlrev_b32 v{vLine}, 7, v{vLANE}')


def itouch(label, vLine, aDst):
    return [f's_add_u32 s94, s92, {label}-L_back_pc0', 's_addc_u32 s95, s93, 0',
            f'global_load_dword {aDst}, v{vLine}, s[94:95]']


def poll_begin(A, srdq, sOff, v0):
    A(f'v_and_b32 v{v0}, 15, v{vLANE}\nv_lshlrev_b32 v{v0}, {FSC[0]}, v{v0}')
    A(f'buffer_load_dword v{v0+1}, v{v0}, s[{srdq}:{srdq+3}], s{sOff} offen sc1')


def poll_end(A, srdq, sOff, v0, sCnt, val=1):
    ok = A.label('L_back_ok')
    slow = A.label('L_pslow'); again = A.label('L_pagain')
    A(f'v_cmp_gt_u32 vcc, {val}, v{v0+1}')
    A(f's_cbranch_vccnz {slow}')
    A(ok + ':')
    A.tail += [slow + ':', f's_mov_b32 s{sCnt}, 0', again + ':', f's_sleep {SLEEP[0]}',
               f'buffer_load_dword v{v0+1}, v{v0}, s[{srdq}:{srdq+3}], s{sOff} offen sc1',
               f's_add_u32 s{sCnt}, s{sCnt}, 1', f's_cmp_gt_u32 s{sCnt}, {SPIN_MAX}', f's_cbranch_scc1 {ok}',
               's_waitcnt vmcnt(0)', f'v_cmp_gt_u32 vcc, {val}, v{v0+1}', 's_nop 1', f's_cbranch_vccnz {again}', f's_branch {ok}']
```

```python
from common import *

B_IMG = 61440
B_LDS = B_IMG + WO_C


def ph_b_dma(A, srdq=16):
    A.comment('==== phase B: wo image ====')
    A(f'''s_and_b32 s40, s{sJ}, 7
    s_mul_i32 s40, s40, {WO_C}
    s_lshl_b32 s41, s{sW}, 10
    s_add_u32 s40, s40, s41
    s_add_u32 s40, s40, {WS_WO}
    s_add_u32 s41, s41, {B_IMG}
    v_lshlrev_b32 v8, 4, v{vLANE}''')
    return [f's_add_u32 m0, s41, {4096*i}\ns_add_u32 s42, s40, {4096*i}\nbuffer_load_dwordx4 v8, s[{srdq}:{srdq+3}], s42 offen lds' for i in range(25)]


OB, XR, GA, SC, SH, ACC, TM = 16, 96, 108, 128, 148, 168, 188
PK = 240
vL16, vX1, vST, vA, vVEC = 238, 239, 252, 253, 12
B_VEC = 49152
sgX = 28


def ph_b_pre(A):
    A(f'''s_lshr_b32 s3, s{sJ}, 3
    s_and_b32 s4, s{sJ}, 7
    v_lshlrev_b32 v{vL16}, 4, v{vLANE}
    s_lshl_b32 s5, s3, 2
    s_add_u32 s5, s5, s{sW}
    s_mul_i32 s6, s5, 20480
    s_mul_i32 s7, s{sG}, {O_G}
    s_add_u32 s6, s6, s7
    s_add_u32 s6, s6, {WS_O}
    v_and_b32 v4, 15, v{vLANE}
    v_lshrrev_b32 v5, 4, v{vLANE}
    v_and_b32 v8, 1, v5
    v_lshlrev_b32 v8, 1, v8
    v_lshrrev_b32 v9, 1, v5
    v_or_b32 v8, v8, v9
    v_lshlrev_b32 v8, 8, v8
    v_lshl_add_u32 v{vX1}, v4, 4, v8
    v_lshlrev_b32 v{vST}, 4, v4
    s_lshl_b32 s39, s{sG}, 3
    s_add_u32 s39, s39, s5
    s_mul_i32 s96, s39, {T16}
    s_mul_i32 s97, s4, 2304
    s_add_u32 s96, s96, s97
    s_add_u32 s7, s96, {WS_XT}
    s_add_u32 s96, s96, {WS_X1}
    v_mul_u32_u24 v6, 57, v{vLANE}
    v_lshrrev_b32 v6, 10, v6
    v_mul_u32_u24 v6, {2304-288}, v6
    v_add_u32 v6, v6, v{vL16}
    s_mul_i32 s38, s4, 288
    s_add_u32 s38, s38, {WS_MOD + 4*1152}
    s_mov_b32 m0, {B_VEC}
    s_mov_b32 exec_hi, 0x3fffff
    buffer_load_dwordx4 v6, s[16:19], s38 offen lds
    s_mov_b32 exec_hi, -1''')
    mk = A.mark()
    for z in range(3):
        A(f'buffer_load_dwordx4 v[{XR+4*z}:{XR+4*z+3}], v{vX1}, s[16:19], s7 offen offset:{1024*z}')
    A(f'''v_add_u32 v{vA}, {B_IMG}, v{vL16}
    v_lshlrev_b32 v{vVEC}, 4, v5
    v_add_u32 v{vVEC}, {B_VEC}, v{vVEC}
    s_lshl_b32 s97, s39, 11
    s_add_u32 s97, s97, {WS_ST}
    s_lshl_b32 s98, s4, 8
    s_add_u32 s98, s98, s97''')
    return mk


def ph_b_vec(A):
    for base, off in ((GA, 0), (SH, 288), (SC, 576)):
        for T in range(5):
            A(f'ds_read_b128 v[{base+4*T}:{base+4*T+3}], v{vVEC} offset:{off+64*T}')
    for bb in (0, 4, 8):
        A(f'v_permlane16_swap_b32 v{XR+bb}, v{XR+bb+2}')
        A(f'v_permlane16_swap_b32 v{XR+bb+1}, v{XR+bb+3}')
    A(f's_mov_b32 s99, {fbits(-LOG2E)}')
    for e in range(20):
        A(f'v_mul_f32 v{SH+e}, s99, v{SH+e}')


NPRE = 56


def ph_b_pre_frags(A):
    for m in range(NPRE):
        A(f'ds_read_b128 a[{32+4*m}:{32+4*m+3}], v{vA} offset:{m*1024}')


def ph_b_main(A, before_stat=None, after_stat=None):
    A.comment('==== phase B ====')
    aFR = 0
    for k in range(20):
        A(f'buffer_load_dwordx4 v[{OB+4*k}:{OB+4*k+3}], v{vL16}, s[16:19], s6 offen offset:{1024*(k%4)} sc1')
        if k % 4 == 3 and k < 19:
            A('s_add_u32 s6, s6, 4096')
    NB = 8

    def freg(m):
        return 32 + 4 * m if m < NPRE else aFR + 4 * ((m - NPRE) % NB)

    def read(m):
        f = freg(m)
        if m == 60:
            A(f'v_add_u32 v{vA}, 61440, v{vA}')
        return f'ds_read_b128 a[{f}:{f+3}], v{vA} offset:{(m % 60)*1024}'
    nxt = NPRE
    while nxt < NPRE + NB:
        A(read(nxt)); nxt += 1
    for m in range(100):
        k, T = divmod(m, 5)
        f = freg(m)
        acc = ACC + 4 * T
        cin = '0' if k == 0 else f'v[{acc}:{acc+3}]'
        if m >= NPRE and (m - NPRE) % 2 == 0:
            A.wait_regs(rl('a', f, 4) + rl('a', freg(min(m + 1, 99)), 4))
        A(f'v_mfma_f32_16x16x32_bf16 v[{acc}:{acc+3}], a[{f}:{f+3}], v[{OB+4*k}:{OB+4*k+3}], {cin}')
        if m >= NPRE and nxt < 100:
            A(read(nxt)); nxt += 1
        if m < 10:
            unpack(A, TM + 2 * m, TM + 2 * m + 1, XR + m)
    stamp(A, 'gemm done')
    for u in range(10):
        t = TM + 2 * u
        A(f'v_pk_fma_f32 v[{t}:{t+1}], v[{ACC+2*u}:{ACC+2*u+1}], v[{GA+2*u}:{GA+2*u+1}], v[{t}:{t+1}]')
    for u in range(10):
        A(f'v_cvt_pk_bf16_f32 v{PK+u}, v{TM+2*u}, v{TM+2*u+1}')
    for u in range(10):
        unpack(A, TM + 2 * u, TM + 2 * u + 1, PK + u)
    a, b = 8, 40

    def allsum(r, t):
        A(f'''v_mov_b32 v{t}, v{r}
        v_permlane16_swap_b32 v{r}, v{t}
        v_add_f32 v{r}, v{r}, v{t}
        v_mov_b32 v{t}, v{r}
        v_permlane32_swap_b32 v{r}, v{t}
        v_add_f32 v{r}, v{r}, v{t}''')
    A(f'v_pk_add_f32 v[{a}:{a+1}], v[{TM}:{TM+1}], v[{TM+2}:{TM+3}]')
    for u in range(2, 10):
        if u == 8:
            A('s_mov_b32 exec_hi, 0')
        A(f'v_pk_add_f32 v[{a}:{a+1}], v[{a}:{a+1}], v[{TM+2*u}:{TM+2*u+1}]')
    A('s_mov_b32 exec_hi, -1')
    A(f'v_add_f32 v{a}, v{a}, v{a+1}')
    allsum(a, a + 1)
    A(f's_mov_b32 s99, {fbits(1.0/72)}\nv_mul_f32 v{a}, s99, v{a}')
    DV = ACC
    for u in range(10):
        A(f'v_pk_add_f32 v[{DV+2*u}:{DV+2*u+1}], v[{TM+2*u}:{TM+2*u+1}], v[{a}:{a+1}] op_sel_hi:[1,0] neg_lo:[0,1] neg_hi:[0,1]')
    A(f'v_pk_mul_f32 v[{b}:{b+1}], v[{DV}:{DV+1}], v[{DV}:{DV+1}]')
    for u in range(1, 10):
        if u == 8:
            A('s_mov_b32 exec_hi, 0')
        t = DV + 2 * u
        A(f'v_pk_fma_f32 v[{b}:{b+1}], v[{t}:{t+1}], v[{t}:{t+1}], v[{b}:{b+1}]')
    A('s_mov_b32 exec_hi, -1')
    A(f'v_add_f32 v{b}, v{b}, v{b+1}')
    allsum(b, b + 1)
    A(f'v_mov_b32 v{a+1}, v{b}\nv_mov_b32 v{a+2}, 1\nv_mov_b32 v{a+3}, 0')
    A('s_mov_b64 exec, 0xffff')
    A(f'buffer_store_dwordx4 v[{a}:{a+3}], v{vST}, s[16:19], s98 offen sc1')
    A('s_mov_b64 exec, -1')

    def swap_store(P, sOff):
        A(f'v_mov_b32 v{P+10}, v{P+8}\nv_mov_b32 v{P+11}, v{P+9}')
        for bb in (0, 4, 8):
            A(f'v_permlane16_swap_b32 v{P+bb}, v{P+bb+2}')
            A(f'v_permlane16_swap_b32 v{P+bb+1}, v{P+bb+3}')
        A(f'buffer_store_dwordx4 v[{P}:{P+3}], v{vX1}, s[16:19], s{sOff} offen sc1')
        A(f'buffer_store_dwordx4 v[{P+4}:{P+7}], v{vX1}, s[16:19], s{sOff} offen offset:1024 sc1')
        A('s_mov_b64 exec, 0xffff')
        A(f'buffer_store_dwordx4 v[{P+8}:{P+11}], v{vX1}, s[16:19], s{sOff} offen offset:2048 sc1')
        A('s_mov_b64 exec, -1')
    G0, G1 = 32, 36
    ok, slow, again = A.label('L_back_st'), A.label('L_stslow'), A.label('L_stagain')
    lds = [f'buffer_load_dwordx4 v[{G0}:{G0+3}], v{vL16}, s[16:19], s97 offen sc1',
           f'buffer_load_dwordx4 v[{G1}:{G1+3}], v{vL16}, s[16:19], s97 offen offset:1024 sc1']
    if before_stat:
        before_stat()
    for x in lds:
        A(x)
    if after_stat:
        after_stat()
    chk = [f'v_and_b32 v4, v{G0+2}, v{G1+2}', 'v_cmp_eq_u32 vcc, 0, v4']
    for x in chk:
        A(x)
    A(f's_cbranch_vccnz {slow}')
    A(ok + ':')
    A.tail += [slow + ':', 's_mov_b32 s100, 0', again + ':', f's_sleep {SLEEP[0]}'] + lds + \
        ['s_add_u32 s100, s100, 1', f's_cmp_gt_u32 s100, {SPIN_MAX}', f's_cbranch_scc1 {ok}', 's_waitcnt vmcnt(0)'] + chk + \
        ['s_nop 1', f's_cbranch_vccnz {again}', f's_branch {ok}']
    stamp(A, 'stats in')
    swap_store(PK, 96)
    A(f'v_add_f32 v{a}, v{G0}, v{G1}')
    allsum(a, a + 1)
    A(f'''v_mul_f32 v{a}, {fbits(0.125)}, v{a}
    v_sub_f32 v{G0}, v{G0}, v{a}
    v_sub_f32 v{G1}, v{G1}, v{a}
    v_mul_f32 v{G0}, v{G0}, v{G0}
    v_fmac_f32 v{G0}, v{G1}, v{G1}
    v_add_f32 v{b}, v{G0+1}, v{G1+1}
    s_mov_b32 s99, {fbits(72.0)}
    v_fmac_f32 v{b}, s99, v{G0}''')
    allsum(b, b + 1)
    A(f'''s_mov_b32 s99, {fbits(1.0/576)}
    v_mov_b32 v{b+1}, {fbits(1e-5)}
    v_fmac_f32 v{b+1}, s99, v{b}
    v_rsq_f32 v{b}, v{b+1}''')
    for u in range(10):
        t = TM + 2 * u
        A(f'v_pk_add_f32 v[{t}:{t+1}], v[{t}:{t+1}], v[{a}:{a+1}] op_sel_hi:[1,0] neg_lo:[0,1] neg_hi:[0,1]')
    A(f's_mov_b32 s99, {fbits(-LOG2E)}\nv_mul_f32 v{b}, s99, v{b}')
    for u in range(10):
        t = TM + 2 * u
        A(f'v_pk_mul_f32 v[{t}:{t+1}], v[{t}:{t+1}], v[{b}:{b+1}] op_sel_hi:[1,0]')
    for u in range(10):
        t = TM + 2 * u
        A(f'v_pk_fma_f32 v[{t}:{t+1}], v[{t}:{t+1}], v[{SC+2*u}:{SC+2*u+1}], v[{SH+2*u}:{SH+2*u+1}]')
    P2 = OB
    for u in range(10):
        A(f'v_cvt_pk_bf16_f32 v{P2+u}, v{TM+2*u}, v{TM+2*u+1}')
    A(f's_add_u32 s96, s96, {WS_H2 - WS_X1}')
    swap_store(P2, 96)


def ph_b(A):
    srd(A, 16, sWS, WS_SIZE)
    for x in ph_b_dma(A):
        A(x)
    ph_b_pre(A)
    A.wait_all()
    A('s_barrier')
    ph_b_vec(A)
    ph_b_pre_frags(A)
    stamp(A, 'img landed')
    ph_b_main(A)
```

```python
from common import *
import ph_small as FS
import sys

NS = 10
WIN = 4
C_LDS = NS * 16384
BIAS = 4096

ACC = 16
HB = 144
vF = 216
vH = 228
vDG, vDH, vDD, vDE = 234, 235, 236, 237
vL16, vOUT = 238, 239
TMP = 240
OUTT = 248
aX = 0
aPH = 144
aFR = 216
sgG, sgU, sgGH, sgD, sgWS = 8, 12, 20, 24, 16

vT1, vT2 = 4, 5
OPT = dict(dma=True, fill=True, barrier=True, reads=True, pairs=False, NB=10, LA=6, LB=6, LAT=5, lag=0, wstep=4, bper=2, xburst=8, xpace=4, dlag=28, prefill=6,
           rush={0: 70, 1: 106, 2: 142, 3: 162, 4: 172}, pubdelay=64, pub3delay=64, pub3=1, sched=0, pf=[], touch=[], itouch=[], fin=(216, 223, 229, 233), outrush={0: 203, 1: 210, 2: 225, 3: 241}, hxst=1, hxpub=1, hxld=1, outst=1,
           checks=[(1, (0, 1), 122, 128), (2, (2,), 154, 159), (3, (3,), 176, 182), (4, (4,), 184, 189)])


def steps():
    st = []
    for p in range(4):
        for k in range(18):
            st.append(dict(kind='g', p=p, k=k))
            st.append(dict(kind='u', p=p, k=k))
    for k in range(18):
        st.append(dict(kind='gh', p=4, k=k))

    def dn(db, ks, who=0):
        for a in ks:
            st.append(dict(kind='dn', p=db, a=a, who=who))
    if not OPT['pairs']:
        ND = 3
        for db in range(ND):
            dn(db, range(6))
        for db in range(ND):
            dn(db, range(6, 9))
        for db in range(ND, 9):
            dn(db, range(9))
    else:
        dn(0, range(6)); dn(0, range(6), 1)
        dn(1, range(6)); dn(1, range(6), 1)
        dn(0, range(6, 9)); dn(1, range(6, 9))
        if OPT['sched'] == 0:
            dn(0, range(6, 9), 1); dn(1, range(6, 9), 1)
            dn(2, range(9)); dn(2, range(9), 1)
        else:
            dn(2, range(OPT['sched']))
            dn(0, range(6, 9), 1); dn(1, range(6, 9), 1)
            dn(2, range(OPT['sched'], 9)); dn(2, range(9), 1)
        dn(3, range(9)); dn(3, range(9), 1)
        for u in range(9):
            st.append(dict(kind='dh', p=4, u=u))
    seen = set()
    for e in st:
        if e['kind'] in ('dn', 'dh'):
            e['first'] = e['p'] not in seen
            seen.add(e['p'])
    seen = set()
    for e in reversed(st):
        if e['kind'] in ('dn', 'dh'):
            e['last'] = e['p'] not in seen
            seen.add(e['p'])
    return st


def down_acc(db):
    if not OPT['pairs']:
        tab = {0: ('a', aX), 1: ('a', aX + 32), 2: ('a', aX + 64)}
        return tab.get(db, ('v', ACC + 32 * ((db + 1) % 4)))
    return {0: ('a', aX), 1: ('a', aX + 32), 2: ('v', ACC), 3: ('v', ACC + 32), 4: ('v', ACC + 64)}[db]


def ph_c_setup_s(A):
    A.comment('==== phase C: setup ====')
    srd(A, sgG, sWG, 576 * 9216, bias=BIAS)
    srd(A, sgU, sWU, 576 * 9216, bias=BIAS + 1024)
    A(f'''s_cmp_lt_u32 s{sW}, 2
    s_cselect_b32 s96, s{sWG}, s{sWU}
    s_cselect_b32 s97, s{sWG+1}, s{sWU+1}''')
    srd(A, sgGH, 96, 576 * 9216, bias=BIAS)
    srd(A, sgD, sWD, F * 1152, bias=BIAS)
    A(f'''s_and_b32 s96, s{sJ}, 1
    s_mul_i32 s97, s{sJ}, 288
    s_lshl_b32 s98, s96, 5
    s_add_u32 s98, s98, s97
    s_lshl_b32 s56, s98, 1
    s_mul_i32 s58, s98, 1152
    s_cmp_eq_u32 s96, 0
    s_cselect_b32 s98, 256, 0
    s_add_u32 s98, s98, s97
    s_lshl_b32 s57, s98, 1
    s_mul_i32 s59, s98, 1152
    s_lshl_b32 s60, s{sW}, 12''')
    if OPT['pairs']:
        A(f'''s_cmp_eq_u32 s96, 0
        s_mov_b32 s98, {-288*1152 & 0xffffffff}
        s_cmov_b32 s98, {320*1152}
        s_mov_b32 s99, {-32*1152 & 0xffffffff}
        s_cmov_b32 s99, {288*1152}
        s_cselect_b32 s52, 0, 640
        s_movk_i32 s53, 576
        s_cmov_b32 s53, 512
        s_mul_i32 s100, s97, 1152
        s_add_u32 s50, s100, s98
        s_add_u32 s51, s100, s99
        s_add_u32 s50, s50, s52
        s_add_u32 s51, s51, s52
        s_add_u32 s48, s59, s53
        s_add_u32 s49, s51, s53
        s_sub_u32 s49, s49, s52
        s_add_u32 s46, s58, s53
        s_add_u32 s47, s50, s53
        s_sub_u32 s47, s47, s52
        s_add_u32 s58, s58, s52
        s_add_u32 s59, s59, s52
        s_lshr_b32 s45, s{sW}, 1
        s_mul_i32 s45, s45, {32*1152}''')
    np_ = 8 if OPT['pairs'] else 16
    A(f'''s_mul_i32 s96, s{sG}, {np_}
    s_lshr_b32 s97, s{sJ}, {1 if OPT['pairs'] else 0}
    s_add_u32 s96, s96, s97
    s_lshl_b32 s96, s96, 3
    s_lshl_b32 s97, s{sW}, 1
    s_add_u32 s96, s96, s97
    s_mul_i32 s55, s96, {T16}
    s_add_u32 s55, s55, {WS_PART}
    s_mov_b32 s62, {fbits(-LOG2E)}''')
    if OPT['pairs']:
        A(f'''s_lshl_b32 s96, s53, 4
        s_add_u32 s54, s55, s96
        s_lshl_b32 s96, s52, 4
        s_add_u32 s55, s55, s96''')


sPFB = 91
vPG, vPD, aJ = 254, 255, 128
aJC = None


def pf_setup(A):
    A(f'''v_mul_u32_u24 v160, 57, v{vLANE}
    v_lshrrev_b32 v160, 9, v160
    v_mul_u32_u24 v161, 9, v160
    v_sub_u32 v161, v{vLANE}, v161
    s_lshl_b32 s96, s{sG}, 2
    s_add_u32 s96, s96, s{sW}
    s_mul_i32 s96, s96, 9
    v_add_u32 v161, s96, v161
    s_movk_i32 s97, 9216
    v_mul_lo_u32 v162, v161, s97
    v_lshlrev_b32 v163, 7, v160
    v_add_u32 v164, s56, v163
    v_mov_b32 v165, s57
    v_cmp_eq_u32 vcc, 4, v160
    v_cndmask_b32 v164, v164, v165, vcc
    v_add_u32 v{vPG}, v162, v164
    s_lshr_b32 s96, s{sJ}, 1
    s_mul_i32 s96, s96, 576
    v_add_u32 v161, s96, v161
    v_mul_u32_u24 v161, 1152, v161
    s_and_b32 s96, s{sJ}, 1
    s_lshl_b32 s96, s96, 9
    v_add_u32 v163, s96, v163
    v_add_u32 v{vPD}, v161, v163
    s_movk_i32 s{sPFB}, {BIAS}''')


def pf_ops(mats, lo, hi, dst='v13'):
    m = ((1 << hi) - 1) ^ ((1 << lo) - 1)
    r = [f's_mov_b32 exec_lo, {m & 0xffffffff}', f's_mov_b32 exec_hi, {m >> 32}']
    for q, c in enumerate(mats):
        sg, v = {'g': (sgG, vPG), 'u': (sgU, vPG), 'd': (sgD, vPD)}[c]
        o = ' offset:1024' if c == 'u' else ''
        r.append(f'buffer_load_dword {dst}, v{v}, s[{sg}:{sg+3}], s{sPFB} offen{o}')
    r.append('s_mov_b64 exec, -1')
    return r


def ph_c_setup_v(A):
    A(f'''v_lshrrev_b32 v4, 3, v{vLANE}
    v_and_b32 v5, 7, v{vLANE}
    v_bfe_u32 v6, v{vLANE}, 4, 1
    s_and_b32 s40, s{sW}, 1
    s_lshr_b32 s41, s{sW}, 1
    s_lshl_b32 s42, s40, 1
    v_add_u32 v6, s42, v6
    v_lshlrev_b32 v6, 1, v6
    v_xor_b32 v5, v5, v6
    v_lshlrev_b32 v5, 4, v5
    s_lshl_b32 s42, s{sW}, 3
    v_add_u32 v6, s42, v4
    s_movk_i32 s43, 9216
    v_mul_lo_u32 v6, v6, s43
    v_add_u32 v{vDG}, v6, v5
    v_lshrrev_b32 v6, 2, v4
    v_lshlrev_b32 v6, 4, v6
    v_and_b32 v7, 3, v4
    v_add_u32 v6, v6, v7
    s_lshl_b32 s42, s{sW}, 2
    v_add_u32 v6, s42, v6
    v_mul_u32_u24 v6, 1152, v6
    v_add_u32 v{vDD}, v6, v5''')
    A(f'''v_lshrrev_b32 v4, 2, v{vLANE}
    v_and_b32 v5, 3, v{vLANE}
    v_lshrrev_b32 v6, 5, v{vLANE}
    v_lshlrev_b32 v7, 1, v6
    v_xor_b32 v5, v5, v7
    v_lshlrev_b32 v5, 4, v5
    s_lshl_b32 s42, s40, 4
    v_add_u32 v7, s42, v4
    v_mul_lo_u32 v7, v7, s43
    v_add_u32 v{vDH}, v7, v5
    v_bfe_u32 v7, v4, 2, 1
    v_lshlrev_b32 v7, 4, v7
    v_lshl_add_u32 v7, v6, 2, v7
    v_and_b32 v8, 3, v4
    v_add_u32 v7, v7, v8
    s_lshl_b32 s42, s40, 3
    v_add_u32 v7, s42, v7
    v_mul_u32_u24 v7, 1152, v7
    v_add_u32 v{vDE}, v7, v5''')
    A(f'''v_lshrrev_b32 v4, 4, v{vLANE}
    v_bfe_u32 v5, v{vLANE}, 2, 2
    v_bfe_u32 v6, v{vLANE}, 1, 1
    v_and_b32 v7, 1, v{vLANE}
    v_lshlrev_b32 v7, 3, v7
    v_lshl_add_u32 v7, v6, 4, v7
    v_and_b32 v8, 1, v4
    v_lshlrev_b32 v9, 1, v8
    v_lshrrev_b32 v10, 1, v5
    v_add_u32 v9, v9, v10
    v_lshlrev_b32 v9, 5, v9
    v_xor_b32 v9, v9, v7
    v_lshl_add_u32 v9, v5, 7, v9
    v_lshl_add_u32 v9, v4, 12, v9
    v_lshlrev_b32 v10, 5, v8
    v_xor_b32 v10, v10, v7
    v_lshl_add_u32 v10, v5, 6, v10
    v_lshl_add_u32 v10, v8, 9, v10
    v_lshrrev_b32 v11, 1, v4
    v_lshl_add_u32 v10, v11, 12, v10''')
    for wd in range(3):
        A(f'v_add_u32 v{vF+4*wd}, {WIN*16384*wd}, v9')
        for ft in range(1, 4):
            A(f'v_xor_b32 v{vF+4*wd+ft}, {32*ft}, v{vF+4*wd}')
        A(f'v_add_u32 v{vH+2*wd}, {WIN*16384*wd}, v10')
        A(f'v_xor_b32 v{vH+2*wd+1}, 32, v{vH+2*wd}')
    A(f'''v_lshlrev_b32 v{vL16}, 4, v{vLANE}
    v_lshlrev_b32 v8, 1, v8
    v_or_b32 v8, v8, v11
    v_lshlrev_b32 v8, 8, v8
    v_and_b32 v9, 15, v{vLANE}
    v_lshl_add_u32 v{vOUT}, v9, 4, v8''')


def ph_c_setup(A):
    ph_c_setup_s(A)
    ph_c_setup_v(A)


def dma_ops(st, n):
    if n >= len(st) or (not OPT['dma'] and n >= 28):
        return []
    e = st[n]
    slot, z = divmod(n, 4)
    r = []
    if z == 0:
        r.append(f's_add_u32 m0, s60, {(slot % NS) * 16384}')
    comp = BIAS - 1024 * z
    k = e['kind']
    if k in 'gu':
        if k == 'g':
            r.append(f's_add_u32 s61, s56, {comp + e["p"]*128 + e["k"]*32*9216}')
        else:
            assert z & 1 and st[n - 1]['kind'] == 'g'
        q, v = (sgG if k == 'g' else sgU), vDG
    elif k == 'gh':
        r.append(f's_add_u32 s61, s57, {comp + e["k"]*32*9216}')
        q, v = sgGH, vDH
    elif k == 'dn':
        full, half = ((58, 59), (50, 51))[e['who']]
        if e['a'] < 8:
            r.append(f's_add_u32 s61, s{full}, {comp + e["p"]*128 + e["a"]*32*1152}')
        else:
            r.append(f's_add_u32 s61, s{half}, {comp + e["p"]*128}')
        q, v = sgD, vDD
    else:
        offs = []
        for par in range(2):
            who, a = divmod(2 * e['u'] + par, 9)
            sreg = ((46, 48), (47, 49))[who][a == 8]
            offs.append((sreg, comp + (a % 8) * 32 * 1152))
        if offs[0][0] == offs[1][0]:
            r.append(f's_add_u32 s61, s{offs[0][0]}, s45')
            r.append(f's_add_u32 s61, s61, {offs[0][1]}')
        else:
            r.append(f's_add_u32 s61, s{offs[0][0]}, {offs[0][1]}')
            r.append(f's_add_u32 s44, s{offs[1][0]}, {offs[1][1]}')
            r.append(f's_cmp_lt_u32 s{sW}, 2')
            r.append('s_cselect_b32 s61, s61, s44')
        q, v = sgD, vDE
    r.append(f'buffer_load_dwordx4 v{v}, s[{q}:{q+3}], s61 offen offset:{1024*z} lds')
    return r


def mf_info(st, mu):
    n, e8 = divmod(mu, 8)
    fl, tt = divmod(e8, 2)
    e = st[n]
    slot, z = divmod(n, 4)
    win, sl = divmod(slot % NS, WIN)
    base = sl * 16384 + z * 1024
    k = e['kind']
    if k in 'gu':
        acc = ('v', ACC + 64 * (e['p'] & 1) + (32 if k == 'u' else 0) + 8 * fl + 4 * tt)
        b = ('a', aX + 72 * tt + 4 * e['k'])
        return acc, b, e['k'] == 0, vF + 4 * win + fl, [base + rd * 512 for rd in range(2)]
    if k == 'gh':
        mat, ft = divmod(fl, 2)
        acc = ('v', ACC + 32 * mat + 8 * ft + 4 * tt)
        b = ('a', aX + 72 * tt + 4 * e['k'])
        return acc, b, e['k'] == 0, vH + 2 * win + ft, [base + mat * 8192 + rd * 256 for rd in range(2)]
    ak, ab = down_acc(e['p'])
    if k == 'dn':
        acc = (ak, ab + 8 * fl + 4 * tt)
        b = ('v', HB + 8 * e['a'] + 4 * tt) if e['who'] == 0 else ('a', aPH + 8 * e['a'] + 4 * tt)
        return acc, b, e['first'], vF + 4 * win + fl, [base + rd * 512 for rd in range(2)]
    par, dt = divmod(fl, 2)
    who, a = divmod(2 * e['u'] + par, 9)
    acc = (ak, ab + 8 * dt + 4 * tt)
    b = ('v', HB + 8 * a + 4 * tt) if who == 0 else ('a', aPH + 8 * a + 4 * tt)
    return acc, b, e['first'] and par == 0, vH + 2 * win + dt, [base + par * 8192 + rd * 256 for rd in range(2)]


def act_ops(p):
    ops = []
    s = ACC + 64 * (p & 1)
    for ft in range(4 if p < 4 else 2):
        for tt in range(2):
            g = s + 8 * ft + 4 * tt
            u = g + 32
            h = HB + 8 * (2 * p + ft // 2) + 4 * tt + 2 * (ft & 1)
            T = TMP + 4 * tt
            r = range(4)
            ops += [(f'v_exp_f32 v{T+e}, v{g+e}', 2) for e in r]
            ops += [(f'v_add_f32 v{T+e}, 1.0, v{T+e}', 1) for e in r]
            ops += [(f'v_rcp_f32 v{T+e}, v{T+e}', 2) for e in r]
            ops += [(f'v_mul_f32 v{T+e}, v{u+e}, v{T+e}', 1) for e in r]
            ops += [(f'v_cvt_pk_bf16_f32 v{h+d}, v{T+2*d}, v{T+2*d+1}', 1) for d in range(2)]
    return ops


def out_ops(db, half=False):
    ops = []
    ak, ab = down_acc(db)
    for tt in range(2):
        for pr in range(1 if half else 2):
            P = OUTT + 4 * (pr & 1)
            for d in range(2):
                src = ab + 8 * (2 * pr + d) + 4 * tt
                if ak == 'a':
                    ops += [(f'v_accvgpr_read_b32 v{TMP+e}, a{src+e}', 1) for e in range(4)]
                    src = TMP
                ops += [(f'v_cvt_pk_bf16_f32 v{P+2*d+c}, v{src+2*c}, v{src+2*c+1}', 1) for c in range(2)]
            if pr == 0:
                off = tt * T16 + (0 if half else db * 2048)
                ops.append((f's_add_u32 s63, s{54 if half else 55}, {off}', 1))
            ops += [(f'v_permlane16_swap_b32 v{P}, v{P+2}', 2), (f'v_permlane16_swap_b32 v{P+1}, v{P+3}', 2)]
            if OPT['outst']:
              ops.append((f'buffer_store_dwordx4 v[{P}:{P+3}], v{vOUT}, s[{sgWS}:{sgWS+3}], s63 offen offset:{pr*1024} sc1', 2))
    return ops


sHXO, sHXP, sPFO, sPFP, sT = 52, 53, 7, 38, 39
vPF, vPV, vZ, vIL = 2, 3, 15, 12


def pair_setup(A):
    A(f'''s_lshl_b32 s40, s{sG}, 4
    s_add_u32 s40, s40, s{sJ}
    s_lshl_b32 s40, s40, 2
    s_add_u32 s40, s40, s{sW}
    s_xor_b32 s43, s40, 4
    s_mul_i32 s{sHXO}, s40, 18432
    s_add_u32 s{sHXO}, s{sHXO}, {WS_HX}
    s_mul_i32 s{sHXP}, s43, 18432
    s_add_u32 s{sHXP}, s{sHXP}, {WS_HX}
    s_lshl_b32 s{sPFO}, s40, {FSC[1]}
    s_add_u32 s{sPFO}, s{sPFO}, {WS_PF}
    s_lshl_b32 s{sPFP}, s43, {FSC[1]}
    s_add_u32 s{sPFP}, s{sPFP}, {WS_PF}
    v_mov_b32 v{vZ}, 0''')


sS3O, sS3C, sTB = 3, 4, 5
vT1, vT2, vFA, vFV = 4, 5, 6, 7


def tail_setup(A):
    flag_base(A, sS3O, 2, sW)
    A(f's_lshl_b32 s40, s{sJ}, {FSC[0]}\ns_add_u32 s{sS3O}, s{sS3O}, s40\ns_lshr_b32 s40, s{sJ}, 2')
    flag_base(A, sS3C, 2, 40)
    A(f'''s_mul_i32 s{sTB}, s{sG}, {64*T16}
    s_lshr_b32 s40, s{sJ}, 1
    s_mul_i32 s40, s40, {T16}
    s_add_u32 s{sTB}, s{sTB}, s40
    s_and_b32 s40, s{sJ}, 1
    s_lshl_b32 s40, s40, 7
    s_add_u32 s{sTB}, s{sTB}, s40
    s_mul_i32 s40, s{sW}, {16*T16}
    s_add_u32 s{sTB}, s{sTB}, s40
    s_add_u32 s{sTB}, s{sTB}, {WS_PART}
    v_and_b32 v{vFA}, 15, v{vLANE}
    v_lshrrev_b32 v8, 5, v{vLANE}
    v_mul_u32_u24 v8, {8*T16}, v8
    v_bfe_u32 v9, v{vLANE}, 4, 1
    v_mul_u32_u24 v10, 24, v9
    v_and_b32 v11, 31, v{vLANE}
    v_add_u32 v10, v10, v11
    v_lshl_add_u32 v{vT1}, v10, 8, v8
    v_mul_u32_u24 v8, {8*T16}, v9
    v_bfe_u32 v9, v{vLANE}, 3, 1
    v_lshlrev_b32 v9, 5, v9
    v_add3_u32 v9, v9, v{vFA}, 16
    v_lshl_add_u32 v{vT2}, v9, 8, v8
    v_lshlrev_b32 v{vFA}, {FSC[0]}, v{vFA}''')


def hx_store_ops(p):
    n = 4 if p < 4 else 2
    ops = [(f's_add_u32 s{sT}, s{sHXO}, {4096*p}', 1)]
    for q in range(n):
        r = HB + 16 * p + 4 * q
        ops.append((f'buffer_store_dwordx4 v[{r}:{r+3}], v{vL16}, s[{sgWS}:{sgWS+3}], s{sT} offen offset:{1024*q} sc1', 2))
    return ops


def hx_load_ops(p):
    n = 4 if p < 4 else 2
    ops = [f's_add_u32 s43, s{sHXP}, {4096*p}']
    for q in range(n):
        r = aPH + 16 * p + 4 * q
        ops.append(f'buffer_load_dwordx4 a[{r}:{r+3}], v{vL16}, s[{sgWS}:{sgWS+3}], s43 offen offset:{1024*q} sc1')
    return ops


class Ring:
    def __init__(self, A):
        self.A = A
        self.st = steps()
        self.marks = {}

    def issue(self, n):
        for x in dma_ops(self.st, n):
            self.A(x)
        if n % 4 == 3 or n == len(self.st) - 1:
            self.marks[n // 4] = self.A.mark()


def ph_c_prefill(A, R, s0, s1):
    for n in range(int(4 * s0), int(4 * s1)):
        R.issue(n)


def ph_c_xload(A):
    A(f'''s_lshl_b32 s40, s{sG}, 3
    s_lshl_b32 s41, s{sW}, 1
    s_add_u32 s40, s40, s41
    s_mul_i32 s41, s40, {T16}
    s_add_u32 s41, s41, {WS_H2}
    s_add_u32 s42, s41, {T16}''')
    ops = []
    for k in range(18):
        for tt in range(2):
            r = aX + 72 * tt + 4 * k
            ops.append(f'buffer_load_dwordx4 a[{r}:{r+3}], v{vL16}, s[{sgWS}:{sgWS+3}], s{41+tt} offen offset:{1024*(k%4)} sc1')
        if k % 4 == 3:
            ops.append('s_add_u32 s41, s41, 4096')
            ops.append('s_add_u32 s42, s42, 4096')
    return ops


def ph_c_stream(A, R, prefilled, xops):
    st = R.st
    NST = len(st)
    NM = 8 * NST
    NF = 4 * NST
    info = [mf_info(st, mu) for mu in range(NM)]
    NB, LA, WS_ = OPT['NB'], OPT['LA'], OPT['wstep']
    global aFR
    aFR = 256 - 4 * NB

    def reads(phi):
        if not OPT['reads'] and phi >= 8:
            return [None, None]
        acc, b, first, va, offs = info[2 * phi]
        f = aFR + 4 * (phi % NB)
        return [f'ds_read_b64_tr_b16 a[{f+2*rd}:{f+2*rd+1}], v{va} offset:{offs[rd]}' for rd in range(2)]

    BP = OPT['bper']

    def boundary(slot):
        A.wait_vm_mark(R.marks[min(slot + BP - 1, (NST - 1) // 4)])
        if OPT['barrier']:
            A('s_barrier')

    def deadline(ins, mu0):
        d, u = set(ins.defs), set(ins.uses)
        for mu in range(mu0, NM):
            acc, b, first, va, offs = info[mu]
            if d & set(rl(b[0], b[1], 4)):
                return mu
            if first and u & set(rl(acc[0], acc[1], 4)):
                return mu
        return NM + 40

    xq = list(xops)

    def xissue():
        while xq[0].startswith('s_'):
            A(xq.pop(0))
        A(xq.pop(0))
        while xq and xq[0].startswith('s_'):
            A(xq.pop(0))
    for k in range(OPT['xburst']):
        xissue()
    boundary(0)
    stamp(A, 'slot0 landed')
    for phi in range(LA):
        for x in reads(phi):
            A(x)
    pairs = OPT['pairs'] and OPT['fill']
    events = []
    hxq = []
    got = set()

    def ev_publish(val, mark):
        def f():
            A.wait_vm_mark(mark())
            A(f'v_mov_b32 v{vPV}, {val}\ns_mov_b64 exec, 1')
            A(f'buffer_store_dword v{vPV}, v{vZ}, s[{sgWS}:{sgWS+3}], s{sPFO} offen sc1')
            A('s_mov_b64 exec, -1')
        return f

    def ev_flagload():
        A(f'buffer_load_dword v{vPF}, v{vZ}, s[{sgWS}:{sgWS+3}], s{sPFP} offen sc1')

    def ev_check(val, blocks):
        def f():
            slow, back, again = A.label('L_slow'), A.label('L_back'), A.label('L_again')
            A(f'v_readfirstlane_b32 s40, v{vPF}')
            A(f's_cmp_ge_u32 s40, {val}')
            if Stamps.on:
                A(f's_cselect_b32 s88, 1, 0\nv_writelane_b32 v14, s88, {50+val}')
            A(f's_cbranch_scc0 {slow}')
            A(back + ':')
            A.tail += [slow + ':', 's_mov_b32 s44, 0', again + ':'] + backoff() + [
                       f'buffer_load_dword v{vPF}, v{vZ}, s[{sgWS}:{sgWS+3}], s{sPFP} offen sc1',
                       's_add_u32 s44, s44, 1', f's_cmp_gt_u32 s44, {SPIN_MAX}', f's_cbranch_scc1 {back}',
                       's_waitcnt vmcnt(0)', f'v_readfirstlane_b32 s40, v{vPF}', 's_nop 1', f's_cmp_ge_u32 s40, {val}',
                       f's_cbranch_scc0 {again}', f's_branch {back}']
            for p in blocks:
                if OPT['hxld']:
                    hxq.extend(hx_load_ops(p))
        return f
    def ev_pub3(val, mark):
        def f():
            A.wait_vm_mark(mark())
            A(f'v_mov_b32 v{vPV}, {val}\ns_mov_b64 exec, 1')
            A(f'buffer_store_dword v{vPV}, v{vZ}, s[{sgWS}:{sgWS+3}], s{sS3O} offen sc1')
            A('s_mov_b64 exec, -1')
        f.optional = True
        return f

    def ev_flag3():
        A(f'buffer_load_dword v9, v8, s[{sgWS}:{sgWS+3}], s{sS3C} offen sc1')

    def ev_early():
        A('v_cmp_gt_u32 vcc, 1, v9')
        A('s_cmp_eq_u64 vcc, 0')
        A(f's_cselect_b32 s{FS.sVALID}, 1, 0')
        A(f's_cselect_b32 s49, s46, {WS_XH}')
        if Stamps.on:
            A(f'v_writelane_b32 v14, s{FS.sVALID}, 41')
        busy = set(rl('v', FS.P0, 32))
        assert not any(busy & set(Ins(x).uses) for x, c, d in fill if c), 'stage-1 loads would overwrite live accumulators'
        slowq.extend(FS.parts_ops(52, FS.P0, 49))
    slowq = []
    if pairs and OPT['fin']:
        n0, n1, n2, n3 = OPT['fin']
        events.append([8 * n0, lambda: slowq.extend(FS.final_setup_ops())])
        events.append([8 * n1, lambda: slowq.extend(FS.side_ops(52, FS.X0) + FS.side_ops(53, FS.X1) + FS.side_ops(58, FS.X2))])
        events.append([8 * n2 + 2, ev_flag3])
        events.append([8 * n3 + 3, ev_early])
    for (n_, tgt) in OPT['itouch']:
        events.append([8 * n_ + 4, (lambda tgt=tgt: [A(x) for x in itouch(f'L_back_step{tgt}', vIL, 'v13')])])
    for (n_, mats, lo, hi) in OPT['pf']:
        events.append([8 * n_ + 6, (lambda mats=mats, lo=lo, hi=hi: [A(x) for x in pf_ops(mats, lo, hi)])])
    if pairs and OPT['hxpub']:
        for (val, blocks, nload, ncheck) in OPT['checks']:
            events.append([8 * nload + 2, ev_flagload])
            events.append([8 * ncheck + 3, ev_check(val, blocks)])
    fill = []
    misc = []
    pend = list(range(4 * prefilled, 4 * (NS - 1)))
    credit = 0.0
    forced = 0
    LB, LAT = OPT['LB'], OPT['LAT']
    nr = 2 * LA
    open_frag = 16 * BP
    next_ld = 0
    for mu in range(NM):
        n, e8 = divmod(mu, 8)
        e = st[n]
        phi, tt = divmod(mu, 2)
        acc, b, first, va, offs = info[mu]
        f = aFR + 4 * (phi % NB)
        if e8 == 0:
            A(f'L_back_step{n}:')
        if e8 == 0 and n in (36, 72, 108, 144, 162, 180, 198, 216, 234):
            stamp(A, f'step {n}')
        if e8 == 4 and n > 0 and OPT['fill']:
            pe = st[n - 1]
            new = []
            if pe['kind'] == 'u' and pe['k'] == 17 or pe['kind'] == 'gh' and pe['k'] == 17:
                new = act_ops(pe['p'])
            elif pe['kind'] in ('dn', 'dh') and pe['last']:
                new = out_ops(pe['p'], pe['kind'] == 'dh')
                if pairs and OPT['pub3'] and pe['p'] in (1, 2):
                    new.append((('pub3', pe['p']), 0))
            rush = NM + 40
            if new and pairs and pe['kind'] == 'dn':
                rush = 8 * OPT['outrush'][pe['p']]
            if new and pairs and pe['kind'] in ('u', 'gh'):
                p = pe['p']
                if OPT['hxst']:
                    new = new + hx_store_ops(p)
                rush = 8 * OPT['rush'][p]
                if p >= 1 and OPT['hxpub']:
                    new.append((('pub', p), 0))
            for x, c in new:
                fill.append([x, c, min(rush, deadline(Ins(x), mu + 1)) if c else rush])
            for q in range(len(fill) - 2, -1, -1):
                fill[q][2] = min(fill[q][2], fill[q + 1][2])
        def emit_fill():
            x, c, d = fill.pop(0)
            if isinstance(x, tuple):
                mk = A.mark()
                events.append([mu + OPT['pubdelay' if x[0] == 'pub' else 'pub3delay'], (ev_publish if x[0] == 'pub' else ev_pub3)(x[1], lambda: mk)])
            else:
                A(x)
            return c
        while fill and fill[0][2] <= mu:
            emit_fill(); forced += 1
        if pairs and OPT['hxld'] and OPT['hxpub'] and b[0] == 'a' and b[1] >= aPH:
            assert b[1] in got, ('partner fragment not loaded yet', mu // 8, b)
        cin = '0' if first else f'{acc[0]}[{acc[1]}:{acc[1]+3}]'
        A(f'v_mfma_f32_16x16x32_bf16 {acc[0]}[{acc[1]}:{acc[1]+3}], a[{f}:{f+3}], {b[0]}[{b[1]}:{b[1]+3}], {cin}')
        cap = 2
        pb = phi + LB
        if tt == 0 and pb < NF and pb % (16 * BP) == 0:
            slot = pb // 16
            boundary(slot); cap -= 2
            open_frag = min(NF, 16 * (slot + BP))
            for q in range(slot - 1 - BP + NS, slot - 1 + NS):
                pend += [4 * q + z for z in range(4)]
        wait_next = tt == 1 and (phi + 1) % WS_ == 0 and phi + 1 < NF
        if wait_next:
            cap -= 1

        def rd_ok():
            return nr < 2 * NF and nr // 2 < open_frag and mu >= 2 * (nr // 2 - NB) + 1

        def rd_emit():
            nonlocal nr
            x = reads(nr // 2)[nr % 2]
            if x:
                A(x)
            nr += 1
        while nr < 2 * NF and mu >= 2 * (WS_ * ((nr // 2) // WS_)) - 1 - LAT:
            assert rd_ok(), (mu, nr)
            rd_emit(); cap -= 1
        for ev in [ev for ev in events if ev[0] <= mu]:
            events.remove(ev)
            ev[1](); cap -= 2
        if not misc and pend and (not xq or len(pend) > OPT['dlag']) and (e8 == 0 or (e8 in (3, 5) and len(pend) > 4 * BP)):
            nd = pend.pop(0)
            misc = dma_ops(st, nd)
            if nd % 4 == 3 or nd == NST - 1:
                misc.append(('mark', nd // 4))

        def marks():
            while misc and isinstance(misc[0], tuple):
                R.marks[misc.pop(0)[1]] = A.mark()
        marks()
        if fill:
            credit += max((q + 1) / max(1, d - mu) for q, (x, c, d) in enumerate(fill))
        else:
            credit = 0.0
        paced = mu >= next_ld
        while True:
            big = small = None
            if paced and xq:
                big = 'x'
            elif paced and hxq and not hxq[0].startswith('s_'):
                big = 'h'
            elif paced and slowq and slowq[0].startswith('buffer'):
                big = 's'
            elif misc and misc[0].startswith('buffer'):
                big = 'm'
            elif fill and fill[0][1] == 2:
                big = 'f'
            if hxq and hxq[0].startswith('s_'):
                small = 'h'
            elif misc and not misc[0].startswith('buffer'):
                small = 'm'
            elif slowq and not slowq[0].startswith('buffer'):
                small = 's'
            elif fill and fill[0][1] < 2:
                small = 'f'
            if small == 'h':
                A(hxq.pop(0)); cap -= 1
                continue
            behind = nr <= 2 * (phi + LA) + tt
            late = big in ('x', 'h', 's') and mu >= next_ld + 2 or big == 'm' and e8 >= 3
            lag = 2 * (phi + LA) + tt + 1 - nr
            if big and ((cap >= 2 and (lag <= OPT['lag'] or not rd_ok())) or late):
                pick = big
                cap -= 2
            elif cap <= 0:
                break
            elif rd_ok() and (behind or not small or big):
                rd_emit(); cap -= 1
                continue
            elif small:
                pick = small
                cap -= 1
            else:
                break
            if pick == 'x':
                xissue(); next_ld = mu + OPT['xpace']; paced = False
            elif pick == 'h':
                if not hxq[0].startswith('s_'):
                    got.add(Ins(hxq[0]).defs[0][1]); next_ld = mu + OPT['xpace']; paced = False
                A(hxq.pop(0))
            elif pick == 's':
                if slowq[0].startswith('buffer'):
                    next_ld = mu + 4; paced = False
                A(slowq.pop(0))
            elif pick == 'm':
                A(misc.pop(0)); marks()
            else:
                if emit_fill() == 0:
                    cap += 1
                credit = max(0.0, credit - 1.0)
        while fill and credit >= 1.0 and (fill[0][1] < 2 or credit >= 2.0):
            emit_fill()
            credit -= 1.0
        if wait_next:
            A.wait_regs([r for q in range(WS_) for r in rl('a', aFR + 4 * ((phi + 1 + q) % NB), 4)])
    stamp(A, 'mfma done')
    last = st[-1]
    for x in slowq:
        A(x)
    assert not hxq and all(getattr(ev[1], 'optional', False) for ev in events)
    for x, c, d in fill:
        A(x)
    for x, c in out_ops(last['p'], last['kind'] == 'dh'):
        A(x)
    print('phase C: forced', forced, 'tail', len(fill), file=sys.stderr)


def ph_c(A):
    A.junk = ('v', 13)
    srd(A, sgWS, sWS, WS_SIZE)
    ph_c_setup(A)
    R = Ring(A)
    ph_c_prefill(A, R, 0, OPT['prefill'])
    xops = ph_c_xload(A)
    if OPT['pairs']:
        pair_setup(A)
        tail_setup(A)
    stamp(A, 'prologue')
    ph_c_stream(A, R, OPT['prefill'], xops)
```

```python
from common import *
from ph_small import ph_mod
from ph_a import mod_table

PT = [(0, 1, 2, 3), (4, 13, 10, 11), (12, 21, 14, 23), (20, 24, 22, 22)]
N_MOD, N_XH, N_WQ, N_WO = 108, 64, 144, 40
N_PREP = N_MOD + N_XH + N_WQ + N_WO
PREP_LDS = 4 * 9216


def task_xhat(A, sI):
    A.comment('---- prep: xhat')
    X, T, P = 16, 56, 136
    srd(A, 8, sX, S * D * 2)
    srd(A, 16, sWS, WS_SIZE)
    A(f'''v_lshrrev_b32 v4, 3, v{vLANE}
    v_and_b32 v5, 7, v{vLANE}
    v_mul_u32_u24 v2, 1152, v4
    v_lshl_add_u32 v2, v5, 4, v2
    s_lshl_b32 s40, s{sI}, 2
    s_add_u32 s40, s40, s{sW}
    s_mul_i32 s41, s40, {8*1152}''')
    for n in range(9):
        A(f'buffer_load_dwordx4 v[{X+4*n}:{X+4*n+3}], v2, s[8:11], s41 offen offset:{128*n}')
    A(f'''s_mul_i32 s42, s{sW}, 9216
    v_xor_b32 v6, v4, v5
    v_lshlrev_b32 v6, 4, v6
    v_add_u32 v6, s42, v6
    v_lshl_add_u32 v7, v4, 7, v6
    v_lshl_add_u32 v6, v5, 7, v6
    v_lshlrev_b32 v3, 9, v4
    v_lshl_add_u32 v3, v5, 4, v3
    s_mul_i32 s43, s{sI}, 36864
    s_lshl_b32 s44, s{sW}, 7
    s_add_u32 s43, s43, s44
    s_add_u32 s43, s43, {WS_XH}''')
    A(f'''s_lshr_b32 s46, s40, 1
    s_mul_i32 s46, s46, {T16}
    s_and_b32 s47, s{sW}, 1
    s_lshl_b32 s47, s47, 7
    s_add_u32 s46, s46, s47
    s_add_u32 s46, s46, {WS_XT}
    v_lshlrev_b32 v15, 8, v4
    v_lshl_add_u32 v15, v5, 4, v15''')
    for n in range(9):
        A(f'ds_write_b128 v6, v[{X+4*n}:{X+4*n+3}] offset:{1024*n}')
        for d in range(4):
            unpack(A, T + 8 * n + 2 * d, T + 8 * n + 2 * d + 1, X + 4 * n + d)
    for n in range(9):
        A(f'ds_read_b128 v[{X+4*n}:{X+4*n+3}], v7 offset:{1024*n}')
    a, q = 8, 10

    def sum8(r):
        A(f'v_add_f32_dpp v{r}, v{r}, v{r} quad_perm:[1,0,3,2] row_mask:0xf bank_mask:0xf')
        A(f'v_add_f32_dpp v{r}, v{r}, v{r} quad_perm:[2,3,0,1] row_mask:0xf bank_mask:0xf')
        A(f'v_add_f32_dpp v{r}, v{r}, v{r} row_half_mirror row_mask:0xf bank_mask:0xf')
    A(f'v_pk_add_f32 v[{a}:{a+1}], v[{T}:{T+1}], v[{T+2}:{T+3}]')
    A(f'v_pk_add_f32 v[{q}:{q+1}], v[{T+4}:{T+5}], v[{T+6}:{T+7}]')
    for u in range(4, 36):
        r = a if u & 1 else q
        A(f'v_pk_add_f32 v[{r}:{r+1}], v[{r}:{r+1}], v[{T+2*u}:{T+2*u+1}]')
    A(f'v_pk_add_f32 v[{a}:{a+1}], v[{a}:{a+1}], v[{q}:{q+1}]')
    A(f'v_add_f32 v{a}, v{a}, v{a+1}')
    sum8(a)
    for n in range(9):
        A(f'buffer_store_dwordx4 v[{X+4*n}:{X+4*n+3}], v15, s[16:19], s46 offen offset:{2048*(n&1)}')
        if n & 1:
            A('s_add_u32 s46, s46, 4096')
    A(f's_mov_b32 s45, {fbits(1.0/576)}\nv_mul_f32 v{a}, s45, v{a}')
    for u in range(36):
        t = T + 2 * u
        A(f'v_pk_add_f32 v[{t}:{t+1}], v[{t}:{t+1}], v[{a}:{a+1}] op_sel_hi:[1,0] neg_lo:[0,1] neg_hi:[0,1]')
    b = 12
    A(f'v_pk_mul_f32 v[{q}:{q+1}], v[{T}:{T+1}], v[{T}:{T+1}]')
    A(f'v_pk_mul_f32 v[{b}:{b+1}], v[{T+2}:{T+3}], v[{T+2}:{T+3}]')
    for u in range(2, 36):
        r = b if u & 1 else q
        t = T + 2 * u
        A(f'v_pk_fma_f32 v[{r}:{r+1}], v[{t}:{t+1}], v[{t}:{t+1}], v[{r}:{r+1}]')
    A(f'v_pk_add_f32 v[{q}:{q+1}], v[{q}:{q+1}], v[{b}:{b+1}]')
    A(f'v_add_f32 v{q}, v{q}, v{q+1}')
    sum8(q)
    A(f'''v_mov_b32 v{q+1}, {fbits(1e-5)}
    v_fmac_f32 v{q+1}, s45, v{q}
    v_rsq_f32 v{a}, v{q+1}''')
    for n in range(9):
        for d in range(4):
            t = T + 8 * n + 2 * d
            A(f'v_pk_mul_f32 v[{t}:{t+1}], v[{t}:{t+1}], v[{a}:{a+1}] op_sel_hi:[1,0]')
        for d in range(4):
            t = T + 8 * n + 2 * d
            A(f'v_cvt_pk_bf16_f32 v{X+4*n+d}, v{t}, v{t+1}')
        A(f'ds_write_b128 v6, v[{X+4*n}:{X+4*n+3}] offset:{1024*n}')
    for n in range(9):
        A(f'ds_read_b128 v[{X+4*n}:{X+4*n+3}], v7 offset:{1024*n}')
    for n in range(9):
        A(f'buffer_store_dwordx4 v[{X+4*n}:{X+4*n+3}], v3, s[16:19], s43 offen')
        if n < 8:
            A('s_add_u32 s43, s43, 4096')


def task_wq(A, sI):
    A.comment('---- prep: qkv weight tiles')
    srd(A, 12, sWQKV, 576 * 3456)
    srd(A, 16, sWS, WS_SIZE)
    A(f'''v_mul_u32_u24 v4, 69, v{vLANE}
    v_lshrrev_b32 v4, 10, v4
    v_mul_u32_u24 v5, 15, v4
    v_sub_u32 v5, v{vLANE}, v5
    v_mul_u32_u24 v6, 13, v5
    v_lshrrev_b32 v6, 6, v6
    v_mul_u32_u24 v7, 5, v6
    v_sub_u32 v7, v5, v7
    v_mul_u32_u24 v4, 3456, v4
    v_mul_u32_u24 v6, 1152, v6
    v_add_u32 v4, v4, v6
    v_lshl_add_u32 v2, v7, 4, v4
    s_lshr_b32 s40, s{sI}, 2
    s_and_b32 s41, s{sI}, 3
    s_lshl_b32 s41, s41, 2
    s_add_u32 s41, s41, s{sW}
    s_mul_i32 s42, s41, 72
    s_and_b32 s42, s42, 0xfffffff0
    s_mul_i32 s43, s40, {16*3456}
    s_add_u32 s42, s42, s43
    s_mul_i32 s44, s{sW}, 3840
    s_mov_b32 exec_hi, 0x0fffffff''')
    for i in range(4):
        A(f's_add_u32 m0, s44, {960*i}')
        A(f's_add_u32 s45, s42, {4*3456*i}')
        A('buffer_load_dwordx4 v2, s[12:15], s45 offen lds')
    A('s_mov_b32 exec_hi, -1')
    A(f'''v_lshrrev_b32 v4, 5, v{vLANE}
    v_bfe_u32 v5, v{vLANE}, 2, 2
    v_and_b32 v6, 3, v{vLANE}
    v_bfe_u32 v7, v{vLANE}, 4, 1
    v_lshlrev_b32 v7, 1, v7
    v_lshrrev_b32 v9, 1, v6
    v_add_u32 v7, v7, v9
    v_lshlrev_b32 v7, 3, v7
    v_and_b32 v8, 1, v6
    v_lshlrev_b32 v8, 2, v8
    s_and_b32 s50, s41, 1
    v_add_u32 v8, s50, v8
    v_lshl_add_u32 v9, v4, 3, v5
    v_mul_u32_u24 v9, 240, v9
    v_add_u32 v9, s44, v9''')
    packs = [t[0] | t[1] << 8 | t[2] << 16 | t[3] << 24 for t in PT]
    for T in range(4):
        A(f'''s_mov_b32 s52, {packs[T]}
        v_bfe_u32 v10, s52, v7, 8
        v_add_u32 v10, v10, v8
        v_lshl_add_u32 v{12+T}, v10, 3, v9''')
    A(f'''v_lshlrev_b32 v3, 4, v{vLANE}
    v_and_b32 v10, 31, v{vLANE}
    v_mul_u32_u24 v11, 24, v4
    v_add_u32 v11, v11, v10
    v_lshlrev_b32 v11, 4, v11
    s_mul_i32 s46, s41, {WQ_J}
    s_mul_i32 s47, s40, 3840
    s_add_u32 s46, s46, s47
    s_add_u32 s46, s46, {WS_WQ}''')
    A.wait_all()
    for T in range(4):
        for rd in range(2):
            A(f'ds_read_b64_tr_b16 v[{16+4*T+2*rd}:{17+4*T+2*rd}], v{12+T} offset:{960*rd}')
    for T in range(3):
        A(f'buffer_store_dwordx4 v[{16+4*T}:{19+4*T}], v3, s[16:19], s46 offen offset:{1024*T}')
    A('s_mov_b32 exec_lo, 0x00ffffff\ns_mov_b32 exec_hi, 0x00ffffff')
    A('buffer_store_dwordx4 v[28:31], v11, s[16:19], s46 offen offset:3072')
    A('s_mov_b64 exec, -1')


def task_wo(A, sI):
    A.comment('---- prep: wo tiles')
    srd(A, 20, sWO, 576 * 1152)
    srd(A, 16, sWS, WS_SIZE)
    A(f'''s_lshl_b32 s40, s{sI}, 2
    s_add_u32 s40, s40, s{sW}
    s_lshr_b32 s41, s40, 3
    s_and_b32 s42, s40, 7
    s_mul_i32 s43, s42, 144
    s_mul_i32 s44, s{sW}, 5120
    v_mul_u32_u24 v4, 57, v{vLANE}
    v_lshrrev_b32 v4, 9, v4
    v_mul_u32_u24 v5, 9, v4
    v_sub_u32 v5, v{vLANE}, v5
    v_lshlrev_b32 v5, 4, v5
    s_lshl_b32 s45, s41, 2
    s_mov_b32 exec_hi, 0x7fffffff''')
    for i in range(5):
        A(f'''v_add_u32 v6, {7*i}, v4
        v_min_u32 v6, 31, v6
        v_lshrrev_b32 v7, 3, v6
        v_and_b32 v6, 7, v6
        v_add_u32 v7, s45, v7
        v_mul_u32_u24 v8, 205, v7
        v_lshrrev_b32 v8, 10, v8
        v_mul_u32_u24 v9, 5, v8
        v_sub_u32 v9, v7, v9
        v_lshrrev_b32 v10, 1, v9
        v_mul_u32_u24 v10, 18, v10
        v_and_b32 v11, 1, v9
        v_lshl_add_u32 v10, v11, 3, v10
        v_lshrrev_b32 v11, 1, v6
        v_cmp_eq_u32 vcc, 0, v11
        v_cndmask_b32 v12, 0, 16, vcc
        v_cmp_eq_u32 vcc, 1, v11
        v_cndmask_b32 v12, v12, 32, vcc
        v_cmp_eq_u32 vcc, 4, v9
        v_cndmask_b32 v10, v10, v12, vcc
        v_add_u32 v10, v10, v6
        v_mad_u32_u24 v10, v8, 36, v10
        v_mul_u32_u24 v10, 1152, v10
        v_add_u32 v{20+i}, v10, v5
        s_add_u32 m0, s44, {1008*i}
        s_nop 0
        buffer_load_dwordx4 v{20+i}, s[20:23], s43 offen lds''')
    A('s_mov_b32 exec_hi, -1')
    A(f'''v_lshrrev_b32 v4, 4, v{vLANE}
    v_bfe_u32 v5, v{vLANE}, 2, 2
    v_lshl_add_u32 v4, v4, 3, v5
    v_mul_u32_u24 v4, 144, v4
    v_and_b32 v5, 3, v{vLANE}
    v_lshl_add_u32 v4, v5, 3, v4
    v_add_u32 v4, s44, v4
    v_lshlrev_b32 v3, 4, v{vLANE}
    s_mul_i32 s46, s42, {WO_C}
    s_mul_i32 s47, s41, 5120
    s_add_u32 s46, s46, s47
    s_add_u32 s46, s46, {WS_WO}
    s_add_u32 s47, s46, 4096''')
    A.wait_all()
    for T in range(5):
        for rd in range(2):
            A(f'ds_read_b64_tr_b16 v[{32+4*T+2*rd}:{33+4*T+2*rd}], v4 offset:{576*rd+32*T}')
    for T in range(4):
        A(f'buffer_store_dwordx4 v[{32+4*T}:{35+4*T}], v3, s[16:19], s46 offen offset:{1024*T}')
    A('buffer_store_dwordx4 v[48:51], v3, s[16:19], s47 offen')


def task_zero(A, sI):
    n = (WS_ZEND - WS_ST + N_WO * 4096 - 1) // (N_WO * 4096)
    A(f'''v_mov_b32 v56, 0
    v_mov_b32 v57, 0
    v_mov_b32 v58, 0
    v_mov_b32 v59, 0
    v_lshlrev_b32 v60, 4, v{vTID}
    s_mul_i32 s48, s{sI}, {n*4096}''')
    srd(A, 24, sWS, WS_ZEND - WS_ST, off=WS_ST)
    for i in range(n):
        A('buffer_store_dwordx4 v[56:59], v60, s[24:27], s48 offen')
        A('s_add_u32 s48, s48, 4096')
    for base, sh, cnt in ((0, FSC[0], 3072), (WS_PF - WS_FLAG, FSC[1], 1024)):
        srd(A, 28, sWS, cnt << sh, off=WS_FLAG + base)
        A(f'v_lshlrev_b32 v60, {sh}, v{vTID}\ns_lshl_b32 s48, s{sI}, {8 + sh}')
        A('buffer_store_dword v56, v60, s[28:31], s48 offen')


POPT = dict(tlb=0, pf=0)
N_PF = 128


def task_tlb(A, sI, shift):
    bufs = [(sWG, 576 * 9216, 0), (sWU, 576 * 9216, 0), (sWD, F * 1152, 0), (sOUT, S * D * 2, 0), (sWS, WS_END, 0)]
    A(f's_lshr_b32 s48, s{sI}, 3\ns_lshl_b32 s48, s48, 2\ns_add_u32 s48, s48, s{sW}')
    A(f'v_lshlrev_b32 v56, {shift}, v{vLANE}')
    q = 0
    for ptr, size, off in bufs:
        srd(A, 24, ptr, size)
        n = -(-size // (64 << shift))
        for i in range(n):
            if q % 20 or True:
                A(f's_cmp_eq_u32 s48, {q % 20}')
                A(f's_cselect_b32 s49, {i * (64 << shift)}, s47') if False else None
                A(f's_mov_b32 s49, 0x80000000\ns_cmov_b32 s49, {i * (64 << shift)}')
                A(f'buffer_load_dword v57, v56, s[24:27], s49 offen')
            q += 1
            if q % 40 == 0:
                A('s_waitcnt vmcnt(0)')


def task_pf(A, sI):
    A(f's_lshl_b32 s40, s{sI}, 2\ns_add_u32 s40, s40, s{sW}\nv_lshlrev_b32 v2, 7, v{vLANE}')
    per = 576 * 9216 // (4 * N_PF)
    assert per % 128 == 0
    A(f's_mul_i32 s41, s40, {per}')
    for ptr in (sWG, sWU, sWD):
        srd(A, 8, ptr, 576 * 9216)
        A(f's_mov_b32 s42, s41')
        n = per // 128
        k = 0
        while n > 0:
            if n < 64:
                m = (1 << n) - 1
                A(f's_mov_b32 exec_lo, {m & 0xffffffff}\ns_mov_b32 exec_hi, {m >> 32}')
            A(f'buffer_load_dword v{8+k}, v2, s[8:11], s42 offen\ns_add_u32 s42, s42, 8192')
            n -= 64; k += 1
        A('s_mov_b64 exec, -1')


NEXT = [None, None]


def n_prep():
    return N_PREP + (N_PF if POPT['pf'] else 0)


def ph_prep(A):
    code_prefetch(A, 'L_k0_body', 'L_k0_end-L_k0_body-4', 2, 127, 50, 1)
    A('L_k0_body:')
    ends = []
    lo = 0
    roles = [(N_MOD, lambda A, s: ph_mod(A, s, 0)), (N_XH, task_xhat), (N_WQ, task_wq)]
    if POPT['pf']:
        roles.append((N_PF, task_pf))
    for n, fn in roles + [(N_WO, None)]:
        last = fn is None
        if not last:
            A(f's_cmp_ge_u32 s2, {lo+n}')
            ctx = A.begin_skip('s_cbranch_scc1 {}')
        A(f's_sub_u32 s39, s2, {lo}')
        if last:
            if NEXT[0]:
                A(f's_lshr_b32 s48, s39, 3\ns_lshl_b32 s48, s48, 2\ns_add_u32 s48, s48, s{sW}\ns_lshl_b32 s48, s48, 13')
                code_prefetch(A, NEXT[0], f'{NEXT[1]}-{NEXT[0]}-4', 60, 62, 50, 1, 48)
            if POPT['tlb']:
                task_tlb(A, 39, POPT['tlb'])
            task_zero(A, 39)
            task_wo(A, 39)
        else:
            n0 = Stamps.n
            fn(A, 39)
            stamp_end(A, again=True)
            keep = Stamps.n
            A('s_endpgm')
            A.end_skip(ctx)
        lo += n
```

```python
from common import *


def ph_mod(A, sM, lds):
    A.comment('==== phase mod ====')
    srd(A, 8, sWMOD, 576 * 6912)
    srd(A, 12, sC, 1152)
    srd(A, 16, sWS, WS_SIZE)
    A(f'''v_lshrrev_b32 v2, 2, v{vLANE}
    v_and_b32 v3, 3, v{vLANE}
    s_mul_i32 s40, s{sW}, 144
    v_add_u32 v4, s40, v2
    s_movk_i32 s41, 6912
    v_mul_lo_u32 v5, v4, s41
    v_lshl_add_u32 v5, v3, 4, v5
    v_lshlrev_b32 v6, 1, v4
    s_lshl_b32 s41, s{sM}, 6''')
    for i in range(9):
        A(f'buffer_load_ushort v{10+i}, v6, s[12:15], 0 offen offset:{32*i}')
    for i in range(9):
        A(f's_add_u32 s42, s41, {i*16*6912}')
        A(f'buffer_load_dwordx4 v[{20+4*i}:{23+4*i}], v5, s[8:11], s42 offen')
    A(f's_mov_b32 s43, {fbits(-LOG2E)}')
    for i in range(9):
        A(f'v_lshlrev_b32 v{10+i}, 16, v{10+i}')
    for i in range(9):
        A(f'v_mul_f32 v{64+i}, s43, v{10+i}')
    for i in range(9):
        A(f'v_exp_f32 v{64+i}, v{64+i}')
    for i in range(9):
        A(f'v_add_f32 v{64+i}, 1.0, v{64+i}')
    for i in range(9):
        A(f'v_rcp_f32 v{64+i}, v{64+i}')
    for i in range(9):
        A(f'v_mul_f32 v{10+i}, v{10+i}, v{64+i}')
    for i in range(9):
        A(f'v_cvt_pk_bf16_f32 v{10+i}, v{10+i}, v{10+i}')
    for i in range(9):
        A(f'v_and_b32 v{10+i}, s{sMASKHI}, v{10+i}')
    for i in range(9):
        for d in range(4):
            unpack(A, 64 + 2 * d, 65 + 2 * d, 20 + 4 * i + d)
        sp = 10 + (i & ~1)
        for d in range(4):
            if i == 0:
                A(f'v_pk_mul_f32 v[{56+2*d}:{57+2*d}], v[{64+2*d}:{65+2*d}], v[{sp}:{sp+1}] op_sel_hi:[1,0]')
            else:
                m = 'op_sel_hi:[1,0,1]' if i % 2 == 0 else 'op_sel:[0,1,0] op_sel_hi:[1,1,1]'
                A(f'v_pk_fma_f32 v[{56+2*d}:{57+2*d}], v[{64+2*d}:{65+2*d}], v[{sp}:{sp+1}], v[{56+2*d}:{57+2*d}] {m}')
    for rot in (8, 4):
        for d in range(8):
            A(f'v_add_f32_dpp v{56+d}, v{56+d}, v{56+d} row_ror:{rot} row_mask:0xf bank_mask:0xf')
    A(f'''v_lshrrev_b32 v7, 4, v{vLANE}
    s_lshl_b32 s40, s{sW}, 2
    v_add_u32 v7, s40, v7
    v_lshlrev_b32 v7, 7, v7
    v_lshl_add_u32 v7, v3, 5, v7
    s_mov_b32 exec_lo, 0x000f000f
    s_mov_b32 exec_hi, 0x000f000f
    ds_write_b128 v7, v[56:59] offset:{lds}
    ds_write_b128 v7, v[60:63] offset:{lds+16}
    s_mov_b64 exec, -1''')
    A.wait_all(vm=False)
    A('s_barrier')
    A(f's_cmp_lg_u32 s{sW}, 0')
    ctx = A.begin_skip('s_cbranch_scc1 {}')
    A(f'''v_lshrrev_b32 v7, 5, v{vLANE}
    v_and_b32 v8, 31, v{vLANE}
    v_lshlrev_b32 v7, 10, v7
    v_lshl_add_u32 v7, v8, 2, v7''')
    for k in range(8):
        A(f'ds_read_b32 v{56+k}, v7 offset:{lds+128*k}')
    A('''v_add_f32 v56, v56, v57
    v_add_f32 v58, v58, v59
    v_add_f32 v60, v60, v61
    v_add_f32 v62, v62, v63
    v_add_f32 v56, v56, v58
    v_add_f32 v60, v60, v62
    v_add_f32 v56, v56, v60
    v_mov_b32 v57, v56
    v_permlane32_swap_b32 v56, v57
    v_add_f32 v56, v56, v57''')
    A(f'''v_cvt_pk_bf16_f32 v56, v56, v56
    v_and_b32 v56, s{sMASKHI}, v56
    s_mul_i32 s40, s{sM}, 57
    s_lshr_b32 s40, s40, 10
    s_cmp_eq_u32 s40, 1
    s_cselect_b32 s41, 1.0, 0
    s_cmp_eq_u32 s40, 4
    s_cselect_b32 s41, 1.0, s41
    v_add_f32 v56, s41, v56
    v_cvt_pk_bf16_f32 v56, v56, v56
    v_and_b32 v56, s{sMASKHI}, v56
    s_lshl_b32 s40, s{sM}, 7
    v_lshlrev_b32 v8, 2, v8
    s_mov_b32 exec_hi, 0
    buffer_store_dword v56, v8, s[16:19], s40 offen offset:{WS_MOD}
    s_mov_b64 exec, -1''')
    A.end_skip(ctx)


def ph_out(A, npart):
    raise NotImplementedError


P0, P1, P2, X0, X1, X2, FACC, FTMP = 16, 144, 176, 96, 108, 120, 208, 240
sVALID = 60


def final_setup_ops():
    t = f'''s_lshr_b32 s40, s{sJ}, 1
    s_and_b32 s41, s{sJ}, 1
    v_lshrrev_b32 v6, 3, v{vLANE}
    v_and_b32 v7, 7, v{vLANE}
    v_lshlrev_b32 v4, 8, v6
    v_lshl_add_u32 v4, v7, 4, v4
    v_lshlrev_b32 v5, 5, v6
    v_mul_u32_u24 v10, 1152, v7
    v_lshl_add_u32 v10, v6, 4, v10
    v_and_b32 v8, 15, v{vLANE}
    v_lshlrev_b32 v8, {FSC[0]}, v8
    s_lshl_b32 s43, s{sG}, 3
    s_add_u32 s43, s43, s40
    s_mul_i32 s44, s43, {T16}
    s_lshl_b32 s45, s41, 7
    s_add_u32 s44, s44, s45
    s_add_u32 s44, s44, {WS_X1}
    s_mul_i32 s46, s{sG}, {64*T16}
    s_mul_i32 s47, s40, {T16}
    s_add_u32 s46, s46, s47
    s_add_u32 s46, s46, s45
    s_add_u32 s46, s46, {WS_PART}
    s_lshl_b32 s47, s43, 4
    s_lshl_b32 s48, s41, 3
    s_add_u32 s47, s47, s48
    s_mul_i32 s47, s47, 1152
    s_lshl_b32 s48, s{sW}, 2
    s_lshr_b32 s52, 0x6510, s48
    s_and_b32 s52, s52, 15
    s_lshr_b32 s53, 0x0072, s48
    s_and_b32 s53, s53, 15
    s_lshr_b32 s58, 0x4308, s48
    s_and_b32 s58, s58, 15
    s_movk_i32 s56, 0x3f80
    s_mov_b32 s57, 0x3f800000
    s_mov_b32 s59, {fbits(-1.0 / LOG2E)}
    s_mov_b32 s12, s{sOUT}
    s_mov_b32 s13, s{sOUT+1}
    s_mov_b32 s14, {S*D*2}
    s_mov_b32 s15, 0x20000'''
    return [x.strip() for x in t.split('\n')]


def side_ops(sN, X):
    G = X + 4
    return [f's_lshl_b32 s50, s{sN}, 11', 's_add_u32 s51, s44, s50',
            f'buffer_load_dwordx4 v[{X}:{X+3}], v4, s[16:19], s51 offen sc1',
            f's_lshl_b32 s51, s{sN}, 8', f's_add_u32 s51, s51, {WS_MOD+5*576*4}',
            f'buffer_load_dwordx4 v[{G}:{G+3}], v5, s[16:19], s51 offen',
            f'buffer_load_dwordx4 v[{G+4}:{G+7}], v5, s[16:19], s51 offen offset:16']


def parts_ops(sN, P, base=46):
    r = [f's_lshl_b32 s50, s{sN}, 11', f's_add_u32 s51, s{base}, s50']
    for p in range(8):
        r.append(f'buffer_load_dwordx4 v[{P+4*p}:{P+4*p+3}], v4, s[16:19], s51 offen sc1')
        if p < 7:
            r.append(f's_add_u32 s51, s51, {8*T16}')
    return r


def ph_final(A, publish_all, wait, check):
    acc, tmp = FACC, FTMP

    def parts(sN, P):
        for x in parts_ops(sN, P):
            A(x)

    def finish(sN, P, X):
        G = X + 4
        for d in range(4):
            A(f'v_pk_mul_f32 v[{G+2*d}:{G+2*d+1}], v[{G+2*d}:{G+2*d+1}], s[58:59] op_sel:[0,1] op_sel_hi:[1,1]')
        for p in range(8):
            for d in range(4):
                for h in range(2):
                    c = '0' if p == 0 else f'v{acc+2*d+h}'
                    A(f'v_dot2_f32_bf16 v{acc+2*d+h}, v{P+4*p+d}, s{56+h}, {c}')
        for d in range(4):
            unpack(A, tmp + 2 * d, tmp + 2 * d + 1, X + d)
        for d in range(4):
            A(f'v_pk_fma_f32 v[{acc+2*d}:{acc+2*d+1}], v[{acc+2*d}:{acc+2*d+1}], v[{G+2*d}:{G+2*d+1}], v[{tmp+2*d}:{tmp+2*d+1}]')
        for d in range(4):
            A(f'v_cvt_pk_bf16_f32 v{X+d}, v{acc+2*d}, v{acc+2*d+1}')
        A(f's_lshl_b32 s50, s{sN}, 7\ns_add_u32 s50, s50, s47')
        A(f'buffer_store_dwordx4 v[{X}:{X+3}], v10, s[12:15], s50 offen')
    fin = A.label('L_fin')

    def save():
        return (list(A.vmq), list(A.lgq), A.vm_issued, A.lg_issued)

    def restore(st):
        A.vmq, A.lgq, A.vm_issued, A.lg_issued = list(st[0]), list(st[1]), st[2], st[3]

    def done():
        A.wait_all()
        A(f's_branch {fin}')

    def path(two, three):
        top = 3 if three else 2
        staged, staged2 = A.label('L_fst'), A.label('L_fst')
        check(top)
        A(f's_cbranch_scc0 {staged}')
        st = save()
        if two:
            parts(53, P1)
        if three:
            parts(58, P2)
        finish(52, P0, X0)
        if two:
            finish(53, P1, X1)
        if three:
            finish(58, P2, X2)
        done()
        A(staged + ':')
        restore(st)
        finish(52, P0, X0)
        if two and three:
            wait(2)
            check(3)
            A(f's_cbranch_scc0 {staged2}')
            st = save()
            parts(53, P1)
            parts(58, P2)
            finish(53, P1, X1)
            finish(58, P2, X2)
            done()
            A(staged2 + ':')
            restore(st)
        if two:
            if not three:
                wait(2)
            parts(53, P1)
            finish(53, P1, X1)
        if three:
            wait(3)
            parts(58, P2)
            finish(58, P2, X2)
        done()
    publish_all()
    A(f's_cmp_lg_u32 s{sVALID}, 0')
    ok = A.label('L_fv')
    A(f's_cbranch_scc1 {ok}')
    wait(1)
    parts(52, P0)
    A(ok + ':')
    l1, l2 = A.label('L_fw'), A.label('L_fw')
    st0 = save()
    A(f's_cmp_eq_u32 s{sW}, 1\ns_cbranch_scc1 {l1}')
    A(f's_cmp_ge_u32 s{sW}, 2\ns_cbranch_scc1 {l2}')
    path(True, True)
    A(l1 + ':')
    restore(st0)
    path(True, False)
    A(l2 + ':')
    restore(st0)
    path(False, True)
    A(fin + ':')
    A.vmq, A.lgq = [], []
```

```python
import sys
sys.path.insert(0, 'gen')
from common import *
from ph_small import ph_mod, ph_final
import ph_a, ph_b, ph_c, ph_prep

def kernel(name, fn, nwg, lds, vgpr=512, accum=256, spread=4, sv=14):
    A = Asm()
    end = f'L_end_{name}'
    A.uid = {'k1':6000,'k0':0,'ka':1000,'kb':2000,'kc':3000,'kd':4000}.get(name[:2], 5000)
    prologue(A, nwg, end, spread)
    stamp_begin(A, len(Stamps.names), sv)
    fn(A)
    stamp_end(A)
    A.wait_all()
    A(end + ':')
    A('s_endpgm')
    for x in A.tail:
        A._emit(Ins(x))
    A(f'L_{name[:2]}_end:')
    n = {}
    for i in A.out: n[i.kind] = n.get(i.kind, 0) + 1
    print(name, n, 'nops', A.nops_inserted, 'waits', A.waits_inserted, file=sys.stderr)
    return dict(name=name, grid=nwg, block=256, lds=lds, body=A.text(), vgpr=vgpr, accum=accum)

def multi(spread=4):
    ks = [kernel('k0_kernel', ph_prep.ph_prep, ph_prep.N_PREP, ph_prep.PREP_LDS, 136 if Stamps.on else 128, 136 if Stamps.on else 128, spread, 130),
          kernel('ka_kernel', ph_a.ph_a, 256, ph_a.A_LDS, spread=spread, sv=14),
          kernel('kb_kernel', ph_b.ph_b, 256, ph_b.B_LDS, spread=spread, sv=250),
          kernel('kc_kernel', ph_c.ph_c, 256, ph_c.C_LDS, spread=spread, sv=12),
          ]
    return ks

def merged_body(A):
    A.junk = ('v', 13)
    PF = ph_c.OPT.get('usepf', 1)
    WINP = {}

    def win(name):
        if name in WINP:
            for x in ph_c.pf_ops(*WINP[name]):
                A(x)
    if PF:
        if PF == 1:
            ph_c.OPT['pf'] = [(24, 'gu', 18, 36), (44, 'gu', 36, 45), (60, 'd', 0, 27), (80, 'd', 27, 45)]
        elif PF == 2:
            ph_c.OPT['pf'] = [(8, 'g', 18, 27), (16, 'u', 18, 27), (30, 'g', 27, 36), (40, 'u', 27, 36), (52, 'g', 36, 45), (62, 'u', 36, 45)] + \
                [(74 + 10 * q, 'd', 9 * q, 9 * q + 9) for q in range(5)]
        elif PF == 4:
            ph_c.OPT['pf'] = [(30, 'gu', 27, 45), (60, 'd', 0, 45)]
        elif PF == 5:
            ph_c.OPT['pf'] = [(40, 'd', 0, 45)]
        elif PF in (6, 7):
            ph_c.OPT['pf'] = []
        elif PF == 8:
            ph_c.OPT['pf'] = [(22, 'gu', 18, 45), (62, 'd', 0, 45)]
        elif PF == 9:
            ph_c.OPT['pf'] = [(38, 'gud', 18, 45), (70, 'd', 0, 18)]
        elif PF >= 10:
            WINP.update({10: dict(s1=('gu', 18, 27), st=('gu', 27, 36), s2=('gu', 36, 45)),
                         11: dict(s1=('gu', 18, 27), s2=('gu', 27, 36)),
                         12: dict(s1=('gu', 18, 27), st=('gu', 27, 36), s2=('gud', 36, 45)),
                         13: dict(s1=('gud', 18, 27), st=('gud', 27, 36), s2=('gud', 36, 45)),
                         14: dict(s2=('gu', 18, 27))}[PF])
            ph_c.OPT['pf'] = {10: [(40, 'd', 0, 23), (64, 'd', 23, 45)],
                              11: [(40, 'gu', 36, 45), (60, 'd', 0, 23), (84, 'd', 23, 45)],
                              12: [(40, 'd', 0, 18), (64, 'd', 18, 36)],
                              13: [(44, 'd', 0, 18)],
                              14: [(30, 'gu', 27, 36), (50, 'gu', 36, 45), (70, 'd', 0, 23), (90, 'd', 23, 45)]}[PF]
        elif PF == 3:
            ph_c.OPT['pf'] = [(20, 'g', 18, 27), (28, 'u', 18, 27), (40, 'g', 27, 36), (50, 'u', 27, 36), (60, 'g', 36, 45), (70, 'u', 36, 45)] + \
                [(80 + 9 * q, 'd', 9 * q, 9 * q + 9) for q in range(5)]

    def early():
        ph_c.ph_c_setup_s(A)
        ph_c.pf_setup(A)

    def late():
        if PF:
            for x in ph_c.pf_ops('gud' if PF == 6 else 'gu', 0, {4: 27, 5: 45, 6: 45}.get(PF, 18)):
                A(x)
    ph_a.ph_a_main(A, early, late)
    bg = ph_b.ph_b_dma(A)
    ph_a.ph_a_attn(A, bg)
    stamp(A, 'attn done')
    flag_base(A, 101, 0, sW)
    A(f's_lshl_b32 s40, s{sJ}, {FSC[0]}\ns_add_u32 s101, s101, s40')
    publish(A, 16, 101, 4)
    A('s_barrier')
    stamp(A, 'o published')
    mk = ph_b.ph_b_pre(A)
    A('s_lshr_b32 s40, s5, 1')
    flag_base(A, 101, 0, 40)
    ph_c.ph_c_setup_v(A)
    R = ph_c.Ring(A)
    SLEEP[0] = ph_c.OPT.get('sleep', 0)
    NP1, NP2, NP3 = ph_c.OPT.get('np', (3, 5, 9))
    Q1, Q2, Q3 = ph_c.OPT.get('nq', (3, 5, 9))
    ph_c.ph_c_prefill(A, R, 0, Q1)
    poll_begin(A, 16, 101, 2)
    ph_c.ph_c_prefill(A, R, Q1, NP1)
    A.wait_vm_mark(mk)
    ph_b.ph_b_vec(A)
    ph_b.NPRE = ph_c.OPT.get('npre', 30)
    ph_b.ph_b_pre_frags(A)
    poll_end(A, 16, 101, 2, 41)
    stamp(A, 'S1')

    def before_stat():
        A('s_barrier')
        ph_c.ph_c_prefill(A, R, NP1, Q2)

    def after_stat():
        ph_c.ph_c_prefill(A, R, Q2, NP2)
    ph_b.ph_b_main(A, before_stat, after_stat)
    A('s_lshr_b32 s40, s5, 1')
    flag_base(A, 101, 1, 40)
    A(f's_lshl_b32 s40, s4, 1\ns_and_b32 s41, s{sW}, 1\ns_add_u32 s40, s40, s41\ns_lshl_b32 s40, s40, {FSC[0]}\ns_add_u32 s101, s101, s40')
    xops = ph_c.ph_c_xload(A)
    if ph_c.OPT['itouch']:
        itouch_setup(A, ph_c.vIL)
    ph_c.pair_setup(A)
    ph_c.tail_setup(A)
    publish(A, 16, 101, 10)
    stamp(A, 'h2 published')
    flag_base(A, 101, 1, sW)
    ph_c.ph_c_prefill(A, R, NP2, Q3)
    poll_begin(A, 16, 101, 10)
    ph_c.ph_c_prefill(A, R, Q3, NP3)
    poll_end(A, 16, 101, 10, 40)
    stamp(A, 'S2')
    ph_c.ph_c_stream(A, R, NP3, xops)
    def publish_all():
        A(f'buffer_load_dword v9, v8, s[16:19], s{ph_c.sS3C} offen sc1')
        publish(A, 16, ph_c.sS3O, 6, 3)
        stamp(A, 'part published')

    def wait(v):
        lab, ok = A.label('L_w'), A.label('L_wok')
        check(v)
        A(f's_cbranch_scc1 {ok}')
        st = (list(A.vmq), list(A.lgq), A.vm_issued, A.lg_issued)
        poll(A, 16, ph_c.sS3C, 8, 43, v)
        A.vmq, A.lgq, A.vm_issued, A.lg_issued = st
        A(ok + ':')
        if Stamps.on and v > 1:
            A(f's_memtime s[88:89]\nv_writelane_b32 v14, s88, {43+v}')

    def check(v):
        A(f'v_cmp_gt_u32 vcc, {v}, v9')
        A('s_cmp_eq_u64 vcc, 0')
    ph_final(A, publish_all, wait, check)


def two(spread=4):
    ph_prep.NEXT[:] = ['k1_kernel', 'L_k1_end']
    FSC[:] = ph_c.OPT.get('fs', (6, 6))
    ph_prep.POPT['nlight'] = ph_c.OPT.get('nlight', 84)
    ph_prep.POPT['lin'] = ph_c.OPT.get('lin', 0)
    ph_prep.POPT['tlb'] = ph_c.OPT.get('tlb', 0); ph_prep.POPT['pf'] = ph_c.OPT.get('k0pf', 0)
    return [kernel('k0_kernel', ph_prep.ph_prep, ph_prep.n_prep(), ph_prep.PREP_LDS, 136 if Stamps.on else 128, 136 if Stamps.on else 128, spread, 130),
            kernel('k1_kernel', merged_body, 256, 163840, spread=spread, sv=14)]


if __name__ == '__main__':
    out = sys.argv[1] if len(sys.argv) > 1 else 'v1.s'
    if 'stamp' in sys.argv:
        Stamps.on = True
    for a in sys.argv[2:]:
        if '=' in a:
            k, v = a.split('=')
            ph_c.OPT[k] = int(v)
    open(out, 'w').write(build(two() if 'two' in sys.argv else multi()))
    if Stamps.on:
        import json
        json.dump(Stamps.names, open(out + '.json', 'w'))
```

```python
import re

TRANS = ('v_exp_f32', 'v_log_f32', 'v_rcp_f32', 'v_rsq_f32', 'v_sqrt_f32', 'v_sin_f32', 'v_cos_f32')
REG_RE = re.compile(r'^(-|\|)?(abs\()?([vas])(\d+|\[(\d+):(\d+)\])\)?\|?$')


def regs_of(tok):
    tok = tok.strip()
    if tok in ('vcc',):
        return [('s', 'vcc_lo'), ('s', 'vcc_hi')]
    if tok in ('vcc_lo', 'vcc_hi'):
        return [('s', tok)]
    if tok == 'exec':
        return [('s', 'exec')]
    if tok in ('exec_lo', 'exec_hi'):
        return [('s', 'exec')]
    if tok == 'm0':
        return [('s', 'm0')]
    m = REG_RE.match(tok)
    if not m:
        return []
    k = m.group(3)
    if m.group(5) is not None:
        return [(k, i) for i in range(int(m.group(5)), int(m.group(6)) + 1)]
    return [(k, int(m.group(4)))]


def split_ops(rest):
    out, cur, d = [], '', 0
    for ch in rest:
        if ch == '[' or ch == '(':
            d += 1
        elif ch == ']' or ch == ')':
            d -= 1
        if ch == ',' and d == 0:
            out.append(cur.strip()); cur = ''
        else:
            cur += ch
    if cur.strip():
        out.append(cur.strip())
    mods = []
    if out:
        parts = out[-1].split()
        out[-1] = parts[0]
        mods = parts[1:]
    return out, mods


class Ins:
    def __init__(self, text):
        self.text = text
        self.defs, self.uses = [], []
        self.kind = 'other'
        self.srcc = []
        self.passes = 0
        self.states = 1
        t = text.strip()
        if t.endswith(':'):
            self.kind = 'softlabel' if t.startswith('L_back') else 'label'; self.op = t; self.states = 0
            return
        if t.startswith('.') or t.startswith(';'):
            self.kind = 'directive'; self.op = t; self.states = 0
            return
        sp = t.split(None, 1)
        op = sp[0]
        self.op = op
        ops, mods = split_ops(sp[1]) if len(sp) > 1 else ([], [])
        self.ops, self.mods = ops, mods
        R = [regs_of(o) for o in ops]
        flat = lambda L: [r for x in L for r in x]
        if op.startswith('v_mfma'):
            self.kind = 'mfma'
            self.defs = R[0]; self.uses = flat(R[1:]); self.srcc = R[3]
            self.srca = R[1] + R[2]
            self.passes = 8 if '32x32' in op else 4
        elif op.startswith('v_'):
            self.kind = 'valu'
            base = op.replace('_e32', '').replace('_e64', '').replace('_dpp', '').replace('_sdwa', '')
            self.base = base
            self.dpp = any(m.startswith(('row_', 'quad_perm', 'wave_')) for m in mods) or op.endswith('_dpp')
            if base.startswith('v_cmpx'):
                raise ValueError('no v_cmpx please')
            if base.startswith('v_permlane') and 'swap' in base:
                self.defs = flat(R[:2]); self.uses = flat(R[:2])
            elif base in ('v_add_co_u32', 'v_sub_co_u32', 'v_subrev_co_u32'):
                self.defs = R[0] + R[1]; self.uses = flat(R[2:])
            elif base in ('v_addc_co_u32', 'v_subb_co_u32'):
                self.defs = R[0] + R[1]; self.uses = flat(R[2:])
            else:
                self.defs = R[0]; self.uses = flat(R[1:])
                if base.startswith(('v_fmac', 'v_dot2c', 'v_pk_fmac', 'v_writelane')) or self.dpp:
                    self.uses = self.uses + R[0]
                if base == 'v_cndmask_b32' and len(ops) == 3:
                    self.uses += regs_of('vcc')
            self.trans = base in TRANS
            self.dl = base.startswith('v_dot')
        elif op.startswith('ds_'):
            if op.startswith('ds_read') or op.startswith(('ds_bpermute', 'ds_permute', 'ds_swizzle')):
                self.kind = 'ds'; self.defs = R[0]; self.uses = flat(R[1:])
            else:
                self.kind = 'ds'; self.uses = flat(R)
        elif op.startswith('buffer_') and op not in ('buffer_wbl2', 'buffer_inv'):
            self.kind = 'vmem'
            if 'lds' in mods:
                self.uses = flat(R) + [('s', 'm0')]; self.dma = True
            elif op.startswith('buffer_load'):
                self.defs = R[0]; self.uses = flat(R[1:])
            elif op.startswith('buffer_store'):
                self.uses = flat(R); self.sdata = R[0]
                self.wide = op.endswith(('x3', 'x4'))
            else:
                self.uses = flat(R)
                if 'sc0' in mods:
                    self.defs = R[0]
        elif op in ('buffer_wbl2', 'buffer_inv'):
            self.kind = 'vmem'
        elif op.startswith('global_'):
            self.kind = 'vmem'
            if op.startswith('global_load'):
                self.defs = R[0]; self.uses = flat(R[1:])
            elif op.startswith('global_store'):
                self.uses = flat(R); self.sdata = R[1]
                self.wide = op.endswith(('x3', 'x4'))
            else:
                raise ValueError(op)
        elif op.startswith('s_load') or op in ('s_memtime', 's_memrealtime'):
            self.kind = 'smem'; self.defs = R[0]; self.uses = flat(R[1:])
        elif op == 's_waitcnt':
            self.kind = 'waitcnt'
            self.vm = self.lgkm = None
            m = re.search(r'vmcnt\((\d+)\)', t)
            if m: self.vm = int(m.group(1))
            m = re.search(r'lgkmcnt\((\d+)\)', t)
            if m: self.lgkm = int(m.group(1))
        elif op == 's_nop':
            self.kind = 'nop'; self.states = int(ops[0]) + 1
        elif op == 's_barrier':
            self.kind = 'barrier'
        elif op.startswith('s_cbranch') or op == 's_branch' or op == 's_endpgm':
            self.kind = 'branch'
        elif op.startswith('s_'):
            self.kind = 'salu'
            if op.startswith(('s_cmp', 's_bitcmp', 's_setprio', 's_sleep', 's_sethalt')):
                self.uses = flat(R)
            elif 'saveexec' in op:
                self.defs = R[0] + [('s', 'exec')]; self.uses = flat(R[1:]) + [('s', 'exec')]
            else:
                self.defs = R[0]; self.uses = flat(R[1:])
                if op.startswith(('s_addk', 's_mulk', 's_cmov')):
                    self.uses += R[0]
        else:
            raise ValueError('unknown instruction: ' + text)


def need_states(p, c):
    n = 0
    pd = set(p.defs)
    if p.kind == 'valu':
        vd = {r for r in pd if r[0] in 'va'}
        sd = {r for r in pd if r[0] == 's'}
        if c.kind == 'mfma' and vd & set(c.uses):
            n = max(n, 2)
        if c.kind == 'valu':
            cu = set(c.uses)
            if p.trans and not c.trans and vd & cu:
                n = max(n, 1)
            if c.base.startswith('v_permlane') and vd & cu:
                n = max(n, 2)
            if c.dpp and vd & cu:
                n = max(n, 2)
            if c.base in ('v_readlane_b32', 'v_readfirstlane_b32') and vd & cu:
                n = max(n, 1)
            if sd & cu:
                n = max(n, 4 if c.base in ('v_readlane_b32', 'v_writelane_b32') else 2)
            if p.dl and (vd & cu or vd & set(c.defs)):
                same_c = c.dl and c.base == p.base and not (vd & set(regs_of(c.ops[1]) + regs_of(c.ops[2])))
                if not same_c:
                    n = max(n, 3)
        if c.kind == 'vmem' and sd & set(c.uses):
            n = max(n, 5)
        if c.kind in ('salu', 'smem') and sd & set(c.uses):
            n = max(n, 1)
        if p.dl and c.kind in ('vmem', 'ds', 'mfma') and vd & set(c.uses):
            n = max(n, 3)
    elif p.kind == 'mfma':
        big = p.passes == 8
        if c.kind == 'mfma':
            if pd & set(c.srca):
                n = max(n, 12 if big else 8)
            if pd & set(c.srcc):
                if not (c.srcc == p.defs and c.passes == p.passes):
                    n = max(n, 10 if big else 6)
            elif pd & set(c.defs):
                n = max(n, 10 if big else 6)
        elif c.kind in ('valu', 'vmem', 'ds'):
            if pd & (set(c.uses) | set(c.defs)):
                n = max(n, 12 if big else 8)
            if c.kind == 'valu' and set(p.srcc) & set(c.defs):
                n = max(n, 7 if big else 3)
            if c.kind != 'valu' and set(p.srcc) & set(c.defs):
                n = max(n, 7 if big else 3)
    elif p.kind == 'salu':
        if ('s', 'm0') in pd and c.kind == 'vmem' and ('s', 'm0') in c.uses:
            n = max(n, 1)
    elif p.kind == 'vmem' and getattr(p, 'wide', False):
        if set(p.sdata) & set(c.defs):
            n = max(n, 2 if c.kind == 'valu' else 1)
    return n


class Asm:
    LOOKBACK = 16

    def __init__(self):
        self.out = []
        self.vmq = []
        self.lgq = []
        self.vm_issued = 0
        self.lg_issued = 0
        self.nops_inserted = 0
        self.waits_inserted = 0
        self.uid = 0
        self.junk = None
        self.tail = []

    def label(self, base):
        self.uid += 1
        return f'{base}_{self.uid}'

    def _emit(self, ins):
        self.out.append(ins)

    def _hazard(self, c):
        need = 0
        dist = 0
        for p in reversed(self.out):
            if p.kind in ('label',):
                break
            if p.states == 0:
                continue
            n = need_states(p, c)
            if n > dist:
                need = max(need, n - dist)
            dist += p.states
            if dist >= self.LOOKBACK:
                break
        while need > 0:
            k = min(need, 16)
            self._emit(Ins(f's_nop {k-1}'))
            self.nops_inserted += k
            need -= k

    def _apply_wait(self, vm, lgkm):
        if vm is not None:
            self.vmq = self.vmq[len(self.vmq) - vm:] if vm < len(self.vmq) and vm > 0 else ([] if vm == 0 else self.vmq)
        if lgkm is not None:
            if lgkm == 0:
                self.lgq = []
            elif not any(e['smem'] for e in self.lgq):
                keep, n = [], 0
                for e in reversed(self.lgq):
                    if e.get('maybe'):
                        if n < lgkm:
                            keep.append(e)
                    elif n < lgkm:
                        keep.append(e); n += 1
                self.lgq = keep[::-1]

    def _needed(self, regs):
        regs = set(regs)
        vm = lg = None
        for i, e in enumerate(self.vmq):
            if e['defs'] & regs:
                vm = len(self.vmq) - 1 - i
        for i, e in enumerate(self.lgq):
            if e['defs'] & regs:
                lg = sum(1 for x in self.lgq[i + 1:] if not x.get('maybe'))
        if lg is not None and any(e['smem'] for e in self.lgq):
            lg = 0
        return vm, lg

    def _wait(self, vm, lg):
        if vm is None and lg is None:
            return
        if vm is not None: vm = min(vm, 63)
        if lg is not None: lg = min(lg, 15)
        s = 's_waitcnt'
        if vm is not None: s += f' vmcnt({vm})'
        if lg is not None: s += f' lgkmcnt({lg})'
        self._emit(Ins(s))
        self.waits_inserted += 1
        self._apply_wait(vm, lg)

    def wait_regs(self, regs):
        self._wait(*self._needed(regs))

    def mark(self):
        return self.vm_issued

    def wait_vm_mark(self, mark):
        n = self.vm_issued - mark
        if len(self.vmq) > n:
            self._wait(n, None)

    def wait_all(self, vm=True, lgkm=True):
        v = 0 if (vm and self.vmq) else None
        l = 0 if (lgkm and self.lgq) else None
        self._wait(v, l)

    def one(self, text):
        ins = Ins(text)
        if ins.kind in ('label', 'softlabel', 'directive'):
            self._emit(ins); return
        if ins.kind == 'waitcnt':
            self._emit(ins); self._apply_wait(ins.vm, ins.lgkm); return
        if self.junk is not None:
            if ins.kind == 'vmem' and ins.defs == [self.junk]:
                self.junk_owner = True
                ins.defs = []
            else:
                assert self.junk not in ins.defs and self.junk not in ins.uses, text
        if ins.kind == 'vmem' and ins.defs[:1] == [('a', 212)] and getattr(self, 'junk212', True) and 'offset' in text and 's61' in text:
            ins.defs = []
        touched = set(ins.defs) | set(ins.uses)
        self._wait(*self._needed(touched))
        self._hazard(ins)
        self._emit(ins)
        if ins.kind == 'vmem':
            self.vmq.append({'defs': set(ins.defs)})
            self.vm_issued += 1
            assert len(self.vmq) <= 63, 'vmcnt overflow'
        elif ins.kind == 'ds':
            self.lgq.append({'defs': set(ins.defs), 'smem': False})
            self.lg_issued += 1
        elif ins.kind == 'smem':
            self.lgq.append({'defs': set(ins.defs), 'smem': True})
            self.lg_issued += 1

    def __call__(self, text):
        for line in text.split('\n'):
            line = line.split(';')[0].strip() if not line.strip().startswith(';') else line.strip()
            if line:
                self.one(line)

    def comment(self, s):
        self._emit(Ins('; ' + s))

    def fence(self):
        need = 0
        dist = 0
        for p in reversed(self.out):
            if p.kind == 'label':
                break
            if p.states == 0:
                continue
            n = {'mfma': 12 if p.passes == 8 else 8, 'valu': 5, 'salu': 1, 'vmem': 2}.get(p.kind, 0)
            need = max(need, n - dist)
            dist += p.states
            if dist >= self.LOOKBACK:
                break
        if need > 0:
            self._emit(Ins(f's_nop {need-1}'))

    def begin_skip(self, branch_text_fmt):
        lab = self.label('L_skip')
        self.fence()
        self.one(branch_text_fmt.format(lab))
        return (lab, list(self.vmq), list(self.lgq), self.vm_issued, self.lg_issued)

    def end_skip_lds(self, ctx):
        lab, vmq, lgq, issued, lgissued = ctx
        assert self.vm_issued == issued
        self.fence()
        self.one(lab + ':')
        self.vmq, self.lgq, self.lg_issued = vmq, lgq + [{'defs': set(), 'smem': False, 'maybe': True}], lgissued + 1

    def end_skip(self, ctx):
        lab, vmq, lgq, issued, lgissued = ctx
        new_vm = self.vm_issued != issued
        new_lg = self.lg_issued != lgissued
        self._wait(0 if (new_vm and self.vmq) else None, 0 if (new_lg and self.lgq) else None)
        self.fence()
        self.one(lab + ':')
        self.vmq, self.lgq, self.vm_issued, self.lg_issued = vmq, lgq, issued, lgissued

    def text(self):
        res = []
        for i in self.out:
            res.append(i.text if i.kind in ('label', 'softlabel') else '    ' + i.text)
        return '\n'.join(res)


def vr(b, n=1, k='v'):
    return f'{k}{b}' if n == 1 else f'{k}[{b}:{b+n-1}]'


def ar(b, n=1):
    return vr(b, n, 'a')


def sr(b, n=1):
    return vr(b, n, 's')


def rl(k, b, n):
    return [(k, i) for i in range(b, b + n)]
```

```python
from asmgen import *

S, D, F = 2048, 576, 4608
WS_MOD = 0
WS_ST = 0x4000
WS_ZEND = WS_ST + 128 * 2048
FSC = [7, 7]
WS_FLAG = WS_ZEND
WS_PF = WS_FLAG + (3 * 1024 << 7)
WS_XH = WS_PF + (1024 << 7)
WS_WQ = WS_XH + 64 * 36864
WQ_J = 36 * 3840
WS_WO = WS_WQ + 16 * WQ_J + 1024
WO_C = 100 * 1024
WS_O = WS_WO + 8 * WO_C
O_G = 8 * 80 * 256
WS_X1 = WS_O + 16 * O_G
T16 = 72 * 256
WS_H2 = WS_X1 + 128 * T16
WS_XT = WS_H2 + 128 * T16
WS_PART = WS_XT + 128 * T16
WS_HX = WS_PART + 128 * 8 * T16
WS_END = WS_HX + 256 * 4 * 18432
WS_SIZE = 268435456

sX, sWQKV, sWO, sWG, sWU, sWD, sC = 64, 66, 68, 72, 74, 76, 78
sWMOD, sOUT, sDBG, sWS = 80, 82, 84, 86
sG, sJ, sW = 32, 33, 34
sMASKHI = 35
sHALF = 36
vTID, vLANE = 0, 1

LOG2E = 1.4426950408889634


def fbits(x):
    import struct
    return '0x%08x' % struct.unpack('<I', struct.pack('<f', x))[0]


def prologue(A, nwg, endlabel, xcd_spread=4):
    A(f's_cmp_ge_u32 s2, {nwg}')
    A(f's_cbranch_scc1 {endlabel}')
    A('s_load_dwordx16 s[64:79], s[0:1], 0')
    A('s_load_dwordx8 s[80:87], s[0:1], 64')
    A(f'v_lshrrev_b32 v2, 6, v{vTID}')
    A(f'v_and_b32 v{vLANE}, 63, v{vTID}')
    A(f'v_readfirstlane_b32 s{sW}, v2')
    mapping(A, xcd_spread)
    A(f's_mov_b32 s{sMASKHI}, 0xffff0000')
    A(f's_mov_b32 s{sHALF}, 0')
    A(f's_mov_b32 s{sHALF+1}, -1')


def mapping(A, n):
    if n == 8:
        A(f's_lshr_b32 s{sG}, s2, 4\ns_and_b32 s{sJ}, s2, 15')
    elif n == 4:
        A(f'''s_and_b32 s40, s2, 7
        s_lshr_b32 s{sG}, s40, 2
        s_lshr_b32 s41, s2, 5
        s_lshl_b32 s41, s41, 1
        s_add_u32 s{sG}, s{sG}, s41
        s_and_b32 s{sJ}, s40, 3
        s_lshl_b32 s{sJ}, s{sJ}, 2
        s_lshr_b32 s41, s2, 3
        s_and_b32 s41, s41, 3
        s_add_u32 s{sJ}, s{sJ}, s41''')
    elif n == 2:
        A(f'''s_and_b32 s40, s2, 7
        s_lshr_b32 s{sG}, s40, 1
        s_lshr_b32 s41, s2, 6
        s_lshl_b32 s41, s41, 2
        s_add_u32 s{sG}, s{sG}, s41
        s_and_b32 s{sJ}, s40, 1
        s_lshl_b32 s{sJ}, s{sJ}, 3
        s_lshr_b32 s41, s2, 3
        s_and_b32 s41, s41, 7
        s_add_u32 s{sJ}, s{sJ}, s41''')
    elif n == 1:
        A(f'''s_and_b32 s{sG}, s2, 7
        s_lshl_b32 s{sG}, s{sG}, 1
        s_lshr_b32 s41, s2, 3
        s_and_b32 s41, s41, 1
        s_add_u32 s{sG}, s{sG}, s41
        s_lshr_b32 s{sJ}, s2, 4''')
    else:
        raise ValueError


def srd(A, q, ptr, size, off=0, bias=0):
    d = off - bias
    if d == 0:
        A(f's_mov_b32 s{q}, s{ptr}\ns_mov_b32 s{q+1}, s{ptr+1}')
    elif d > 0:
        A(f's_add_u32 s{q}, s{ptr}, {d}\ns_addc_u32 s{q+1}, s{ptr+1}, 0')
    else:
        A(f's_sub_u32 s{q}, s{ptr}, {-d}\ns_subb_u32 s{q+1}, s{ptr+1}, 0')
    A(f's_mov_b32 s{q+2}, {size + bias}\ns_mov_b32 s{q+3}, 0x20000')


def unpack(A, lo, hi, src):
    A(f'v_lshlrev_b32 v{lo}, 16, v{src}')
    A(f'v_and_b32 v{hi}, s{sMASKHI}, v{src}')


HDR = open('adaLN_cond__sliding_local_dilated__glu_gated_glu__prompt.s.ref').read().split('\n')[:13]


def kd(name, vgpr, accum, sgpr=102):
    return f""".p2align 6
.amdhsa_kernel {name}
  .amdhsa_next_free_vgpr {vgpr}
  .amdhsa_next_free_sgpr {sgpr}
  .amdhsa_accum_offset {accum}
  .amdhsa_group_segment_fixed_size 0
  .amdhsa_kernarg_size 96
  .amdhsa_user_sgpr_count 2
  .amdhsa_user_sgpr_kernarg_segment_ptr 1
  .amdhsa_system_sgpr_workgroup_id_x 1
  .amdhsa_float_denorm_mode_32 3
.end_amdhsa_kernel"""


def build(kernels):
    out = list(HDR)
    for k in kernels:
        out.append(f"; @launch kernel={k['name']} grid=({k['grid']},1,1) block=({k['block']},1,1) lds={k['lds']}")
    out.append('.amdgcn_target "amdgcn-amd-amdhsa--gfx950"')
    out.append('.text')
    seen = set()
    for k in kernels:
        if k['name'] in seen:
            continue
        seen.add(k['name'])
        out.append(f".globl {k['name']}\n.p2align 8\n.type {k['name']},@function\n{k['name']}:")
        out.append(k['body'])
        out.append('')
    out.append('.section .rodata,"a"')
    seen = set()
    for k in kernels:
        if k['name'] in seen:
            continue
        seen.add(k['name'])
        out.append(kd(k['name'], k.get('vgpr', 512), k.get('accum', 256), k.get('sgpr', 102)))
    return '\n'.join(out) + '\n'


WS_STAMP = 0x8000000
class Stamps:
    on = False
    vreg = 14
    n = 0
    names = []
    kidx = 0


def stamp_begin(A, kidx, vreg):
    Stamps.n = 0; Stamps.kidx = kidx; Stamps.vreg = vreg
    Stamps.names.append([])
    if not Stamps.on:
        return
    A(f'v_mov_b32 v{vreg}, 0')
    A('s_memrealtime s[88:89]')
    A(f'v_writelane_b32 v{vreg}, s88, 62')
    stamp(A, 'start')


def stamp(A, name):
    if not Stamps.on:
        return
    A('s_memtime s[88:89]')
    A(f'v_writelane_b32 v{Stamps.vreg}, s88, {Stamps.n}')
    Stamps.names[-1].append(name)
    Stamps.n += 1


def stamp_end(A, again=False):
    if not Stamps.on:
        return
    A.wait_all()
    stamp(A, 'end')
    if again:
        Stamps.names[-1].pop(); Stamps.n -= 1
    A('s_memrealtime s[88:89]')
    A(f'v_writelane_b32 v{Stamps.vreg}, s88, 63')
    srd(A, 8, sWS, WS_SIZE)
    A(f'''s_lshl_b32 s88, s2, 2
    s_add_u32 s88, s88, s{sW}
    s_lshl_b32 s88, s88, 8
    s_add_u32 s88, s88, {WS_STAMP + Stamps.kidx * 0x80000}
    v_lshlrev_b32 v2, 2, v{vLANE}
    buffer_store_dword v{Stamps.vreg}, v2, s[8:11], s88 offen''')


SPIN_MAX = 400000
SLEEP = [0]


def backoff():
    return [f's_sleep {SLEEP[0]}'] if SLEEP[0] else []


def flag_base(A, sD, stage, sCls):
    A(f'''s_lshl_b32 s{sD}, s{sG}, 2
    s_add_u32 s{sD}, s{sD}, s{sCls}
    s_lshl_b32 s{sD}, s{sD}, {4 + FSC[0]}
    s_add_u32 s{sD}, s{sD}, {WS_FLAG + (stage*1024 << FSC[0])}''')


def publish(A, srdq, sOff, v0, val=1):
    A('s_waitcnt vmcnt(0)')
    A(f'v_mov_b32 v{v0}, {val}\nv_mov_b32 v{v0+1}, 0\ns_mov_b64 exec, 1')
    A(f'buffer_store_dword v{v0}, v{v0+1}, s[{srdq}:{srdq+3}], s{sOff} offen sc1')
    A('s_mov_b64 exec, -1')


def poll(A, srdq, sOff, v0, sCnt, val=1):
    lab = A.label('L_poll'); done = A.label('L_polled')
    A(f'v_and_b32 v{v0}, 15, v{vLANE}\nv_lshlrev_b32 v{v0}, {FSC[0]}, v{v0}\ns_mov_b32 s{sCnt}, 0')
    A.fence()
    A(lab + ':')
    for x in backoff():
        A(x)
    A(f'buffer_load_dword v{v0+1}, v{v0}, s[{srdq}:{srdq+3}], s{sOff} offen sc1')
    A(f's_add_u32 s{sCnt}, s{sCnt}, 1\ns_cmp_gt_u32 s{sCnt}, {SPIN_MAX}')
    A(f's_cbranch_scc1 {done}')
    A(f'v_cmp_gt_u32 vcc, {val}, v{v0+1}')
    A(f's_cbranch_vccnz {lab}')
    A(done + ':')
    A('s_waitcnt vmcnt(0)')


def code_prefetch(A, label, nbytes_expr, vOff, vDst, sq, ninstr, sBase=None):
    here = A.label('L_pc')
    A(f's_getpc_b64 s[{sq}:{sq+1}]')
    A(here + ':')
    A(f's_add_u32 s{sq}, s{sq}, {label}-{here}')
    A(f's_addc_u32 s{sq+1}, s{sq+1}, (({label}-{here})>>63)&0xffffffff' if False else f's_addc_u32 s{sq+1}, s{sq+1}, 0')
    A(f'v_lshlrev_b32 v{vOff}, 7, v{vLANE}')
    if sBase is not None:
        A(f'v_add_u32 v{vOff}, s{sBase}, v{vOff}')
    for i in range(ninstr):
        if i:
            A(f'v_add_u32 v{vOff}, 8192, v{vOff}')
        A(f'v_min_u32 v{vOff+1}, {nbytes_expr}, v{vOff}')
        A(f'global_load_dword v{vDst+i}, v{vOff+1}, s[{sq}:{sq+1}]')


sPC = 92


def itouch_setup(A, vLine):
    A('s_getpc_b64 s[92:93]')
    A('L_back_pc0:')
    A(f'v_lshlrev_b32 v{vLine}, 7, v{vLANE}')


def itouch(label, vLine, aDst):
    return [f's_add_u32 s94, s92, {label}-L_back_pc0', 's_addc_u32 s95, s93, 0',
            f'global_load_dword {aDst}, v{vLine}, s[94:95]']


def poll_begin(A, srdq, sOff, v0):
    A(f'v_and_b32 v{v0}, 15, v{vLANE}\nv_lshlrev_b32 v{v0}, {FSC[0]}, v{v0}')
    A(f'buffer_load_dword v{v0+1}, v{v0}, s[{srdq}:{srdq+3}], s{sOff} offen sc1')


def poll_end(A, srdq, sOff, v0, sCnt, val=1):
    ok = A.label('L_back_ok')
    slow = A.label('L_pslow'); again = A.label('L_pagain')
    A(f'v_cmp_gt_u32 vcc, {val}, v{v0+1}')
    A(f's_cbranch_vccnz {slow}')
    A(ok + ':')
    A.tail += [slow + ':', f's_mov_b32 s{sCnt}, 0', again + ':'] + backoff() + [
               f'buffer_load_dword v{v0+1}, v{v0}, s[{srdq}:{srdq+3}], s{sOff} offen sc1',
               f's_add_u32 s{sCnt}, s{sCnt}, 1', f's_cmp_gt_u32 s{sCnt}, {SPIN_MAX}', f's_cbranch_scc1 {ok}',
               's_waitcnt vmcnt(0)', f'v_cmp_gt_u32 vcc, {val}, v{v0+1}', 's_nop 1', f's_cbranch_vccnz {again}', f's_branch {ok}']


NT = ['', '', '', '']
```

```python
from common import *

A_WIMG = 0
A_HH = 138240
A_VT = A_HH + 18432
A_LDS = A_VT + 5120
A_KREC = 0
A_VREC = 13824

QLOC = [(0, 0), (0, 1), (0, 2), (0, 3), (1, 0)]
KLOC = [(1, 2), (1, 3), (2, 0), (1, 1), (2, 2)]
VLOC = [(3, 0), (2, 1), (3, 2), (2, 3), (3, 1)]

XB = 16
TAB = 160
CB = 178
TB = 196
HB = 204
vA = 224
vA3 = 227
vAH = 230
vHB = 233
vL16 = 234
vCT = 235
HT = 236
aACC = 0
aHACC = 64
aFR = 80
aHBF = 120
NWI = 34


def mod_table(A, vt, col_b, col_s, srdq=16, V=192):
    A(f'''v_lshlrev_b32 v8, 2, v{vTID}
    v_lshlrev_b32 v9, 2, v{vLANE}
    s_mov_b32 s96, {WS_MOD + 4*col_s}
    s_mov_b32 s97, {WS_MOD + 4*col_b}
    buffer_load_dword v{V}, v8, s[{srdq}:{srdq+3}], s96 offen sc1
    buffer_load_dword v{V+1}, v8, s[{srdq}:{srdq+3}], s96 offen offset:1024 sc1
    buffer_load_dword v{V+2}, v9, s[{srdq}:{srdq+3}], s96 offen offset:2048 sc1
    buffer_load_dword v{V+3}, v8, s[{srdq}:{srdq+3}], s97 offen sc1
    buffer_load_dword v{V+4}, v8, s[{srdq}:{srdq+3}], s97 offen offset:1024 sc1
    buffer_load_dword v{V+5}, v9, s[{srdq}:{srdq+3}], s97 offen offset:2048 sc1
    v_lshrrev_b32 v8, 3, v{vTID}
    v_lshlrev_b32 v8, 6, v8
    v_and_b32 v9, 7, v{vTID}
    v_lshl_add_u32 v8, v9, 2, v8
    v_add_u32 v8, {vt}, v8
    v_lshrrev_b32 v7, 3, v{vLANE}
    v_lshlrev_b32 v7, 6, v7
    v_lshl_add_u32 v9, v9, 2, v7
    v_add_u32 v9, {vt}, v9''')

    def write():
        A(f'''ds_write_b32 v8, v{V}
        ds_write_b32 v8, v{V+1} offset:2048
        ds_write_b32 v9, v{V+2} offset:4096
        ds_write_b32 v8, v{V+3} offset:32
        ds_write_b32 v8, v{V+4} offset:2080
        ds_write_b32 v9, v{V+5} offset:4128''')
    return write


def ph_a_main(A, early=None, late=None):
    A.comment('==== phase A ====')
    srd(A, 16, sWS, WS_SIZE)
    A(f'''v_lshlrev_b32 v{vL16}, 4, v{vLANE}
    s_lshl_b32 s40, s{sG}, 2
    s_add_u32 s40, s40, s{sW}
    s_mul_i32 s40, s40, 36864
    s_add_u32 s40, s40, {WS_XH}
    s_mul_i32 s41, s{sG}, {4*36864}
    s_add_u32 s41, s41, {WS_XH - 36864 + 256}
    s_cmp_eq_u32 s{sG}, 0
    s_cselect_b32 s41, {WS_XH + 256}, s41
    s_lshl_b32 s42, s{sW}, 11
    s_add_u32 s41, s41, s42
    v_lshrrev_b32 v4, 4, v{vLANE}
    v_and_b32 v5, 15, v{vLANE}
    v_lshlrev_b32 v6, 9, v4
    v_lshl_add_u32 v6, v5, 4, v6
    s_mul_i32 s42, s{sJ}, {WQ_J}
    s_lshl_b32 s43, s{sW}, 10
    s_add_u32 s42, s42, s43
    s_add_u32 s42, s42, {WS_WQ}''')
    xq = list(range(36))
    wq = list(range(NWI))
    marks = {}

    def xload():
        s = xq.pop(0)
        if s % 4 == 0:
            A(f's_add_u32 s3, s40, {4096*(s//4)}')
        A(f'buffer_load_dwordx4 v[{XB+4*s}:{XB+4*s+3}], v{vL16}, s[16:19], s3 offen offset:{1024*(s%4)}')

    def issue_w():
        i = wq.pop(0)
        if i == NWI - 1:
            A(f's_min_u32 s5, s{sW}, 2\ns_lshl_b32 s5, s5, 10\ns_sub_u32 s4, s42, s43\ns_add_u32 s4, s4, s5')
            A(f's_add_u32 m0, s5, {4096*i}\ns_add_u32 s4, s4, {4096*i}')
        else:
            A(f's_add_u32 m0, s43, {4096*i}\ns_add_u32 s4, s42, {4096*i}')
        A(f'buffer_load_dwordx4 v{vL16}, s[16:19], s4 offen lds')
        marks[i] = A.mark()

    def halo_load(i):
        if i < 4:
            A(f's_add_u32 s6, s41, {8192*i}')
        else:
            A(f's_min_u32 s4, s{sW}, 1\ns_sub_u32 s4, s4, s{sW}\ns_lshl_b32 s4, s4, 11')
            A(f's_add_u32 s6, s41, s4\ns_add_u32 s6, s6, {8192*4}')
        A(f'buffer_load_dwordx4 v[{HB+4*i}:{HB+4*i+3}], v6, s[16:19], s6 offen')

    A(f's_add_u32 m0, s43, {A_VT}\ns_add_u32 s4, s43, {WS_MOD}')
    A(f'buffer_load_dwordx4 v{vL16}, s[16:19], s4 offen lds')
    A(f's_mov_b32 m0, {A_VT + 4096}\ns_mov_b32 s4, {WS_MOD + 4096}')
    A(f'buffer_load_dwordx4 v{vL16}, s[16:19], s4 offen lds')
    mkt = A.mark()
    xload()
    for i in range(5):
        halo_load(i)
    for k in range(3):
        issue_w()
    mk0 = A.mark()
    for k in range(3):
        xload()
    for k in range(4):
        issue_w()
    if early:
        early()
    A(f'''v_lshrrev_b32 v7, 5, v{vLANE}
    v_and_b32 v10, 31, v{vLANE}
    v_min_u32 v11, 23, v10
    v_mul_u32_u24 v12, 24, v7
    v_add_u32 v11, v11, v12
    v_lshlrev_b32 v11, 4, v11
    v_add_u32 v11, 3072, v11
    v_add_u32 v12, s43, v{vL16}
    s_cmp_eq_u32 s{sW}, 3
    s_cselect_b64 vcc, -1, 0
    v_cndmask_b32 v12, v12, v11, vcc''')
    for wd in range(3):
        A(f'v_add_u32 v{vA+wd}, {61440*wd}, v{vL16}')
        A(f'v_add_u32 v{vA3+wd}, {61440*wd}, v11')
        A(f'v_add_u32 v{vAH+wd}, {61440*wd}, v12')
    A(f'''v_and_b32 v10, 15, v{vLANE}
    v_lshlrev_b32 v10, 4, v10
    v_lshl_add_u32 v10, v7, 8, v10
    v_add_u32 v{vHB}, {A_HH}, v10
    v_and_b32 v10, 7, v5
    v_lshlrev_b32 v10, 2, v10
    v_lshrrev_b32 v11, 3, v5
    v_lshl_add_u32 v8, v11, 6, v10
    v_lshl_add_u32 v8, v7, 5, v8
    v_add_u32 v8, {A_VT + 2304}, v8
    v_lshlrev_b32 v{vCT}, 5, v7
    v_add_u32 v{vCT}, {A_VT}, v{vCT}
    s_lshl_b32 s4, s{sW}, 7
    s_add_u32 s4, s4, {A_VT}
    v_lshlrev_b32 v9, 5, v4
    v_add_u32 v9, s4, v9
    v_add_u32 v10, v9, v10
    v_add_u32 v5, s43, v{vL16}
    v_add_u32 v5, {A_HH}, v5
    s_min_u32 s5, s{sW}, 1
    s_sub_u32 s5, s5, s{sW}
    s_lshl_b32 s6, s5, 7
    v_add_u32 v6, s6, v9
    v_add_u32 v11, s6, v10
    s_lshl_b32 s6, s5, 10
    v_add_u32 v7, s6, v5''')
    A.wait_vm_mark(mkt)
    A('s_barrier')
    stamp(A, 'table')

    def bread(s, z):
        c = CB + 8 * (s & 1) + 4 * z
        return f'ds_read_b128 v[{c}:{c+3}], v{vCT} offset:{64*s+16*z}'
    A(f'ds_read_b32 v{TAB}, v8')
    A(bread(0, 0)); A(bread(0, 1))
    HC = XB + 64
    for i in range(5):
        A(f'ds_read_b32 v{HT+i}, v{10 if i < 4 else 11} offset:{2304+512*i}')
        for z in range(2):
            A(f'ds_read_b128 v[{HC+8*i+4*z}:{HC+8*i+4*z+3}], v{9 if i < 4 else 6} offset:{512*i+16*z}')
    A(bread(1, 0)); A(bread(1, 1))
    for t in range(1, 18):
        A(f'ds_read_b32 v{TAB+t}, v8 offset:{128*t}')

    def norm_ops(r, tab, lane0, c):
        ops = []
        for d in range(4):
            ops.append(f'v_lshlrev_b32 v{TB+2*d}, 16, v{r+d}')
            ops.append(f'v_and_b32 v{TB+2*d+1}, s{sMASKHI}, v{r+d}')
        for e in range(8):
            ops.append(f'v_fmac_f32_dpp v{c+e}, v{tab}, v{TB+e} row_newbcast:{lane0+e} row_mask:0xf bank_mask:0xf')
        for d in range(4):
            ops.append(f'v_cvt_pk_bf16_f32 v{r+d}, v{c+2*d}, v{c+2*d+1}')
        return ops

    def norm_main(s):
        return norm_ops(XB + 4 * s, TAB + s // 2, 8 * (s & 1), CB + 8 * (s & 1))
    for x in norm_main(0):
        A(x)
    for i in range(5):
        for x in norm_ops(HB + 4 * i, HT + i, 0, HC + 8 * i):
            A(x)
        A(f'ds_write_b128 v{5 if i < 4 else 7}, v[{HB+4*i}:{HB+4*i+3}] offset:{4096*i}')
        if i < 2:
            issue_w()
        else:
            xload()

    def aread(m):
        s, T = divmod(m, 5)
        f = aFR + 4 * (m % 10)
        wd, sl = divmod(s, 16)
        if T < 3:
            return f'ds_read_b128 a[{f}:{f+3}], v{vA+wd} offset:{3840*sl+1024*T}'
        return f'ds_read_b128 a[{f}:{f+3}], v{(vA3 if T == 3 else vAH)+wd} offset:{3840*sl}'

    def hread(s):
        f = aHBF + 4 * (s & 1)
        return f'ds_read_b128 a[{f}:{f+3}], v{vHB} offset:{512*s}'

    BS = (0, 3, 6, 10, 14, 18, 22, 26, 30, 33, 36)
    NEED = {BS[q]: (3840 * BS[q + 1] - 1) // 4096 for q in range(len(BS) - 1)}

    def boundary(s):
        A.wait_vm_mark(mk0 if s == 0 else marks[NEED[s]])
        if s == 0:
            A.wait_all(vm=False)
        A('s_barrier')
    boundary(0)
    stamp(A, 'first data')
    for m in range(5):
        A(aread(m))
    A(hread(0))
    for s in range(36):
        nops = norm_main(s + 1) if s + 1 < 36 else []
        for T in range(5):
            m = 5 * s + T
            f = aFR + 4 * (m % 10)
            if T < 4:
                acc = aACC + 16 * T
                b = f'v[{XB+4*s}:{XB+4*s+3}]'
            else:
                acc = aHACC
                b = f'a[{aHBF+4*(s&1)}:{aHBF+4*(s&1)+3}]'
            cin = '0' if s == 0 else f'a[{acc}:{acc+15}]'
            if T in (0, 2):
                regs = rl('a', f, 4) + rl('a', aFR + 4 * ((m + 1) % 10), 4)
                if T == 2:
                    regs += rl('a', aFR + 4 * ((m + 2) % 10), 4) + rl('a', aHBF + 4 * (s & 1), 4)
                A.wait_regs(regs)
            A(f'v_mfma_f32_32x32x16_bf16 a[{acc}:{acc+15}], a[{f}:{f+3}], {b}, {cin}')
            if m + 5 < 180:
                if T == 0 and s + 1 in NEED:
                    boundary(s + 1)
                A(aread(m + 5))
            if T == 0 and s + 1 < 36:
                A(hread(s + 1))
            if T in (1, 2) and s + 2 < 36:
                A(bread(s + 2, T - 1))
            for x in nops[(0, 4, 8, 12, 16)[T]:(4, 8, 12, 16, 20)[T]]:
                A(x)
            if T == 0 and xq:
                xload()
            if T == 3 and wq:
                issue_w()
            if late and T == 3 and s == 30:
                late()


def ph_a_attn(A, bg=()):
    bg = list(bg)

    def idle(n=1):
        for _ in range(n):
            if bg:
                A(bg.pop(0))

    stamp(A, 'gemm done')
    Q, KO, TM, KN, VN, OA, L = 16, 28, 40, 60, 144, 224, 244
    vK, vV, vO, vKh, vVh, vTok = 252, 253, 9, 10, 2, 3
    A(f'''v_lshrrev_b32 v4, 5, v{vLANE}
    v_and_b32 v5, 31, v{vLANE}
    v_mul_u32_u24 v6, 144, v4
    v_add_u32 v6, v6, v5
    v_mul_u32_u24 v{vKh}, 48, v6
    v_mul_u32_u24 v{vVh}, 80, v6
    v_add_u32 v{vVh}, {A_VREC}, v{vVh}
    s_mul_i32 s96, s{sW}, {32*48}
    s_add_u32 s96, s96, 96
    v_add_u32 v{vK}, s96, v{vKh}
    s_mul_i32 s96, s{sW}, {32*80}
    s_add_u32 s96, s96, 160
    v_add_u32 v{vV}, s96, v{vVh}
    s_lshl_b32 s96, s{sG}, 2
    s_add_u32 s96, s96, s{sW}
    s_lshl_b32 s96, s96, 5
    v_add_u32 v{vTok}, s96, v5''')
    for m in range(5):
        T, i = KLOC[m]
        for jj in range(4):
            A(f'v_accvgpr_read_b32 v{TM+4*m+jj}, a{aACC+16*T+4*i+jj}')
    for d in range(10):
        A(f'v_cvt_pk_bf16_f32 v{KO+d}, v{TM+2*d}, v{TM+2*d+1}')
    A(f'v_mov_b32 v{KO+10}, 0\nv_mov_b32 v{KO+11}, 0')
    A('s_barrier')
    for z in range(3):
        A(f'ds_write_b128 v{vK}, v[{KO+4*z}:{KO+4*z+3}] offset:{14*48+16*z}')
    for m in range(5):
        T, i = VLOC[m]
        r = aACC + 16 * T + 4 * i
        A(f'ds_write_b128 v{vV}, a[{r}:{r+3}] offset:{14*80+16*m}')
    idle(3)
    for w in (1, 2, 3):
        A(f's_cmp_lg_u32 s{sW}, {w}')
        ctx = A.begin_skip('s_cbranch_scc1 {}')
        A('s_mov_b32 exec_lo, 0xffff\ns_mov_b32 exec_hi, 0xffff')
        for m in range(5):
            T, i = KLOC[m]
            if T == w:
                for jj in range(4):
                    A(f'v_accvgpr_read_b32 v{TM+jj}, a{aHACC+4*i+jj}')
                A(f'v_cvt_pk_bf16_f32 v{KN+2*m}, v{TM}, v{TM+1}\nv_cvt_pk_bf16_f32 v{KN+2*m+1}, v{TM+2}, v{TM+3}')
                A(f'ds_write_b64 v{vKh}, v[{KN+2*m}:{KN+2*m+1}] offset:{8*m}')
            T, i = VLOC[m]
            if T == w:
                A(f'ds_write_b128 v{vVh}, a[{aHACC+4*i}:{aHACC+4*i+3}] offset:{16*m}')
        A('s_mov_b64 exec, -1')
        A.end_skip_lds(ctx)
    for m in range(5):
        T, i = QLOC[m]
        for jj in range(4):
            A(f'v_accvgpr_read_b32 v{TM+4*m+jj}, a{aACC+16*T+4*i+jj}')
    for e in (0, 1):
        A(f'v_cndmask_b32 v{TM+e}, v{TM+e}, 0, s[{sHALF}:{sHALF+1}]')
        A(f'v_cndmask_b32 v{TM+18+e}, 0, v{TM+18+e}, s[{sHALF}:{sHALF+1}]')
    for d in range(10):
        A(f'v_cvt_pk_bf16_f32 v{Q+d}, v{TM+2*d}, v{TM+2*d+1}')
    for m in range(5):
        T, i = VLOC[m]
        for jj in range(4):
            A(f'v_accvgpr_read_b32 v{OA+4*m+jj}, a{aACC+16*T+4*i+jj}')
    idle(3)
    A.wait_all(vm=False)
    A('s_barrier')
    for w in range(1, 8):
        for z in range(3):
            r = KN + 12 * (w - 1) + 4 * z
            A(f'ds_read_b128 v[{r}:{r+3}], v{vK} offset:{(14-2*w)*48+16*z}')

    def vread(w, base):
        for z in range(5):
            A(f'ds_read_b128 v[{base+4*z}:{base+4*z+3}], v{vV} offset:{(14-2*w)*80+16*z}')
    vb = {w: VN + 20 * (w - 1) for w in range(1, 5)}
    vb.update({w: KN + 20 * (w - 5) for w in range(5, 8)})
    for ws in ((0, 1, 2, 3), (4, 5, 6, 7)):
        for d in range(10):
            for w in ws:
                k = (KO if w == 0 else KN + 12 * (w - 1)) + d
                c = '0' if d == 0 else f'v{L+w}'
                A(f'v_dot2_f32_bf16 v{L+w}, v{Q+d}, v{k}, {c}')
            if d % 3 == 0:
                idle()
        if ws[0] == 0:
            for w in range(1, 5):
                vread(w, vb[w])
    for w in range(5, 8):
        vread(w, vb[w])
    A(f's_mov_b32 s96, {fbits(18 ** -0.5 * LOG2E)}')
    A(f's_mov_b32 s97, {fbits(-1e9)}')
    for w in range(8):
        A(f'v_mul_f32 v{L+w}, s96, v{L+w}')
    A(f's_or_b32 s98, s{sG}, s{sW}\ns_cmp_lg_u32 s98, 0')
    ctx = A.begin_skip('s_cbranch_scc1 {}')
    A(f'v_mov_b32 v4, s97')
    for w in range(1, 8):
        A(f'v_cmp_le_u32 vcc, {2*w}, v{vTok}')
        A(f'v_cndmask_b32 v{L+w}, v4, v{L+w}, vcc')
    A.end_skip(ctx)
    A(f'''v_max3_f32 v4, v{L}, v{L+1}, v{L+2}
    v_max3_f32 v5, v{L+3}, v{L+4}, v{L+5}
    v_max3_f32 v4, v4, v{L+6}, v{L+7}
    v_max_f32 v4, v4, v5''')
    for w in range(8):
        A(f'v_sub_f32 v{L+w}, v{L+w}, v4')
    for w in range(8):
        A(f'v_exp_f32 v{L+w}, v{L+w}')
    A(f'''v_add_f32 v4, v{L}, v{L+1}
    v_add_f32 v5, v{L+2}, v{L+3}
    v_add_f32 v6, v{L+4}, v{L+5}
    v_add_f32 v7, v{L+6}, v{L+7}
    v_add_f32 v4, v4, v5
    v_add_f32 v6, v6, v7
    v_add_f32 v4, v4, v6
    v_rcp_f32 v4, v4''')
    for w in range(8):
        A(f'v_mul_f32 v{L+w}, v{L+w}, v4')
    idle(3)
    for w in range(8):
        idle()
        lp = L + (w & ~1)
        for d in range(10):
            o = OA + 2 * d
            if w == 0:
                A(f'v_pk_mul_f32 v[{o}:{o+1}], v[{o}:{o+1}], v[{lp}:{lp+1}] op_sel_hi:[1,0]')
            else:
                m = 'op_sel_hi:[1,0,1]' if w % 2 == 0 else 'op_sel:[0,1,0] op_sel_hi:[1,1,1]'
                v = vb[w] + 2 * d
                A(f'v_pk_fma_f32 v[{o}:{o+1}], v[{v}:{v+1}], v[{lp}:{lp+1}], v[{o}:{o+1}] {m}')
    for d in range(10):
        A(f'v_cvt_pk_bf16_f32 v{TM+d}, v{OA+2*d}, v{OA+2*d+1}')
    idle(100)
    OUT, E = 16, 24
    for d in range(9):
        A(f'v_cndmask_b32 v{OUT+d}, v{TM+d}, v{TM+d+1}, s[{sHALF}:{sHALF+1}]')
    A(f'''v_mov_b32 v{E+1}, v{E}
    v_mov_b32 v{E+2}, 0
    v_mov_b32 v{E+3}, 0
    v_permlane32_swap_b32 v{E}, v{E+1}''')
    A(f'''v_bfe_u32 v4, v{vLANE}, 4, 1
    v_mul_u32_u24 v4, 20480, v4
    v_and_b32 v5, 15, v{vLANE}
    v_lshl_add_u32 v4, v5, 4, v4
    v_lshrrev_b32 v5, 5, v{vLANE}
    v_lshl_add_u32 v{vO}, v5, 9, v4
    s_mul_i32 s96, s{sG}, {O_G}
    s_mul_i32 s97, s{sW}, 40960
    s_add_u32 s96, s96, s97
    s_mul_i32 s97, s{sJ}, 1280
    s_add_u32 s96, s96, s97
    s_add_u32 s96, s96, {WS_O}
    buffer_store_dwordx4 v[{OUT}:{OUT+3}], v{vO}, s[16:19], s96 offen sc1
    buffer_store_dwordx4 v[{OUT+4}:{OUT+7}], v{vO}, s[16:19], s96 offen offset:256 sc1
    s_mov_b32 exec_hi, 0
    buffer_store_dwordx4 v[{E}:{E+3}], v{vO}, s[16:19], s96 offen offset:1024 sc1
    s_mov_b32 exec_hi, -1''')


def ph_a(A):
    ph_a_main(A)
    ph_a_attn(A)
```

```python
from common import *

B_IMG = 61440
B_LDS = B_IMG + WO_C


def ph_b_dma(A, srdq=16):
    A.comment('==== phase B: wo image ====')
    A(f'''s_and_b32 s40, s{sJ}, 7
    s_mul_i32 s40, s40, {WO_C}
    s_mul_i32 s41, s{sW}, 25600
    s_add_u32 s40, s40, s41
    s_add_u32 s40, s40, {WS_WO}
    s_add_u32 s41, s41, {B_IMG}
    v_lshlrev_b32 v8, 4, v{vLANE}''')
    r = []
    for i in range(25):
        pre = f's_add_u32 m0, s41, {1024*i}\ns_add_u32 s42, s40, {1024*i}\n' if i % 4 == 0 else ''
        r.append(pre + f'buffer_load_dwordx4 v8, s[{srdq}:{srdq+3}], s42 offen offset:{1024*(i%4)} lds')
    return r


OB, XR, GA, SC, SH, ACC, TM = 16, 96, 108, 128, 148, 168, 188
PK = 240
vL16, vX1, vST, vA, vVEC = 238, 239, 252, 253, 12
B_VEC = 49152
sgX = 28


def ph_b_pre(A):
    A(f'''s_lshr_b32 s3, s{sJ}, 3
    s_and_b32 s4, s{sJ}, 7
    v_lshlrev_b32 v{vL16}, 4, v{vLANE}
    s_lshl_b32 s5, s3, 2
    s_add_u32 s5, s5, s{sW}
    s_mul_i32 s6, s5, 20480
    s_mul_i32 s7, s{sG}, {O_G}
    s_add_u32 s6, s6, s7
    s_add_u32 s6, s6, {WS_O}
    v_and_b32 v4, 15, v{vLANE}
    v_lshrrev_b32 v5, 4, v{vLANE}
    v_and_b32 v8, 1, v5
    v_lshlrev_b32 v8, 1, v8
    v_lshrrev_b32 v9, 1, v5
    v_or_b32 v8, v8, v9
    v_lshlrev_b32 v8, 8, v8
    v_lshl_add_u32 v{vX1}, v4, 4, v8
    v_lshlrev_b32 v{vST}, 4, v4
    s_lshl_b32 s39, s{sG}, 3
    s_add_u32 s39, s39, s5
    s_mul_i32 s96, s39, {T16}
    s_mul_i32 s97, s4, 2304
    s_add_u32 s96, s96, s97
    s_add_u32 s7, s96, {WS_XT}
    s_add_u32 s96, s96, {WS_X1}
    v_mul_u32_u24 v6, 57, v{vLANE}
    v_lshrrev_b32 v6, 10, v6
    v_mul_u32_u24 v6, {2304-288}, v6
    v_add_u32 v6, v6, v{vL16}
    s_mul_i32 s38, s4, 288
    s_add_u32 s38, s38, {WS_MOD + 4*1152}
    s_mov_b32 m0, {B_VEC}
    s_mov_b32 exec_hi, 0x3fffff
    buffer_load_dwordx4 v6, s[16:19], s38 offen lds
    s_mov_b32 exec_hi, -1''')
    mk = A.mark()
    for z in range(3):
        A(f'buffer_load_dwordx4 v[{XR+4*z}:{XR+4*z+3}], v{vX1}, s[16:19], s7 offen offset:{1024*z}')
    A(f'''v_add_u32 v{vA}, {B_IMG}, v{vL16}
    v_lshlrev_b32 v{vVEC}, 4, v5
    v_add_u32 v{vVEC}, {B_VEC}, v{vVEC}
    s_lshl_b32 s97, s39, 11
    s_add_u32 s97, s97, {WS_ST}
    s_lshl_b32 s98, s4, 8
    s_add_u32 s98, s98, s97''')
    return mk


def ph_b_vec(A):
    for base, off in ((GA, 0), (SH, 288), (SC, 576)):
        for T in range(5):
            A(f'ds_read_b128 v[{base+4*T}:{base+4*T+3}], v{vVEC} offset:{off+64*T}')
    for bb in (0, 4, 8):
        A(f'v_permlane16_swap_b32 v{XR+bb}, v{XR+bb+2}')
        A(f'v_permlane16_swap_b32 v{XR+bb+1}, v{XR+bb+3}')
    A(f's_mov_b32 s99, {fbits(-LOG2E)}')
    for e in range(20):
        A(f'v_mul_f32 v{SH+e}, s99, v{SH+e}')


NPRE = 56


def ph_b_pre_frags(A):
    for m in range(NPRE):
        A(f'ds_read_b128 a[{32+4*m}:{32+4*m+3}], v{vA} offset:{m*1024}')


def ph_b_main(A, before_stat=None, after_stat=None):
    A.comment('==== phase B ====')
    aFR = 0
    for k in range(20):
        A(f'buffer_load_dwordx4 v[{OB+4*k}:{OB+4*k+3}], v{vL16}, s[16:19], s6 offen offset:{1024*(k%4)} sc1')
        if k % 4 == 3 and k < 19:
            A('s_add_u32 s6, s6, 4096')
    NB = 8

    def freg(m):
        return 32 + 4 * m if m < NPRE else aFR + 4 * ((m - NPRE) % NB)

    def read(m):
        f = freg(m)
        if m == 60:
            A(f'v_add_u32 v{vA}, 61440, v{vA}')
        return f'ds_read_b128 a[{f}:{f+3}], v{vA} offset:{(m % 60)*1024}'
    nxt = NPRE
    while nxt < NPRE + NB:
        A(read(nxt)); nxt += 1
    for m in range(100):
        k, T = divmod(m, 5)
        f = freg(m)
        acc = ACC + 4 * T
        cin = '0' if k == 0 else f'v[{acc}:{acc+3}]'
        if m >= NPRE and (m - NPRE) % 2 == 0:
            A.wait_regs(rl('a', f, 4) + rl('a', freg(min(m + 1, 99)), 4))
        A(f'v_mfma_f32_16x16x32_bf16 v[{acc}:{acc+3}], a[{f}:{f+3}], v[{OB+4*k}:{OB+4*k+3}], {cin}')
        if m >= NPRE and nxt < 100:
            A(read(nxt)); nxt += 1
        if m < 10:
            unpack(A, TM + 2 * m, TM + 2 * m + 1, XR + m)
    stamp(A, 'gemm done')
    for u in range(10):
        t = TM + 2 * u
        A(f'v_pk_fma_f32 v[{t}:{t+1}], v[{ACC+2*u}:{ACC+2*u+1}], v[{GA+2*u}:{GA+2*u+1}], v[{t}:{t+1}]')
    for u in range(10):
        A(f'v_cvt_pk_bf16_f32 v{PK+u}, v{TM+2*u}, v{TM+2*u+1}')
    for u in range(10):
        unpack(A, TM + 2 * u, TM + 2 * u + 1, PK + u)
    a, b = 8, 40

    def allsum(r, t):
        A(f'''v_mov_b32 v{t}, v{r}
        v_permlane16_swap_b32 v{r}, v{t}
        v_add_f32 v{r}, v{r}, v{t}
        v_mov_b32 v{t}, v{r}
        v_permlane32_swap_b32 v{r}, v{t}
        v_add_f32 v{r}, v{r}, v{t}''')
    A(f'v_pk_add_f32 v[{a}:{a+1}], v[{TM}:{TM+1}], v[{TM+2}:{TM+3}]')
    for u in range(2, 10):
        if u == 8:
            A('s_mov_b32 exec_hi, 0')
        A(f'v_pk_add_f32 v[{a}:{a+1}], v[{a}:{a+1}], v[{TM+2*u}:{TM+2*u+1}]')
    A('s_mov_b32 exec_hi, -1')
    A(f'v_add_f32 v{a}, v{a}, v{a+1}')
    allsum(a, a + 1)
    A(f's_mov_b32 s99, {fbits(1.0/72)}\nv_mul_f32 v{a}, s99, v{a}')
    DV = ACC
    for u in range(10):
        A(f'v_pk_add_f32 v[{DV+2*u}:{DV+2*u+1}], v[{TM+2*u}:{TM+2*u+1}], v[{a}:{a+1}] op_sel_hi:[1,0] neg_lo:[0,1] neg_hi:[0,1]')
    A(f'v_pk_mul_f32 v[{b}:{b+1}], v[{DV}:{DV+1}], v[{DV}:{DV+1}]')
    for u in range(1, 10):
        if u == 8:
            A('s_mov_b32 exec_hi, 0')
        t = DV + 2 * u
        A(f'v_pk_fma_f32 v[{b}:{b+1}], v[{t}:{t+1}], v[{t}:{t+1}], v[{b}:{b+1}]')
    A('s_mov_b32 exec_hi, -1')
    A(f'v_add_f32 v{b}, v{b}, v{b+1}')
    allsum(b, b + 1)
    A(f'v_mov_b32 v{a+1}, v{b}\nv_mov_b32 v{a+2}, 1\nv_mov_b32 v{a+3}, 0')
    A('s_mov_b64 exec, 0xffff')
    A(f'buffer_store_dwordx4 v[{a}:{a+3}], v{vST}, s[16:19], s98 offen sc1')
    A('s_mov_b64 exec, -1')

    def swap_store(P, sOff):
        A(f'v_mov_b32 v{P+10}, v{P+8}\nv_mov_b32 v{P+11}, v{P+9}')
        for bb in (0, 4, 8):
            A(f'v_permlane16_swap_b32 v{P+bb}, v{P+bb+2}')
            A(f'v_permlane16_swap_b32 v{P+bb+1}, v{P+bb+3}')
        A(f'buffer_store_dwordx4 v[{P}:{P+3}], v{vX1}, s[16:19], s{sOff} offen sc1')
        A(f'buffer_store_dwordx4 v[{P+4}:{P+7}], v{vX1}, s[16:19], s{sOff} offen offset:1024 sc1')
        A('s_mov_b64 exec, 0xffff')
        A(f'buffer_store_dwordx4 v[{P+8}:{P+11}], v{vX1}, s[16:19], s{sOff} offen offset:2048 sc1')
        A('s_mov_b64 exec, -1')
    G0, G1 = 32, 36
    ok, slow, again = A.label('L_back_st'), A.label('L_stslow'), A.label('L_stagain')
    lds = [f'buffer_load_dwordx4 v[{G0}:{G0+3}], v{vL16}, s[16:19], s97 offen sc1',
           f'buffer_load_dwordx4 v[{G1}:{G1+3}], v{vL16}, s[16:19], s97 offen offset:1024 sc1']
    if before_stat:
        before_stat()
    for x in lds:
        A(x)
    if after_stat:
        after_stat()
    chk = [f'v_and_b32 v4, v{G0+2}, v{G1+2}', 'v_cmp_eq_u32 vcc, 0, v4']
    for x in chk:
        A(x)
    A(f's_cbranch_vccnz {slow}')
    A(ok + ':')
    A.tail += [slow + ':', 's_mov_b32 s100, 0', again + ':'] + backoff() + lds + \
        ['s_add_u32 s100, s100, 1', f's_cmp_gt_u32 s100, {SPIN_MAX}', f's_cbranch_scc1 {ok}', 's_waitcnt vmcnt(0)'] + chk + \
        ['s_nop 1', f's_cbranch_vccnz {again}', f's_branch {ok}']
    stamp(A, 'stats in')
    swap_store(PK, 96)
    A(f'v_add_f32 v{a}, v{G0}, v{G1}')
    allsum(a, a + 1)
    A(f'''v_mul_f32 v{a}, {fbits(0.125)}, v{a}
    v_sub_f32 v{G0}, v{G0}, v{a}
    v_sub_f32 v{G1}, v{G1}, v{a}
    v_mul_f32 v{G0}, v{G0}, v{G0}
    v_fmac_f32 v{G0}, v{G1}, v{G1}
    v_add_f32 v{b}, v{G0+1}, v{G1+1}
    s_mov_b32 s99, {fbits(72.0)}
    v_fmac_f32 v{b}, s99, v{G0}''')
    allsum(b, b + 1)
    A(f'''s_mov_b32 s99, {fbits(1.0/576)}
    v_mov_b32 v{b+1}, {fbits(1e-5)}
    v_fmac_f32 v{b+1}, s99, v{b}
    v_rsq_f32 v{b}, v{b+1}''')
    for u in range(10):
        t = TM + 2 * u
        A(f'v_pk_add_f32 v[{t}:{t+1}], v[{t}:{t+1}], v[{a}:{a+1}] op_sel_hi:[1,0] neg_lo:[0,1] neg_hi:[0,1]')
    A(f's_mov_b32 s99, {fbits(-LOG2E)}\nv_mul_f32 v{b}, s99, v{b}')
    for u in range(10):
        t = TM + 2 * u
        A(f'v_pk_mul_f32 v[{t}:{t+1}], v[{t}:{t+1}], v[{b}:{b+1}] op_sel_hi:[1,0]')
    for u in range(10):
        t = TM + 2 * u
        A(f'v_pk_fma_f32 v[{t}:{t+1}], v[{t}:{t+1}], v[{SC+2*u}:{SC+2*u+1}], v[{SH+2*u}:{SH+2*u+1}]')
    P2 = OB
    for u in range(10):
        A(f'v_cvt_pk_bf16_f32 v{P2+u}, v{TM+2*u}, v{TM+2*u+1}')
    A(f's_add_u32 s96, s96, {WS_H2 - WS_X1}')
    swap_store(P2, 96)


def ph_b(A):
    srd(A, 16, sWS, WS_SIZE)
    for x in ph_b_dma(A):
        A(x)
    ph_b_pre(A)
    A.wait_all()
    A('s_barrier')
    ph_b_vec(A)
    ph_b_pre_frags(A)
    stamp(A, 'img landed')
    ph_b_main(A)
```

```python
from common import *
from ph_small import ph_mod
from ph_a import mod_table

PT = [(0, 1, 2, 3), (4, 13, 10, 11), (12, 21, 14, 23), (20, 24, 22, 22)]
N_MOD, N_XH, N_WQ, N_WO = 108, 64, 144, 40
N_PREP = N_MOD + N_XH + N_WQ + N_WO
PREP_LDS = 4 * 9216


def task_xhat(A, sI):
    A.comment('---- prep: xhat')
    X, T, P = 16, 56, 136
    srd(A, 8, sX, S * D * 2)
    srd(A, 16, sWS, WS_SIZE)
    A(f'''v_lshrrev_b32 v4, 3, v{vLANE}
    v_and_b32 v5, 7, v{vLANE}
    v_mul_u32_u24 v2, 1152, v4
    v_lshl_add_u32 v2, v5, 4, v2
    s_lshl_b32 s40, s{sI}, 2
    s_add_u32 s40, s40, s{sW}
    s_mul_i32 s41, s40, {8*1152}''')
    for n in range(9):
        A(f'buffer_load_dwordx4 v[{X+4*n}:{X+4*n+3}], v2, s[8:11], s41 offen offset:{128*n}')
    A(f'''s_mul_i32 s42, s{sW}, 9216
    v_xor_b32 v6, v4, v5
    v_lshlrev_b32 v6, 4, v6
    v_add_u32 v6, s42, v6
    v_lshl_add_u32 v7, v4, 7, v6
    v_lshl_add_u32 v6, v5, 7, v6
    v_lshlrev_b32 v3, 9, v4
    v_lshl_add_u32 v3, v5, 4, v3
    s_mul_i32 s43, s{sI}, 36864
    s_lshl_b32 s44, s{sW}, 7
    s_add_u32 s43, s43, s44
    s_add_u32 s43, s43, {WS_XH}''')
    A(f'''s_lshr_b32 s46, s40, 1
    s_mul_i32 s46, s46, {T16}
    s_and_b32 s47, s{sW}, 1
    s_lshl_b32 s47, s47, 7
    s_add_u32 s46, s46, s47
    s_add_u32 s46, s46, {WS_XT}
    v_lshlrev_b32 v15, 8, v4
    v_lshl_add_u32 v15, v5, 4, v15''')
    for n in range(9):
        A(f'ds_write_b128 v6, v[{X+4*n}:{X+4*n+3}] offset:{1024*n}')
        for d in range(4):
            unpack(A, T + 8 * n + 2 * d, T + 8 * n + 2 * d + 1, X + 4 * n + d)
    for n in range(9):
        A(f'ds_read_b128 v[{X+4*n}:{X+4*n+3}], v7 offset:{1024*n}')
    a, q = 8, 10

    def sum8(r):
        A(f'v_add_f32_dpp v{r}, v{r}, v{r} quad_perm:[1,0,3,2] row_mask:0xf bank_mask:0xf')
        A(f'v_add_f32_dpp v{r}, v{r}, v{r} quad_perm:[2,3,0,1] row_mask:0xf bank_mask:0xf')
        A(f'v_add_f32_dpp v{r}, v{r}, v{r} row_half_mirror row_mask:0xf bank_mask:0xf')
    A(f'v_pk_add_f32 v[{a}:{a+1}], v[{T}:{T+1}], v[{T+2}:{T+3}]')
    A(f'v_pk_add_f32 v[{q}:{q+1}], v[{T+4}:{T+5}], v[{T+6}:{T+7}]')
    for u in range(4, 36):
        r = a if u & 1 else q
        A(f'v_pk_add_f32 v[{r}:{r+1}], v[{r}:{r+1}], v[{T+2*u}:{T+2*u+1}]')
    A(f'v_pk_add_f32 v[{a}:{a+1}], v[{a}:{a+1}], v[{q}:{q+1}]')
    A(f'v_add_f32 v{a}, v{a}, v{a+1}')
    sum8(a)
    for n in range(9):
        A(f'buffer_store_dwordx4 v[{X+4*n}:{X+4*n+3}], v15, s[16:19], s46 offen offset:{2048*(n&1)}')
        if n & 1:
            A('s_add_u32 s46, s46, 4096')
    A(f's_mov_b32 s45, {fbits(1.0/576)}\nv_mul_f32 v{a}, s45, v{a}')
    for u in range(36):
        t = T + 2 * u
        A(f'v_pk_add_f32 v[{t}:{t+1}], v[{t}:{t+1}], v[{a}:{a+1}] op_sel_hi:[1,0] neg_lo:[0,1] neg_hi:[0,1]')
    b = 12
    A(f'v_pk_mul_f32 v[{q}:{q+1}], v[{T}:{T+1}], v[{T}:{T+1}]')
    A(f'v_pk_mul_f32 v[{b}:{b+1}], v[{T+2}:{T+3}], v[{T+2}:{T+3}]')
    for u in range(2, 36):
        r = b if u & 1 else q
        t = T + 2 * u
        A(f'v_pk_fma_f32 v[{r}:{r+1}], v[{t}:{t+1}], v[{t}:{t+1}], v[{r}:{r+1}]')
    A(f'v_pk_add_f32 v[{q}:{q+1}], v[{q}:{q+1}], v[{b}:{b+1}]')
    A(f'v_add_f32 v{q}, v{q}, v{q+1}')
    sum8(q)
    A(f'''v_mov_b32 v{q+1}, {fbits(1e-5)}
    v_fmac_f32 v{q+1}, s45, v{q}
    v_rsq_f32 v{a}, v{q+1}''')
    for n in range(9):
        for d in range(4):
            t = T + 8 * n + 2 * d
            A(f'v_pk_mul_f32 v[{t}:{t+1}], v[{t}:{t+1}], v[{a}:{a+1}] op_sel_hi:[1,0]')
        for d in range(4):
            t = T + 8 * n + 2 * d
            A(f'v_cvt_pk_bf16_f32 v{X+4*n+d}, v{t}, v{t+1}')
        A(f'ds_write_b128 v6, v[{X+4*n}:{X+4*n+3}] offset:{1024*n}')
    for n in range(9):
        A(f'ds_read_b128 v[{X+4*n}:{X+4*n+3}], v7 offset:{1024*n}')
    for n in range(9):
        A(f'buffer_store_dwordx4 v[{X+4*n}:{X+4*n+3}], v3, s[16:19], s43 offen')
        if n < 8:
            A('s_add_u32 s43, s43, 4096')


def task_wq(A, sI):
    A.comment('---- prep: qkv weight tiles')
    srd(A, 12, sWQKV, 576 * 3456)
    srd(A, 16, sWS, WS_SIZE)
    A(f'''v_mul_u32_u24 v4, 69, v{vLANE}
    v_lshrrev_b32 v4, 10, v4
    v_mul_u32_u24 v5, 15, v4
    v_sub_u32 v5, v{vLANE}, v5
    v_mul_u32_u24 v6, 13, v5
    v_lshrrev_b32 v6, 6, v6
    v_mul_u32_u24 v7, 5, v6
    v_sub_u32 v7, v5, v7
    v_mul_u32_u24 v4, 3456, v4
    v_mul_u32_u24 v6, 1152, v6
    v_add_u32 v4, v4, v6
    v_lshl_add_u32 v2, v7, 4, v4
    s_lshr_b32 s40, s{sI}, 2
    s_and_b32 s41, s{sI}, 3
    s_lshl_b32 s41, s41, 2
    s_add_u32 s41, s41, s{sW}
    s_mul_i32 s42, s41, 72
    s_and_b32 s42, s42, 0xfffffff0
    s_mul_i32 s43, s40, {16*3456}
    s_add_u32 s42, s42, s43
    s_mul_i32 s44, s{sW}, 3840
    s_mov_b32 exec_hi, 0x0fffffff''')
    for i in range(4):
        A(f's_add_u32 m0, s44, {960*i}')
        A(f's_add_u32 s45, s42, {4*3456*i}')
        A('buffer_load_dwordx4 v2, s[12:15], s45 offen lds')
    A('s_mov_b32 exec_hi, -1')
    wq_extra(A, sI)
    A(f'''v_lshrrev_b32 v4, 5, v{vLANE}
    v_bfe_u32 v5, v{vLANE}, 2, 2
    v_and_b32 v6, 3, v{vLANE}
    v_bfe_u32 v7, v{vLANE}, 4, 1
    v_lshlrev_b32 v7, 1, v7
    v_lshrrev_b32 v9, 1, v6
    v_add_u32 v7, v7, v9
    v_lshlrev_b32 v7, 3, v7
    v_and_b32 v8, 1, v6
    v_lshlrev_b32 v8, 2, v8
    s_and_b32 s50, s41, 1
    v_add_u32 v8, s50, v8
    v_lshl_add_u32 v9, v4, 3, v5
    v_mul_u32_u24 v9, 240, v9
    v_add_u32 v9, s44, v9''')
    packs = [t[0] | t[1] << 8 | t[2] << 16 | t[3] << 24 for t in PT]
    for T in range(4):
        A(f'''s_mov_b32 s52, {packs[T]}
        v_bfe_u32 v10, s52, v7, 8
        v_add_u32 v10, v10, v8
        v_lshl_add_u32 v{12+T}, v10, 3, v9''')
    A(f'''v_lshlrev_b32 v3, 4, v{vLANE}
    v_and_b32 v10, 31, v{vLANE}
    v_mul_u32_u24 v11, 24, v4
    v_add_u32 v11, v11, v10
    v_lshlrev_b32 v11, 4, v11
    s_mul_i32 s46, s41, {WQ_J}
    s_mul_i32 s47, s40, 3840
    s_add_u32 s46, s46, s47
    s_add_u32 s46, s46, {WS_WQ}''')
    A.wait_all()
    for T in range(4):
        for rd in range(2):
            A(f'ds_read_b64_tr_b16 v[{16+4*T+2*rd}:{17+4*T+2*rd}], v{12+T} offset:{960*rd}')
    for T in range(3):
        A(f'buffer_store_dwordx4 v[{16+4*T}:{19+4*T}], v3, s[16:19], s46 offen offset:{1024*T}')
    A('s_mov_b32 exec_lo, 0x00ffffff\ns_mov_b32 exec_hi, 0x00ffffff')
    A('buffer_store_dwordx4 v[28:31], v11, s[16:19], s46 offen offset:3072')
    A('s_mov_b64 exec, -1')


def task_wo(A, sI):
    A.comment('---- prep: wo tiles')
    srd(A, 20, sWO, 576 * 1152)
    A(f'''s_lshl_b32 s40, s{sI}, 2
    s_add_u32 s40, s40, s{sW}
    s_lshr_b32 s41, s40, 3
    s_and_b32 s42, s40, 7
    s_mul_i32 s43, s42, 144
    s_mul_i32 s44, s{sW}, 4864
    v_lshrrev_b32 v4, 3, v{vLANE}
    v_and_b32 v5, 7, v{vLANE}
    v_lshlrev_b32 v5, 4, v5
    v_mul_u32_u24 v6, 1152, v4
    v_add_u32 v6, v6, v5
    v_lshlrev_b32 v7, 2, v4
    s_mov_b32 s45, 0x76543210
    v_lshrrev_b32 v7, v7, s45
    v_and_b32 v7, 15, v7
    v_lshlrev_b32 v9, 2, v4
    s_mov_b32 s45, 0x00002211
    v_lshrrev_b32 v9, v9, s45
    v_and_b32 v9, 15, v9
    v_lshl_add_u32 v7, v9, 4, v7
    v_mul_u32_u24 v8, 1152, v7
    v_add_u32 v8, v8, v5
    s_lshl_b32 s45, s41, 2''')
    for q in range(4):
        A(f'''s_add_u32 s47, s45, {q}
        s_mul_i32 s48, s47, 205
        s_lshr_b32 s48, s48, 10
        s_mul_i32 s49, s48, 5
        s_sub_u32 s49, s47, s49
        s_lshr_b32 s50, s49, 1
        s_mul_i32 s50, s50, 18
        s_and_b32 s51, s49, 1
        s_lshl_b32 s51, s51, 3
        s_add_u32 s50, s50, s51
        s_mul_i32 s48, s48, 36
        s_cmp_eq_u32 s49, 4
        s_cselect_b32 s50, 0, s50
        s_cselect_b64 vcc, -1, 0
        s_add_u32 s50, s50, s48
        s_mul_i32 s50, s50, 1152
        s_add_u32 s{52+q}, s50, s43
        v_cndmask_b32 v{10+q}, v6, v8, vcc
        s_add_u32 m0, s44, {1024*q}
        s_nop 0
        buffer_load_dwordx4 v{10+q}, s[20:23], s{52+q} offen lds''')
    A(f'''v_and_b32 v14, 7, v{vLANE}
    v_lshlrev_b32 v14, 5, v14
    v_bfe_u32 v15, v{vLANE}, 3, 2''')
    for q in range(4):
        A(f'v_add_u32 v{10+q}, s{52+q}, v{10+q}')
    for q in range(4):
        A(f'ds_bpermute_b32 v{16+q}, v14, v{10+q}')
    A(f'''v_cmp_eq_u32 vcc, 1, v15
    v_cndmask_b32 v16, v16, v17, vcc
    v_cmp_eq_u32 vcc, 2, v15
    v_cndmask_b32 v16, v16, v18, vcc
    v_cmp_eq_u32 vcc, 3, v15
    v_cndmask_b32 v16, v16, v19, vcc
    s_add_u32 m0, s44, 4096
    s_mov_b32 exec_hi, 0
    buffer_load_dwordx4 v16, s[20:23], 0 offen offset:128 lds
    s_mov_b32 exec_hi, -1''')
    srd(A, 16, sWS, WS_SIZE)
    A(f'''v_lshrrev_b32 v4, 4, v{vLANE}
    v_bfe_u32 v5, v{vLANE}, 2, 2
    v_lshl_add_u32 v4, v4, 3, v5
    v_and_b32 v5, 3, v{vLANE}
    v_lshlrev_b32 v6, 7, v4
    v_lshl_add_u32 v6, v5, 3, v6
    v_add_u32 v6, s44, v6
    v_and_b32 v5, 1, v5
    v_lshlrev_b32 v7, 4, v4
    v_lshl_add_u32 v7, v5, 3, v7
    v_add_u32 v7, s44, v7
    v_lshlrev_b32 v3, 4, v{vLANE}
    s_mul_i32 s46, s42, {WO_C}
    s_mul_i32 s47, s41, 5120
    s_add_u32 s46, s46, s47
    s_add_u32 s46, s46, {WS_WO}
    s_add_u32 s47, s46, 4096''')
    A.wait_all()
    for T in range(4):
        for rd in range(2):
            A(f'ds_read_b64_tr_b16 v[{32+4*T+2*rd}:{33+4*T+2*rd}], v6 offset:{512*rd+32*T}')
    for rd in range(2):
        A(f'ds_read_b64_tr_b16 v[{48+2*rd}:{49+2*rd}], v7 offset:{4096+128+64*rd}')
    for T in range(4):
        A(f'buffer_store_dwordx4 v[{32+4*T}:{35+4*T}], v3, s[16:19], s46 offen offset:{1024*T}')
    A('buffer_store_dwordx4 v[48:51], v3, s[16:19], s47 offen')


def task_zero(A, sI):
    A(f'''v_mov_b32 v56, 0
    v_mov_b32 v57, 0
    v_mov_b32 v58, 0
    v_mov_b32 v59, 0
    v_lshlrev_b32 v60, 4, v{vTID}
    s_lshl_b32 s48, s{sI}, 12''')
    assert WS_ZEND - WS_ST <= N_WQ * 4096
    srd(A, 24, sWS, WS_ZEND - WS_ST, off=WS_ST)
    A('buffer_store_dwordx4 v[56:59], v60, s[24:27], s48 offen')
    for base, sh, cnt in ((0, FSC[0], 3072), (WS_PF - WS_FLAG, FSC[1], 1024)):
        srd(A, 28, sWS, cnt << sh, off=WS_FLAG + base)
        A(f'v_lshlrev_b32 v60, {sh}, v{vTID}\ns_lshl_b32 s48, s{sI}, {8 + sh}')
        A('buffer_store_dword v56, v60, s[28:31], s48 offen')


def wq_extra(A, sI):
    task_zero(A, sI)
    if NEXT[0]:
        A(f's_lshr_b32 s48, s{sI}, 3\ns_lshl_b32 s48, s48, 2\ns_add_u32 s48, s48, s{sW}\ns_lshl_b32 s48, s48, 13')
        code_prefetch(A, NEXT[0], f'{NEXT[1]}-{NEXT[0]}-4', 60, 62, 50, 1, 48)


POPT = dict(tlb=0, pf=0)
N_PF = 128


def task_tlb(A, sI, shift):
    bufs = [(sWG, 576 * 9216, 0), (sWU, 576 * 9216, 0), (sWD, F * 1152, 0), (sOUT, S * D * 2, 0), (sWS, WS_END, 0)]
    A(f's_lshr_b32 s48, s{sI}, 3\ns_lshl_b32 s48, s48, 2\ns_add_u32 s48, s48, s{sW}')
    A(f'v_lshlrev_b32 v56, {shift}, v{vLANE}')
    q = 0
    for ptr, size, off in bufs:
        srd(A, 24, ptr, size)
        n = -(-size // (64 << shift))
        for i in range(n):
            if q % 20 or True:
                A(f's_cmp_eq_u32 s48, {q % 20}')
                A(f's_cselect_b32 s49, {i * (64 << shift)}, s47') if False else None
                A(f's_mov_b32 s49, 0x80000000\ns_cmov_b32 s49, {i * (64 << shift)}')
                A(f'buffer_load_dword v57, v56, s[24:27], s49 offen')
            q += 1
            if q % 40 == 0:
                A('s_waitcnt vmcnt(0)')


def task_pf(A, sI):
    A(f's_lshl_b32 s40, s{sI}, 2\ns_add_u32 s40, s40, s{sW}\nv_lshlrev_b32 v2, 7, v{vLANE}')
    per = 576 * 9216 // (4 * N_PF)
    assert per % 128 == 0
    A(f's_mul_i32 s41, s40, {per}')
    for ptr in (sWG, sWU, sWD):
        srd(A, 8, ptr, 576 * 9216)
        A(f's_mov_b32 s42, s41')
        n = per // 128
        k = 0
        while n > 0:
            if n < 64:
                m = (1 << n) - 1
                A(f's_mov_b32 exec_lo, {m & 0xffffffff}\ns_mov_b32 exec_hi, {m >> 32}')
            A(f'buffer_load_dword v{8+k}, v2, s[8:11], s42 offen\ns_add_u32 s42, s42, 8192')
            n -= 64; k += 1
        A('s_mov_b64 exec, -1')


NEXT = [None, None]


def n_prep():
    return N_PREP + (N_PF if POPT['pf'] else 0)


def ph_prep(A):
    code_prefetch(A, 'L_k0_body', 'L_k0_end-L_k0_body-4', 2, 127, 50, 1)
    A('L_k0_body:')
    if POPT.get('lin'):
        nw = N_PREP * 4
        A(f's_lshl_b32 s40, s2, 2\ns_add_u32 s40, s40, s{sW}\nv_lshlrev_b32 v3, 7, v{vLANE}')
        for q, (ptr, size) in enumerate(((sWMOD, 576 * 6912), (sX, S * D * 2), (sWQKV, 576 * 3456), (sWO, 576 * 1152))):
            n = -(-(size // 128) // nw)
            srd(A, 8, ptr, size)
            A(f's_mul_i32 s41, s40, {n*128}\ns_mov_b64 exec, {(1 << n) - 1}')
            A(f'buffer_load_dword v{122+q}, v3, s[8:11], s41 offen')
        A('s_mov_b64 exec, -1')
    NL = POPT.get('nlight', 84)
    lab = {r: A.label('L_role' + r) for r in ('mod', 'xh', 'wq', 'wo')}
    A(f'''s_mov_b32 s39, s2
    s_cmp_lt_u32 s2, {NL}
    s_cbranch_scc1 {lab['wq']}
    s_sub_u32 s39, s2, {NL}
    s_cmp_lt_u32 s39, {N_MOD}
    s_cbranch_scc1 {lab['mod']}
    s_sub_u32 s39, s39, {N_MOD}
    s_cmp_lt_u32 s39, {N_XH}
    s_cbranch_scc1 {lab['xh']}
    s_sub_u32 s39, s2, {N_MOD + N_XH}
    s_cmp_lt_u32 s39, {N_WQ}
    s_cbranch_scc1 {lab['wq']}
    s_sub_u32 s39, s39, {N_WQ}''')
    st0 = (list(A.vmq), list(A.lgq), A.vm_issued, A.lg_issued)
    for r, fn in (('wo', task_wo), ('mod', None), ('xh', task_xhat), ('wq', task_wq)):
        A(lab[r] + ':')
        A.vmq, A.lgq, A.vm_issued, A.lg_issued = list(st0[0]), list(st0[1]), st0[2], st0[3]
        if r == 'mod':
            A('s_and_b32 s40, s39, 7\ns_lshl_b32 s40, s40, 1\ns_bfe_u32 s41, s39, 0x10003\ns_and_b32 s42, s39, 0xfffffff0\ns_or_b32 s40, s40, s41\ns_or_b32 s40, s40, s42')
            A('s_cmp_lt_u32 s39, 96\ns_cselect_b32 s39, s40, s39')
            ph_mod(A, 39, 0)
        else:
            fn(A, 39)
        if r != 'wq':
            stamp_end(A, again=True)
            A('s_endpgm')
```

```python
from common import *

A_WIMG = 0
A_HH = 138240
A_VT = A_HH + 18432
A_LDS = A_VT + 5120
A_KREC = 0
A_VREC = 13824

QLOC = [(0, 0), (0, 1), (0, 2), (0, 3), (1, 0)]
KLOC = [(1, 2), (1, 3), (2, 0), (1, 1), (2, 2)]
VLOC = [(3, 0), (2, 1), (3, 2), (2, 3), (3, 1)]

XB = 16
TAB = 160
CB = 178
TB = 196
HB = 204
vA = 224
vA3 = 227
vAH = 230
vHB = 233
vL16 = 234
vCT = 235
HT = 236
aACC = 0
aHACC = 64
aFR = 80
aHBF = 120
LATE_S = 30
NWI = 34


def mod_table(A, vt, col_b, col_s, srdq=16, V=192):
    A(f'''v_lshlrev_b32 v8, 2, v{vTID}
    v_lshlrev_b32 v9, 2, v{vLANE}
    s_mov_b32 s96, {WS_MOD + 4*col_s}
    s_mov_b32 s97, {WS_MOD + 4*col_b}
    buffer_load_dword v{V}, v8, s[{srdq}:{srdq+3}], s96 offen sc1
    buffer_load_dword v{V+1}, v8, s[{srdq}:{srdq+3}], s96 offen offset:1024 sc1
    buffer_load_dword v{V+2}, v9, s[{srdq}:{srdq+3}], s96 offen offset:2048 sc1
    buffer_load_dword v{V+3}, v8, s[{srdq}:{srdq+3}], s97 offen sc1
    buffer_load_dword v{V+4}, v8, s[{srdq}:{srdq+3}], s97 offen offset:1024 sc1
    buffer_load_dword v{V+5}, v9, s[{srdq}:{srdq+3}], s97 offen offset:2048 sc1
    v_lshrrev_b32 v8, 3, v{vTID}
    v_lshlrev_b32 v8, 6, v8
    v_and_b32 v9, 7, v{vTID}
    v_lshl_add_u32 v8, v9, 2, v8
    v_add_u32 v8, {vt}, v8
    v_lshrrev_b32 v7, 3, v{vLANE}
    v_lshlrev_b32 v7, 6, v7
    v_lshl_add_u32 v9, v9, 2, v7
    v_add_u32 v9, {vt}, v9''')

    def write():
        A(f'''ds_write_b32 v8, v{V}
        ds_write_b32 v8, v{V+1} offset:2048
        ds_write_b32 v9, v{V+2} offset:4096
        ds_write_b32 v8, v{V+3} offset:32
        ds_write_b32 v8, v{V+4} offset:2080
        ds_write_b32 v9, v{V+5} offset:4128''')
    return write


def ph_a_main(A, early=None, late=None):
    A.comment('==== phase A ====')
    srd(A, 16, sWS, WS_SIZE)
    A(f'''v_lshlrev_b32 v{vL16}, 4, v{vLANE}
    s_lshl_b32 s40, s{sG}, 2
    s_add_u32 s40, s40, s{sW}
    s_mul_i32 s40, s40, 36864
    s_add_u32 s40, s40, {WS_XH}
    s_mul_i32 s41, s{sG}, {4*36864}
    s_add_u32 s41, s41, {WS_XH - 36864 + 256}
    s_cmp_eq_u32 s{sG}, 0
    s_cselect_b32 s41, {WS_XH + 256}, s41
    s_lshl_b32 s42, s{sW}, 11
    s_add_u32 s41, s41, s42
    v_lshrrev_b32 v4, 4, v{vLANE}
    v_and_b32 v5, 15, v{vLANE}
    v_lshlrev_b32 v6, 9, v4
    v_lshl_add_u32 v6, v5, 4, v6
    s_mul_i32 s42, s{sJ}, {WQ_J}
    s_lshl_b32 s43, s{sW}, 10
    s_add_u32 s42, s42, s43
    s_add_u32 s42, s42, {WS_WQ}''')
    xq = list(range(36))
    wq = list(range(NWI))
    marks = {}

    def xload():
        s = xq.pop(0)
        if s % 4 == 0:
            A(f's_add_u32 s3, s40, {4096*(s//4)}')
        A(f'buffer_load_dwordx4 v[{XB+4*s}:{XB+4*s+3}], v{vL16}, s[16:19], s3 offen offset:{1024*(s%4)}')

    def issue_w():
        i = wq.pop(0)
        if i == NWI - 1:
            A(f's_min_u32 s5, s{sW}, 2\ns_lshl_b32 s5, s5, 10\ns_sub_u32 s4, s42, s43\ns_add_u32 s4, s4, s5')
            A(f's_add_u32 m0, s5, {4096*i}\ns_add_u32 s4, s4, {4096*i}')
        else:
            A(f's_add_u32 m0, s43, {4096*i}\ns_add_u32 s4, s42, {4096*i}')
        A(f'buffer_load_dwordx4 v{vL16}, s[16:19], s4 offen lds')
        marks[i] = A.mark()

    def halo_load(i):
        if i < 4:
            A(f's_add_u32 s6, s41, {8192*i}')
        else:
            A(f's_min_u32 s4, s{sW}, 1\ns_sub_u32 s4, s4, s{sW}\ns_lshl_b32 s4, s4, 11')
            A(f's_add_u32 s6, s41, s4\ns_add_u32 s6, s6, {8192*4}')
        A(f'buffer_load_dwordx4 v[{HB+4*i}:{HB+4*i+3}], v6, s[16:19], s6 offen')

    A(f's_add_u32 m0, s43, {A_VT}\ns_add_u32 s4, s43, {WS_MOD}')
    A(f'buffer_load_dwordx4 v{vL16}, s[16:19], s4 offen lds')
    A(f's_mov_b32 m0, {A_VT + 4096}\ns_mov_b32 s4, {WS_MOD + 4096}')
    A(f'buffer_load_dwordx4 v{vL16}, s[16:19], s4 offen lds')
    mkt = A.mark()
    xload()
    for i in range(5):
        halo_load(i)
    for k in range(3):
        issue_w()
    mk0 = A.mark()
    for k in range(3):
        xload()
    for k in range(4):
        issue_w()
    if early:
        early()
    A(f'''v_lshrrev_b32 v7, 5, v{vLANE}
    v_and_b32 v10, 31, v{vLANE}
    v_min_u32 v11, 23, v10
    v_mul_u32_u24 v12, 24, v7
    v_add_u32 v11, v11, v12
    v_lshlrev_b32 v11, 4, v11
    v_add_u32 v11, 3072, v11
    v_add_u32 v12, s43, v{vL16}
    s_cmp_eq_u32 s{sW}, 3
    s_cselect_b64 vcc, -1, 0
    v_cndmask_b32 v12, v12, v11, vcc''')
    for wd in range(3):
        A(f'v_add_u32 v{vA+wd}, {61440*wd}, v{vL16}')
        A(f'v_add_u32 v{vA3+wd}, {61440*wd}, v11')
        A(f'v_add_u32 v{vAH+wd}, {61440*wd}, v12')
    A(f'''v_and_b32 v10, 15, v{vLANE}
    v_lshlrev_b32 v10, 4, v10
    v_lshl_add_u32 v10, v7, 8, v10
    v_add_u32 v{vHB}, {A_HH}, v10
    v_and_b32 v10, 7, v5
    v_lshlrev_b32 v10, 2, v10
    v_lshrrev_b32 v11, 3, v5
    v_lshl_add_u32 v8, v11, 6, v10
    v_lshl_add_u32 v8, v7, 5, v8
    v_add_u32 v8, {A_VT + 2304}, v8
    v_lshlrev_b32 v{vCT}, 5, v7
    v_add_u32 v{vCT}, {A_VT}, v{vCT}
    s_lshl_b32 s4, s{sW}, 7
    s_add_u32 s4, s4, {A_VT}
    v_lshlrev_b32 v9, 5, v4
    v_add_u32 v9, s4, v9
    v_add_u32 v10, v9, v10
    v_add_u32 v5, s43, v{vL16}
    v_add_u32 v5, {A_HH}, v5
    s_min_u32 s5, s{sW}, 1
    s_sub_u32 s5, s5, s{sW}
    s_lshl_b32 s6, s5, 7
    v_add_u32 v6, s6, v9
    v_add_u32 v11, s6, v10
    s_lshl_b32 s6, s5, 10
    v_add_u32 v7, s6, v5''')
    A.wait_vm_mark(mkt)
    A('s_barrier')
    stamp(A, 'table')

    def bread(s, z):
        c = CB + 8 * (s & 1) + 4 * z
        return f'ds_read_b128 v[{c}:{c+3}], v{vCT} offset:{64*s+16*z}'
    A(f'ds_read_b32 v{TAB}, v8')
    A(bread(0, 0)); A(bread(0, 1))
    HC = XB + 64
    for i in range(5):
        A(f'ds_read_b32 v{HT+i}, v{10 if i < 4 else 11} offset:{2304+512*i}')
        for z in range(2):
            A(f'ds_read_b128 v[{HC+8*i+4*z}:{HC+8*i+4*z+3}], v{9 if i < 4 else 6} offset:{512*i+16*z}')
    A(bread(1, 0)); A(bread(1, 1))
    for t in range(1, 18):
        A(f'ds_read_b32 v{TAB+t}, v8 offset:{128*t}')

    def norm_ops(r, tab, lane0, c):
        ops = []
        for d in range(4):
            ops.append(f'v_lshlrev_b32 v{TB+d}, 16, v{r+d}')
        for e in (1, 3, 5, 7, 0, 2, 4, 6):
            src = r + e // 2 if e & 1 else TB + e // 2
            ops.append(f'v_fmac_f32_dpp v{c+e}, v{tab}, v{src} row_newbcast:{lane0+e} row_mask:0xf bank_mask:0xf')
        for d in range(4):
            ops.append(f'v_cvt_pk_bf16_f32 v{r+d}, v{c+2*d}, v{c+2*d+1}')
        return ops

    def norm_main(s):
        return norm_ops(XB + 4 * s, TAB + s // 2, 8 * (s & 1), CB + 8 * (s & 1))
    for x in norm_main(0):
        A(x)
    for i in range(5):
        for x in norm_ops(HB + 4 * i, HT + i, 0, HC + 8 * i):
            A(x)
        A(f'ds_write_b128 v{5 if i < 4 else 7}, v[{HB+4*i}:{HB+4*i+3}] offset:{4096*i}')
        if i < 2:
            issue_w()
        else:
            xload()

    def aread(m):
        s, T = divmod(m, 5)
        f = aFR + 4 * (m % 10)
        wd, sl = divmod(s, 16)
        if T < 3:
            return f'ds_read_b128 a[{f}:{f+3}], v{vA+wd} offset:{3840*sl+1024*T}'
        return f'ds_read_b128 a[{f}:{f+3}], v{(vA3 if T == 3 else vAH)+wd} offset:{3840*sl}'

    def hread(s):
        f = aHBF + 4 * (s & 1)
        return f'ds_read_b128 a[{f}:{f+3}], v{vHB} offset:{512*s}'

    BS = (0, 3, 6, 10, 14, 18, 22, 26, 30, 33, 36)
    NEED = {BS[q]: (3840 * BS[q + 1] - 1) // 4096 for q in range(len(BS) - 1)}

    def boundary(s):
        A.wait_vm_mark(mk0 if s == 0 else marks[NEED[s]])
        if s == 0:
            A.wait_all(vm=False)
        A('s_barrier')
    boundary(0)
    stamp(A, 'first data')
    for m in range(5):
        A(aread(m))
    A(hread(0))
    for s in range(36):
        nops = norm_main(s + 1) if s + 1 < 36 else []
        for T in range(5):
            m = 5 * s + T
            f = aFR + 4 * (m % 10)
            if T < 4:
                acc = aACC + 16 * T
                b = f'v[{XB+4*s}:{XB+4*s+3}]'
            else:
                acc = aHACC
                b = f'a[{aHBF+4*(s&1)}:{aHBF+4*(s&1)+3}]'
            cin = '0' if s == 0 else f'a[{acc}:{acc+15}]'
            if T in (0, 2):
                regs = rl('a', f, 4) + rl('a', aFR + 4 * ((m + 1) % 10), 4)
                if T == 2:
                    regs += rl('a', aFR + 4 * ((m + 2) % 10), 4) + rl('a', aHBF + 4 * (s & 1), 4)
                A.wait_regs(regs)
            A(f'v_mfma_f32_32x32x16_bf16 a[{acc}:{acc+15}], a[{f}:{f+3}], {b}, {cin}')
            if m + 5 < 180:
                if T == 0 and s + 1 in NEED:
                    boundary(s + 1)
                A(aread(m + 5))
            if T == 0 and s + 1 < 36:
                A(hread(s + 1))
            if T in (1, 2) and s + 2 < 36:
                A(bread(s + 2, T - 1))
            for x in nops[(0, 3, 6, 10, 13)[T]:(3, 6, 10, 13, 16)[T]]:
                A(x)
            if T == 0 and xq:
                xload()
            if T == 3 and wq:
                issue_w()
            if late and T == 3 and s == LATE_S:
                late()


def ph_a_attn(A, bg=()):
    bg = list(bg)

    def idle(n=1):
        for _ in range(n):
            if bg:
                A(bg.pop(0))

    stamp(A, 'gemm done')
    Q, KO, TM, KN, VN, OA, L = 16, 28, 40, 60, 144, 224, 244
    vK, vV, vO, vKh, vVh, vTok = 252, 253, 9, 10, 2, 3
    A(f'''v_lshrrev_b32 v4, 5, v{vLANE}
    v_and_b32 v5, 31, v{vLANE}
    v_mul_u32_u24 v6, 144, v4
    v_add_u32 v6, v6, v5
    v_mul_u32_u24 v{vKh}, 48, v6
    v_mul_u32_u24 v{vVh}, 80, v6
    v_add_u32 v{vVh}, {A_VREC}, v{vVh}
    s_mul_i32 s96, s{sW}, {32*48}
    s_add_u32 s96, s96, 96
    v_add_u32 v{vK}, s96, v{vKh}
    s_mul_i32 s96, s{sW}, {32*80}
    s_add_u32 s96, s96, 160
    v_add_u32 v{vV}, s96, v{vVh}
    s_lshl_b32 s96, s{sG}, 2
    s_add_u32 s96, s96, s{sW}
    s_lshl_b32 s96, s96, 5
    v_add_u32 v{vTok}, s96, v5''')
    for m in range(5):
        T, i = KLOC[m]
        for jj in range(4):
            A(f'v_accvgpr_read_b32 v{TM+4*m+jj}, a{aACC+16*T+4*i+jj}')
    for d in range(10):
        A(f'v_cvt_pk_bf16_f32 v{KO+d}, v{TM+2*d}, v{TM+2*d+1}')
    A(f'v_mov_b32 v{KO+10}, 0\nv_mov_b32 v{KO+11}, 0')
    A('s_barrier')
    for z in range(3):
        A(f'ds_write_b128 v{vK}, v[{KO+4*z}:{KO+4*z+3}] offset:{14*48+16*z}')
    for m in range(5):
        T, i = VLOC[m]
        r = aACC + 16 * T + 4 * i
        A(f'ds_write_b128 v{vV}, a[{r}:{r+3}] offset:{14*80+16*m}')
    idle(3)
    for w in (1, 2, 3):
        A(f's_cmp_lg_u32 s{sW}, {w}')
        ctx = A.begin_skip('s_cbranch_scc1 {}')
        A('s_mov_b32 exec_lo, 0xffff\ns_mov_b32 exec_hi, 0xffff')
        for m in range(5):
            T, i = KLOC[m]
            if T == w:
                for jj in range(4):
                    A(f'v_accvgpr_read_b32 v{TM+jj}, a{aHACC+4*i+jj}')
                A(f'v_cvt_pk_bf16_f32 v{KN+2*m}, v{TM}, v{TM+1}\nv_cvt_pk_bf16_f32 v{KN+2*m+1}, v{TM+2}, v{TM+3}')
                A(f'ds_write_b64 v{vKh}, v[{KN+2*m}:{KN+2*m+1}] offset:{8*m}')
            T, i = VLOC[m]
            if T == w:
                A(f'ds_write_b128 v{vVh}, a[{aHACC+4*i}:{aHACC+4*i+3}] offset:{16*m}')
        A('s_mov_b64 exec, -1')
        A.end_skip_lds(ctx)
    for m in range(5):
        T, i = QLOC[m]
        for jj in range(4):
            A(f'v_accvgpr_read_b32 v{TM+4*m+jj}, a{aACC+16*T+4*i+jj}')
    for e in (0, 1):
        A(f'v_cndmask_b32 v{TM+e}, v{TM+e}, 0, s[{sHALF}:{sHALF+1}]')
        A(f'v_cndmask_b32 v{TM+18+e}, 0, v{TM+18+e}, s[{sHALF}:{sHALF+1}]')
    for d in range(10):
        A(f'v_cvt_pk_bf16_f32 v{Q+d}, v{TM+2*d}, v{TM+2*d+1}')
    for m in range(5):
        T, i = VLOC[m]
        for jj in range(4):
            A(f'v_accvgpr_read_b32 v{OA+4*m+jj}, a{aACC+16*T+4*i+jj}')
    idle(3)
    A.wait_all(vm=False)
    A('s_barrier')
    for w in range(1, 8):
        for z in range(3):
            r = KN + 12 * (w - 1) + 4 * z
            A(f'ds_read_b128 v[{r}:{r+3}], v{vK} offset:{(14-2*w)*48+16*z}')

    def vread(w, base):
        for z in range(5):
            A(f'ds_read_b128 v[{base+4*z}:{base+4*z+3}], v{vV} offset:{(14-2*w)*80+16*z}')
    vb = {w: VN + 20 * (w - 1) for w in range(1, 5)}
    vb.update({w: KN + 20 * (w - 5) for w in range(5, 8)})
    for ws in ((0, 1, 2, 3), (4, 5, 6, 7)):
        for d in range(10):
            for w in ws:
                k = (KO if w == 0 else KN + 12 * (w - 1)) + d
                c = '0' if d == 0 else f'v{L+w}'
                A(f'v_dot2_f32_bf16 v{L+w}, v{Q+d}, v{k}, {c}')
            if d % 3 == 0:
                idle()
        if ws[0] == 0:
            for w in range(1, 5):
                vread(w, vb[w])
    for w in range(5, 8):
        vread(w, vb[w])
    A(f's_mov_b32 s96, {fbits(18 ** -0.5 * LOG2E)}')
    A(f's_mov_b32 s97, {fbits(-1e9)}')
    for w in range(8):
        A(f'v_mul_f32 v{L+w}, s96, v{L+w}')
    A(f's_or_b32 s98, s{sG}, s{sW}\ns_cmp_lg_u32 s98, 0')
    ctx = A.begin_skip('s_cbranch_scc1 {}')
    A(f'v_mov_b32 v4, s97')
    for w in range(1, 8):
        A(f'v_cmp_le_u32 vcc, {2*w}, v{vTok}')
        A(f'v_cndmask_b32 v{L+w}, v4, v{L+w}, vcc')
    A.end_skip(ctx)
    A(f'''v_max3_f32 v4, v{L}, v{L+1}, v{L+2}
    v_max3_f32 v5, v{L+3}, v{L+4}, v{L+5}
    v_max3_f32 v4, v4, v{L+6}, v{L+7}
    v_max_f32 v4, v4, v5''')
    for w in range(8):
        A(f'v_sub_f32 v{L+w}, v{L+w}, v4')
    for w in range(8):
        A(f'v_exp_f32 v{L+w}, v{L+w}')
    A(f'''v_add_f32 v4, v{L}, v{L+1}
    v_add_f32 v5, v{L+2}, v{L+3}
    v_add_f32 v6, v{L+4}, v{L+5}
    v_add_f32 v7, v{L+6}, v{L+7}
    v_add_f32 v4, v4, v5
    v_add_f32 v6, v6, v7
    v_add_f32 v4, v4, v6
    v_rcp_f32 v4, v4''')
    for w in range(8):
        A(f'v_mul_f32 v{L+w}, v{L+w}, v4')
    idle(3)
    for w in range(8):
        idle()
        lp = L + (w & ~1)
        for d in range(10):
            o = OA + 2 * d
            if w == 0:
                A(f'v_pk_mul_f32 v[{o}:{o+1}], v[{o}:{o+1}], v[{lp}:{lp+1}] op_sel_hi:[1,0]')
            else:
                m = 'op_sel_hi:[1,0,1]' if w % 2 == 0 else 'op_sel:[0,1,0] op_sel_hi:[1,1,1]'
                v = vb[w] + 2 * d
                A(f'v_pk_fma_f32 v[{o}:{o+1}], v[{v}:{v+1}], v[{lp}:{lp+1}], v[{o}:{o+1}] {m}')
    for d in range(10):
        A(f'v_cvt_pk_bf16_f32 v{TM+d}, v{OA+2*d}, v{OA+2*d+1}')
    idle(100)
    OUT, E = 16, 24
    for d in range(9):
        A(f'v_cndmask_b32 v{OUT+d}, v{TM+d}, v{TM+d+1}, s[{sHALF}:{sHALF+1}]')
    A(f'''v_mov_b32 v{E+1}, v{E}
    v_mov_b32 v{E+2}, 0
    v_mov_b32 v{E+3}, 0
    v_permlane32_swap_b32 v{E}, v{E+1}''')
    A(f'''v_bfe_u32 v4, v{vLANE}, 4, 1
    v_mul_u32_u24 v4, 20480, v4
    v_and_b32 v5, 15, v{vLANE}
    v_lshl_add_u32 v4, v5, 4, v4
    v_lshrrev_b32 v5, 5, v{vLANE}
    v_lshl_add_u32 v{vO}, v5, 9, v4
    s_mul_i32 s96, s{sG}, {O_G}
    s_mul_i32 s97, s{sW}, 40960
    s_add_u32 s96, s96, s97
    s_mul_i32 s97, s{sJ}, 1280
    s_add_u32 s96, s96, s97
    s_add_u32 s96, s96, {WS_O}
    buffer_store_dwordx4 v[{OUT}:{OUT+3}], v{vO}, s[16:19], s96 offen sc1
    buffer_store_dwordx4 v[{OUT+4}:{OUT+7}], v{vO}, s[16:19], s96 offen offset:256 sc1
    s_mov_b32 exec_hi, 0
    buffer_store_dwordx4 v[{E}:{E+3}], v{vO}, s[16:19], s96 offen offset:1024 sc1
    s_mov_b32 exec_hi, -1''')


def ph_a(A):
    ph_a_main(A)
    ph_a_attn(A)
```

```python
from common import *

B_IMG = 61440
B_LDS = B_IMG + WO_C


def ph_b_dma(A, srdq=16):
    A.comment('==== phase B: wo image ====')
    A(f'''s_and_b32 s40, s{sJ}, 7
    s_mul_i32 s40, s40, {WO_C}
    s_mul_i32 s41, s{sW}, 25600
    s_add_u32 s40, s40, s41
    s_add_u32 s40, s40, {WS_WO}
    s_add_u32 s41, s41, {B_IMG}
    v_lshlrev_b32 v8, 4, v{vLANE}''')
    r = []
    for i in range(25):
        pre = f's_add_u32 m0, s41, {1024*i}\ns_add_u32 s42, s40, {1024*i}\n' if i % 4 == 0 else ''
        r.append(pre + f'buffer_load_dwordx4 v8, s[{srdq}:{srdq+3}], s42 offen offset:{1024*(i%4)} lds')
    return r


OB, XR, GA, SC, SH, ACC, TM = 16, 96, 108, 128, 148, 168, 188
PK = 240
vL16, vX1, vST, vA, vVEC = 238, 239, 252, 253, 12
B_VEC = 49152
sgX = 28


def ph_b_pre(A):
    A(f'''s_lshr_b32 s3, s{sJ}, 3
    s_and_b32 s4, s{sJ}, 7
    v_lshlrev_b32 v{vL16}, 4, v{vLANE}
    s_lshl_b32 s5, s3, 2
    s_add_u32 s5, s5, s{sW}
    s_mul_i32 s6, s5, 20480
    s_mul_i32 s7, s{sG}, {O_G}
    s_add_u32 s6, s6, s7
    s_add_u32 s6, s6, {WS_O}
    v_and_b32 v4, 15, v{vLANE}
    v_lshrrev_b32 v5, 4, v{vLANE}
    v_and_b32 v8, 1, v5
    v_lshlrev_b32 v8, 1, v8
    v_lshrrev_b32 v9, 1, v5
    v_or_b32 v8, v8, v9
    v_lshlrev_b32 v8, 8, v8
    v_lshl_add_u32 v{vX1}, v4, 4, v8
    v_lshlrev_b32 v{vST}, 4, v4
    s_lshl_b32 s39, s{sG}, 3
    s_add_u32 s39, s39, s5
    s_mul_i32 s96, s39, {T16}
    s_mul_i32 s97, s4, 2304
    s_add_u32 s96, s96, s97
    s_add_u32 s7, s96, {WS_XT}
    s_add_u32 s96, s96, {WS_X1}
    v_mul_u32_u24 v6, 57, v{vLANE}
    v_lshrrev_b32 v6, 10, v6
    v_mul_u32_u24 v6, {2304-288}, v6
    v_add_u32 v6, v6, v{vL16}
    s_mul_i32 s38, s4, 288
    s_add_u32 s38, s38, {WS_MOD + 4*1152}
    s_mov_b32 m0, {B_VEC}
    s_mov_b32 exec_hi, 0x3fffff
    buffer_load_dwordx4 v6, s[16:19], s38 offen lds
    s_mov_b32 exec_hi, -1''')
    mk = A.mark()
    for z in range(3):
        A(f'buffer_load_dwordx4 v[{XR+4*z}:{XR+4*z+3}], v{vX1}, s[16:19], s7 offen offset:{1024*z}')
    A(f'''v_add_u32 v{vA}, {B_IMG}, v{vL16}
    v_lshlrev_b32 v{vVEC}, 4, v5
    v_add_u32 v{vVEC}, {B_VEC}, v{vVEC}
    s_lshl_b32 s97, s39, 11
    s_add_u32 s97, s97, {WS_ST}
    s_lshl_b32 s98, s4, 8
    s_add_u32 s98, s98, s97''')
    return mk


def ph_b_vec(A):
    for base, off in ((GA, 0), (SH, 288), (SC, 576)):
        for T in range(5):
            A(f'ds_read_b128 v[{base+4*T}:{base+4*T+3}], v{vVEC} offset:{off+64*T}')
    for bb in (0, 4, 8):
        A(f'v_permlane16_swap_b32 v{XR+bb}, v{XR+bb+2}')
        A(f'v_permlane16_swap_b32 v{XR+bb+1}, v{XR+bb+3}')
    A(f's_mov_b32 s99, {fbits(-LOG2E)}')
    for e in range(20):
        A(f'v_mul_f32 v{SH+e}, s99, v{SH+e}')


NPRE = 56


def ph_b_pre_frags(A):
    for m in range(NPRE):
        A(f'ds_read_b128 a[{32+4*m}:{32+4*m+3}], v{vA} offset:{m*1024}')


def ph_b_main(A, before_stat=None, after_stat=None):
    A.comment('==== phase B ====')
    aFR = 0
    for k in range(20):
        A(f'buffer_load_dwordx4 v[{OB+4*k}:{OB+4*k+3}], v{vL16}, s[16:19], s6 offen offset:{1024*(k%4)} sc1')
        if k % 4 == 3 and k < 19:
            A('s_add_u32 s6, s6, 4096')
    NB = 8

    def freg(m):
        return 32 + 4 * m if m < NPRE else aFR + 4 * ((m - NPRE) % NB)

    def read(m):
        f = freg(m)
        if m == 60:
            A(f'v_add_u32 v{vA}, 61440, v{vA}')
        return f'ds_read_b128 a[{f}:{f+3}], v{vA} offset:{(m % 60)*1024}'
    nxt = NPRE
    while nxt < NPRE + NB:
        A(read(nxt)); nxt += 1
    for m in range(100):
        k, T = divmod(m, 5)
        f = freg(m)
        acc = ACC + 4 * T
        cin = '0' if k == 0 else f'v[{acc}:{acc+3}]'
        if m >= NPRE and (m - NPRE) % 2 == 0:
            A.wait_regs(rl('a', f, 4) + rl('a', freg(min(m + 1, 99)), 4))
        A(f'v_mfma_f32_16x16x32_bf16 v[{acc}:{acc+3}], a[{f}:{f+3}], v[{OB+4*k}:{OB+4*k+3}], {cin}')
        if m >= NPRE and nxt < 100:
            A(read(nxt)); nxt += 1
        if m < 10:
            unpack(A, TM + 2 * m, TM + 2 * m + 1, XR + m)
    stamp(A, 'gemm done')
    for u in range(10):
        t = TM + 2 * u
        A(f'v_pk_fma_f32 v[{t}:{t+1}], v[{ACC+2*u}:{ACC+2*u+1}], v[{GA+2*u}:{GA+2*u+1}], v[{t}:{t+1}]')
    a, b = 48, 40

    def allsum(r, t):
        A(f'''v_mov_b32 v{t}, v{r}
        v_permlane16_swap_b32 v{r}, v{t}
        v_add_f32 v{r}, v{r}, v{t}
        v_mov_b32 v{t}, v{r}
        v_permlane32_swap_b32 v{r}, v{t}
        v_add_f32 v{r}, v{r}, v{t}''')
    A(f'v_pk_add_f32 v[{a}:{a+1}], v[{TM}:{TM+1}], v[{TM+2}:{TM+3}]')
    for u in range(2, 10):
        if u == 8:
            A('s_mov_b32 exec_hi, 0')
        A(f'v_pk_add_f32 v[{a}:{a+1}], v[{a}:{a+1}], v[{TM+2*u}:{TM+2*u+1}]')
    A('s_mov_b32 exec_hi, -1')
    A(f'v_add_f32 v{a}, v{a}, v{a+1}')
    allsum(a, a + 1)
    A(f's_mov_b32 s99, {fbits(1.0/72)}\nv_mul_f32 v{a}, s99, v{a}')
    DV = ACC
    for u in range(10):
        A(f'v_pk_add_f32 v[{DV+2*u}:{DV+2*u+1}], v[{TM+2*u}:{TM+2*u+1}], v[{a}:{a+1}] op_sel_hi:[1,0] neg_lo:[0,1] neg_hi:[0,1]')
    A(f'v_pk_mul_f32 v[{b}:{b+1}], v[{DV}:{DV+1}], v[{DV}:{DV+1}]')
    for u in range(1, 10):
        if u == 8:
            A('s_mov_b32 exec_hi, 0')
        t = DV + 2 * u
        A(f'v_pk_fma_f32 v[{b}:{b+1}], v[{t}:{t+1}], v[{t}:{t+1}], v[{b}:{b+1}]')
    A('s_mov_b32 exec_hi, -1')
    A(f'v_add_f32 v{b}, v{b}, v{b+1}')
    allsum(b, b + 1)
    A(f'v_mov_b32 v{a+1}, v{b}\nv_mov_b32 v{a+2}, 1\nv_mov_b32 v{a+3}, 0')
    A('s_mov_b64 exec, 0xffff')
    A(f'buffer_store_dwordx4 v[{a}:{a+3}], v{vST}, s[16:19], s98 offen sc1')
    A('s_mov_b64 exec, -1')

    def swap_only(P):
        A(f'v_mov_b32 v{P+10}, v{P+8}\nv_mov_b32 v{P+11}, v{P+9}')
        for bb in (0, 4, 8):
            A(f'v_permlane16_swap_b32 v{P+bb}, v{P+bb+2}')
            A(f'v_permlane16_swap_b32 v{P+bb+1}, v{P+bb+3}')

    def swap_store(P, sOff, swap=True):
        if swap:
            swap_only(P)
        A(f'buffer_store_dwordx4 v[{P}:{P+3}], v{vX1}, s[16:19], s{sOff} offen sc1')
        A(f'buffer_store_dwordx4 v[{P+4}:{P+7}], v{vX1}, s[16:19], s{sOff} offen offset:1024 sc1')
        A('s_mov_b64 exec, 0xffff')
        A(f'buffer_store_dwordx4 v[{P+8}:{P+11}], v{vX1}, s[16:19], s{sOff} offen offset:2048 sc1')
        A('s_mov_b64 exec, -1')
    G0, G1 = 32, 36
    ok, slow, again = A.label('L_back_st'), A.label('L_stslow'), A.label('L_stagain')
    lds = [f'buffer_load_dwordx4 v[{G0}:{G0+3}], v{vL16}, s[16:19], s97 offen sc1',
           f'buffer_load_dwordx4 v[{G1}:{G1+3}], v{vL16}, s[16:19], s97 offen offset:1024 sc1']
    if before_stat:
        before_stat()
    for x in lds:
        A(x)
    if after_stat:
        after_stat()
    for u in range(10):
        A(f'v_cvt_pk_bf16_f32 v{PK+u}, v{TM+2*u}, v{TM+2*u+1}')
    swap_only(PK)
    chk = [f'v_and_b32 v44, v{G0+2}, v{G1+2}', 'v_cmp_eq_u32 vcc, 0, v44']
    for x in chk:
        A(x)
    A(f's_cbranch_vccnz {slow}')
    A(ok + ':')
    A.tail += [slow + ':', 's_mov_b32 s100, 0', again + ':'] + backoff() + lds + \
        ['s_add_u32 s100, s100, 1', f's_cmp_gt_u32 s100, {SPIN_MAX}', f's_cbranch_scc1 {ok}', 's_waitcnt vmcnt(0)'] + chk + \
        ['s_nop 1', f's_cbranch_vccnz {again}', f's_branch {ok}']
    stamp(A, 'stats in')
    swap_store(PK, 96, False)
    A(f'v_add_f32 v{a}, v{G0}, v{G1}')
    allsum(a, a + 1)
    A(f'''v_mul_f32 v{a}, {fbits(0.125)}, v{a}
    v_sub_f32 v{G0}, v{G0}, v{a}
    v_sub_f32 v{G1}, v{G1}, v{a}
    v_mul_f32 v{G0}, v{G0}, v{G0}
    v_fmac_f32 v{G0}, v{G1}, v{G1}
    v_add_f32 v{b}, v{G0+1}, v{G1+1}
    s_mov_b32 s99, {fbits(72.0)}
    v_fmac_f32 v{b}, s99, v{G0}''')
    allsum(b, b + 1)
    A(f'''s_mov_b32 s99, {fbits(1.0/576)}
    v_mov_b32 v{b+1}, {fbits(1e-5)}
    v_fmac_f32 v{b+1}, s99, v{b}
    v_rsq_f32 v{b}, v{b+1}''')
    for u in range(10):
        t = TM + 2 * u
        A(f'v_pk_add_f32 v[{t}:{t+1}], v[{t}:{t+1}], v[{a}:{a+1}] op_sel_hi:[1,0] neg_lo:[0,1] neg_hi:[0,1]')
    A(f's_mov_b32 s99, {fbits(-LOG2E)}\nv_mul_f32 v{b}, s99, v{b}')
    for u in range(10):
        t = TM + 2 * u
        A(f'v_pk_mul_f32 v[{t}:{t+1}], v[{t}:{t+1}], v[{b}:{b+1}] op_sel_hi:[1,0]')
    for u in range(10):
        t = TM + 2 * u
        A(f'v_pk_fma_f32 v[{t}:{t+1}], v[{t}:{t+1}], v[{SC+2*u}:{SC+2*u+1}], v[{SH+2*u}:{SH+2*u+1}]')
    P2 = OB
    for u in range(10):
        A(f'v_cvt_pk_bf16_f32 v{P2+u}, v{TM+2*u}, v{TM+2*u+1}')
    A(f's_add_u32 s96, s96, {WS_H2 - WS_X1}')
    swap_store(P2, 96)


def ph_b(A):
    srd(A, 16, sWS, WS_SIZE)
    for x in ph_b_dma(A):
        A(x)
    ph_b_pre(A)
    A.wait_all()
    A('s_barrier')
    ph_b_vec(A)
    ph_b_pre_frags(A)
    stamp(A, 'img landed')
    ph_b_main(A)
```

```python
from common import *
import ph_small as FS
import sys

NS = 10
WIN = 4
C_LDS = NS * 16384
BIAS = 4096

ACC = 16
HB = 144
vF = 216
vH = 228
vDG, vDH, vDD, vDE = 234, 235, 236, 237
vL16, vOUT = 238, 239
TMP = 240
OUTT = 248
aX = 0
aPH = 144
aFR = 216
sgG, sgU, sgGH, sgD, sgWS = 8, 12, 20, 24, 16

vT1, vT2 = 4, 5
OPT = dict(dma=True, fill=True, barrier=True, reads=True, pairs=False, NB=10, LA=6, LB=6, LAT=5, lag=0, wstep=4, bper=2, xburst=8, xpace=4, dlag=28, prefill=6,
           rush={0: 70, 1: 106, 2: 142, 3: 162, 4: 172}, pubdelay=64, pub3delay=64, pub3=1, sched=0, pf=[], touch=[], itouch=[], fin=(216, 223, 229, 233), d2hi=0, outrush={0: 203, 1: 210, 2: 225, 3: 241}, hxst=1, hxpub=1, hxld=1, outst=1,
           checks=[(1, (0, 1), 122, 128), (2, (2,), 154, 159), (3, (3,), 176, 182), (4, (4,), 184, 189)])


def steps():
    st = []
    for p in range(4):
        for k in range(18):
            st.append(dict(kind='g', p=p, k=k))
            st.append(dict(kind='u', p=p, k=k))
    for k in range(18):
        st.append(dict(kind='gh', p=4, k=k))

    def dn(db, ks, who=0):
        for a in ks:
            st.append(dict(kind='dn', p=db, a=a, who=who))
    if not OPT['pairs']:
        ND = 3
        for db in range(ND):
            dn(db, range(6))
        for db in range(ND):
            dn(db, range(6, 9))
        for db in range(ND, 9):
            dn(db, range(9))
    else:
        if OPT.get('late2'):
            dn(0, range(6)); dn(0, range(4), 1)
            dn(1, range(6)); dn(1, range(4), 1)
            dn(0, range(4, 6), 1); dn(1, range(4, 6), 1)
        else:
            dn(0, range(6)); dn(0, range(6), 1)
            dn(1, range(6)); dn(1, range(6), 1)
        dn(0, range(6, 9)); dn(1, range(6, 9))
        if OPT['sched'] == 0:
            dn(0, range(6, 9), 1); dn(1, range(6, 9), 1)
            dn(2, range(9)); dn(2, range(9), 1)
        else:
            dn(2, range(OPT['sched']))
            dn(0, range(6, 9), 1); dn(1, range(6, 9), 1)
            dn(2, range(OPT['sched'], 9)); dn(2, range(9), 1)
        dn(3, range(9)); dn(3, range(9), 1)
        for u in range(9):
            st.append(dict(kind='dh', p=4, u=u))
    seen = set()
    for e in st:
        if e['kind'] in ('dn', 'dh'):
            e['first'] = e['p'] not in seen
            seen.add(e['p'])
    seen = set()
    for e in reversed(st):
        if e['kind'] in ('dn', 'dh'):
            e['last'] = e['p'] not in seen
            seen.add(e['p'])
    return st


def down_acc(db):
    if not OPT['pairs']:
        tab = {0: ('a', aX), 1: ('a', aX + 32), 2: ('a', aX + 64)}
        return tab.get(db, ('v', ACC + 32 * ((db + 1) % 4)))
    return {0: ('a', aX), 1: ('a', aX + 32), 2: ('v', ACC + 80 if OPT.get('d2hi', 1) else ACC), 3: ('v', ACC + 32), 4: ('v', ACC + 64)}[db]


def ph_c_setup_s(A):
    A.comment('==== phase C: setup ====')
    srd(A, sgG, sWG, 576 * 9216, bias=BIAS)
    srd(A, sgU, sWU, 576 * 9216, bias=BIAS + 1024)
    A(f'''s_cmp_lt_u32 s{sW}, 2
    s_cselect_b32 s96, s{sWG}, s{sWU}
    s_cselect_b32 s97, s{sWG+1}, s{sWU+1}''')
    srd(A, sgGH, 96, 576 * 9216, bias=BIAS)
    srd(A, sgD, sWD, F * 1152, bias=BIAS)
    A(f'''s_and_b32 s96, s{sJ}, 1
    s_mul_i32 s97, s{sJ}, 288
    s_lshl_b32 s98, s96, 5
    s_add_u32 s98, s98, s97
    s_lshl_b32 s56, s98, 1
    s_mul_i32 s58, s98, 1152
    s_cmp_eq_u32 s96, 0
    s_cselect_b32 s98, 256, 0
    s_add_u32 s98, s98, s97
    s_lshl_b32 s57, s98, 1
    s_mul_i32 s59, s98, 1152
    s_lshl_b32 s60, s{sW}, 12''')
    if OPT['pairs']:
        A(f'''s_cmp_eq_u32 s96, 0
        s_mov_b32 s98, {-288*1152 & 0xffffffff}
        s_cmov_b32 s98, {320*1152}
        s_mov_b32 s99, {-32*1152 & 0xffffffff}
        s_cmov_b32 s99, {288*1152}
        s_cselect_b32 s52, 0, 640
        s_movk_i32 s53, 576
        s_cmov_b32 s53, 512
        s_mul_i32 s100, s97, 1152
        s_add_u32 s50, s100, s98
        s_add_u32 s51, s100, s99
        s_add_u32 s50, s50, s52
        s_add_u32 s51, s51, s52
        s_add_u32 s48, s59, s53
        s_add_u32 s49, s51, s53
        s_sub_u32 s49, s49, s52
        s_add_u32 s46, s58, s53
        s_add_u32 s47, s50, s53
        s_sub_u32 s47, s47, s52
        s_add_u32 s58, s58, s52
        s_add_u32 s59, s59, s52
        s_lshr_b32 s45, s{sW}, 1
        s_mul_i32 s45, s45, {32*1152}''')
    np_ = 8 if OPT['pairs'] else 16
    A(f'''s_mul_i32 s96, s{sG}, {np_}
    s_lshr_b32 s97, s{sJ}, {1 if OPT['pairs'] else 0}
    s_add_u32 s96, s96, s97
    s_lshl_b32 s96, s96, 3
    s_lshl_b32 s97, s{sW}, 1
    s_add_u32 s96, s96, s97
    s_mul_i32 s55, s96, {T16}
    s_add_u32 s55, s55, {WS_PART}
    s_mov_b32 s62, {fbits(-LOG2E)}''')
    if OPT['pairs']:
        A(f'''s_lshl_b32 s96, s53, 4
        s_add_u32 s54, s55, s96
        s_lshl_b32 s96, s52, 4
        s_add_u32 s55, s55, s96''')


sPFB = 91
vPG, vPD, aJ = 254, 255, 128
aJC = None


def pf_setup(A):
    if OPT.get('pfl'):
        A(f's_movk_i32 s{sPFB}, {BIAS}')
        return pfl_setup(A)
    A(f'''v_mul_u32_u24 v160, 57, v{vLANE}
    v_lshrrev_b32 v160, 9, v160
    v_mul_u32_u24 v161, 9, v160
    v_sub_u32 v161, v{vLANE}, v161
    s_lshl_b32 s96, s{sG}, 2
    s_add_u32 s96, s96, s{sW}
    s_mul_i32 s96, s96, 9
    v_add_u32 v161, s96, v161
    s_movk_i32 s97, 9216
    v_mul_lo_u32 v162, v161, s97
    v_lshlrev_b32 v163, 7, v160
    v_add_u32 v164, s56, v163
    v_mov_b32 v165, s57
    v_cmp_eq_u32 vcc, 4, v160
    v_cndmask_b32 v164, v164, v165, vcc
    v_add_u32 v{vPG}, v162, v164
    s_lshr_b32 s96, s{sJ}, 1
    s_mul_i32 s96, s96, 576
    v_add_u32 v161, s96, v161
    v_mul_u32_u24 v161, 1152, v161
    s_and_b32 s96, s{sJ}, 1
    s_lshl_b32 s96, s96, 9
    v_add_u32 v163, s96, v163
    v_add_u32 v{vPD}, v161, v163
    s_movk_i32 s{sPFB}, {BIAS}''')


vPH = 253


def pfl_setup(A):
    A(f'''v_mul_u32_u24 v160, 57, v{vLANE}
    v_lshrrev_b32 v160, 10, v160
    v_mul_u32_u24 v161, 18, v160
    v_sub_u32 v161, v{vLANE}, v161
    s_lshr_b32 s96, s{sG}, 1
    s_lshl_b32 s96, s96, 2
    s_add_u32 s96, s96, s{sW}
    s_mul_i32 s96, s96, 18
    v_add_u32 v161, s96, v161
    s_movk_i32 s97, 9216
    v_mul_lo_u32 v162, v161, s97
    v_lshlrev_b32 v163, 7, v160
    v_add_u32 v162, v162, v163
    v_add_u32 v{vPG}, s56, v162
    s_lshr_b32 s96, s{sJ}, 1
    s_mul_i32 s96, s96, 576
    v_add_u32 v161, s96, v161
    v_mul_u32_u24 v161, 1152, v161
    s_and_b32 s96, s{sJ}, 1
    s_lshl_b32 s96, s96, 9
    v_add_u32 v163, s96, v163
    v_add_u32 v{vPD}, v161, v163
    s_sub_u32 s90, s57, s56
    s_add_u32 s90, s90, {BIAS}''')


def pfl_ops(mats, p0, n, dst='v13'):
    m = (1 << (18 * n)) - 1
    r = [f's_mov_b32 exec_lo, {m & 0xffffffff}', f's_mov_b32 exec_hi, {m >> 32}']
    for c in mats:
        sg, v = {'g': (sgG, vPG), 'u': (sgU, vPG), 'd': (sgD, vPD)}[c]
        extra = 1024 if c == 'u' else 0
        if c != 'd' and p0 == 4:
            so, off = 's90', extra
        else:
            so, off = f's{sPFB}', extra + 128 * p0
        r.append(f'buffer_load_dword {dst}, v{v}, s[{sg}:{sg+3}], {so} offen offset:{off} nt')
    r.append('s_mov_b64 exec, -1')
    return r


def pf_ops(mats, lo, hi, dst='v13'):
    if OPT.get('pfl'):
        return pfl_ops(mats, lo, hi)
    m = ((1 << hi) - 1) ^ ((1 << lo) - 1)
    r = [f's_mov_b32 exec_lo, {m & 0xffffffff}', f's_mov_b32 exec_hi, {m >> 32}']
    for q, c in enumerate(mats):
        sg, v = {'g': (sgG, vPG), 'u': (sgU, vPG), 'd': (sgD, vPD)}[c]
        o = ' offset:1024' if c == 'u' else ''
        r.append(f'buffer_load_dword {dst}, v{v}, s[{sg}:{sg+3}], s{sPFB} offen{o}{" nt" if OPT.get("pfnt") else ""}')
    r.append('s_mov_b64 exec, -1')
    return r


def ph_c_setup_v(A):
    A(f'''v_lshrrev_b32 v4, 3, v{vLANE}
    v_and_b32 v5, 7, v{vLANE}
    v_bfe_u32 v6, v{vLANE}, 4, 1
    s_and_b32 s40, s{sW}, 1
    s_lshr_b32 s41, s{sW}, 1
    s_lshl_b32 s42, s40, 1
    v_add_u32 v6, s42, v6
    v_lshlrev_b32 v6, 1, v6
    v_xor_b32 v5, v5, v6
    v_lshlrev_b32 v5, 4, v5
    s_lshl_b32 s42, s{sW}, 3
    v_add_u32 v6, s42, v4
    s_movk_i32 s43, 9216
    v_mul_lo_u32 v6, v6, s43
    v_add_u32 v{vDG}, v6, v5
    v_lshrrev_b32 v6, 2, v4
    v_lshlrev_b32 v6, 4, v6
    v_and_b32 v7, 3, v4
    v_add_u32 v6, v6, v7
    s_lshl_b32 s42, s{sW}, 2
    v_add_u32 v6, s42, v6
    v_mul_u32_u24 v6, 1152, v6
    v_add_u32 v{vDD}, v6, v5''')
    A(f'''v_lshrrev_b32 v4, 2, v{vLANE}
    v_and_b32 v5, 3, v{vLANE}
    v_lshrrev_b32 v6, 5, v{vLANE}
    v_lshlrev_b32 v7, 1, v6
    v_xor_b32 v5, v5, v7
    v_lshlrev_b32 v5, 4, v5
    s_lshl_b32 s42, s40, 4
    v_add_u32 v7, s42, v4
    v_mul_lo_u32 v7, v7, s43
    v_add_u32 v{vDH}, v7, v5
    v_bfe_u32 v7, v4, 2, 1
    v_lshlrev_b32 v7, 4, v7
    v_lshl_add_u32 v7, v6, 2, v7
    v_and_b32 v8, 3, v4
    v_add_u32 v7, v7, v8
    s_lshl_b32 s42, s40, 3
    v_add_u32 v7, s42, v7
    v_mul_u32_u24 v7, 1152, v7
    v_add_u32 v{vDE}, v7, v5''')
    A(f'''v_lshrrev_b32 v4, 4, v{vLANE}
    v_bfe_u32 v5, v{vLANE}, 2, 2
    v_bfe_u32 v6, v{vLANE}, 1, 1
    v_and_b32 v7, 1, v{vLANE}
    v_lshlrev_b32 v7, 3, v7
    v_lshl_add_u32 v7, v6, 4, v7
    v_and_b32 v8, 1, v4
    v_lshlrev_b32 v9, 1, v8
    v_lshrrev_b32 v10, 1, v5
    v_add_u32 v9, v9, v10
    v_lshlrev_b32 v9, 5, v9
    v_xor_b32 v9, v9, v7
    v_lshl_add_u32 v9, v5, 7, v9
    v_lshl_add_u32 v9, v4, 12, v9
    v_lshlrev_b32 v10, 5, v8
    v_xor_b32 v10, v10, v7
    v_lshl_add_u32 v10, v5, 6, v10
    v_lshl_add_u32 v10, v8, 9, v10
    v_lshrrev_b32 v11, 1, v4
    v_lshl_add_u32 v10, v11, 12, v10''')
    for wd in range(3):
        A(f'v_add_u32 v{vF+4*wd}, {WIN*16384*wd}, v9')
        for ft in range(1, 4):
            A(f'v_xor_b32 v{vF+4*wd+ft}, {32*ft}, v{vF+4*wd}')
        A(f'v_add_u32 v{vH+2*wd}, {WIN*16384*wd}, v10')
        A(f'v_xor_b32 v{vH+2*wd+1}, 32, v{vH+2*wd}')
    A(f'''v_lshlrev_b32 v{vL16}, 4, v{vLANE}
    v_lshlrev_b32 v8, 1, v8
    v_or_b32 v8, v8, v11
    v_lshlrev_b32 v8, 8, v8
    v_and_b32 v9, 15, v{vLANE}
    v_lshl_add_u32 v{vOUT}, v9, 4, v8''')


def ph_c_setup(A):
    ph_c_setup_s(A)
    ph_c_setup_v(A)


def nt_step(e):
    m = OPT.get('dmant', 0)
    if m == 1:
        return True
    if m == 2:
        return not (e['kind'] in 'gu' and e['p'] < 2)
    if m == 4:
        return e['kind'] in 'gu' and e['p'] >= 2
    if m == 5:
        return e['kind'] in 'gu' and e['p'] >= 3
    if m == 3:
        return e['kind'] in ('dn', 'dh')
    return False


def dma_ops(st, n):
    if n >= len(st) or (not OPT['dma'] and n >= 28):
        return []
    e = st[n]
    slot, z = divmod(n, 4)
    r = []
    if z == 0:
        r.append(f's_add_u32 m0, s60, {(slot % NS) * 16384}')
    comp = BIAS - 1024 * z
    k = e['kind']
    if k in 'gu':
        if k == 'g':
            r.append(f's_add_u32 s61, s56, {comp + e["p"]*128 + e["k"]*32*9216}')
        else:
            assert z & 1 and st[n - 1]['kind'] == 'g'
        q, v = (sgG if k == 'g' else sgU), vDG
    elif k == 'gh':
        r.append(f's_add_u32 s61, s57, {comp + e["k"]*32*9216}')
        q, v = sgGH, vDH
    elif k == 'dn':
        full, half = ((58, 59), (50, 51))[e['who']]
        if e['a'] < 8:
            r.append(f's_add_u32 s61, s{full}, {comp + e["p"]*128 + e["a"]*32*1152}')
        else:
            r.append(f's_add_u32 s61, s{half}, {comp + e["p"]*128}')
        q, v = sgD, vDD
    else:
        offs = []
        for par in range(2):
            who, a = divmod(2 * e['u'] + par, 9)
            sreg = ((46, 48), (47, 49))[who][a == 8]
            offs.append((sreg, comp + (a % 8) * 32 * 1152))
        if offs[0][0] == offs[1][0]:
            r.append(f's_add_u32 s61, s{offs[0][0]}, s45')
            r.append(f's_add_u32 s61, s61, {offs[0][1]}')
        else:
            r.append(f's_add_u32 s61, s{offs[0][0]}, {offs[0][1]}')
            r.append(f's_add_u32 s44, s{offs[1][0]}, {offs[1][1]}')
            r.append(f's_cmp_lt_u32 s{sW}, 2\ns_cselect_b32 s61, s61, s44')
        q, v = sgD, vDE
    r.append(f'buffer_load_dwordx4 v{v}, s[{q}:{q+3}], s61 offen offset:{1024*z}{" nt" if nt_step(e) else ""} lds')
    return r


def mf_info(st, mu):
    n, e8 = divmod(mu, 8)
    fl, tt = divmod(e8, 2)
    e = st[n]
    slot, z = divmod(n, 4)
    win, sl = divmod(slot % NS, WIN)
    base = sl * 16384 + z * 1024
    k = e['kind']
    if k in 'gu':
        acc = ('v', ACC + 64 * (e['p'] & 1) + (32 if k == 'u' else 0) + 8 * fl + 4 * tt)
        b = ('a', aX + 72 * tt + 4 * e['k'])
        return acc, b, e['k'] == 0, vF + 4 * win + fl, [base + rd * 512 for rd in range(2)]
    if k == 'gh':
        mat, ft = divmod(fl, 2)
        acc = ('v', ACC + 32 * mat + 8 * ft + 4 * tt)
        b = ('a', aX + 72 * tt + 4 * e['k'])
        return acc, b, e['k'] == 0, vH + 2 * win + ft, [base + mat * 8192 + rd * 256 for rd in range(2)]
    ak, ab = down_acc(e['p'])
    if k == 'dn':
        acc = (ak, ab + 8 * fl + 4 * tt)
        b = ('v', HB + 8 * e['a'] + 4 * tt) if e['who'] == 0 else ('a', aPH + 8 * e['a'] + 4 * tt)
        return acc, b, e['first'], vF + 4 * win + fl, [base + rd * 512 for rd in range(2)]
    par, dt = divmod(fl, 2)
    who, a = divmod(2 * e['u'] + par, 9)
    acc = (ak, ab + 8 * dt + 4 * tt)
    b = ('v', HB + 8 * a + 4 * tt) if who == 0 else ('a', aPH + 8 * a + 4 * tt)
    return acc, b, e['first'] and par == 0, vH + 2 * win + dt, [base + par * 8192 + rd * 256 for rd in range(2)]


def act_ops(p):
    ops = []
    s = ACC + 64 * (p & 1)
    for ft in range(4 if p < 4 else 2):
        for tt in range(2):
            g = s + 8 * ft + 4 * tt
            u = g + 32
            h = HB + 8 * (2 * p + ft // 2) + 4 * tt + 2 * (ft & 1)
            T = TMP + 4 * tt
            r = range(4)
            ops += [(f'v_exp_f32 v{T+e}, v{g+e}', 2) for e in r]
            ops += [(f'v_add_f32 v{T+e}, 1.0, v{T+e}', 1) for e in r]
            ops += [(f'v_rcp_f32 v{T+e}, v{T+e}', 2) for e in r]
            ops += [(f'v_mul_f32 v{T+e}, v{u+e}, v{T+e}', 1) for e in r]
            ops += [(f'v_cvt_pk_bf16_f32 v{h+d}, v{T+2*d}, v{T+2*d+1}', 1) for d in range(2)]
    return ops


def out_ops(db, half=False):
    ops = []
    ak, ab = down_acc(db)
    for tt in range(2):
        for pr in range(1 if half else 2):
            P = OUTT + 4 * (pr & 1)
            for d in range(2):
                src = ab + 8 * (2 * pr + d) + 4 * tt
                if ak == 'a':
                    ops += [(f'v_accvgpr_read_b32 v{TMP+e}, a{src+e}', 1) for e in range(4)]
                    src = TMP
                ops += [(f'v_cvt_pk_bf16_f32 v{P+2*d+c}, v{src+2*c}, v{src+2*c+1}', 1) for c in range(2)]
            if pr == 0:
                off = tt * T16 + (0 if half else db * 2048)
                ops.append((f's_add_u32 s63, s{54 if half else 55}, {off}', 1))
            ops += [(f'v_permlane16_swap_b32 v{P}, v{P+2}', 2), (f'v_permlane16_swap_b32 v{P+1}, v{P+3}', 2)]
            if OPT['outst']:
              ops.append((f'buffer_store_dwordx4 v[{P}:{P+3}], v{vOUT}, s[{sgWS}:{sgWS+3}], s63 offen offset:{pr*1024} sc1', 2))
    return ops


sHXO, sHXP, sPFO, sPFP, sT = 52, 53, 7, 38, 39
vPF, vPV, vZ, vIL = 2, 3, 15, 12


def pair_setup(A):
    A(f'''s_lshl_b32 s40, s{sG}, 4
    s_add_u32 s40, s40, s{sJ}
    s_lshl_b32 s40, s40, 2
    s_add_u32 s40, s40, s{sW}
    s_xor_b32 s43, s40, 4
    s_mul_i32 s{sHXO}, s40, 18432
    s_add_u32 s{sHXO}, s{sHXO}, {WS_HX}
    s_mul_i32 s{sHXP}, s43, 18432
    s_add_u32 s{sHXP}, s{sHXP}, {WS_HX}
    s_lshl_b32 s{sPFO}, s40, {FSC[1]}
    s_add_u32 s{sPFO}, s{sPFO}, {WS_PF}
    s_lshl_b32 s{sPFP}, s43, {FSC[1]}
    s_add_u32 s{sPFP}, s{sPFP}, {WS_PF}
    v_mov_b32 v{vZ}, 0''')


sS3O, sS3C, sTB = 3, 4, 5
vT1, vT2, vFA, vFV = 4, 5, 6, 7


def tail_setup(A):
    flag_base(A, sS3O, 2, sW)
    A(f's_lshl_b32 s40, s{sJ}, {FSC[0]}\ns_add_u32 s{sS3O}, s{sS3O}, s40\ns_lshr_b32 s40, s{sJ}, 2')
    flag_base(A, sS3C, 2, 40)
    A(f'''s_mul_i32 s{sTB}, s{sG}, {64*T16}
    s_lshr_b32 s40, s{sJ}, 1
    s_mul_i32 s40, s40, {T16}
    s_add_u32 s{sTB}, s{sTB}, s40
    s_and_b32 s40, s{sJ}, 1
    s_lshl_b32 s40, s40, 7
    s_add_u32 s{sTB}, s{sTB}, s40
    s_mul_i32 s40, s{sW}, {16*T16}
    s_add_u32 s{sTB}, s{sTB}, s40
    s_add_u32 s{sTB}, s{sTB}, {WS_PART}
    v_and_b32 v{vFA}, 15, v{vLANE}
    v_lshrrev_b32 v8, 5, v{vLANE}
    v_mul_u32_u24 v8, {8*T16}, v8
    v_bfe_u32 v9, v{vLANE}, 4, 1
    v_mul_u32_u24 v10, 24, v9
    v_and_b32 v11, 31, v{vLANE}
    v_add_u32 v10, v10, v11
    v_lshl_add_u32 v{vT1}, v10, 8, v8
    v_mul_u32_u24 v8, {8*T16}, v9
    v_bfe_u32 v9, v{vLANE}, 3, 1
    v_lshlrev_b32 v9, 5, v9
    v_add3_u32 v9, v9, v{vFA}, 16
    v_lshl_add_u32 v{vT2}, v9, 8, v8
    v_lshlrev_b32 v{vFA}, {FSC[0]}, v{vFA}''')


def hx_store_ops(p):
    n = 4 if p < 4 else 2
    ops = [(f's_add_u32 s{sT}, s{sHXO}, {4096*p}', 1)]
    for q in range(n):
        r = HB + 16 * p + 4 * q
        ops.append((f'buffer_store_dwordx4 v[{r}:{r+3}], v{vL16}, s[{sgWS}:{sgWS+3}], s{sT} offen offset:{1024*q} sc1', 2))
    return ops


def hx_load_ops(p):
    n = 4 if p < 4 else 2
    ops = [f's_add_u32 s43, s{sHXP}, {4096*p}']
    for q in range(n):
        r = aPH + 16 * p + 4 * q
        ops.append(f'buffer_load_dwordx4 a[{r}:{r+3}], v{vL16}, s[{sgWS}:{sgWS+3}], s43 offen offset:{1024*q} sc1')
    return ops


class Ring:
    def __init__(self, A):
        self.A = A
        self.st = steps()
        self.marks = {}

    def issue(self, n):
        for x in dma_ops(self.st, n):
            self.A(x)
        if n % 4 == 3 or n == len(self.st) - 1:
            self.marks[n // 4] = self.A.mark()


def ph_c_prefill(A, R, s0, s1):
    for n in range(int(4 * s0), int(4 * s1)):
        R.issue(n)


def ph_c_xload(A):
    A(f'''s_lshl_b32 s40, s{sG}, 3
    s_lshl_b32 s41, s{sW}, 1
    s_add_u32 s40, s40, s41
    s_mul_i32 s41, s40, {T16}
    s_add_u32 s41, s41, {WS_H2}
    s_add_u32 s42, s41, {T16}''')
    ops = []
    for k in range(18):
        for tt in range(2):
            r = aX + 72 * tt + 4 * k
            ops.append(f'buffer_load_dwordx4 a[{r}:{r+3}], v{vL16}, s[{sgWS}:{sgWS+3}], s{41+tt} offen offset:{1024*(k%4)} sc1')
        if k % 4 == 3:
            ops.append('s_add_u32 s41, s41, 4096')
            ops.append('s_add_u32 s42, s42, 4096')
    return ops


def ph_c_stream(A, R, prefilled, xops):
    st = R.st
    NST = len(st)
    NM = 8 * NST
    NF = 4 * NST
    info = [mf_info(st, mu) for mu in range(NM)]
    NB, LA, WS_ = OPT['NB'], OPT['LA'], OPT['wstep']
    global aFR
    aFR = 256 - 4 * NB

    def reads(phi):
        if not OPT['reads'] and phi >= 8:
            return [None, None]
        acc, b, first, va, offs = info[2 * phi]
        f = aFR + 4 * (phi % NB)
        return [f'ds_read_b64_tr_b16 a[{f+2*rd}:{f+2*rd+1}], v{va} offset:{offs[rd]}' for rd in range(2)]

    BP = OPT['bper']

    def boundary(slot):
        A.wait_vm_mark(R.marks[min(slot + BP - 1, (NST - 1) // 4)])
        if OPT['barrier']:
            A('s_barrier')

    def deadline(ins, mu0):
        d, u = set(ins.defs), set(ins.uses)
        for mu in range(mu0, NM):
            acc, b, first, va, offs = info[mu]
            if d & set(rl(b[0], b[1], 4)):
                return mu
            if first and u & set(rl(acc[0], acc[1], 4)):
                return mu
        return NM + 40

    xq = list(xops)

    def xissue():
        while xq[0].startswith('s_'):
            A(xq.pop(0))
        A(xq.pop(0))
        while xq and xq[0].startswith('s_'):
            A(xq.pop(0))
    for k in range(OPT['xburst']):
        xissue()
    boundary(0)
    stamp(A, 'slot0 landed')
    for phi in range(LA):
        for x in reads(phi):
            A(x)
    pairs = OPT['pairs'] and OPT['fill']
    events = []
    hxq = []
    got = set()

    def ev_publish(val, mark):
        def f():
            A.wait_vm_mark(mark())
            A(f'v_mov_b32 v{vPV}, {val}\ns_mov_b64 exec, 1')
            A(f'buffer_store_dword v{vPV}, v{vZ}, s[{sgWS}:{sgWS+3}], s{sPFO} offen sc1')
            A('s_mov_b64 exec, -1')
        return f

    def ev_flagload():
        A(f'buffer_load_dword v{vPF}, v{vZ}, s[{sgWS}:{sgWS+3}], s{sPFP} offen sc1')

    def ev_check(val, blocks):
        def f():
            slow, back, again = A.label('L_slow'), A.label('L_back'), A.label('L_again')
            A(f'v_readfirstlane_b32 s40, v{vPF}')
            A(f's_cmp_ge_u32 s40, {val}')
            if Stamps.on:
                A(f's_cselect_b32 s88, 1, 0\nv_writelane_b32 v14, s88, {50+val}')
            A(f's_cbranch_scc0 {slow}')
            A(back + ':')
            A.tail += [slow + ':', 's_mov_b32 s44, 0', again + ':'] + backoff() + [
                       f'buffer_load_dword v{vPF}, v{vZ}, s[{sgWS}:{sgWS+3}], s{sPFP} offen sc1',
                       's_add_u32 s44, s44, 1', f's_cmp_gt_u32 s44, {SPIN_MAX}', f's_cbranch_scc1 {back}',
                       's_waitcnt vmcnt(0)', f'v_readfirstlane_b32 s40, v{vPF}', 's_nop 1', f's_cmp_ge_u32 s40, {val}',
                       f's_cbranch_scc0 {again}', f's_branch {back}']
            for p in blocks:
                if OPT['hxld']:
                    hxq.extend(hx_load_ops(p))
        return f
    def ev_pub3(val, mark):
        def f():
            A.wait_vm_mark(mark())
            A(f'v_mov_b32 v{vPV}, {val}\ns_mov_b64 exec, 1')
            A(f'buffer_store_dword v{vPV}, v{vZ}, s[{sgWS}:{sgWS+3}], s{sS3O} offen sc1')
            A('s_mov_b64 exec, -1')
        f.optional = True
        return f

    def ev_flag3():
        assert not slowq, 'final set-up not finished'
        A(f'buffer_load_dword v9, v8, s[{sgWS}:{sgWS+3}], s{sS3C} offen sc1')

    def ev_early():
        A('v_cmp_gt_u32 vcc, 1, v9')
        A('s_cmp_eq_u64 vcc, 0')
        A(f's_cselect_b32 s{FS.sVALID}, 1, 0')
        A(f's_cselect_b32 s6, s98, {WS_XH}')
        if Stamps.on:
            A(f'v_writelane_b32 v14, s{FS.sVALID}, 41')
        busy = set(rl('v', FS.P0, 32))
        assert not any(busy & set(Ins(x).uses) for x, c, d in fill if c), 'stage-1 loads would overwrite live accumulators'
        slowq.extend(FS.parts_ops(52, FS.P0, 6))
    slowq = []
    if pairs and OPT['fin']:
        n0, n1, n2, n3 = OPT['fin']
        def ev_setup():
            assert all(st[q]['kind'] == 'dh' for q in pend if q < NST) and not any(isinstance(x, str) and 'v236' in x for x in misc)
            slowq.extend(FS.final_setup_ops())
        events.append([8 * n0, ev_setup])
        def ev_sides():
            busy = set(rl('v', FS.X0, 36))
            assert not any(busy & set(Ins(x).uses) for x, c, d in fill if c), 'side loads would overwrite live accumulators'
            slowq.extend(FS.side_ops(52, FS.X0) + FS.side_ops(53, FS.X1) + FS.side_ops(58, FS.X2))
        events.append([8 * n1, ev_sides])
        events.append([8 * n2 + 2, ev_flag3])
        events.append([8 * n3 + 3, ev_early])
    for (n_, tgt) in OPT['itouch']:
        events.append([8 * n_ + 4, (lambda tgt=tgt: [A(x) for x in itouch(f'L_back_step{tgt}', vIL, 'v13')])])
    for (n_, mats, lo, hi) in OPT['pf']:
        events.append([8 * n_ + 6, (lambda mats=mats, lo=lo, hi=hi: [A(x) for x in pf_ops(mats, lo, hi)])])
    if pairs and OPT['hxpub']:
        for (val, blocks, nload, ncheck) in OPT['checks']:
            events.append([8 * nload + 2, ev_flagload])
            events.append([8 * ncheck + 3, ev_check(val, blocks)])
    fill = []
    misc = []
    pend = list(range(4 * prefilled, 4 * (NS - 1)))
    credit = 0.0
    forced = 0
    LB, LAT = OPT['LB'], OPT['LAT']
    nr = 2 * LA
    open_frag = 16 * BP
    next_ld = 0
    for mu in range(NM):
        n, e8 = divmod(mu, 8)
        e = st[n]
        phi, tt = divmod(mu, 2)
        acc, b, first, va, offs = info[mu]
        f = aFR + 4 * (phi % NB)
        if e8 == 0:
            A(f'L_back_step{n}:')
        if e8 == 0 and n in (36, 72, 108, 144, 162, 180, 198, 216, 234):
            stamp(A, f'step {n}')
        if e8 == 4 and n > 0 and OPT['fill']:
            pe = st[n - 1]
            new = []
            if pe['kind'] == 'u' and pe['k'] == 17 or pe['kind'] == 'gh' and pe['k'] == 17:
                new = act_ops(pe['p'])
            elif pe['kind'] in ('dn', 'dh') and pe['last']:
                new = out_ops(pe['p'], pe['kind'] == 'dh')
                if pairs and OPT['pub3'] and pe['p'] in (1, 2):
                    new.append((('pub3', pe['p']), 0))
            rush = NM + 40
            if new and pairs and pe['kind'] == 'dn':
                rush = 8 * OPT['outrush'][pe['p']]
            if new and pairs and pe['kind'] in ('u', 'gh'):
                p = pe['p']
                if OPT['hxst']:
                    new = new + hx_store_ops(p)
                rush = 8 * OPT['rush'][p]
                if p >= 1 and OPT['hxpub']:
                    new.append((('pub', p), 0))
            for x, c in new:
                fill.append([x, c, min(rush, deadline(Ins(x), mu + 1)) if c else rush])
            for q in range(len(fill) - 2, -1, -1):
                fill[q][2] = min(fill[q][2], fill[q + 1][2])
        def emit_fill():
            x, c, d = fill.pop(0)
            if isinstance(x, tuple):
                mk = A.mark()
                events.append([mu + OPT['pubdelay' if x[0] == 'pub' else 'pub3delay'], (ev_publish if x[0] == 'pub' else ev_pub3)(x[1], lambda: mk)])
            else:
                A(x)
            return c
        while fill and fill[0][2] <= mu:
            emit_fill(); forced += 1
        if pairs and OPT['hxld'] and OPT['hxpub'] and b[0] == 'a' and b[1] >= aPH:
            assert b[1] in got, ('partner fragment not loaded yet', mu // 8, b)
        cin = '0' if first else f'{acc[0]}[{acc[1]}:{acc[1]+3}]'
        A(f'v_mfma_f32_16x16x32_bf16 {acc[0]}[{acc[1]}:{acc[1]+3}], a[{f}:{f+3}], {b[0]}[{b[1]}:{b[1]+3}], {cin}')
        cap = 2
        pb = phi + LB
        if tt == 0 and pb < NF and pb % (16 * BP) == 0:
            slot = pb // 16
            boundary(slot); cap -= 2
            open_frag = min(NF, 16 * (slot + BP))
            for q in range(slot - 1 - BP + NS, slot - 1 + NS):
                pend += [4 * q + z for z in range(4)]
        wait_next = tt == 1 and (phi + 1) % WS_ == 0 and phi + 1 < NF
        if wait_next:
            cap -= 1

        def rd_ok():
            return nr < 2 * NF and nr // 2 < open_frag and mu >= 2 * (nr // 2 - NB) + 1

        def rd_emit():
            nonlocal nr
            x = reads(nr // 2)[nr % 2]
            if x:
                A(x)
            nr += 1
        while nr < 2 * NF and mu >= 2 * (WS_ * ((nr // 2) // WS_)) - 1 - LAT:
            assert rd_ok(), (mu, nr)
            rd_emit(); cap -= 1
        for ev in [ev for ev in events if ev[0] <= mu]:
            events.remove(ev)
            ev[1](); cap -= 2
        if not misc and pend and (not xq or len(pend) > OPT['dlag']) and (e8 == 0 or (e8 in (3, 5) and len(pend) > 4 * BP)):
            nd = pend.pop(0)
            misc = dma_ops(st, nd)
            if nd % 4 == 3 or nd == NST - 1:
                misc.append(('mark', nd // 4))

        def marks():
            while misc and isinstance(misc[0], tuple):
                R.marks[misc.pop(0)[1]] = A.mark()
        marks()
        if fill:
            credit += max((q + 1) / max(1, d - mu) for q, (x, c, d) in enumerate(fill))
        else:
            credit = 0.0
        paced = mu >= next_ld
        while True:
            big = small = None
            if paced and xq:
                big = 'x'
            elif paced and hxq and not hxq[0].startswith('s_'):
                big = 'h'
            elif paced and slowq and slowq[0].startswith('buffer'):
                big = 's'
            elif misc and misc[0].startswith('buffer'):
                big = 'm'
            elif fill and fill[0][1] == 2:
                big = 'f'
            if hxq and hxq[0].startswith('s_'):
                small = 'h'
            elif misc and not misc[0].startswith('buffer'):
                small = 'm'
            elif slowq and not slowq[0].startswith('buffer'):
                small = 's'
            elif fill and fill[0][1] < 2:
                small = 'f'
            if small == 'h':
                A(hxq.pop(0)); cap -= 1
                continue
            behind = nr <= 2 * (phi + LA) + tt
            late = big in ('x', 'h', 's') and mu >= next_ld + 2 or big == 'm' and e8 >= 3
            lag = 2 * (phi + LA) + tt + 1 - nr
            if big and ((cap >= 2 and (lag <= OPT['lag'] or not rd_ok())) or late):
                pick = big
                cap -= 2
            elif cap <= 0:
                break
            elif rd_ok() and (behind or not small or big):
                rd_emit(); cap -= 1
                continue
            elif small:
                pick = small
                cap -= 1
            else:
                break
            if pick == 'x':
                xissue(); next_ld = mu + OPT['xpace']; paced = False
            elif pick == 'h':
                if not hxq[0].startswith('s_'):
                    got.add(Ins(hxq[0]).defs[0][1]); next_ld = mu + OPT['xpace']; paced = False
                A(hxq.pop(0))
            elif pick == 's':
                if slowq[0].startswith('buffer'):
                    next_ld = mu + 4; paced = False
                A(slowq.pop(0))
            elif pick == 'm':
                A(misc.pop(0)); marks()
            else:
                if emit_fill() == 0:
                    cap += 1
                credit = max(0.0, credit - 1.0)
        while fill and credit >= 1.0 and (fill[0][1] < 2 or credit >= 2.0):
            emit_fill()
            credit -= 1.0
        if wait_next:
            A.wait_regs([r for q in range(WS_) for r in rl('a', aFR + 4 * ((phi + 1 + q) % NB), 4)])
    stamp(A, 'mfma done')
    last = st[-1]
    for x in slowq:
        A(x)
    assert not hxq and all(getattr(ev[1], 'optional', False) for ev in events)
    for x, c, d in fill:
        A(x)
    for x, c in out_ops(last['p'], last['kind'] == 'dh'):
        A(x)
    print('phase C: forced', forced, 'tail', len(fill), file=sys.stderr)


def ph_c(A):
    A.junk = ('v', 13)
    srd(A, sgWS, sWS, WS_SIZE)
    ph_c_setup(A)
    R = Ring(A)
    ph_c_prefill(A, R, 0, OPT['prefill'])
    xops = ph_c_xload(A)
    if OPT['pairs']:
        pair_setup(A)
        tail_setup(A)
    stamp(A, 'prologue')
    ph_c_stream(A, R, OPT['prefill'], xops)
```

```python
from common import *
from ph_small import ph_mod
from ph_a import mod_table

PT = [(0, 1, 2, 3), (4, 13, 10, 11), (12, 21, 14, 23), (20, 24, 22, 22)]
N_MOD, N_XH, N_WQ, N_WO = 108, 64, 144, 40
N_PREP = N_MOD + N_XH + N_WQ + N_WO
PREP_LDS = 4 * 9216


def task_xhat(A, sI):
    A.comment('---- prep: xhat')
    X, T, P = 16, 56, 136
    srd(A, 8, sX, S * D * 2)
    srd(A, 16, sWS, WS_SIZE)
    A(f'''v_lshrrev_b32 v4, 3, v{vLANE}
    v_and_b32 v5, 7, v{vLANE}
    v_mul_u32_u24 v2, 1152, v4
    v_lshl_add_u32 v2, v5, 4, v2
    s_lshl_b32 s40, s{sI}, 2
    s_add_u32 s40, s40, s{sW}
    s_mul_i32 s41, s40, {8*1152}''')
    for n in range(9):
        A(f'buffer_load_dwordx4 v[{X+4*n}:{X+4*n+3}], v2, s[8:11], s41 offen offset:{128*n}{NT[0]}')
    A(f'''s_mul_i32 s42, s{sW}, 9216
    v_xor_b32 v6, v4, v5
    v_lshlrev_b32 v6, 4, v6
    v_add_u32 v6, s42, v6
    v_lshl_add_u32 v7, v4, 7, v6
    v_lshl_add_u32 v6, v5, 7, v6
    v_lshlrev_b32 v3, 9, v4
    v_lshl_add_u32 v3, v5, 4, v3
    s_mul_i32 s43, s{sI}, 36864
    s_lshl_b32 s44, s{sW}, 7
    s_add_u32 s43, s43, s44
    s_add_u32 s43, s43, {WS_XH}''')
    A(f'''s_lshr_b32 s46, s40, 1
    s_mul_i32 s46, s46, {T16}
    s_and_b32 s47, s{sW}, 1
    s_lshl_b32 s47, s47, 7
    s_add_u32 s46, s46, s47
    s_add_u32 s46, s46, {WS_XT}
    v_lshlrev_b32 v15, 8, v4
    v_lshl_add_u32 v15, v5, 4, v15''')
    for n in range(9):
        A(f'ds_write_b128 v6, v[{X+4*n}:{X+4*n+3}] offset:{1024*n}')
        for d in range(4):
            unpack(A, T + 8 * n + 2 * d, T + 8 * n + 2 * d + 1, X + 4 * n + d)
    for n in range(9):
        A(f'ds_read_b128 v[{X+4*n}:{X+4*n+3}], v7 offset:{1024*n}')
    a, q = 8, 10

    def sum8(r):
        A(f'v_add_f32_dpp v{r}, v{r}, v{r} quad_perm:[1,0,3,2] row_mask:0xf bank_mask:0xf')
        A(f'v_add_f32_dpp v{r}, v{r}, v{r} quad_perm:[2,3,0,1] row_mask:0xf bank_mask:0xf')
        A(f'v_add_f32_dpp v{r}, v{r}, v{r} row_half_mirror row_mask:0xf bank_mask:0xf')
    A(f'v_pk_add_f32 v[{a}:{a+1}], v[{T}:{T+1}], v[{T+2}:{T+3}]')
    A(f'v_pk_add_f32 v[{q}:{q+1}], v[{T+4}:{T+5}], v[{T+6}:{T+7}]')
    for u in range(4, 36):
        r = a if u & 1 else q
        A(f'v_pk_add_f32 v[{r}:{r+1}], v[{r}:{r+1}], v[{T+2*u}:{T+2*u+1}]')
    A(f'v_pk_add_f32 v[{a}:{a+1}], v[{a}:{a+1}], v[{q}:{q+1}]')
    A(f'v_add_f32 v{a}, v{a}, v{a+1}')
    sum8(a)
    for n in range(9):
        A(f'buffer_store_dwordx4 v[{X+4*n}:{X+4*n+3}], v15, s[16:19], s46 offen offset:{2048*(n&1)}')
        if n & 1:
            A('s_add_u32 s46, s46, 4096')
    A(f's_mov_b32 s45, {fbits(1.0/576)}\nv_mul_f32 v{a}, s45, v{a}')
    for u in range(36):
        t = T + 2 * u
        A(f'v_pk_add_f32 v[{t}:{t+1}], v[{t}:{t+1}], v[{a}:{a+1}] op_sel_hi:[1,0] neg_lo:[0,1] neg_hi:[0,1]')
    b = 12
    A(f'v_pk_mul_f32 v[{q}:{q+1}], v[{T}:{T+1}], v[{T}:{T+1}]')
    A(f'v_pk_mul_f32 v[{b}:{b+1}], v[{T+2}:{T+3}], v[{T+2}:{T+3}]')
    for u in range(2, 36):
        r = b if u & 1 else q
        t = T + 2 * u
        A(f'v_pk_fma_f32 v[{r}:{r+1}], v[{t}:{t+1}], v[{t}:{t+1}], v[{r}:{r+1}]')
    A(f'v_pk_add_f32 v[{q}:{q+1}], v[{q}:{q+1}], v[{b}:{b+1}]')
    A(f'v_add_f32 v{q}, v{q}, v{q+1}')
    sum8(q)
    A(f'''v_mov_b32 v{q+1}, {fbits(1e-5)}
    v_fmac_f32 v{q+1}, s45, v{q}
    v_rsq_f32 v{a}, v{q+1}
    s_mov_b32 s48, 0xffff
    s_mov_b32 s47, 0x7fffffff''')
    for n in range(9):
        for d in range(4):
            t = T + 8 * n + 2 * d
            A(f'v_pk_mul_f32 v[{t}:{t+1}], v[{t}:{t+1}], v[{a}:{a+1}] op_sel_hi:[1,0]')
        ts = [T + 8 * n + 2 * d for d in range(4)]
        for t in ts:
            A(f'v_cvt_pk_bf16_f32 v{t}, v{t}, 0')
        for d, t in enumerate(ts):
            A(f'v_and_b32 v{X+4*n+d}, s47, v{t+1}')
        for d, t in enumerate(ts):
            A(f'v_add_u32 v{X+4*n+d}, 0x8000, v{X+4*n+d}')
        for d, t in enumerate(ts):
            A(f'v_sub_u32 v{X+4*n+d}, v{X+4*n+d}, v{t} clamp')
        for d, t in enumerate(ts):
            A(f'v_bfi_b32 v{X+4*n+d}, s47, v{X+4*n+d}, v{t+1}')
        for d, t in enumerate(ts):
            A(f'v_bfi_b32 v{X+4*n+d}, s48, v{t}, v{X+4*n+d}')
        A(f'ds_write_b128 v6, v[{X+4*n}:{X+4*n+3}] offset:{1024*n}')
    for n in range(9):
        A(f'ds_read_b128 v[{X+4*n}:{X+4*n+3}], v7 offset:{1024*n}')
    for n in range(9):
        A(f'buffer_store_dwordx4 v[{X+4*n}:{X+4*n+3}], v3, s[16:19], s43 offen')
        if n < 8:
            A('s_add_u32 s43, s43, 4096')


def task_wq(A, sI):
    A.comment('---- prep: qkv weight tiles')
    srd(A, 12, sWQKV, 576 * 3456)
    srd(A, 16, sWS, WS_SIZE)
    A(f'''v_mul_u32_u24 v4, 69, v{vLANE}
    v_lshrrev_b32 v4, 10, v4
    v_mul_u32_u24 v5, 15, v4
    v_sub_u32 v5, v{vLANE}, v5
    v_mul_u32_u24 v6, 13, v5
    v_lshrrev_b32 v6, 6, v6
    v_mul_u32_u24 v7, 5, v6
    v_sub_u32 v7, v5, v7
    v_mul_u32_u24 v4, 3456, v4
    v_mul_u32_u24 v6, 1152, v6
    v_add_u32 v4, v4, v6
    v_lshl_add_u32 v2, v7, 4, v4
    s_lshr_b32 s40, s{sI}, 2
    s_and_b32 s41, s{sI}, 3
    s_lshl_b32 s41, s41, 2
    s_add_u32 s41, s41, s{sW}
    s_mul_i32 s42, s41, 72
    s_and_b32 s42, s42, 0xfffffff0
    s_mul_i32 s43, s40, {16*3456}
    s_add_u32 s42, s42, s43
    s_mul_i32 s44, s{sW}, 3840
    s_mov_b32 exec_hi, 0x0fffffff''')
    for i in range(4):
        A(f's_add_u32 m0, s44, {960*i}')
        A(f's_add_u32 s45, s42, {4*3456*i}')
        A(f'buffer_load_dwordx4 v2, s[12:15], s45 offen{NT[0]} lds')
    A('s_mov_b32 exec_hi, -1')
    wq_extra(A, sI)
    A(f'''v_lshrrev_b32 v4, 5, v{vLANE}
    v_bfe_u32 v5, v{vLANE}, 2, 2
    v_and_b32 v6, 3, v{vLANE}
    v_bfe_u32 v7, v{vLANE}, 4, 1
    v_lshlrev_b32 v7, 1, v7
    v_lshrrev_b32 v9, 1, v6
    v_add_u32 v7, v7, v9
    v_lshlrev_b32 v7, 3, v7
    v_and_b32 v8, 1, v6
    v_lshlrev_b32 v8, 2, v8
    s_and_b32 s50, s41, 1
    v_add_u32 v8, s50, v8
    v_lshl_add_u32 v9, v4, 3, v5
    v_mul_u32_u24 v9, 240, v9
    v_add_u32 v9, s44, v9''')
    packs = [t[0] | t[1] << 8 | t[2] << 16 | t[3] << 24 for t in PT]
    for T in range(4):
        A(f'''s_mov_b32 s52, {packs[T]}
        v_bfe_u32 v10, s52, v7, 8
        v_add_u32 v10, v10, v8
        v_lshl_add_u32 v{12+T}, v10, 3, v9''')
    A(f'''v_lshlrev_b32 v3, 4, v{vLANE}
    v_and_b32 v10, 31, v{vLANE}
    v_mul_u32_u24 v11, 24, v4
    v_add_u32 v11, v11, v10
    v_lshlrev_b32 v11, 4, v11
    s_mul_i32 s46, s41, {WQ_J}
    s_mul_i32 s47, s40, 3840
    s_add_u32 s46, s46, s47
    s_add_u32 s46, s46, {WS_WQ}''')
    A.wait_all()
    for T in range(4):
        for rd in range(2):
            A(f'ds_read_b64_tr_b16 v[{16+4*T+2*rd}:{17+4*T+2*rd}], v{12+T} offset:{960*rd}')
    for T in range(3):
        A(f'buffer_store_dwordx4 v[{16+4*T}:{19+4*T}], v3, s[16:19], s46 offen offset:{1024*T}')
    A('s_mov_b32 exec_lo, 0x00ffffff\ns_mov_b32 exec_hi, 0x00ffffff')
    A('buffer_store_dwordx4 v[28:31], v11, s[16:19], s46 offen offset:3072')
    A('s_mov_b64 exec, -1')


def task_wo(A, sI):
    A.comment('---- prep: wo tiles')
    srd(A, 20, sWO, 576 * 1152)
    A(f'''s_lshl_b32 s40, s{sI}, 2
    s_add_u32 s40, s40, s{sW}
    s_lshr_b32 s41, s40, 3
    s_and_b32 s42, s40, 7
    s_mul_i32 s43, s42, 144
    s_mul_i32 s44, s{sW}, 4864
    v_lshrrev_b32 v4, 3, v{vLANE}
    v_and_b32 v5, 7, v{vLANE}
    v_lshlrev_b32 v5, 4, v5
    v_mul_u32_u24 v6, 1152, v4
    v_add_u32 v6, v6, v5
    v_lshlrev_b32 v7, 2, v4
    s_mov_b32 s45, 0x76543210
    v_lshrrev_b32 v7, v7, s45
    v_and_b32 v7, 15, v7
    v_lshlrev_b32 v9, 2, v4
    s_mov_b32 s45, 0x00002211
    v_lshrrev_b32 v9, v9, s45
    v_and_b32 v9, 15, v9
    v_lshl_add_u32 v7, v9, 4, v7
    v_mul_u32_u24 v8, 1152, v7
    v_add_u32 v8, v8, v5
    s_lshl_b32 s45, s41, 2''')
    for q in range(4):
        A(f'''s_add_u32 s47, s45, {q}
        s_mul_i32 s48, s47, 205
        s_lshr_b32 s48, s48, 10
        s_mul_i32 s49, s48, 5
        s_sub_u32 s49, s47, s49
        s_lshr_b32 s50, s49, 1
        s_mul_i32 s50, s50, 18
        s_and_b32 s51, s49, 1
        s_lshl_b32 s51, s51, 3
        s_add_u32 s50, s50, s51
        s_mul_i32 s48, s48, 36
        s_cmp_eq_u32 s49, 4
        s_cselect_b32 s50, 0, s50
        s_cselect_b64 vcc, -1, 0
        s_add_u32 s50, s50, s48
        s_mul_i32 s50, s50, 1152
        s_add_u32 s{52+q}, s50, s43
        v_cndmask_b32 v{10+q}, v6, v8, vcc
        s_add_u32 m0, s44, {1024*q}
        s_nop 0
        buffer_load_dwordx4 v{10+q}, s[20:23], s{52+q} offen{NT[0]} lds''')
    A(f'''v_and_b32 v14, 7, v{vLANE}
    v_lshlrev_b32 v14, 5, v14
    v_bfe_u32 v15, v{vLANE}, 3, 2''')
    for q in range(4):
        A(f'v_add_u32 v{10+q}, s{52+q}, v{10+q}')
    for q in range(4):
        A(f'ds_bpermute_b32 v{16+q}, v14, v{10+q}')
    A(f'''v_cmp_eq_u32 vcc, 1, v15
    v_cndmask_b32 v16, v16, v17, vcc
    v_cmp_eq_u32 vcc, 2, v15
    v_cndmask_b32 v16, v16, v18, vcc
    v_cmp_eq_u32 vcc, 3, v15
    v_cndmask_b32 v16, v16, v19, vcc
    s_add_u32 m0, s44, 4096
    s_mov_b32 exec_hi, 0
    buffer_load_dwordx4 v16, s[20:23], 0 offen offset:128{NT[0]} lds
    s_mov_b32 exec_hi, -1''')
    srd(A, 16, sWS, WS_SIZE)
    A(f'''v_lshrrev_b32 v4, 4, v{vLANE}
    v_bfe_u32 v5, v{vLANE}, 2, 2
    v_lshl_add_u32 v4, v4, 3, v5
    v_and_b32 v5, 3, v{vLANE}
    v_lshlrev_b32 v6, 7, v4
    v_lshl_add_u32 v6, v5, 3, v6
    v_add_u32 v6, s44, v6
    v_and_b32 v5, 1, v5
    v_lshlrev_b32 v7, 4, v4
    v_lshl_add_u32 v7, v5, 3, v7
    v_add_u32 v7, s44, v7
    v_lshlrev_b32 v3, 4, v{vLANE}
    s_mul_i32 s46, s42, {WO_C}
    s_mul_i32 s47, s41, 5120
    s_add_u32 s46, s46, s47
    s_add_u32 s46, s46, {WS_WO}
    s_add_u32 s47, s46, 4096''')
    A.wait_all()
    for T in range(4):
        for rd in range(2):
            A(f'ds_read_b64_tr_b16 v[{32+4*T+2*rd}:{33+4*T+2*rd}], v6 offset:{512*rd+32*T}')
    for rd in range(2):
        A(f'ds_read_b64_tr_b16 v[{48+2*rd}:{49+2*rd}], v7 offset:{4096+128+64*rd}')
    for T in range(4):
        A(f'buffer_store_dwordx4 v[{32+4*T}:{35+4*T}], v3, s[16:19], s46 offen offset:{1024*T}')
    A('buffer_store_dwordx4 v[48:51], v3, s[16:19], s47 offen')


def task_zero(A, sI):
    A(f'''v_mov_b32 v56, 0
    v_mov_b32 v57, 0
    v_mov_b32 v58, 0
    v_mov_b32 v59, 0
    v_lshlrev_b32 v60, 4, v{vTID}
    s_lshl_b32 s48, s{sI}, 12''')
    assert WS_ZEND - WS_ST <= N_WQ * 4096
    srd(A, 24, sWS, WS_ZEND - WS_ST, off=WS_ST)
    A('buffer_store_dwordx4 v[56:59], v60, s[24:27], s48 offen')
    for base, sh, cnt in ((0, FSC[0], 3072), (WS_PF - WS_FLAG, FSC[1], 1024)):
        srd(A, 28, sWS, cnt << sh, off=WS_FLAG + base)
        A(f'v_lshlrev_b32 v60, {sh}, v{vTID}\ns_lshl_b32 s48, s{sI}, {8 + sh}')
        A('buffer_store_dword v56, v60, s[28:31], s48 offen')


def wq_extra(A, sI):
    task_zero(A, sI)
    if NEXT[0]:
        A(f's_lshr_b32 s48, s{sI}, 3\ns_lshl_b32 s48, s48, 2\ns_add_u32 s48, s48, s{sW}\ns_lshl_b32 s48, s48, 13')
        code_prefetch(A, NEXT[0], f'{NEXT[1]}-{NEXT[0]}-4', 60, 62, 50, 1, 48)


POPT = dict(tlb=0, pf=0)
N_PF = 128


def task_tlb(A, sI, shift):
    bufs = [(sWG, 576 * 9216, 0), (sWU, 576 * 9216, 0), (sWD, F * 1152, 0), (sOUT, S * D * 2, 0), (sWS, WS_END, 0)]
    A(f's_lshr_b32 s48, s{sI}, 3\ns_lshl_b32 s48, s48, 2\ns_add_u32 s48, s48, s{sW}')
    A(f'v_lshlrev_b32 v56, {shift}, v{vLANE}')
    q = 0
    for ptr, size, off in bufs:
        srd(A, 24, ptr, size)
        n = -(-size // (64 << shift))
        for i in range(n):
            if q % 20 or True:
                A(f's_cmp_eq_u32 s48, {q % 20}')
                A(f's_cselect_b32 s49, {i * (64 << shift)}, s47') if False else None
                A(f's_mov_b32 s49, 0x80000000\ns_cmov_b32 s49, {i * (64 << shift)}')
                A(f'buffer_load_dword v57, v56, s[24:27], s49 offen')
            q += 1
            if q % 40 == 0:
                A('s_waitcnt vmcnt(0)')


def task_pf(A, sI):
    A(f's_lshl_b32 s40, s{sI}, 2\ns_add_u32 s40, s40, s{sW}\nv_lshlrev_b32 v2, 7, v{vLANE}')
    per = 576 * 9216 // (4 * N_PF)
    assert per % 128 == 0
    A(f's_mul_i32 s41, s40, {per}')
    for ptr in (sWG, sWU, sWD):
        srd(A, 8, ptr, 576 * 9216)
        A(f's_mov_b32 s42, s41')
        n = per // 128
        k = 0
        while n > 0:
            if n < 64:
                m = (1 << n) - 1
                A(f's_mov_b32 exec_lo, {m & 0xffffffff}\ns_mov_b32 exec_hi, {m >> 32}')
            A(f'buffer_load_dword v{8+k}, v2, s[8:11], s42 offen\ns_add_u32 s42, s42, 8192')
            n -= 64; k += 1
        A('s_mov_b64 exec, -1')


NEXT = [None, None]


def n_prep():
    return N_PREP + (N_PF if POPT['pf'] else 0)


def ph_prep(A):
    code_prefetch(A, 'L_k0_body', 'L_k0_end-L_k0_body-4', 2, 127, 50, 1)
    A('L_k0_body:')
    if POPT.get('lin'):
        nw = N_PREP * 4
        A(f's_lshl_b32 s40, s2, 2\ns_add_u32 s40, s40, s{sW}\nv_lshlrev_b32 v3, 7, v{vLANE}')
        for q, (ptr, size) in enumerate(((sWMOD, 576 * 6912), (sX, S * D * 2), (sWQKV, 576 * 3456), (sWO, 576 * 1152))):
            n = -(-(size // 128) // nw)
            srd(A, 8, ptr, size)
            A(f's_mul_i32 s41, s40, {n*128}\ns_mov_b64 exec, {(1 << n) - 1}')
            A(f'buffer_load_dword v{122+q}, v3, s[8:11], s41 offen')
        A('s_mov_b64 exec, -1')
    NL = POPT.get('nlight', 84)
    lab = {r: A.label('L_role' + r) for r in ('mod', 'xh', 'wq', 'wo')}
    A(f'''s_mov_b32 s39, s2
    s_cmp_lt_u32 s2, {NL}
    s_cbranch_scc1 {lab['wq']}
    s_sub_u32 s39, s2, {NL}
    s_cmp_lt_u32 s39, {N_MOD}
    s_cbranch_scc1 {lab['mod']}
    s_sub_u32 s39, s39, {N_MOD}
    s_cmp_lt_u32 s39, {N_XH}
    s_cbranch_scc1 {lab['xh']}
    s_sub_u32 s39, s2, {N_MOD + N_XH}
    s_cmp_lt_u32 s39, {N_WQ}
    s_cbranch_scc1 {lab['wq']}
    s_sub_u32 s39, s39, {N_WQ}''')
    st0 = (list(A.vmq), list(A.lgq), A.vm_issued, A.lg_issued)
    for r, fn in (('wo', task_wo), ('mod', None), ('xh', task_xhat), ('wq', task_wq)):
        A(lab[r] + ':')
        A.vmq, A.lgq, A.vm_issued, A.lg_issued = list(st0[0]), list(st0[1]), st0[2], st0[3]
        if r == 'mod':
            A('s_and_b32 s40, s39, 7\ns_lshl_b32 s40, s40, 1\ns_bfe_u32 s41, s39, 0x10003\ns_and_b32 s42, s39, 0xfffffff0\ns_or_b32 s40, s40, s41\ns_or_b32 s40, s40, s42')
            A('s_cmp_lt_u32 s39, 96\ns_cselect_b32 s39, s40, s39')
            ph_mod(A, 39, 0)
        else:
            fn(A, 39)
        if r != 'wq':
            stamp_end(A, again=True)
            A('s_endpgm')
```

```python
from common import *


def ph_mod(A, sM, lds):
    A.comment('==== phase mod ====')
    srd(A, 8, sWMOD, 576 * 6912)
    srd(A, 12, sC, 1152)
    srd(A, 16, sWS, WS_SIZE)
    A(f'''v_lshrrev_b32 v2, 2, v{vLANE}
    v_and_b32 v3, 3, v{vLANE}
    s_mul_i32 s40, s{sW}, 144
    v_add_u32 v4, s40, v2
    s_movk_i32 s41, 6912
    v_mul_lo_u32 v5, v4, s41
    v_lshl_add_u32 v5, v3, 4, v5
    v_lshlrev_b32 v6, 1, v4
    s_lshl_b32 s41, s{sM}, 6''')
    for i in range(9):
        A(f'buffer_load_ushort v{10+i}, v6, s[12:15], 0 offen offset:{32*i}')
    for i in range(9):
        A(f's_add_u32 s42, s41, {i*16*6912}')
        A(f'buffer_load_dwordx4 v[{20+4*i}:{23+4*i}], v5, s[8:11], s42 offen{NT[0]}')
    A(f's_mov_b32 s43, {fbits(-LOG2E)}')
    for i in range(9):
        A(f'v_lshlrev_b32 v{10+i}, 16, v{10+i}')
    for i in range(9):
        A(f'v_mul_f32 v{64+i}, s43, v{10+i}')
    for i in range(9):
        A(f'v_exp_f32 v{64+i}, v{64+i}')
    for i in range(9):
        A(f'v_add_f32 v{64+i}, 1.0, v{64+i}')
    for i in range(9):
        A(f'v_rcp_f32 v{64+i}, v{64+i}')
    for i in range(9):
        A(f'v_mul_f32 v{10+i}, v{10+i}, v{64+i}')
    for i in range(9):
        A(f'v_cvt_pk_bf16_f32 v{10+i}, v{10+i}, v{10+i}')
    for i in range(9):
        A(f'v_and_b32 v{10+i}, s{sMASKHI}, v{10+i}')
    for i in range(9):
        for d in range(4):
            unpack(A, 64 + 2 * d, 65 + 2 * d, 20 + 4 * i + d)
        sp = 10 + (i & ~1)
        for d in range(4):
            if i == 0:
                A(f'v_pk_mul_f32 v[{56+2*d}:{57+2*d}], v[{64+2*d}:{65+2*d}], v[{sp}:{sp+1}] op_sel_hi:[1,0]')
            else:
                m = 'op_sel_hi:[1,0,1]' if i % 2 == 0 else 'op_sel:[0,1,0] op_sel_hi:[1,1,1]'
                A(f'v_pk_fma_f32 v[{56+2*d}:{57+2*d}], v[{64+2*d}:{65+2*d}], v[{sp}:{sp+1}], v[{56+2*d}:{57+2*d}] {m}')
    for rot in (8, 4):
        for d in range(8):
            A(f'v_add_f32_dpp v{56+d}, v{56+d}, v{56+d} row_ror:{rot} row_mask:0xf bank_mask:0xf')
    A(f'''v_lshrrev_b32 v7, 4, v{vLANE}
    s_lshl_b32 s40, s{sW}, 2
    v_add_u32 v7, s40, v7
    v_lshlrev_b32 v7, 7, v7
    v_lshl_add_u32 v7, v3, 5, v7
    s_mov_b32 exec_lo, 0x000f000f
    s_mov_b32 exec_hi, 0x000f000f
    ds_write_b128 v7, v[56:59] offset:{lds}
    ds_write_b128 v7, v[60:63] offset:{lds+16}
    s_mov_b64 exec, -1''')
    A.wait_all(vm=False)
    A('s_barrier')
    A(f's_cmp_lg_u32 s{sW}, 0')
    ctx = A.begin_skip('s_cbranch_scc1 {}')
    A(f'''v_lshrrev_b32 v7, 5, v{vLANE}
    v_and_b32 v8, 31, v{vLANE}
    v_lshlrev_b32 v7, 10, v7
    v_lshl_add_u32 v7, v8, 2, v7''')
    for k in range(8):
        A(f'ds_read_b32 v{56+k}, v7 offset:{lds+128*k}')
    A('''v_add_f32 v56, v56, v57
    v_add_f32 v58, v58, v59
    v_add_f32 v60, v60, v61
    v_add_f32 v62, v62, v63
    v_add_f32 v56, v56, v58
    v_add_f32 v60, v60, v62
    v_add_f32 v56, v56, v60
    v_mov_b32 v57, v56
    v_permlane32_swap_b32 v56, v57
    v_add_f32 v56, v56, v57''')
    A(f'''v_cvt_pk_bf16_f32 v56, v56, v56
    v_and_b32 v56, s{sMASKHI}, v56
    s_mul_i32 s40, s{sM}, 57
    s_lshr_b32 s40, s40, 10
    s_cmp_eq_u32 s40, 1
    s_cselect_b32 s41, 1.0, 0
    s_cmp_eq_u32 s40, 4
    s_cselect_b32 s41, 1.0, s41
    v_add_f32 v56, s41, v56
    v_cvt_pk_bf16_f32 v56, v56, v56
    v_and_b32 v56, s{sMASKHI}, v56
    s_lshl_b32 s40, s{sM}, 7
    v_lshlrev_b32 v8, 2, v8
    s_mov_b32 exec_hi, 0
    buffer_store_dword v56, v8, s[16:19], s40 offen offset:{WS_MOD}
    s_mov_b64 exec, -1''')
    A.end_skip(ctx)


def ph_out(A, npart):
    raise NotImplementedError


P0, P1, P2, X0, X1, X2, FACC, FTMP = 16, 144, 176, 96, 108, 120, 208, 240
sVALID = 60


def final_setup_ops():
    t = f'''s_lshr_b32 s40, s{sJ}, 1
    s_and_b32 s41, s{sJ}, 1
    v_lshrrev_b32 v6, 3, v{vLANE}
    v_and_b32 v7, 7, v{vLANE}
    v_lshlrev_b32 v4, 8, v6
    v_lshl_add_u32 v4, v7, 4, v4
    v_lshlrev_b32 v5, 5, v6
    v_mul_u32_u24 v10, 1152, v7
    v_lshl_add_u32 v10, v6, 4, v10
    v_and_b32 v8, 15, v{vLANE}
    v_lshlrev_b32 v8, {FSC[0]}, v8
    s_lshl_b32 s43, s{sG}, 3
    s_add_u32 s43, s43, s40
    s_mul_i32 s96, s43, {T16}
    s_lshl_b32 s97, s41, 7
    s_add_u32 s96, s96, s97
    s_add_u32 s96, s96, {WS_X1}
    s_mul_i32 s98, s{sG}, {64*T16}
    s_mul_i32 s99, s40, {T16}
    s_add_u32 s98, s98, s99
    s_add_u32 s98, s98, s97
    s_add_u32 s98, s98, {WS_PART}
    s_lshl_b32 s99, s43, 4
    s_lshl_b32 s100, s41, 3
    s_add_u32 s99, s99, s100
    s_mul_i32 s99, s99, 1152
    s_lshl_b32 s100, s{sW}, 2
    s_lshr_b32 s52, 0x6510, s100
    s_and_b32 s52, s52, 15
    s_lshr_b32 s53, 0x0072, s100
    s_and_b32 s53, s53, 15
    s_lshr_b32 s58, 0x4308, s100
    s_and_b32 s58, s58, 15
    s_movk_i32 s56, 0x3f80
    s_mov_b32 s57, 0x3f800000
    s_mov_b32 s59, {fbits(-1.0 / LOG2E)}
    s_mov_b32 s12, s{sOUT}
    s_mov_b32 s13, s{sOUT+1}
    s_mov_b32 s14, {S*D*2}
    s_mov_b32 s15, 0x20000'''
    return [x.strip() for x in t.split('\n')]


def side_ops(sN, X):
    G = X + 4
    return [f's_lshl_b32 s50, s{sN}, 11', 's_add_u32 s51, s96, s50',
            f'buffer_load_dwordx4 v[{X}:{X+3}], v4, s[16:19], s51 offen sc1',
            f's_lshl_b32 s51, s{sN}, 8', f's_add_u32 s51, s51, {WS_MOD+5*576*4}',
            f'buffer_load_dwordx4 v[{G}:{G+3}], v5, s[16:19], s51 offen',
            f'buffer_load_dwordx4 v[{G+4}:{G+7}], v5, s[16:19], s51 offen offset:16']


def parts_ops(sN, P, base=98):
    r = [f's_lshl_b32 s50, s{sN}, 11', f's_add_u32 s51, s{base}, s50']
    for p in range(8):
        r.append(f'buffer_load_dwordx4 v[{P+4*p}:{P+4*p+3}], v4, s[16:19], s51 offen sc1')
        if p < 7:
            r.append(f's_add_u32 s51, s51, {8*T16}')
    return r


def ph_final(A, publish_all, wait, check):
    acc, tmp = FACC, FTMP

    def parts(sN, P):
        for x in parts_ops(sN, P):
            A(x)

    def finish(sN, P, X):
        G = X + 4
        for d in range(4):
            A(f'v_pk_mul_f32 v[{G+2*d}:{G+2*d+1}], v[{G+2*d}:{G+2*d+1}], s[58:59] op_sel:[0,1] op_sel_hi:[1,1]')
        for p in range(8):
            for d in range(4):
                for h in range(2):
                    c = '0' if p == 0 else f'v{acc+2*d+h}'
                    A(f'v_dot2_f32_bf16 v{acc+2*d+h}, v{P+4*p+d}, s{56+h}, {c}')
        for d in range(4):
            unpack(A, tmp + 2 * d, tmp + 2 * d + 1, X + d)
        for d in range(4):
            A(f'v_pk_fma_f32 v[{acc+2*d}:{acc+2*d+1}], v[{acc+2*d}:{acc+2*d+1}], v[{G+2*d}:{G+2*d+1}], v[{tmp+2*d}:{tmp+2*d+1}]')
        for d in range(4):
            A(f'v_cvt_pk_bf16_f32 v{X+d}, v{acc+2*d}, v{acc+2*d+1}')
        A(f's_lshl_b32 s50, s{sN}, 7\ns_add_u32 s50, s50, s99')
        A(f'buffer_store_dwordx4 v[{X}:{X+3}], v10, s[12:15], s50 offen')
    fin = A.label('L_fin')

    def save():
        return (list(A.vmq), list(A.lgq), A.vm_issued, A.lg_issued)

    def restore(st):
        A.vmq, A.lgq, A.vm_issued, A.lg_issued = list(st[0]), list(st[1]), st[2], st[3]

    def done():
        A.wait_all()
        A(f's_branch {fin}')

    def path(two, three):
        top = 3 if three else 2
        staged, staged2 = A.label('L_fst'), A.label('L_fst')
        check(top)
        A(f's_cbranch_scc0 {staged}')
        st = save()
        if two:
            parts(53, P1)
        if three:
            parts(58, P2)
        finish(52, P0, X0)
        if two:
            finish(53, P1, X1)
        if three:
            finish(58, P2, X2)
        done()
        A(staged + ':')
        restore(st)
        finish(52, P0, X0)
        if two and three:
            wait(2)
            check(3)
            A(f's_cbranch_scc0 {staged2}')
            st = save()
            parts(53, P1)
            parts(58, P2)
            finish(53, P1, X1)
            finish(58, P2, X2)
            done()
            A(staged2 + ':')
            restore(st)
        if two:
            if not three:
                wait(2)
            parts(53, P1)
            finish(53, P1, X1)
        if three:
            wait(3)
            parts(58, P2)
            finish(58, P2, X2)
        done()
    publish_all()
    A(f's_cmp_lg_u32 s{sVALID}, 0')
    ok = A.label('L_fv')
    A(f's_cbranch_scc1 {ok}')
    wait(1)
    parts(52, P0)
    A(ok + ':')
    l1, l2 = A.label('L_fw'), A.label('L_fw')
    st0 = save()
    A(f's_cmp_eq_u32 s{sW}, 1\ns_cbranch_scc1 {l1}')
    A(f's_cmp_ge_u32 s{sW}, 2\ns_cbranch_scc1 {l2}')
    path(True, True)
    A(l1 + ':')
    restore(st0)
    path(True, False)
    A(l2 + ':')
    restore(st0)
    path(False, True)
    A(fin + ':')
    A.vmq, A.lgq = [], []
```

```python
import sys
sys.path.insert(0, 'gen')
from common import *
from ph_small import ph_mod, ph_final
import ph_a, ph_b, ph_c, ph_prep

def kernel(name, fn, nwg, lds, vgpr=512, accum=256, spread=4, sv=14):
    A = Asm()
    end = f'L_end_{name}'
    A.uid = {'k1':6000,'k0':0,'ka':1000,'kb':2000,'kc':3000,'kd':4000}.get(name[:2], 5000)
    prologue(A, nwg, end, spread)
    stamp_begin(A, len(Stamps.names), sv)
    fn(A)
    stamp_end(A)
    A.wait_all()
    A(end + ':')
    A('s_endpgm')
    for x in A.tail:
        A._emit(Ins(x))
    A(f'L_{name[:2]}_end:')
    n = {}
    for i in A.out: n[i.kind] = n.get(i.kind, 0) + 1
    print(name, n, 'nops', A.nops_inserted, 'waits', A.waits_inserted, file=sys.stderr)
    return dict(name=name, grid=nwg, block=256, lds=lds, body=A.text(), vgpr=vgpr, accum=accum)

def multi(spread=4):
    ks = [kernel('k0_kernel', ph_prep.ph_prep, ph_prep.N_PREP, ph_prep.PREP_LDS, 136 if Stamps.on else 128, 136 if Stamps.on else 128, spread, 130),
          kernel('ka_kernel', ph_a.ph_a, 256, ph_a.A_LDS, spread=spread, sv=14),
          kernel('kb_kernel', ph_b.ph_b, 256, ph_b.B_LDS, spread=spread, sv=250),
          kernel('kc_kernel', ph_c.ph_c, 256, ph_c.C_LDS, spread=spread, sv=12),
          ]
    return ks

def merged_body(A):
    A.junk = ('v', 13)
    PF = ph_c.OPT.get('usepf', 1)
    ph_c.OPT['pfl'] = 0
    WINP = {}

    def win(name):
        if name in WINP:
            for x in ph_c.pf_ops(*WINP[name]):
                A(x)
    if PF:
        if PF == 1:
            ph_c.OPT['pf'] = [(24, 'gu', 18, 36), (44, 'gu', 36, 45), (60, 'd', 0, 27), (80, 'd', 27, 45)]
        elif PF == 2:
            ph_c.OPT['pf'] = [(8, 'g', 18, 27), (16, 'u', 18, 27), (30, 'g', 27, 36), (40, 'u', 27, 36), (52, 'g', 36, 45), (62, 'u', 36, 45)] + \
                [(74 + 10 * q, 'd', 9 * q, 9 * q + 9) for q in range(5)]
        elif PF == 4:
            ph_c.OPT['pf'] = [(30, 'gu', 27, 45), (60, 'd', 0, 45)]
        elif PF == 5:
            ph_c.OPT['pf'] = [(40, 'd', 0, 45)]
        elif PF == 30:
            ph_c.OPT['pf'] = [(2, 'gu', 9, 18), (28, 'gu', 18, 27), (48, 'gu', 27, 36), (66, 'gu', 36, 45), (82, 'd', 0, 23), (98, 'd', 23, 45)]
        elif PF == 31:
            ph_c.OPT['pf'] = [(2, 'gu', 9, 18), (26, 'gu', 18, 36), (52, 'gu', 36, 45), (66, 'd', 0, 27), (86, 'd', 27, 45)]
        elif PF == 32:
            ph_c.OPT['pf'] = [(24, 'gu', 18, 36), (44, 'gu', 36, 45), (60, 'd', 0, 27), (80, 'd', 27, 45)]
        elif PF >= 20:
            ph_c.OPT['pfl'] = 1
            ph_c.OPT['pf'] = {20: [(30, 'gu', 2, 1), (64, 'gu', 3, 1), (98, 'gu', 4, 1), (110, 'd', 0, 3), (130, 'd', 3, 2)],
                              21: [(4, 'gu', 1, 1), (36, 'gu', 2, 1), (70, 'gu', 3, 1), (100, 'gu', 4, 1), (112, 'd', 0, 3), (132, 'd', 3, 2)],
                              22: [(20, 'gu', 2, 1), (50, 'gu', 3, 1), (84, 'gu', 4, 1), (96, 'd', 0, 3), (120, 'd', 3, 2)],
                              23: [(36, 'g', 2, 1), (42, 'u', 2, 1), (70, 'g', 3, 1), (76, 'u', 3, 1), (96, 'g', 4, 1), (102, 'u', 4, 1), (112, 'd', 0, 2), (124, 'd', 2, 1), (140, 'd', 3, 1), (160, 'd', 4, 1)]}[PF]
        elif PF == 16:
            ph_c.OPT['pf'] = [(40, 'd', 0, 23), (60, 'd', 23, 45), (80, 'gu', 36, 45)]
        elif PF == 17:
            ph_c.OPT['pf'] = [(24, 'gu', 18, 27), (44, 'd', 0, 23), (64, 'd', 23, 45), (84, 'gu', 36, 45)]
        elif PF == 18:
            ph_c.OPT['pf'] = [(44, 'gu', 36, 45), (60, 'd', 0, 45)]
        elif PF == 15:
            ph_c.OPT['pf'] = [(24, 'gu', 18, 36), (44, 'gu', 36, 45)]
        elif PF in (6, 7):
            ph_c.OPT['pf'] = []
        elif PF == 8:
            ph_c.OPT['pf'] = [(22, 'gu', 18, 45), (62, 'd', 0, 45)]
        elif PF == 9:
            ph_c.OPT['pf'] = [(38, 'gud', 18, 45), (70, 'd', 0, 18)]
        elif 10 <= PF <= 14:
            WINP.update({10: dict(s1=('gu', 18, 27), st=('gu', 27, 36), s2=('gu', 36, 45)),
                         11: dict(s1=('gu', 18, 27), s2=('gu', 27, 36)),
                         12: dict(s1=('gu', 18, 27), st=('gu', 27, 36), s2=('gud', 36, 45)),
                         13: dict(s1=('gud', 18, 27), st=('gud', 27, 36), s2=('gud', 36, 45)),
                         14: dict(s2=('gu', 18, 27))}[PF])
            ph_c.OPT['pf'] = {10: [(40, 'd', 0, 23), (64, 'd', 23, 45)],
                              11: [(40, 'gu', 36, 45), (60, 'd', 0, 23), (84, 'd', 23, 45)],
                              12: [(40, 'd', 0, 18), (64, 'd', 18, 36)],
                              13: [(44, 'd', 0, 18)],
                              14: [(30, 'gu', 27, 36), (50, 'gu', 36, 45), (70, 'd', 0, 23), (90, 'd', 23, 45)]}[PF]
        elif PF == 3:
            ph_c.OPT['pf'] = [(20, 'g', 18, 27), (28, 'u', 18, 27), (40, 'g', 27, 36), (50, 'u', 27, 36), (60, 'g', 36, 45), (70, 'u', 36, 45)] + \
                [(80 + 9 * q, 'd', 9 * q, 9 * q + 9) for q in range(5)]

    def early():
        ph_c.ph_c_setup_s(A)
        ph_c.pf_setup(A)

    def late():
        if PF:
            for x in ph_c.pf_ops('gud' if PF == 6 else 'gu', 0, {4: 27, 5: 45, 6: 45, 20: 2, 21: 1, 22: 2, 23: 2, 30: 9, 31: 9}.get(PF, 18)):
                A(x)
    ph_a.NPRE_X, ph_a.NPRE_W = ph_c.OPT.get('apre', (0, 0))
    ph_a.LATE_S = 26 if PF == 32 else 30
    ph_a.ph_a_main(A, early, late)
    bg = ph_b.ph_b_dma(A)
    ph_a.ph_a_attn(A, bg[:ph_c.OPT.get('nbg', 25)])
    stamp(A, 'attn done')
    flag_base(A, 101, 0, sW)
    A(f's_lshl_b32 s40, s{sJ}, {FSC[0]}\ns_add_u32 s101, s101, s40')
    publish(A, 16, 101, 4)
    A('s_barrier')
    stamp(A, 'o published')
    mk = ph_b.ph_b_pre(A)
    A('s_lshr_b32 s40, s5, 1')
    flag_base(A, 101, 0, 40)
    ph_c.ph_c_setup_v(A)
    R = ph_c.Ring(A)
    SLEEP[0] = ph_c.OPT.get('sleep', 0)
    NP1, NP2, NP3 = ph_c.OPT.get('np', (3, 5, 9))
    Q1, Q2, Q3 = ph_c.OPT.get('nq', (3, 5, 9))
    ph_c.ph_c_prefill(A, R, 0, Q1)
    poll_begin(A, 16, 101, 2)
    ph_c.ph_c_prefill(A, R, Q1, NP1)
    A.wait_vm_mark(mk)
    ph_b.ph_b_vec(A)
    ph_b.NPRE = ph_c.OPT.get('npre', 30)
    ph_b.ph_b_pre_frags(A)
    poll_end(A, 16, 101, 2, 41)
    stamp(A, 'S1')

    def before_stat():
        A('s_barrier')
        ph_c.ph_c_prefill(A, R, NP1, Q2)

    def after_stat():
        ph_c.ph_c_prefill(A, R, Q2, NP2)
        A('s_lshr_b32 s40, s5, 1')
        flag_base(A, 101, 1, 40)
        A(f's_lshl_b32 s40, s4, 1\ns_and_b32 s41, s{sW}, 1\ns_add_u32 s40, s40, s41\ns_lshl_b32 s40, s40, {FSC[0]}\ns_add_u32 s101, s101, s40')
        XO.extend(ph_c.ph_c_xload(A))
        ph_c.pair_setup(A)
        ph_c.tail_setup(A)
    XO = []
    ph_b.ph_b_main(A, before_stat, after_stat)
    xops = XO
    publish(A, 16, 101, 10)
    stamp(A, 'h2 published')
    flag_base(A, 101, 1, sW)
    ph_c.ph_c_prefill(A, R, NP2, Q3)
    poll_begin(A, 16, 101, 10)
    ph_c.ph_c_prefill(A, R, Q3, NP3)
    poll_end(A, 16, 101, 10, 40)
    stamp(A, 'S2')
    ph_c.ph_c_stream(A, R, NP3, xops)
    def publish_all():
        A(f'buffer_load_dword v9, v8, s[16:19], s{ph_c.sS3C} offen sc1')
        publish(A, 16, ph_c.sS3O, 6, 3)
        stamp(A, 'part published')

    def wait(v):
        lab, ok = A.label('L_w'), A.label('L_wok')
        check(v)
        A(f's_cbranch_scc1 {ok}')
        st = (list(A.vmq), list(A.lgq), A.vm_issued, A.lg_issued)
        poll(A, 16, ph_c.sS3C, 8, 43, v)
        A.vmq, A.lgq, A.vm_issued, A.lg_issued = st
        A(ok + ':')
        if Stamps.on and v > 1:
            A(f's_memtime s[88:89]\nv_writelane_b32 v14, s88, {43+v}')

    def check(v):
        A(f'v_cmp_gt_u32 vcc, {v}, v9')
        A('s_cmp_eq_u64 vcc, 0')
    ph_final(A, publish_all, wait, check)


def two(spread=4):
    ph_prep.NEXT[:] = ['k1_kernel', 'L_k1_end']
    NT[:] = [' nt' if ph_c.OPT.get('nt', 3) >> q & 1 else '' for q in range(4)]
    FSC[:] = ph_c.OPT.get('fs', (6, 6))
    ph_prep.POPT['nlight'] = ph_c.OPT.get('nlight', 84)
    ph_prep.POPT['lin'] = ph_c.OPT.get('lin', 0)
    ph_prep.POPT['tlb'] = ph_c.OPT.get('tlb', 0); ph_prep.POPT['pf'] = ph_c.OPT.get('k0pf', 0)
    return [kernel('k0_kernel', ph_prep.ph_prep, ph_prep.n_prep(), ph_prep.PREP_LDS, 136 if Stamps.on else 128, 136 if Stamps.on else 128, spread, 130),
            kernel('k1_kernel', merged_body, 256, 163840, spread=spread, sv=14)]


if __name__ == '__main__':
    out = sys.argv[1] if len(sys.argv) > 1 else 'v1.s'
    if 'stamp' in sys.argv:
        Stamps.on = True
    for a in sys.argv[2:]:
        if '=' in a:
            k, v = a.split('=')
            ph_c.OPT[k] = int(v)
    open(out, 'w').write(build(two() if 'two' in sys.argv else multi()))
    if Stamps.on:
        import json
        json.dump(Stamps.names, open(out + '.json', 'w'))
```

```python
from common import *

A_WIMG = 0
A_HH = 138240
A_VT = A_HH + 18432
A_LDS = A_VT + 5120
A_KREC = 0
A_VREC = 13824

QLOC = [(0, 0), (0, 1), (0, 2), (0, 3), (1, 0)]
KLOC = [(1, 2), (1, 3), (2, 0), (1, 1), (2, 2)]
VLOC = [(3, 0), (2, 1), (3, 2), (2, 3), (3, 1)]

ACC = 16
HACC = 80
XW = 96
HC = 136
TAB = 176
CB = 194
TB = 210
HB = 214
vA = 234
vA3 = 237
vAH = 240
vHB = 243
vL16 = 244
vCT = 245
HT = 246


def xr(s):
    return XW + 4 * (s % 10)


aFR = 80
aHBF = 120
LATE_S = 30
NPRE_X, NPRE_W = 3, 4
NWI = 34


def mod_table(A, vt, col_b, col_s, srdq=16, V=192):
    A(f'''v_lshlrev_b32 v8, 2, v{vTID}
    v_lshlrev_b32 v9, 2, v{vLANE}
    s_mov_b32 s96, {WS_MOD + 4*col_s}
    s_mov_b32 s97, {WS_MOD + 4*col_b}
    buffer_load_dword v{V}, v8, s[{srdq}:{srdq+3}], s96 offen sc1
    buffer_load_dword v{V+1}, v8, s[{srdq}:{srdq+3}], s96 offen offset:1024 sc1
    buffer_load_dword v{V+2}, v9, s[{srdq}:{srdq+3}], s96 offen offset:2048 sc1
    buffer_load_dword v{V+3}, v8, s[{srdq}:{srdq+3}], s97 offen sc1
    buffer_load_dword v{V+4}, v8, s[{srdq}:{srdq+3}], s97 offen offset:1024 sc1
    buffer_load_dword v{V+5}, v9, s[{srdq}:{srdq+3}], s97 offen offset:2048 sc1
    v_lshrrev_b32 v8, 3, v{vTID}
    v_lshlrev_b32 v8, 6, v8
    v_and_b32 v9, 7, v{vTID}
    v_lshl_add_u32 v8, v9, 2, v8
    v_add_u32 v8, {vt}, v8
    v_lshrrev_b32 v7, 3, v{vLANE}
    v_lshlrev_b32 v7, 6, v7
    v_lshl_add_u32 v9, v9, 2, v7
    v_add_u32 v9, {vt}, v9''')

    def write():
        A(f'''ds_write_b32 v8, v{V}
        ds_write_b32 v8, v{V+1} offset:2048
        ds_write_b32 v9, v{V+2} offset:4096
        ds_write_b32 v8, v{V+3} offset:32
        ds_write_b32 v8, v{V+4} offset:2080
        ds_write_b32 v9, v{V+5} offset:4128''')
    return write


def ph_a_main(A, early=None, late=None):
    A.comment('==== phase A ====')
    A(f'''v_lshlrev_b32 v{vL16}, 4, v{vLANE}
    s_lshl_b32 s40, s{sG}, 2
    s_add_u32 s40, s40, s{sW}
    s_mul_i32 s40, s40, 36864
    s_add_u32 s40, s40, {WS_XH}
    s_mul_i32 s41, s{sG}, {4*36864}
    s_add_u32 s41, s41, {WS_XH - 36864 + 256}
    s_cmp_eq_u32 s{sG}, 0
    s_cselect_b32 s41, {WS_XH + 256}, s41
    s_lshl_b32 s42, s{sW}, 11
    s_add_u32 s41, s41, s42
    v_lshrrev_b32 v4, 4, v{vLANE}
    v_and_b32 v5, 15, v{vLANE}
    v_lshlrev_b32 v6, 9, v4
    v_lshl_add_u32 v6, v5, 4, v6
    s_mul_i32 s42, s{sJ}, {WQ_J}
    s_lshl_b32 s43, s{sW}, 10
    s_add_u32 s42, s42, s43
    s_add_u32 s42, s42, {WS_WQ}''')
    srd(A, 16, sWS, WS_SIZE)
    xq = list(range(36))
    wq = list(range(NWI))
    marks = {}

    def xload():
        s = xq.pop(0)
        if s % 4 == 0:
            A(f's_add_u32 s3, s40, {4096*(s//4)}')
        A(f'buffer_load_dwordx4 v[{xr(s)}:{xr(s)+3}], v{vL16}, s[16:19], s3 offen offset:{1024*(s%4)}')

    def issue_w():
        i = wq.pop(0)
        if i == NWI - 1:
            A(f's_min_u32 s5, s{sW}, 2\ns_lshl_b32 s5, s5, 10\ns_sub_u32 s4, s42, s43\ns_add_u32 s4, s4, s5')
            A(f's_add_u32 m0, s5, {4096*i}\ns_add_u32 s4, s4, {4096*i}')
        else:
            A(f's_add_u32 m0, s43, {4096*i}\ns_add_u32 s4, s42, {4096*i}')
        A(f'buffer_load_dwordx4 v{vL16}, s[16:19], s4 offen lds')
        marks[i] = A.mark()

    def halo_load(i):
        if i < 4:
            A(f's_add_u32 s6, s41, {8192*i}')
        else:
            A(f's_min_u32 s4, s{sW}, 1\ns_sub_u32 s4, s4, s{sW}\ns_lshl_b32 s4, s4, 11')
            A(f's_add_u32 s6, s41, s4\ns_add_u32 s6, s6, {8192*4}')
        A(f'buffer_load_dwordx4 v[{HB+4*i}:{HB+4*i+3}], v6, s[16:19], s6 offen')

    A(f's_add_u32 m0, s43, {A_VT}\ns_add_u32 s4, s43, {WS_MOD}')
    A(f'buffer_load_dwordx4 v{vL16}, s[16:19], s4 offen lds')
    A(f's_mov_b32 m0, {A_VT + 4096}\ns_mov_b32 s4, {WS_MOD + 4096}')
    A(f'buffer_load_dwordx4 v{vL16}, s[16:19], s4 offen lds')
    mkt = A.mark()
    xload()
    for i in range(5):
        halo_load(i)
    for k in range(3):
        issue_w()
    mk0 = A.mark()
    for k in range(NPRE_X):
        xload()
    for k in range(NPRE_W):
        issue_w()
    if early:
        early()
    A(f'''v_lshrrev_b32 v7, 5, v{vLANE}
    v_and_b32 v10, 31, v{vLANE}
    v_min_u32 v11, 23, v10
    v_mul_u32_u24 v12, 24, v7
    v_add_u32 v11, v11, v12
    v_lshlrev_b32 v11, 4, v11
    v_add_u32 v11, 3072, v11
    v_add_u32 v12, s43, v{vL16}
    s_cmp_eq_u32 s{sW}, 3
    s_cselect_b64 vcc, -1, 0
    v_cndmask_b32 v12, v12, v11, vcc''')
    for wd in range(3):
        A(f'v_add_u32 v{vA+wd}, {61440*wd}, v{vL16}')
        A(f'v_add_u32 v{vA3+wd}, {61440*wd}, v11')
        A(f'v_add_u32 v{vAH+wd}, {61440*wd}, v12')
    A(f'''v_and_b32 v10, 15, v{vLANE}
    v_lshlrev_b32 v10, 4, v10
    v_lshl_add_u32 v10, v7, 8, v10
    v_add_u32 v{vHB}, {A_HH}, v10
    v_and_b32 v10, 7, v5
    v_lshlrev_b32 v10, 2, v10
    v_lshrrev_b32 v11, 3, v5
    v_lshl_add_u32 v8, v11, 6, v10
    v_lshl_add_u32 v8, v7, 5, v8
    v_add_u32 v8, {A_VT + 2304}, v8
    v_lshlrev_b32 v{vCT}, 5, v7
    v_add_u32 v{vCT}, {A_VT}, v{vCT}
    s_lshl_b32 s4, s{sW}, 7
    s_add_u32 s4, s4, {A_VT}
    v_lshlrev_b32 v9, 5, v4
    v_add_u32 v9, s4, v9
    v_add_u32 v10, v9, v10
    v_add_u32 v5, s43, v{vL16}
    v_add_u32 v5, {A_HH}, v5
    s_min_u32 s5, s{sW}, 1
    s_sub_u32 s5, s5, s{sW}
    s_lshl_b32 s6, s5, 7
    v_add_u32 v6, s6, v9
    v_add_u32 v11, s6, v10
    s_lshl_b32 s6, s5, 10
    v_add_u32 v7, s6, v5''')
    A.wait_vm_mark(mkt)
    A('s_barrier')
    stamp(A, 'table')

    def bread(s, z):
        c = CB + 8 * (s & 1) + 4 * z
        return f'ds_read_b128 v[{c}:{c+3}], v{vCT} offset:{64*s+16*z}'
    A(f'ds_read_b32 v{TAB}, v8')
    A(bread(0, 0)); A(bread(0, 1))
    for i in range(5):
        A(f'ds_read_b32 v{HT+i}, v{10 if i < 4 else 11} offset:{2304+512*i}')
        for z in range(2):
            A(f'ds_read_b128 v[{HC+8*i+4*z}:{HC+8*i+4*z+3}], v{9 if i < 4 else 6} offset:{512*i+16*z}')
    A(bread(1, 0)); A(bread(1, 1))
    for t in range(1, 18):
        A(f'ds_read_b32 v{TAB+t}, v8 offset:{128*t}')

    def norm_ops(r, tab, lane0, c):
        ops = []
        for d in range(4):
            ops.append(f'v_lshlrev_b32 v{TB+d}, 16, v{r+d}')
        for e in (1, 3, 5, 7, 0, 2, 4, 6):
            src = r + e // 2 if e & 1 else TB + e // 2
            ops.append(f'v_fmac_f32_dpp v{c+e}, v{tab}, v{src} row_newbcast:{lane0+e} row_mask:0xf bank_mask:0xf')
        for d in range(4):
            ops.append(f'v_cvt_pk_bf16_f32 v{r+d}, v{c+2*d}, v{c+2*d+1}')
        return ops

    def norm_main(s):
        return norm_ops(xr(s), TAB + s // 2, 8 * (s & 1), CB + 8 * (s & 1))
    todo = ['x'] * (3 - NPRE_X) + ['w'] * (4 - NPRE_W) + ['w', 'w', 'x', 'x', 'x']
    todo.sort(key=lambda c: 0) if False else None

    def some(n):
        for _ in range(n):
            if todo:
                (xload if todo.pop(0) == 'x' else issue_w)()
    some(2)
    for x in norm_main(0):
        A(x)
    for i in range(5):
        some(1)
        for q, x in enumerate(norm_ops(HB + 4 * i, HT + i, 0, HC + 8 * i)):
            A(x)
            if q == 8:
                some(1)
        A(f'ds_write_b128 v{5 if i < 4 else 7}, v[{HB+4*i}:{HB+4*i+3}] offset:{4096*i}')
    some(99)

    def aread(m):
        s, T = divmod(m, 5)
        f = aFR + 4 * (m % 10)
        wd, sl = divmod(s, 16)
        if T < 3:
            return f'ds_read_b128 a[{f}:{f+3}], v{vA+wd} offset:{3840*sl+1024*T}'
        return f'ds_read_b128 a[{f}:{f+3}], v{(vA3 if T == 3 else vAH)+wd} offset:{3840*sl}'

    def hread(s):
        f = aHBF + 4 * (s & 1)
        return f'ds_read_b128 a[{f}:{f+3}], v{vHB} offset:{512*s}'

    BS = (0, 3, 6, 10, 14, 18, 22, 26, 30, 33, 36)
    NEED = {BS[q]: (3840 * BS[q + 1] - 1) // 4096 for q in range(len(BS) - 1)}

    def boundary(s):
        A.wait_vm_mark(mk0 if s == 0 else marks[NEED[s]])
        if s == 0:
            A.wait_all(vm=False)
        A('s_barrier')
    boundary(0)
    stamp(A, 'first data')
    for m in range(5):
        A(aread(m))
    A(hread(0))
    for s in range(36):
        nops = norm_main(s + 1) if s + 1 < 36 else []
        for T in range(5):
            m = 5 * s + T
            f = aFR + 4 * (m % 10)
            if T < 4:
                acc = ACC + 16 * T
                b = f'v[{xr(s)}:{xr(s)+3}]'
            else:
                acc = HACC
                b = f'a[{aHBF+4*(s&1)}:{aHBF+4*(s&1)+3}]'
            cin = '0' if s == 0 else f'v[{acc}:{acc+15}]'
            if T in (0, 2):
                regs = rl('a', f, 4) + rl('a', aFR + 4 * ((m + 1) % 10), 4)
                if T == 2:
                    regs += rl('a', aFR + 4 * ((m + 2) % 10), 4) + rl('a', aHBF + 4 * (s & 1), 4)
                A.wait_regs(regs)
            A(f'v_mfma_f32_32x32x16_bf16 v[{acc}:{acc+15}], a[{f}:{f+3}], {b}, {cin}')
            if m + 5 < 180:
                if T == 0 and s + 1 in NEED:
                    boundary(s + 1)
                A(aread(m + 5))
            if T == 0 and s + 1 < 36:
                A(hread(s + 1))
            if T in (1, 2) and s + 2 < 36:
                A(bread(s + 2, T - 1))
            for x in nops[(0, 3, 6, 10, 13)[T]:(3, 6, 10, 13, 16)[T]]:
                A(x)
            if T == 0 and xq:
                xload()
            if T == 3 and wq:
                issue_w()
            if late and T == 3 and s == LATE_S:
                late()


def ph_a_attn(A, bg=()):
    bg = list(bg)

    def idle(n=1):
        for _ in range(n):
            if bg:
                A(bg.pop(0))

    stamp(A, 'gemm done')
    KO, Q, KN, L = 96, 108, 118, 242
    vK, vV, vO, vKh, vVh, vTok = 250, 251, 9, 10, 2, 3
    quad = lambda loc: ACC + 16 * loc[0] + 4 * loc[1]
    QR, KR, VR = [quad(x) for x in QLOC], [quad(x) for x in KLOC], [quad(x) for x in VLOC]
    A(f'''v_lshrrev_b32 v4, 5, v{vLANE}
    v_and_b32 v5, 31, v{vLANE}
    v_mul_u32_u24 v6, 144, v4
    v_add_u32 v6, v6, v5
    v_mul_u32_u24 v{vKh}, 48, v6
    v_mul_u32_u24 v{vVh}, 80, v6
    v_add_u32 v{vVh}, {A_VREC}, v{vVh}
    s_mul_i32 s96, s{sW}, {32*48}
    s_add_u32 s96, s96, 96
    v_add_u32 v{vK}, s96, v{vKh}
    s_mul_i32 s96, s{sW}, {32*80}
    s_add_u32 s96, s96, 160
    v_add_u32 v{vV}, s96, v{vVh}
    s_lshl_b32 s96, s{sG}, 2
    s_add_u32 s96, s96, s{sW}
    s_lshl_b32 s96, s96, 5
    v_add_u32 v{vTok}, s96, v5''')
    for m in range(5):
        for c in range(2):
            A(f'v_cvt_pk_bf16_f32 v{KO+2*m+c}, v{KR[m]+2*c}, v{KR[m]+2*c+1}')
    A(f'v_mov_b32 v{KO+10}, 0\nv_mov_b32 v{KO+11}, 0')
    A('s_barrier')
    for z in range(3):
        A(f'ds_write_b128 v{vK}, v[{KO+4*z}:{KO+4*z+3}] offset:{14*48+16*z}')
    for m in range(5):
        A(f'ds_write_b128 v{vV}, v[{VR[m]}:{VR[m]+3}] offset:{14*80+16*m}')
    idle(3)
    for w in (1, 2, 3):
        A(f's_cmp_lg_u32 s{sW}, {w}')
        ctx = A.begin_skip('s_cbranch_scc1 {}')
        A('s_mov_b32 exec_lo, 0xffff\ns_mov_b32 exec_hi, 0xffff')
        for m in range(5):
            T, i = KLOC[m]
            if T == w:
                A(f'v_cvt_pk_bf16_f32 v{KN+2*m}, v{HACC+4*i}, v{HACC+4*i+1}\nv_cvt_pk_bf16_f32 v{KN+2*m+1}, v{HACC+4*i+2}, v{HACC+4*i+3}')
                A(f'ds_write_b64 v{vKh}, v[{KN+2*m}:{KN+2*m+1}] offset:{8*m}')
            T, i = VLOC[m]
            if T == w:
                A(f'ds_write_b128 v{vVh}, v[{HACC+4*i}:{HACC+4*i+3}] offset:{16*m}')
        A('s_mov_b64 exec, -1')
        A.end_skip_lds(ctx)
    for e in (0, 1):
        A(f'v_cndmask_b32 v{QR[0]+e}, v{QR[0]+e}, 0, s[{sHALF}:{sHALF+1}]')
        A(f'v_cndmask_b32 v{QR[4]+2+e}, 0, v{QR[4]+2+e}, s[{sHALF}:{sHALF+1}]')
    for m in range(5):
        for c in range(2):
            A(f'v_cvt_pk_bf16_f32 v{Q+2*m+c}, v{QR[m]+2*c}, v{QR[m]+2*c+1}')
    idle(3)
    A.wait_all(vm=False)
    A('s_barrier')
    for w in range(1, 8):
        for z in range(3):
            r = KN + 12 * (w - 1) + 4 * z
            A(f'ds_read_b128 v[{r}:{r+3}], v{vK} offset:{(14-2*w)*48+16*z}')

    pool = list(range(16, 52, 4)) + [56, 76] + list(range(80, 96, 4)) + list(range(202, 242, 4))
    assert not set(pool) & set(VR)
    vb = {w: pool[5 * (w - 1):5 * w] for w in range(1, 6)}
    vb.update({w: [KN + 2 + 20 * (w - 6) + 4 * z for z in range(5)] for w in (6, 7)})

    def vread(w):
        for z in range(5):
            A(f'ds_read_b128 v[{vb[w][z]}:{vb[w][z]+3}], v{vV} offset:{(14-2*w)*80+16*z}')
    for ws in ((0, 1, 2, 3), (4, 5, 6, 7)):
        for d in range(10):
            for w in ws:
                k = (KO if w == 0 else KN + 12 * (w - 1)) + d
                c = '0' if d == 0 else f'v{L+w}'
                A(f'v_dot2_f32_bf16 v{L+w}, v{Q+d}, v{k}, {c}')
            if d % 3 == 0:
                idle()
        if ws[0] == 0:
            for w in range(1, 6):
                vread(w)
    for w in (6, 7):
        vread(w)
    A(f's_mov_b32 s96, {fbits(18 ** -0.5 * LOG2E)}')
    A(f's_mov_b32 s97, {fbits(-1e9)}')
    for w in range(8):
        A(f'v_mul_f32 v{L+w}, s96, v{L+w}')
    A(f's_or_b32 s98, s{sG}, s{sW}\ns_cmp_lg_u32 s98, 0')
    ctx = A.begin_skip('s_cbranch_scc1 {}')
    A(f'v_mov_b32 v4, s97')
    for w in range(1, 8):
        A(f'v_cmp_le_u32 vcc, {2*w}, v{vTok}')
        A(f'v_cndmask_b32 v{L+w}, v4, v{L+w}, vcc')
    A.end_skip(ctx)
    A(f'''v_max3_f32 v4, v{L}, v{L+1}, v{L+2}
    v_max3_f32 v5, v{L+3}, v{L+4}, v{L+5}
    v_max3_f32 v4, v4, v{L+6}, v{L+7}
    v_max_f32 v4, v4, v5''')
    for w in range(8):
        A(f'v_sub_f32 v{L+w}, v{L+w}, v4')
    for w in range(8):
        A(f'v_exp_f32 v{L+w}, v{L+w}')
    A(f'''v_add_f32 v4, v{L}, v{L+1}
    v_add_f32 v5, v{L+2}, v{L+3}
    v_add_f32 v6, v{L+4}, v{L+5}
    v_add_f32 v7, v{L+6}, v{L+7}
    v_add_f32 v4, v4, v5
    v_add_f32 v6, v6, v7
    v_add_f32 v4, v4, v6
    v_rcp_f32 v4, v4''')
    for w in range(8):
        A(f'v_mul_f32 v{L+w}, v{L+w}, v4')
    idle(3)
    for w in range(8):
        idle()
        lp = L + (w & ~1)
        for d in range(10):
            o = VR[d // 2] + 2 * (d & 1)
            if w == 0:
                A(f'v_pk_mul_f32 v[{o}:{o+1}], v[{o}:{o+1}], v[{lp}:{lp+1}] op_sel_hi:[1,0]')
            else:
                m = 'op_sel_hi:[1,0,1]' if w % 2 == 0 else 'op_sel:[0,1,0] op_sel_hi:[1,1,1]'
                v = vb[w][d // 2] + 2 * (d & 1)
                A(f'v_pk_fma_f32 v[{o}:{o+1}], v[{v}:{v+1}], v[{lp}:{lp+1}], v[{o}:{o+1}] {m}')
    TM = KO
    for d in range(10):
        o = VR[d // 2] + 2 * (d & 1)
        A(f'v_cvt_pk_bf16_f32 v{TM+d}, v{o}, v{o+1}')
    idle(100)
    OUT, E = 108, 116
    for d in range(9):
        A(f'v_cndmask_b32 v{OUT+d}, v{TM+d}, v{TM+d+1}, s[{sHALF}:{sHALF+1}]')
    A(f'''v_mov_b32 v{E+1}, v{E}
    v_mov_b32 v{E+2}, 0
    v_mov_b32 v{E+3}, 0
    v_permlane32_swap_b32 v{E}, v{E+1}''')
    A(f'''v_bfe_u32 v4, v{vLANE}, 4, 1
    v_mul_u32_u24 v4, 20480, v4
    v_and_b32 v5, 15, v{vLANE}
    v_lshl_add_u32 v4, v5, 4, v4
    v_lshrrev_b32 v5, 5, v{vLANE}
    v_lshl_add_u32 v{vO}, v5, 9, v4
    s_mul_i32 s96, s{sG}, {O_G}
    s_mul_i32 s97, s{sW}, 40960
    s_add_u32 s96, s96, s97
    s_mul_i32 s97, s{sJ}, 1280
    s_add_u32 s96, s96, s97
    s_add_u32 s96, s96, {WS_O}
    buffer_store_dwordx4 v[{OUT}:{OUT+3}], v{vO}, s[16:19], s96 offen sc1
    buffer_store_dwordx4 v[{OUT+4}:{OUT+7}], v{vO}, s[16:19], s96 offen offset:256 sc1
    s_mov_b32 exec_hi, 0
    buffer_store_dwordx4 v[{E}:{E+3}], v{vO}, s[16:19], s96 offen offset:1024 sc1
    s_mov_b32 exec_hi, -1''')


def ph_a(A):
    ph_a_main(A)
    ph_a_attn(A)
```

```python
from common import *
import ph_small as FS
import sys

NS = 10
WIN = 4
C_LDS = NS * 16384
BIAS = 4096

ACC = 16
HB = 144
vF = 216
vH = 228
vDG, vDH, vDD, vDE = 234, 235, 236, 237
vL16, vOUT = 238, 239
TMP = 240
OUTT = 248
aX = 0
aPH = 144
aFR = 216
sgG, sgU, sgGH, sgD, sgWS = 8, 12, 20, 24, 16

vT1, vT2 = 4, 5
OPT = dict(dma=True, fill=True, barrier=True, reads=True, pairs=False, NB=10, LA=6, LB=6, LAT=5, lag=0, lead=1, bigov=0, wstep=4, bper=2, xburst=8, xpace=4, dlag=28, prefill=6,
           rush={0: 70, 1: 106, 2: 142, 3: 162, 4: 172}, pubdelay=64, pub3delay=64, pub3=1, sched=0, pf=[], touch=[], itouch=[], fin=(212, 223, 229, 233), d2hi=0, outrush={0: 203, 1: 210, 2: 225, 3: 241}, hxst=1, hxpub=1, hxld=1, outst=1,
           checks=[(1, (0, 1), 122, 128), (2, (2,), 154, 159), (3, (3,), 176, 182), (4, (4,), 184, 189)])


def steps():
    st = []
    for p in range(4):
        for k in range(18):
            st.append(dict(kind='g', p=p, k=k))
            st.append(dict(kind='u', p=p, k=k))
    for k in range(18):
        st.append(dict(kind='gh', p=4, k=k))

    def dn(db, ks, who=0):
        for a in ks:
            st.append(dict(kind='dn', p=db, a=a, who=who))
    if not OPT['pairs']:
        ND = 3
        for db in range(ND):
            dn(db, range(6))
        for db in range(ND):
            dn(db, range(6, 9))
        for db in range(ND, 9):
            dn(db, range(9))
    else:
        if OPT.get('late2'):
            dn(0, range(6)); dn(0, range(4), 1)
            dn(1, range(6)); dn(1, range(4), 1)
            dn(0, range(4, 6), 1); dn(1, range(4, 6), 1)
        else:
            dn(0, range(6)); dn(0, range(6), 1)
            dn(1, range(6)); dn(1, range(6), 1)
        dn(0, range(6, 9)); dn(1, range(6, 9))
        if OPT['sched'] == 0:
            dn(0, range(6, 9), 1); dn(1, range(6, 9), 1)
            dn(2, range(9)); dn(2, range(9), 1)
        else:
            dn(2, range(OPT['sched']))
            dn(0, range(6, 9), 1); dn(1, range(6, 9), 1)
            dn(2, range(OPT['sched'], 9)); dn(2, range(9), 1)
        dn(3, range(9)); dn(3, range(9), 1)
        for u in range(9):
            st.append(dict(kind='dh', p=4, u=u))
    seen = set()
    for e in st:
        if e['kind'] in ('dn', 'dh'):
            e['first'] = e['p'] not in seen
            seen.add(e['p'])
    seen = set()
    for e in reversed(st):
        if e['kind'] in ('dn', 'dh'):
            e['last'] = e['p'] not in seen
            seen.add(e['p'])
    return st


def down_acc(db):
    if not OPT['pairs']:
        tab = {0: ('a', aX), 1: ('a', aX + 32), 2: ('a', aX + 64)}
        return tab.get(db, ('v', ACC + 32 * ((db + 1) % 4)))
    return {0: ('a', aX), 1: ('a', aX + 32), 2: ('v', ACC + 80 if OPT.get('d2hi', 1) else ACC), 3: ('v', ACC + 32), 4: ('v', ACC + 64)}[db]


def ph_c_setup_s(A):
    A.comment('==== phase C: setup ====')
    srd(A, sgG, sWG, 576 * 9216, bias=BIAS)
    srd(A, sgU, sWU, 576 * 9216, bias=BIAS + 1024)
    A(f'''s_cmp_lt_u32 s{sW}, 2
    s_cselect_b32 s96, s{sWG}, s{sWU}
    s_cselect_b32 s97, s{sWG+1}, s{sWU+1}''')
    srd(A, sgGH, 96, 576 * 9216, bias=BIAS)
    srd(A, sgD, sWD, F * 1152, bias=BIAS)
    A(f'''s_and_b32 s96, s{sJ}, 1
    s_mul_i32 s97, s{sJ}, 288
    s_lshl_b32 s98, s96, 5
    s_add_u32 s98, s98, s97
    s_lshl_b32 s56, s98, 1
    s_mul_i32 s58, s98, 1152
    s_cmp_eq_u32 s96, 0
    s_cselect_b32 s98, 256, 0
    s_add_u32 s98, s98, s97
    s_lshl_b32 s57, s98, 1
    s_mul_i32 s59, s98, 1152
    s_lshl_b32 s60, s{sW}, 12''')
    if OPT['pairs']:
        A(f'''s_cmp_eq_u32 s96, 0
        s_mov_b32 s98, {-288*1152 & 0xffffffff}
        s_cmov_b32 s98, {320*1152}
        s_mov_b32 s99, {-32*1152 & 0xffffffff}
        s_cmov_b32 s99, {288*1152}
        s_cselect_b32 s52, 0, 640
        s_movk_i32 s53, 576
        s_cmov_b32 s53, 512
        s_mul_i32 s100, s97, 1152
        s_add_u32 s50, s100, s98
        s_add_u32 s51, s100, s99
        s_add_u32 s50, s50, s52
        s_add_u32 s51, s51, s52
        s_add_u32 s48, s59, s53
        s_add_u32 s49, s51, s53
        s_sub_u32 s49, s49, s52
        s_add_u32 s46, s58, s53
        s_add_u32 s47, s50, s53
        s_sub_u32 s47, s47, s52
        s_add_u32 s58, s58, s52
        s_add_u32 s59, s59, s52
        s_lshr_b32 s45, s{sW}, 1
        s_mul_i32 s45, s45, {32*1152}''')
    np_ = 8 if OPT['pairs'] else 16
    A(f'''s_mul_i32 s96, s{sG}, {np_}
    s_lshr_b32 s97, s{sJ}, {1 if OPT['pairs'] else 0}
    s_add_u32 s96, s96, s97
    s_lshl_b32 s96, s96, 3
    s_lshl_b32 s97, s{sW}, 1
    s_add_u32 s96, s96, s97
    s_mul_i32 s55, s96, {T16}
    s_add_u32 s55, s55, {WS_PART}
    s_mov_b32 s62, {fbits(-LOG2E)}''')
    if OPT['pairs']:
        A(f'''s_lshl_b32 s96, s53, 4
        s_add_u32 s54, s55, s96
        s_lshl_b32 s96, s52, 4
        s_add_u32 s55, s55, s96''')


sPFB = 91
vPG, vPD, aJ = 254, 255, 128
aJC = None


def pf_setup(A):
    if OPT.get('pfl'):
        A(f's_movk_i32 s{sPFB}, {BIAS}')
        return pfl_setup(A)
    A(f'''v_mul_u32_u24 v160, 57, v{vLANE}
    v_lshrrev_b32 v160, 9, v160
    v_mul_u32_u24 v161, 9, v160
    v_sub_u32 v161, v{vLANE}, v161
    s_lshl_b32 s96, s{sG}, 2
    s_add_u32 s96, s96, s{sW}
    s_mul_i32 s96, s96, 9
    v_add_u32 v161, s96, v161
    s_movk_i32 s97, 9216
    v_mul_lo_u32 v162, v161, s97
    v_lshlrev_b32 v163, 7, v160
    v_add_u32 v164, s56, v163
    v_mov_b32 v165, s57
    v_cmp_eq_u32 vcc, 4, v160
    v_cndmask_b32 v164, v164, v165, vcc
    v_add_u32 v{vPG}, v162, v164
    s_lshr_b32 s96, s{sJ}, 1
    s_mul_i32 s96, s96, 576
    v_add_u32 v161, s96, v161
    v_mul_u32_u24 v161, 1152, v161
    s_and_b32 s96, s{sJ}, 1
    s_lshl_b32 s96, s96, 9
    v_add_u32 v163, s96, v163
    v_add_u32 v{vPD}, v161, v163
    s_movk_i32 s{sPFB}, {BIAS}''')


vPH = 253


def pfl_setup(A):
    A(f'''v_mul_u32_u24 v160, 57, v{vLANE}
    v_lshrrev_b32 v160, 10, v160
    v_mul_u32_u24 v161, 18, v160
    v_sub_u32 v161, v{vLANE}, v161
    s_lshr_b32 s96, s{sG}, 1
    s_lshl_b32 s96, s96, 2
    s_add_u32 s96, s96, s{sW}
    s_mul_i32 s96, s96, 18
    v_add_u32 v161, s96, v161
    s_movk_i32 s97, 9216
    v_mul_lo_u32 v162, v161, s97
    v_lshlrev_b32 v163, 7, v160
    v_add_u32 v162, v162, v163
    v_add_u32 v{vPG}, s56, v162
    s_lshr_b32 s96, s{sJ}, 1
    s_mul_i32 s96, s96, 576
    v_add_u32 v161, s96, v161
    v_mul_u32_u24 v161, 1152, v161
    s_and_b32 s96, s{sJ}, 1
    s_lshl_b32 s96, s96, 9
    v_add_u32 v163, s96, v163
    v_add_u32 v{vPD}, v161, v163
    s_sub_u32 s90, s57, s56
    s_add_u32 s90, s90, {BIAS}''')


def pfl_ops(mats, p0, n, dst='v13'):
    m = (1 << (18 * n)) - 1
    r = [f's_mov_b32 exec_lo, {m & 0xffffffff}', f's_mov_b32 exec_hi, {m >> 32}']
    for c in mats:
        sg, v = {'g': (sgG, vPG), 'u': (sgU, vPG), 'd': (sgD, vPD)}[c]
        extra = 1024 if c == 'u' else 0
        if c != 'd' and p0 == 4:
            so, off = 's90', extra
        else:
            so, off = f's{sPFB}', extra + 128 * p0
        r.append(f'buffer_load_dword {dst}, v{v}, s[{sg}:{sg+3}], {so} offen offset:{off} nt')
    r.append('s_mov_b64 exec, -1')
    return r


def pf_ops(mats, lo, hi, dst='v13'):
    if OPT.get('pfl'):
        return pfl_ops(mats, lo, hi)
    m = ((1 << hi) - 1) ^ ((1 << lo) - 1)
    r = [f's_mov_b32 exec_lo, {m & 0xffffffff}', f's_mov_b32 exec_hi, {m >> 32}']
    for q, c in enumerate(mats):
        sg, v = {'g': (sgG, vPG), 'u': (sgU, vPG), 'd': (sgD, vPD)}[c]
        o = ' offset:1024' if c == 'u' else ''
        r.append(f'buffer_load_dword {dst}, v{v}, s[{sg}:{sg+3}], s{sPFB} offen{o}{" nt" if OPT.get("pfnt") else ""}')
    r.append('s_mov_b64 exec, -1')
    return r


def ph_c_setup_v(A):
    A(f'''v_lshrrev_b32 v4, 3, v{vLANE}
    v_and_b32 v5, 7, v{vLANE}
    v_bfe_u32 v6, v{vLANE}, 4, 1
    s_and_b32 s40, s{sW}, 1
    s_lshr_b32 s41, s{sW}, 1
    s_lshl_b32 s42, s40, 1
    v_add_u32 v6, s42, v6
    v_lshlrev_b32 v6, 1, v6
    v_xor_b32 v5, v5, v6
    v_lshlrev_b32 v5, 4, v5
    s_lshl_b32 s42, s{sW}, 3
    v_add_u32 v6, s42, v4
    s_movk_i32 s43, 9216
    v_mul_lo_u32 v6, v6, s43
    v_add_u32 v{vDG}, v6, v5
    v_lshrrev_b32 v6, 2, v4
    v_lshlrev_b32 v6, 4, v6
    v_and_b32 v7, 3, v4
    v_add_u32 v6, v6, v7
    s_lshl_b32 s42, s{sW}, 2
    v_add_u32 v6, s42, v6
    v_mul_u32_u24 v6, 1152, v6
    v_add_u32 v{vDD}, v6, v5''')
    A(f'''v_lshrrev_b32 v4, 2, v{vLANE}
    v_and_b32 v5, 3, v{vLANE}
    v_lshrrev_b32 v6, 5, v{vLANE}
    v_lshlrev_b32 v7, 1, v6
    v_xor_b32 v5, v5, v7
    v_lshlrev_b32 v5, 4, v5
    s_lshl_b32 s42, s40, 4
    v_add_u32 v7, s42, v4
    v_mul_lo_u32 v7, v7, s43
    v_add_u32 v{vDH}, v7, v5
    v_bfe_u32 v7, v4, 2, 1
    v_lshlrev_b32 v7, 4, v7
    v_lshl_add_u32 v7, v6, 2, v7
    v_and_b32 v8, 3, v4
    v_add_u32 v7, v7, v8
    s_lshl_b32 s42, s40, 3
    v_add_u32 v7, s42, v7
    v_mul_u32_u24 v7, 1152, v7
    v_add_u32 v{vDE}, v7, v5''')
    A(f'''v_lshrrev_b32 v4, 4, v{vLANE}
    v_bfe_u32 v5, v{vLANE}, 2, 2
    v_bfe_u32 v6, v{vLANE}, 1, 1
    v_and_b32 v7, 1, v{vLANE}
    v_lshlrev_b32 v7, 3, v7
    v_lshl_add_u32 v7, v6, 4, v7
    v_and_b32 v8, 1, v4
    v_lshlrev_b32 v9, 1, v8
    v_lshrrev_b32 v10, 1, v5
    v_add_u32 v9, v9, v10
    v_lshlrev_b32 v9, 5, v9
    v_xor_b32 v9, v9, v7
    v_lshl_add_u32 v9, v5, 7, v9
    v_lshl_add_u32 v9, v4, 12, v9
    v_lshlrev_b32 v10, 5, v8
    v_xor_b32 v10, v10, v7
    v_lshl_add_u32 v10, v5, 6, v10
    v_lshl_add_u32 v10, v8, 9, v10
    v_lshrrev_b32 v11, 1, v4
    v_lshl_add_u32 v10, v11, 12, v10''')
    for wd in range(3):
        A(f'v_add_u32 v{vF+4*wd}, {WIN*16384*wd}, v9')
        for ft in range(1, 4):
            A(f'v_xor_b32 v{vF+4*wd+ft}, {32*ft}, v{vF+4*wd}')
        A(f'v_add_u32 v{vH+2*wd}, {WIN*16384*wd}, v10')
        A(f'v_xor_b32 v{vH+2*wd+1}, 32, v{vH+2*wd}')
    A(f'''v_lshlrev_b32 v{vL16}, 4, v{vLANE}
    v_lshlrev_b32 v8, 1, v8
    v_or_b32 v8, v8, v11
    v_lshlrev_b32 v8, 8, v8
    v_and_b32 v9, 15, v{vLANE}
    v_lshl_add_u32 v{vOUT}, v9, 4, v8''')


def ph_c_setup(A):
    ph_c_setup_s(A)
    ph_c_setup_v(A)


def nt_step(e):
    m = OPT.get('dmant', 0)
    if m == 1:
        return True
    if m == 2:
        return not (e['kind'] in 'gu' and e['p'] < 2)
    if m == 4:
        return e['kind'] in 'gu' and e['p'] >= 2
    if m == 5:
        return e['kind'] in 'gu' and e['p'] >= 3
    if m == 3:
        return e['kind'] in ('dn', 'dh')
    return False


def dma_ops(st, n):
    if n >= len(st) or (not OPT['dma'] and n >= 28):
        return []
    e = st[n]
    slot, z = divmod(n, 4)
    r = []
    if z == 0:
        r.append(f's_add_u32 m0, s60, {(slot % NS) * 16384}')
    comp = BIAS - 1024 * z
    k = e['kind']
    if k in 'gu':
        if k == 'g':
            r.append(f's_add_u32 s61, s56, {comp + e["p"]*128 + e["k"]*32*9216}')
        else:
            assert z & 1 and st[n - 1]['kind'] == 'g'
        q, v = (sgG if k == 'g' else sgU), vDG
    elif k == 'gh':
        r.append(f's_add_u32 s61, s57, {comp + e["k"]*32*9216}')
        q, v = sgGH, vDH
    elif k == 'dn':
        full, half = ((58, 59), (50, 51))[e['who']]
        if e['a'] < 8:
            r.append(f's_add_u32 s61, s{full}, {comp + e["p"]*128 + e["a"]*32*1152}')
        else:
            r.append(f's_add_u32 s61, s{half}, {comp + e["p"]*128}')
        q, v = sgD, vDD
    else:
        offs = []
        for par in range(2):
            who, a = divmod(2 * e['u'] + par, 9)
            sreg = ((46, 48), (47, 49))[who][a == 8]
            offs.append((sreg, comp + (a % 8) * 32 * 1152))
        if offs[0][0] == offs[1][0]:
            r.append(f's_add_u32 s61, s{offs[0][0]}, s45')
            r.append(f's_add_u32 s61, s61, {offs[0][1]}')
        else:
            r.append(f's_add_u32 s61, s{offs[0][0]}, {offs[0][1]}')
            r.append(f's_add_u32 s44, s{offs[1][0]}, {offs[1][1]}')
            r.append(f's_cmp_lt_u32 s{sW}, 2\ns_cselect_b32 s61, s61, s44')
        q, v = sgD, vDE
    r.append(f'buffer_load_dwordx4 v{v}, s[{q}:{q+3}], s61 offen offset:{1024*z}{" nt" if nt_step(e) else ""} lds')
    if OPT.get('dmajunk') and n >= 28:
        r[-1] = r[-1].replace(' lds', '').replace('buffer_load_dwordx4 ', 'buffer_load_dwordx4 a[212:215], ')
    return r


def mf_info(st, mu):
    n, e8 = divmod(mu, 8)
    fl, tt = divmod(e8, 2)
    e = st[n]
    slot, z = divmod(n, 4)
    win, sl = divmod(slot % NS, WIN)
    base = sl * 16384 + z * 1024
    k = e['kind']
    if k in 'gu':
        acc = ('v', ACC + 64 * (e['p'] & 1) + (32 if k == 'u' else 0) + 8 * fl + 4 * tt)
        b = ('a', aX + 72 * tt + 4 * e['k'])
        return acc, b, e['k'] == 0, vF + 4 * win + fl, [base + rd * 512 for rd in range(2)]
    if k == 'gh':
        mat, ft = divmod(fl, 2)
        acc = ('v', ACC + 32 * mat + 8 * ft + 4 * tt)
        b = ('a', aX + 72 * tt + 4 * e['k'])
        return acc, b, e['k'] == 0, vH + 2 * win + ft, [base + mat * 8192 + rd * 256 for rd in range(2)]
    ak, ab = down_acc(e['p'])
    if k == 'dn':
        acc = (ak, ab + 8 * fl + 4 * tt)
        b = ('v', HB + 8 * e['a'] + 4 * tt) if e['who'] == 0 else ('a', aPH + 8 * e['a'] + 4 * tt)
        return acc, b, e['first'], vF + 4 * win + fl, [base + rd * 512 for rd in range(2)]
    par, dt = divmod(fl, 2)
    who, a = divmod(2 * e['u'] + par, 9)
    acc = (ak, ab + 8 * dt + 4 * tt)
    b = ('v', HB + 8 * a + 4 * tt) if who == 0 else ('a', aPH + 8 * a + 4 * tt)
    return acc, b, e['first'] and par == 0, vH + 2 * win + dt, [base + par * 8192 + rd * 256 for rd in range(2)]


def act_ops(p):
    ops = []
    s = ACC + 64 * (p & 1)
    for ft in range(4 if p < 4 else 2):
        for tt in range(2):
            g = s + 8 * ft + 4 * tt
            u = g + 32
            h = HB + 8 * (2 * p + ft // 2) + 4 * tt + 2 * (ft & 1)
            T = TMP + 4 * tt
            r = range(4)
            ops += [(f'v_exp_f32 v{T+e}, v{g+e}', 2) for e in r]
            ops += [(f'v_add_f32 v{T+e}, 1.0, v{T+e}', 1) for e in r]
            ops += [(f'v_rcp_f32 v{T+e}, v{T+e}', 2) for e in r]
            ops += [(f'v_mul_f32 v{T+e}, v{u+e}, v{T+e}', 1) for e in r]
            ops += [(f'v_cvt_pk_bf16_f32 v{h+d}, v{T+2*d}, v{T+2*d+1}', 1) for d in range(2)]
    return ops


def out_ops(db, half=False):
    ops = []
    ak, ab = down_acc(db)
    for tt in range(2):
        for pr in range(1 if half else 2):
            P = OUTT + 4 * (pr & 1)
            for d in range(2):
                src = ab + 8 * (2 * pr + d) + 4 * tt
                if ak == 'a':
                    ops += [(f'v_accvgpr_read_b32 v{TMP+e}, a{src+e}', 1) for e in range(4)]
                    src = TMP
                ops += [(f'v_cvt_pk_bf16_f32 v{P+2*d+c}, v{src+2*c}, v{src+2*c+1}', 1) for c in range(2)]
            if pr == 0:
                off = tt * T16 + (0 if half else db * 2048)
                ops.append((f's_add_u32 s63, s{54 if half else 55}, {off}', 1))
            ops += [(f'v_permlane16_swap_b32 v{P}, v{P+2}', 2), (f'v_permlane16_swap_b32 v{P+1}, v{P+3}', 2)]
            if OPT['outst']:
              ops.append((f'buffer_store_dwordx4 v[{P}:{P+3}], v{vOUT}, s[{sgWS}:{sgWS+3}], s63 offen offset:{pr*1024} sc1', 2))
    return ops


sHXO, sHXP, sPFO, sPFP, sT = 52, 53, 7, 38, 39
vPF, vPV, vZ, vIL = 2, 3, 15, 12


def pair_setup(A):
    A(f'''s_lshl_b32 s40, s{sG}, 4
    s_add_u32 s40, s40, s{sJ}
    s_lshl_b32 s40, s40, 2
    s_add_u32 s40, s40, s{sW}
    s_xor_b32 s43, s40, 4
    s_mul_i32 s{sHXO}, s40, 18432
    s_add_u32 s{sHXO}, s{sHXO}, {WS_HX}
    s_mul_i32 s{sHXP}, s43, 18432
    s_add_u32 s{sHXP}, s{sHXP}, {WS_HX}
    s_lshl_b32 s{sPFO}, s40, {FSC[1]}
    s_add_u32 s{sPFO}, s{sPFO}, {WS_PF}
    s_lshl_b32 s{sPFP}, s43, {FSC[1]}
    s_add_u32 s{sPFP}, s{sPFP}, {WS_PF}
    v_mov_b32 v{vZ}, 0''')


sS3O, sS3C, sTB = 3, 4, 5
vT1, vT2, vFA, vFV = 4, 5, 6, 7


def tail_setup(A):
    flag_base(A, sS3O, 2, sW)
    A(f's_lshl_b32 s40, s{sJ}, {FSC[0]}\ns_add_u32 s{sS3O}, s{sS3O}, s40\ns_lshr_b32 s40, s{sJ}, 2')
    flag_base(A, sS3C, 2, 40)
    A(f'''s_mul_i32 s{sTB}, s{sG}, {64*T16}
    s_lshr_b32 s40, s{sJ}, 1
    s_mul_i32 s40, s40, {T16}
    s_add_u32 s{sTB}, s{sTB}, s40
    s_and_b32 s40, s{sJ}, 1
    s_lshl_b32 s40, s40, 7
    s_add_u32 s{sTB}, s{sTB}, s40
    s_mul_i32 s40, s{sW}, {16*T16}
    s_add_u32 s{sTB}, s{sTB}, s40
    s_add_u32 s{sTB}, s{sTB}, {WS_PART}
    v_and_b32 v{vFA}, 15, v{vLANE}
    v_lshrrev_b32 v8, 5, v{vLANE}
    v_mul_u32_u24 v8, {8*T16}, v8
    v_bfe_u32 v9, v{vLANE}, 4, 1
    v_mul_u32_u24 v10, 24, v9
    v_and_b32 v11, 31, v{vLANE}
    v_add_u32 v10, v10, v11
    v_lshl_add_u32 v{vT1}, v10, 8, v8
    v_mul_u32_u24 v8, {8*T16}, v9
    v_bfe_u32 v9, v{vLANE}, 3, 1
    v_lshlrev_b32 v9, 5, v9
    v_add3_u32 v9, v9, v{vFA}, 16
    v_lshl_add_u32 v{vT2}, v9, 8, v8
    v_lshlrev_b32 v{vFA}, {FSC[0]}, v{vFA}''')


def hx_store_ops(p):
    n = 4 if p < 4 else 2
    ops = [(f's_add_u32 s{sT}, s{sHXO}, {4096*p}', 1)]
    for q in range(n):
        r = HB + 16 * p + 4 * q
        ops.append((f'buffer_store_dwordx4 v[{r}:{r+3}], v{vL16}, s[{sgWS}:{sgWS+3}], s{sT} offen offset:{1024*q} sc1', 2))
    return ops


def hx_load_ops(p):
    n = 4 if p < 4 else 2
    ops = [f's_add_u32 s43, s{sHXP}, {4096*p}']
    for q in range(n):
        r = aPH + 16 * p + 4 * q
        ops.append(f'buffer_load_dwordx4 a[{r}:{r+3}], v{vL16}, s[{sgWS}:{sgWS+3}], s43 offen offset:{1024*q} sc1')
    return ops


class Ring:
    def __init__(self, A):
        self.A = A
        self.st = steps()
        self.marks = {}

    def issue(self, n):
        for x in dma_ops(self.st, n):
            self.A(x)
        if n % 4 == 3 or n == len(self.st) - 1:
            self.marks[n // 4] = self.A.mark()


def ph_c_prefill(A, R, s0, s1):
    for n in range(int(4 * s0), int(4 * s1)):
        R.issue(n)


def ph_c_xload(A):
    A(f'''s_lshl_b32 s40, s{sG}, 3
    s_lshl_b32 s41, s{sW}, 1
    s_add_u32 s40, s40, s41
    s_mul_i32 s41, s40, {T16}
    s_add_u32 s41, s41, {WS_H2}
    s_add_u32 s42, s41, {T16}''')
    ops = []
    for k in range(18):
        for tt in range(2):
            r = aX + 72 * tt + 4 * k
            ops.append(f'buffer_load_dwordx4 a[{r}:{r+3}], v{vL16}, s[{sgWS}:{sgWS+3}], s{41+tt} offen offset:{1024*(k%4)} sc1')
        if k % 4 == 3:
            ops.append('s_add_u32 s41, s41, 4096')
            ops.append('s_add_u32 s42, s42, 4096')
    return ops


def ph_c_stream(A, R, prefilled, xops):
    st = R.st
    NST = len(st)
    NM = 8 * NST
    NF = 4 * NST
    info = [mf_info(st, mu) for mu in range(NM)]
    NB, LA, WS_ = OPT['NB'], OPT['LA'], OPT['wstep']
    global aFR
    aFR = 256 - 4 * NB

    def reads(phi):
        if not OPT['reads'] and phi >= 8:
            return [None, None]
        acc, b, first, va, offs = info[2 * phi]
        f = aFR + 4 * (phi % NB)
        return [f'ds_read_b64_tr_b16 a[{f+2*rd}:{f+2*rd+1}], v{va} offset:{offs[rd]}' for rd in range(2)]

    BP = OPT['bper']

    def boundary(slot):
        A.wait_vm_mark(R.marks[min(slot + BP - 1, (NST - 1) // 4)])
        if OPT['barrier']:
            A('s_barrier')

    def deadline(ins, mu0):
        d, u = set(ins.defs), set(ins.uses)
        for mu in range(mu0, NM):
            acc, b, first, va, offs = info[mu]
            if d & set(rl(b[0], b[1], 4)):
                return mu
            if first and u & set(rl(acc[0], acc[1], 4)):
                return mu
        return NM + 40

    xq = list(xops)

    def xissue():
        while xq[0].startswith('s_'):
            A(xq.pop(0))
        A(xq.pop(0))
        while xq and xq[0].startswith('s_'):
            A(xq.pop(0))
    for k in range(OPT['xburst']):
        xissue()
    boundary(0)
    stamp(A, 'slot0 landed')
    for phi in range(LA):
        for x in reads(phi):
            A(x)
    pairs = OPT['pairs'] and OPT['fill']
    events = []
    hxq = []
    got = set()

    def ev_publish(val, mark):
        def f():
            A.wait_vm_mark(mark())
            A(f'v_mov_b32 v{vPV}, {val}\ns_mov_b64 exec, 1')
            A(f'buffer_store_dword v{vPV}, v{vZ}, s[{sgWS}:{sgWS+3}], s{sPFO} offen sc1')
            A('s_mov_b64 exec, -1')
        return f

    def ev_flagload():
        A(f'buffer_load_dword v{vPF}, v{vZ}, s[{sgWS}:{sgWS+3}], s{sPFP} offen sc1')

    def ev_check(val, blocks):
        def f():
            slow, back, again = A.label('L_slow'), A.label('L_back'), A.label('L_again')
            A(f'v_readfirstlane_b32 s40, v{vPF}')
            A(f's_cmp_ge_u32 s40, {val}')
            if Stamps.on:
                A(f's_cselect_b32 s88, 1, 0\nv_writelane_b32 v14, s88, {50+val}')
            A(f's_cbranch_scc0 {slow}')
            A(back + ':')
            A.tail += [slow + ':', 's_mov_b32 s44, 0', again + ':'] + backoff() + [
                       f'buffer_load_dword v{vPF}, v{vZ}, s[{sgWS}:{sgWS+3}], s{sPFP} offen sc1',
                       's_add_u32 s44, s44, 1', f's_cmp_gt_u32 s44, {SPIN_MAX}', f's_cbranch_scc1 {back}',
                       's_waitcnt vmcnt(0)', f'v_readfirstlane_b32 s40, v{vPF}', 's_nop 1', f's_cmp_ge_u32 s40, {val}',
                       f's_cbranch_scc0 {again}', f's_branch {back}']
            for p in blocks:
                if OPT['hxld']:
                    hxq.extend(hx_load_ops(p))
        return f
    def ev_pub3(val, mark):
        def f():
            A.wait_vm_mark(mark())
            A(f'v_mov_b32 v{vPV}, {val}\ns_mov_b64 exec, 1')
            A(f'buffer_store_dword v{vPV}, v{vZ}, s[{sgWS}:{sgWS+3}], s{sS3O} offen sc1')
            A('s_mov_b64 exec, -1')
        f.optional = True
        return f

    def ev_flag3():
        assert not set(slowq) & set(FS.final_setup_ops()), 'final set-up not finished'
        A(f'buffer_load_dword v9, v8, s[{sgWS}:{sgWS+3}], s{sS3C} offen sc1')

    def ev_early():
        A('v_cmp_gt_u32 vcc, 1, v9')
        A('s_cmp_eq_u64 vcc, 0')
        A(f's_cselect_b32 s{FS.sVALID}, 1, 0')
        A(f's_cselect_b32 s6, s98, {WS_XH}')
        if Stamps.on:
            A(f'v_writelane_b32 v14, s{FS.sVALID}, 41')
        busy = set(rl('v', FS.P0, 32))
        assert not any(busy & set(Ins(x).uses) for x, c, d in fill if c), 'stage-1 loads would overwrite live accumulators'
        slowq.extend(FS.parts_ops(52, FS.P0, 6))
    slowq = []
    if pairs and OPT['fin']:
        n0, n1, n2, n3 = OPT['fin']
        def ev_setup():
            assert all(st[q]['kind'] == 'dh' for q in pend if q < NST) and not any(isinstance(x, str) and 'v236' in x for x in misc)
            slowq.extend(FS.final_setup_ops())
        events.append([8 * n0, ev_setup])
        def ev_sides():
            busy = set(rl('v', FS.X0, 36))
            assert not any(busy & set(Ins(x).uses) for x, c, d in fill if c), 'side loads would overwrite live accumulators'
            slowq.extend(FS.side_ops(52, FS.X0) + FS.side_ops(53, FS.X1) + FS.side_ops(58, FS.X2))
        events.append([8 * n1, ev_sides])
        events.append([8 * n2 + 2, ev_flag3])
        events.append([8 * n3 + 3, ev_early])
    for (n_, tgt) in OPT['itouch']:
        events.append([8 * n_ + 4, (lambda tgt=tgt: [A(x) for x in itouch(f'L_back_step{tgt}', vIL, 'v13')])])
    for (n_, mats, lo, hi) in OPT['pf']:
        events.append([8 * n_ + 6, (lambda mats=mats, lo=lo, hi=hi: [A(x) for x in pf_ops(mats, lo, hi)])])
    if pairs and OPT['hxpub']:
        for (val, blocks, nload, ncheck) in OPT['checks']:
            events.append([8 * nload + 2, ev_flagload])
            events.append([8 * ncheck + 3, ev_check(val, blocks)])
    fill = []
    misc = []
    pend = list(range(4 * prefilled, 4 * (NS - 1)))
    credit = 0.0
    forced = 0
    LB, LAT = OPT['LB'], OPT['LAT']
    nr = 2 * LA
    open_frag = 16 * BP
    next_ld = 0
    for mu in range(NM):
        n, e8 = divmod(mu, 8)
        e = st[n]
        phi, tt = divmod(mu, 2)
        acc, b, first, va, offs = info[mu]
        f = aFR + 4 * (phi % NB)
        if e8 == 0:
            A(f'L_back_step{n}:')
        if e8 == 0 and n in (36, 72, 108, 144, 162, 180, 198, 216, 234):
            stamp(A, f'step {n}')
        if e8 == 4 and n > 0 and OPT['fill']:
            pe = st[n - 1]
            new = []
            if pe['kind'] == 'u' and pe['k'] == 17 or pe['kind'] == 'gh' and pe['k'] == 17:
                new = act_ops(pe['p'])
            elif pe['kind'] in ('dn', 'dh') and pe['last']:
                new = out_ops(pe['p'], pe['kind'] == 'dh')
                if pairs and OPT['pub3'] and pe['p'] in (1, 2):
                    new.append((('pub3', pe['p']), 0))
            rush = NM + 40
            if new and pairs and pe['kind'] == 'dn':
                rush = 8 * OPT['outrush'][pe['p']]
            if new and pairs and pe['kind'] in ('u', 'gh'):
                p = pe['p']
                if OPT['hxst']:
                    new = new + hx_store_ops(p)
                rush = 8 * OPT['rush'][p]
                if p >= 1 and OPT['hxpub']:
                    new.append((('pub', p), 0))
            for x, c in new:
                fill.append([x, c, min(rush, deadline(Ins(x), mu + 1)) if c else rush])
            for q in range(len(fill) - 2, -1, -1):
                fill[q][2] = min(fill[q][2], fill[q + 1][2])
        def emit_fill():
            x, c, d = fill.pop(0)
            if isinstance(x, tuple):
                mk = A.mark()
                events.append([mu + OPT['pubdelay' if x[0] == 'pub' else 'pub3delay'], (ev_publish if x[0] == 'pub' else ev_pub3)(x[1], lambda: mk)])
            else:
                A(x)
            return c
        while fill and fill[0][2] <= mu:
            emit_fill(); forced += 1
        if pairs and OPT['hxld'] and OPT['hxpub'] and b[0] == 'a' and b[1] >= aPH:
            assert b[1] in got, ('partner fragment not loaded yet', mu // 8, b)
        cin = '0' if first else f'{acc[0]}[{acc[1]}:{acc[1]+3}]'
        A(f'v_mfma_f32_16x16x32_bf16 {acc[0]}[{acc[1]}:{acc[1]+3}], a[{f}:{f+3}], {b[0]}[{b[1]}:{b[1]+3}], {cin}')
        cap = 2
        pb = phi + LB
        if tt == 0 and pb < NF and pb % (16 * BP) == 0:
            slot = pb // 16
            boundary(slot); cap -= 2
            open_frag = min(NF, 16 * (slot + BP))
            for q in range(slot - 1 - BP + NS, slot - 1 + NS):
                pend += [4 * q + z for z in range(4)]
        wait_next = tt == 1 and (phi + 1) % WS_ == 0 and phi + 1 < NF
        if wait_next:
            cap -= 1

        def rd_ok():
            return nr < 2 * NF and nr // 2 < open_frag and mu >= 2 * (nr // 2 - NB) + 1

        def rd_emit():
            nonlocal nr
            x = reads(nr // 2)[nr % 2]
            if x:
                A(x)
            nr += 1
        while nr < 2 * NF and mu >= 2 * (WS_ * ((nr // 2) // WS_)) - 1 - LAT:
            assert rd_ok(), (mu, nr)
            rd_emit(); cap -= 1
        for ev in [ev for ev in events if ev[0] <= mu]:
            events.remove(ev)
            ev[1](); cap -= 2
        if not misc and pend and (not xq or len(pend) > OPT['dlag']) and (e8 == 0 or (e8 in (3, 5) and len(pend) > 4 * BP)):
            nd = pend.pop(0)
            misc = dma_ops(st, nd)
            if nd % 4 == 3 or nd == NST - 1:
                misc.append(('mark', nd // 4))

        def marks():
            while misc and isinstance(misc[0], tuple):
                R.marks[misc.pop(0)[1]] = A.mark()
        marks()
        if fill:
            credit += max((q + 1) / max(1, d - mu) for q, (x, c, d) in enumerate(fill))
        else:
            credit = 0.0
        paced = mu >= next_ld
        while True:
            big = small = None
            if paced and xq:
                big = 'x'
            elif paced and hxq and not hxq[0].startswith('s_'):
                big = 'h'
            elif paced and slowq and slowq[0].startswith('buffer'):
                big = 's'
            elif misc and misc[0].startswith('buffer'):
                big = 'm'
            elif fill and fill[0][1] == 2:
                big = 'f'
            if hxq and hxq[0].startswith('s_'):
                small = 'h'
            elif misc and not misc[0].startswith('buffer'):
                small = 'm'
            elif slowq and not slowq[0].startswith('buffer'):
                small = 's'
            elif fill and fill[0][1] < 2:
                small = 'f'
            if small == 'h':
                A(hxq.pop(0)); cap -= 1
                continue
            behind = nr <= 2 * (phi + LA) + tt
            late = big in ('x', 'h', 's') and mu >= next_ld + 2 or big == 'm' and e8 >= 3
            lag = 2 * (phi + LA) + tt + 1 - nr
            if big and cap == 1 and lag <= 0 and OPT['bigov']:
                pick = big
                cap -= 2
            elif big and ((cap >= 2 and (lag <= OPT['lag'] or not rd_ok())) or late):
                pick = big
                cap -= 2
            elif cap <= 0:
                break
            elif rd_ok() and (behind or (lag > -OPT['lead'] and (not small or big))):
                rd_emit(); cap -= 1
                continue
            elif small:
                pick = small
                cap -= 1
            else:
                break
            if pick == 'x':
                xissue(); next_ld = mu + OPT['xpace']; paced = False
            elif pick == 'h':
                if not hxq[0].startswith('s_'):
                    got.add(Ins(hxq[0]).defs[0][1]); next_ld = mu + OPT['xpace']; paced = False
                A(hxq.pop(0))
            elif pick == 's':
                if slowq[0].startswith('buffer'):
                    next_ld = mu + 4; paced = False
                A(slowq.pop(0))
            elif pick == 'm':
                A(misc.pop(0)); marks()
            else:
                if emit_fill() == 0:
                    cap += 1
                credit = max(0.0, credit - 1.0)
        while fill and credit >= 1.0 and (fill[0][1] < 2 or credit >= 2.0):
            emit_fill()
            credit -= 1.0
        if wait_next:
            A.wait_regs([r for q in range(WS_) for r in rl('a', aFR + 4 * ((phi + 1 + q) % NB), 4)])
    stamp(A, 'mfma done')
    last = st[-1]
    for x in slowq:
        A(x)
    assert not hxq and all(getattr(ev[1], 'optional', False) for ev in events)
    for x, c, d in fill:
        A(x)
    for x, c in out_ops(last['p'], last['kind'] == 'dh'):
        A(x)
    print('phase C: forced', forced, 'tail', len(fill), file=sys.stderr)


def ph_c(A):
    A.junk = ('v', 13)
    srd(A, sgWS, sWS, WS_SIZE)
    ph_c_setup(A)
    R = Ring(A)
    ph_c_prefill(A, R, 0, OPT['prefill'])
    xops = ph_c_xload(A)
    if OPT['pairs']:
        pair_setup(A)
        tail_setup(A)
    stamp(A, 'prologue')
    ph_c_stream(A, R, OPT['prefill'], xops)
```

```python
from common import *
from ph_small import ph_mod
from ph_a import mod_table

PT = [(0, 1, 2, 3), (4, 13, 10, 11), (12, 21, 14, 23), (20, 24, 22, 22)]
N_MOD, N_XH, N_WQ, N_WO = 108, 64, 144, 40
N_PREP = N_MOD + N_XH + N_WQ + N_WO
PREP_LDS = 4 * 9216


def task_xhat(A, sI):
    A.comment('---- prep: xhat')
    X, T, P = 16, 56, 136
    A(f'''v_lshrrev_b32 v4, 3, v{vLANE}
    v_and_b32 v5, 7, v{vLANE}
    v_mul_u32_u24 v2, 1152, v4
    v_lshl_add_u32 v2, v5, 4, v2
    s_lshl_b32 s40, s{sI}, 2
    s_add_u32 s40, s40, s{sW}
    s_mul_i32 s41, s40, {8*1152}''')
    srd(A, 8, sX, S * D * 2)
    for n in range(9):
        A(f'buffer_load_dwordx4 v[{X+4*n}:{X+4*n+3}], v2, s[8:11], s41 offen offset:{128*n}{NT[0]}')
    srd(A, 16, sWS, WS_SIZE)
    A(f'''s_mul_i32 s42, s{sW}, 9216
    v_xor_b32 v6, v4, v5
    v_lshlrev_b32 v6, 4, v6
    v_add_u32 v6, s42, v6
    v_lshl_add_u32 v7, v4, 7, v6
    v_lshl_add_u32 v6, v5, 7, v6
    v_lshlrev_b32 v3, 9, v4
    v_lshl_add_u32 v3, v5, 4, v3
    s_mul_i32 s43, s{sI}, 36864
    s_lshl_b32 s44, s{sW}, 7
    s_add_u32 s43, s43, s44
    s_add_u32 s43, s43, {WS_XH}''')
    A(f'''s_lshr_b32 s46, s40, 1
    s_mul_i32 s46, s46, {T16}
    s_and_b32 s47, s{sW}, 1
    s_lshl_b32 s47, s47, 7
    s_add_u32 s46, s46, s47
    s_add_u32 s46, s46, {WS_XT}
    v_lshlrev_b32 v15, 8, v4
    v_lshl_add_u32 v15, v5, 4, v15''')
    for n in range(9):
        A(f'ds_write_b128 v6, v[{X+4*n}:{X+4*n+3}] offset:{1024*n}')
        for d in range(4):
            unpack(A, T + 8 * n + 2 * d, T + 8 * n + 2 * d + 1, X + 4 * n + d)
    for n in range(9):
        A(f'ds_read_b128 v[{X+4*n}:{X+4*n+3}], v7 offset:{1024*n}')
    a, q = 8, 10

    def sum8(r):
        A(f'v_add_f32_dpp v{r}, v{r}, v{r} quad_perm:[1,0,3,2] row_mask:0xf bank_mask:0xf')
        A(f'v_add_f32_dpp v{r}, v{r}, v{r} quad_perm:[2,3,0,1] row_mask:0xf bank_mask:0xf')
        A(f'v_add_f32_dpp v{r}, v{r}, v{r} row_half_mirror row_mask:0xf bank_mask:0xf')
    A(f'v_pk_add_f32 v[{a}:{a+1}], v[{T}:{T+1}], v[{T+2}:{T+3}]')
    A(f'v_pk_add_f32 v[{q}:{q+1}], v[{T+4}:{T+5}], v[{T+6}:{T+7}]')
    for u in range(4, 36):
        r = a if u & 1 else q
        A(f'v_pk_add_f32 v[{r}:{r+1}], v[{r}:{r+1}], v[{T+2*u}:{T+2*u+1}]')
    A(f'v_pk_add_f32 v[{a}:{a+1}], v[{a}:{a+1}], v[{q}:{q+1}]')
    A(f'v_add_f32 v{a}, v{a}, v{a+1}')
    sum8(a)
    for n in range(9):
        A(f'buffer_store_dwordx4 v[{X+4*n}:{X+4*n+3}], v15, s[16:19], s46 offen offset:{2048*(n&1)}')
        if n & 1:
            A('s_add_u32 s46, s46, 4096')
    A(f's_mov_b32 s45, {fbits(1.0/576)}\nv_mul_f32 v{a}, s45, v{a}')
    for u in range(36):
        t = T + 2 * u
        A(f'v_pk_add_f32 v[{t}:{t+1}], v[{t}:{t+1}], v[{a}:{a+1}] op_sel_hi:[1,0] neg_lo:[0,1] neg_hi:[0,1]')
    b = 12
    A(f'v_pk_mul_f32 v[{q}:{q+1}], v[{T}:{T+1}], v[{T}:{T+1}]')
    A(f'v_pk_mul_f32 v[{b}:{b+1}], v[{T+2}:{T+3}], v[{T+2}:{T+3}]')
    for u in range(2, 36):
        r = b if u & 1 else q
        t = T + 2 * u
        A(f'v_pk_fma_f32 v[{r}:{r+1}], v[{t}:{t+1}], v[{t}:{t+1}], v[{r}:{r+1}]')
    A(f'v_pk_add_f32 v[{q}:{q+1}], v[{q}:{q+1}], v[{b}:{b+1}]')
    A(f'v_add_f32 v{q}, v{q}, v{q+1}')
    sum8(q)
    A(f'''v_mov_b32 v{q+1}, {fbits(1e-5)}
    v_fmac_f32 v{q+1}, s45, v{q}
    v_rsq_f32 v{a}, v{q+1}
    s_mov_b32 s48, 0xffff
    s_mov_b32 s47, 0x7fffffff''')
    for n in range(9):
        for d in range(4):
            t = T + 8 * n + 2 * d
            A(f'v_pk_mul_f32 v[{t}:{t+1}], v[{t}:{t+1}], v[{a}:{a+1}] op_sel_hi:[1,0]')
        ts = [T + 8 * n + 2 * d for d in range(4)]
        for t in ts:
            A(f'v_cvt_pk_bf16_f32 v{t}, v{t}, 0')
        for d, t in enumerate(ts):
            A(f'v_and_b32 v{X+4*n+d}, s47, v{t+1}')
        for d, t in enumerate(ts):
            A(f'v_add_u32 v{X+4*n+d}, 0x8000, v{X+4*n+d}')
        for d, t in enumerate(ts):
            A(f'v_sub_u32 v{X+4*n+d}, v{X+4*n+d}, v{t} clamp')
        for d, t in enumerate(ts):
            A(f'v_bfi_b32 v{X+4*n+d}, s47, v{X+4*n+d}, v{t+1}')
        for d, t in enumerate(ts):
            A(f'v_bfi_b32 v{X+4*n+d}, s48, v{t}, v{X+4*n+d}')
        A(f'ds_write_b128 v6, v[{X+4*n}:{X+4*n+3}] offset:{1024*n}')
    for n in range(9):
        A(f'ds_read_b128 v[{X+4*n}:{X+4*n+3}], v7 offset:{1024*n}')
    for n in range(9):
        A(f'buffer_store_dwordx4 v[{X+4*n}:{X+4*n+3}], v3, s[16:19], s43 offen')
        if n < 8:
            A('s_add_u32 s43, s43, 4096')


def task_wq(A, sI):
    A.comment('---- prep: qkv weight tiles')
    A(f'''v_mul_u32_u24 v4, 69, v{vLANE}
    v_lshrrev_b32 v4, 10, v4
    v_mul_u32_u24 v5, 15, v4
    v_sub_u32 v5, v{vLANE}, v5
    v_mul_u32_u24 v6, 13, v5
    v_lshrrev_b32 v6, 6, v6
    v_mul_u32_u24 v7, 5, v6
    v_sub_u32 v7, v5, v7
    v_mul_u32_u24 v4, 3456, v4
    v_mul_u32_u24 v6, 1152, v6
    v_add_u32 v4, v4, v6
    v_lshl_add_u32 v2, v7, 4, v4
    s_lshr_b32 s40, s{sI}, 2
    s_and_b32 s41, s{sI}, 3
    s_lshl_b32 s41, s41, 2
    s_add_u32 s41, s41, s{sW}
    s_mul_i32 s42, s41, 72
    s_and_b32 s42, s42, 0xfffffff0
    s_mul_i32 s43, s40, {16*3456}
    s_add_u32 s42, s42, s43
    s_mul_i32 s44, s{sW}, 3840
    s_mov_b32 exec_hi, 0x0fffffff''')
    srd(A, 12, sWQKV, 576 * 3456)
    for i in range(4):
        A(f's_add_u32 m0, s44, {960*i}')
        A(f's_add_u32 s45, s42, {4*3456*i}')
        A(f'buffer_load_dwordx4 v2, s[12:15], s45 offen{NT[2]} lds')
    A('s_mov_b32 exec_hi, -1')
    srd(A, 16, sWS, WS_SIZE)
    wq_extra(A, sI)
    A(f'''v_lshrrev_b32 v4, 5, v{vLANE}
    v_bfe_u32 v5, v{vLANE}, 2, 2
    v_and_b32 v6, 3, v{vLANE}
    v_bfe_u32 v7, v{vLANE}, 4, 1
    v_lshlrev_b32 v7, 1, v7
    v_lshrrev_b32 v9, 1, v6
    v_add_u32 v7, v7, v9
    v_lshlrev_b32 v7, 3, v7
    v_and_b32 v8, 1, v6
    v_lshlrev_b32 v8, 2, v8
    s_and_b32 s50, s41, 1
    v_add_u32 v8, s50, v8
    v_lshl_add_u32 v9, v4, 3, v5
    v_mul_u32_u24 v9, 240, v9
    v_add_u32 v9, s44, v9''')
    packs = [t[0] | t[1] << 8 | t[2] << 16 | t[3] << 24 for t in PT]
    for T in range(4):
        A(f'''s_mov_b32 s52, {packs[T]}
        v_bfe_u32 v10, s52, v7, 8
        v_add_u32 v10, v10, v8
        v_lshl_add_u32 v{12+T}, v10, 3, v9''')
    A(f'''v_lshlrev_b32 v3, 4, v{vLANE}
    v_and_b32 v10, 31, v{vLANE}
    v_mul_u32_u24 v11, 24, v4
    v_add_u32 v11, v11, v10
    v_lshlrev_b32 v11, 4, v11
    s_mul_i32 s46, s41, {WQ_J}
    s_mul_i32 s47, s40, 3840
    s_add_u32 s46, s46, s47
    s_add_u32 s46, s46, {WS_WQ}''')
    A.wait_all()
    for T in range(4):
        for rd in range(2):
            A(f'ds_read_b64_tr_b16 v[{16+4*T+2*rd}:{17+4*T+2*rd}], v{12+T} offset:{960*rd}')
    for T in range(3):
        A(f'buffer_store_dwordx4 v[{16+4*T}:{19+4*T}], v3, s[16:19], s46 offen offset:{1024*T}')
    A('s_mov_b32 exec_lo, 0x00ffffff\ns_mov_b32 exec_hi, 0x00ffffff')
    A('buffer_store_dwordx4 v[28:31], v11, s[16:19], s46 offen offset:3072')
    A('s_mov_b64 exec, -1')


def task_wo(A, sI):
    A.comment('---- prep: wo tiles')
    A(f'''s_lshl_b32 s40, s{sI}, 2
    s_add_u32 s40, s40, s{sW}
    s_lshr_b32 s41, s40, 3
    s_and_b32 s42, s40, 7
    s_mul_i32 s43, s42, 144
    s_mul_i32 s44, s{sW}, 4864
    v_lshrrev_b32 v4, 3, v{vLANE}
    v_and_b32 v5, 7, v{vLANE}
    v_lshlrev_b32 v5, 4, v5
    v_mul_u32_u24 v6, 1152, v4
    v_add_u32 v6, v6, v5
    v_lshlrev_b32 v7, 2, v4
    s_mov_b32 s45, 0x76543210
    v_lshrrev_b32 v7, v7, s45
    v_and_b32 v7, 15, v7
    v_lshlrev_b32 v9, 2, v4
    s_mov_b32 s45, 0x00002211
    v_lshrrev_b32 v9, v9, s45
    v_and_b32 v9, 15, v9
    v_lshl_add_u32 v7, v9, 4, v7
    v_mul_u32_u24 v8, 1152, v7
    v_add_u32 v8, v8, v5
    s_lshl_b32 s45, s41, 2''')
    srd(A, 20, sWO, 576 * 1152)
    for q in range(4):
        A(f'''s_add_u32 s47, s45, {q}
        s_mul_i32 s48, s47, 205
        s_lshr_b32 s48, s48, 10
        s_mul_i32 s49, s48, 5
        s_sub_u32 s49, s47, s49
        s_lshr_b32 s50, s49, 1
        s_mul_i32 s50, s50, 18
        s_and_b32 s51, s49, 1
        s_lshl_b32 s51, s51, 3
        s_add_u32 s50, s50, s51
        s_mul_i32 s48, s48, 36
        s_cmp_eq_u32 s49, 4
        s_cselect_b32 s50, 0, s50
        s_cselect_b64 vcc, -1, 0
        s_add_u32 s50, s50, s48
        s_mul_i32 s50, s50, 1152
        s_add_u32 s{52+q}, s50, s43
        v_cndmask_b32 v{10+q}, v6, v8, vcc
        s_add_u32 m0, s44, {1024*q}
        s_nop 0
        buffer_load_dwordx4 v{10+q}, s[20:23], s{52+q} offen{NT[3]} lds''')
    A(f'''v_and_b32 v14, 7, v{vLANE}
    v_lshlrev_b32 v14, 5, v14
    v_bfe_u32 v15, v{vLANE}, 3, 2''')
    for q in range(4):
        A(f'v_add_u32 v{10+q}, s{52+q}, v{10+q}')
    for q in range(4):
        A(f'ds_bpermute_b32 v{16+q}, v14, v{10+q}')
    A(f'''v_cmp_eq_u32 vcc, 1, v15
    v_cndmask_b32 v16, v16, v17, vcc
    v_cmp_eq_u32 vcc, 2, v15
    v_cndmask_b32 v16, v16, v18, vcc
    v_cmp_eq_u32 vcc, 3, v15
    v_cndmask_b32 v16, v16, v19, vcc
    s_add_u32 m0, s44, 4096
    s_mov_b32 exec_hi, 0
    buffer_load_dwordx4 v16, s[20:23], 0 offen offset:128{NT[3]} lds
    s_mov_b32 exec_hi, -1''')
    srd(A, 16, sWS, WS_SIZE)
    A(f'''v_lshrrev_b32 v4, 4, v{vLANE}
    v_bfe_u32 v5, v{vLANE}, 2, 2
    v_lshl_add_u32 v4, v4, 3, v5
    v_and_b32 v5, 3, v{vLANE}
    v_lshlrev_b32 v6, 7, v4
    v_lshl_add_u32 v6, v5, 3, v6
    v_add_u32 v6, s44, v6
    v_and_b32 v5, 1, v5
    v_lshlrev_b32 v7, 4, v4
    v_lshl_add_u32 v7, v5, 3, v7
    v_add_u32 v7, s44, v7
    v_lshlrev_b32 v3, 4, v{vLANE}
    s_mul_i32 s46, s42, {WO_C}
    s_mul_i32 s47, s41, 5120
    s_add_u32 s46, s46, s47
    s_add_u32 s46, s46, {WS_WO}
    s_add_u32 s47, s46, 4096''')
    A.wait_all()
    for T in range(4):
        for rd in range(2):
            A(f'ds_read_b64_tr_b16 v[{32+4*T+2*rd}:{33+4*T+2*rd}], v6 offset:{512*rd+32*T}')
    for rd in range(2):
        A(f'ds_read_b64_tr_b16 v[{48+2*rd}:{49+2*rd}], v7 offset:{4096+128+64*rd}')
    for T in range(4):
        A(f'buffer_store_dwordx4 v[{32+4*T}:{35+4*T}], v3, s[16:19], s46 offen offset:{1024*T}')
    A('buffer_store_dwordx4 v[48:51], v3, s[16:19], s47 offen')


def task_zero(A, sI):
    A(f'''v_mov_b32 v56, 0
    v_mov_b32 v57, 0
    v_mov_b32 v58, 0
    v_mov_b32 v59, 0
    v_lshlrev_b32 v60, 4, v{vTID}
    s_lshl_b32 s48, s{sI}, 12''')
    assert WS_ZEND - WS_ST <= N_WQ * 4096
    srd(A, 24, sWS, WS_ZEND - WS_ST, off=WS_ST)
    A('buffer_store_dwordx4 v[56:59], v60, s[24:27], s48 offen')
    for base, sh, cnt in ((0, FSC[0], 3072), (WS_PF - WS_FLAG, FSC[1], 1024)):
        srd(A, 28, sWS, cnt << sh, off=WS_FLAG + base)
        A(f'v_lshlrev_b32 v60, {sh}, v{vTID}\ns_lshl_b32 s48, s{sI}, {8 + sh}')
        A('buffer_store_dword v56, v60, s[28:31], s48 offen')


def wq_extra(A, sI):
    task_zero(A, sI)
    if NEXT[0]:
        A(f's_lshr_b32 s48, s{sI}, 3\ns_lshl_b32 s48, s48, 2\ns_add_u32 s48, s48, s{sW}\ns_lshl_b32 s48, s48, 13')
        code_prefetch(A, NEXT[0], f'{NEXT[1]}-{NEXT[0]}-4', 60, 62, 50, 1, 48)


POPT = dict(tlb=0, pf=0)
N_PF = 128


def task_tlb(A, sI, shift):
    bufs = [(sWG, 576 * 9216, 0), (sWU, 576 * 9216, 0), (sWD, F * 1152, 0), (sOUT, S * D * 2, 0), (sWS, WS_END, 0)]
    A(f's_lshr_b32 s48, s{sI}, 3\ns_lshl_b32 s48, s48, 2\ns_add_u32 s48, s48, s{sW}')
    A(f'v_lshlrev_b32 v56, {shift}, v{vLANE}')
    q = 0
    for ptr, size, off in bufs:
        srd(A, 24, ptr, size)
        n = -(-size // (64 << shift))
        for i in range(n):
            if q % 20 or True:
                A(f's_cmp_eq_u32 s48, {q % 20}')
                A(f's_cselect_b32 s49, {i * (64 << shift)}, s47') if False else None
                A(f's_mov_b32 s49, 0x80000000\ns_cmov_b32 s49, {i * (64 << shift)}')
                A(f'buffer_load_dword v57, v56, s[24:27], s49 offen')
            q += 1
            if q % 40 == 0:
                A('s_waitcnt vmcnt(0)')


def task_pf(A, sI):
    A(f's_lshl_b32 s40, s{sI}, 2\ns_add_u32 s40, s40, s{sW}\nv_lshlrev_b32 v2, 7, v{vLANE}')
    per = 576 * 9216 // (4 * N_PF)
    assert per % 128 == 0
    A(f's_mul_i32 s41, s40, {per}')
    for ptr in (sWG, sWU, sWD):
        srd(A, 8, ptr, 576 * 9216)
        A(f's_mov_b32 s42, s41')
        n = per // 128
        k = 0
        while n > 0:
            if n < 64:
                m = (1 << n) - 1
                A(f's_mov_b32 exec_lo, {m & 0xffffffff}\ns_mov_b32 exec_hi, {m >> 32}')
            A(f'buffer_load_dword v{8+k}, v2, s[8:11], s42 offen\ns_add_u32 s42, s42, 8192')
            n -= 64; k += 1
        A('s_mov_b64 exec, -1')


NEXT = [None, None]


def n_prep():
    return N_PREP + (N_PF if POPT['pf'] else 0)


def ph_prep(A):
    code_prefetch(A, 'L_k0_body', 'L_k0_end-L_k0_body-4', 2, 127, 50, 1)
    A('L_k0_body:')
    if POPT.get('lin'):
        nw = N_PREP * 4
        A(f's_lshl_b32 s40, s2, 2\ns_add_u32 s40, s40, s{sW}\nv_lshlrev_b32 v3, 7, v{vLANE}')
        for q, (ptr, size) in enumerate(((sWMOD, 576 * 6912), (sX, S * D * 2), (sWQKV, 576 * 3456), (sWO, 576 * 1152))):
            n = -(-(size // 128) // nw)
            srd(A, 8, ptr, size)
            A(f's_mul_i32 s41, s40, {n*128}\ns_mov_b64 exec, {(1 << n) - 1}')
            A(f'buffer_load_dword v{122+q}, v3, s[8:11], s41 offen')
        A('s_mov_b64 exec, -1')
    NL = POPT.get('nlight', 84)
    lab = {r: A.label('L_role' + r) for r in ('mod', 'xh', 'wq', 'wo')}
    A(f'''s_mov_b32 s39, s2
    s_cmp_lt_u32 s2, {NL}
    s_cbranch_scc1 {lab['wq']}
    s_sub_u32 s39, s2, {NL}
    s_cmp_lt_u32 s39, {N_MOD}
    s_cbranch_scc1 {lab['mod']}
    s_sub_u32 s39, s39, {N_MOD}
    s_cmp_lt_u32 s39, {N_XH}
    s_cbranch_scc1 {lab['xh']}
    s_sub_u32 s39, s2, {N_MOD + N_XH}
    s_cmp_lt_u32 s39, {N_WQ}
    s_cbranch_scc1 {lab['wq']}
    s_sub_u32 s39, s39, {N_WQ}''')
    st0 = (list(A.vmq), list(A.lgq), A.vm_issued, A.lg_issued)
    for r, fn in (('wo', task_wo), ('mod', None), ('xh', task_xhat), ('wq', task_wq)):
        A(lab[r] + ':')
        A.vmq, A.lgq, A.vm_issued, A.lg_issued = list(st0[0]), list(st0[1]), st0[2], st0[3]
        if r == 'mod':
            A('s_and_b32 s40, s39, 7\ns_lshl_b32 s40, s40, 1\ns_bfe_u32 s41, s39, 0x10003\ns_and_b32 s42, s39, 0xfffffff0\ns_or_b32 s40, s40, s41\ns_or_b32 s40, s40, s42')
            A('s_cmp_lt_u32 s39, 96\ns_cselect_b32 s39, s40, s39')
            ph_mod(A, 39, 0)
        else:
            fn(A, 39)
        if r != 'wq':
            stamp_end(A, again=True)
            A('s_endpgm')
```

```python
from common import *


def ph_mod(A, sM, lds):
    A.comment('==== phase mod ====')
    A(f'''v_lshrrev_b32 v2, 2, v{vLANE}
    v_and_b32 v3, 3, v{vLANE}
    s_mul_i32 s40, s{sW}, 144
    v_add_u32 v4, s40, v2
    s_movk_i32 s41, 6912
    v_mul_lo_u32 v5, v4, s41
    v_lshl_add_u32 v5, v3, 4, v5
    v_lshlrev_b32 v6, 1, v4
    s_lshl_b32 s41, s{sM}, 6''')
    srd(A, 12, sC, 1152)
    srd(A, 8, sWMOD, 576 * 6912)
    for i in range(9):
        A(f'buffer_load_ushort v{10+i}, v6, s[12:15], 0 offen offset:{32*i}')
    for i in range(9):
        A(f's_add_u32 s42, s41, {i*16*6912}')
        A(f'buffer_load_dwordx4 v[{20+4*i}:{23+4*i}], v5, s[8:11], s42 offen{NT[1]}')
    srd(A, 16, sWS, WS_SIZE)
    A(f's_mov_b32 s43, {fbits(-LOG2E)}')
    for i in range(9):
        A(f'v_lshlrev_b32 v{10+i}, 16, v{10+i}')
    for i in range(9):
        A(f'v_mul_f32 v{64+i}, s43, v{10+i}')
    for i in range(9):
        A(f'v_exp_f32 v{64+i}, v{64+i}')
    for i in range(9):
        A(f'v_add_f32 v{64+i}, 1.0, v{64+i}')
    for i in range(9):
        A(f'v_rcp_f32 v{64+i}, v{64+i}')
    for i in range(9):
        A(f'v_mul_f32 v{10+i}, v{10+i}, v{64+i}')
    for i in range(9):
        A(f'v_cvt_pk_bf16_f32 v{10+i}, v{10+i}, v{10+i}')
    for i in range(9):
        A(f'v_and_b32 v{10+i}, s{sMASKHI}, v{10+i}')
    for i in range(9):
        for d in range(4):
            unpack(A, 64 + 2 * d, 65 + 2 * d, 20 + 4 * i + d)
        sp = 10 + (i & ~1)
        for d in range(4):
            if i == 0:
                A(f'v_pk_mul_f32 v[{56+2*d}:{57+2*d}], v[{64+2*d}:{65+2*d}], v[{sp}:{sp+1}] op_sel_hi:[1,0]')
            else:
                m = 'op_sel_hi:[1,0,1]' if i % 2 == 0 else 'op_sel:[0,1,0] op_sel_hi:[1,1,1]'
                A(f'v_pk_fma_f32 v[{56+2*d}:{57+2*d}], v[{64+2*d}:{65+2*d}], v[{sp}:{sp+1}], v[{56+2*d}:{57+2*d}] {m}')
    for rot in (8, 4):
        for d in range(8):
            A(f'v_add_f32_dpp v{56+d}, v{56+d}, v{56+d} row_ror:{rot} row_mask:0xf bank_mask:0xf')
    A(f'''v_lshrrev_b32 v7, 4, v{vLANE}
    s_lshl_b32 s40, s{sW}, 2
    v_add_u32 v7, s40, v7
    v_lshlrev_b32 v7, 7, v7
    v_lshl_add_u32 v7, v3, 5, v7
    s_mov_b32 exec_lo, 0x000f000f
    s_mov_b32 exec_hi, 0x000f000f
    ds_write_b128 v7, v[56:59] offset:{lds}
    ds_write_b128 v7, v[60:63] offset:{lds+16}
    s_mov_b64 exec, -1''')
    A.wait_all(vm=False)
    A('s_barrier')
    A(f's_cmp_lg_u32 s{sW}, 0')
    ctx = A.begin_skip('s_cbranch_scc1 {}')
    A(f'''v_lshrrev_b32 v7, 5, v{vLANE}
    v_and_b32 v8, 31, v{vLANE}
    v_lshlrev_b32 v7, 10, v7
    v_lshl_add_u32 v7, v8, 2, v7''')
    for k in range(8):
        A(f'ds_read_b32 v{56+k}, v7 offset:{lds+128*k}')
    A('''v_add_f32 v56, v56, v57
    v_add_f32 v58, v58, v59
    v_add_f32 v60, v60, v61
    v_add_f32 v62, v62, v63
    v_add_f32 v56, v56, v58
    v_add_f32 v60, v60, v62
    v_add_f32 v56, v56, v60
    v_mov_b32 v57, v56
    v_permlane32_swap_b32 v56, v57
    v_add_f32 v56, v56, v57''')
    A(f'''v_cvt_pk_bf16_f32 v56, v56, v56
    v_and_b32 v56, s{sMASKHI}, v56
    s_mul_i32 s40, s{sM}, 57
    s_lshr_b32 s40, s40, 10
    s_cmp_eq_u32 s40, 1
    s_cselect_b32 s41, 1.0, 0
    s_cmp_eq_u32 s40, 4
    s_cselect_b32 s41, 1.0, s41
    v_add_f32 v56, s41, v56
    v_cvt_pk_bf16_f32 v56, v56, v56
    v_and_b32 v56, s{sMASKHI}, v56
    s_lshl_b32 s40, s{sM}, 7
    v_lshlrev_b32 v8, 2, v8
    s_mov_b32 exec_hi, 0
    buffer_store_dword v56, v8, s[16:19], s40 offen offset:{WS_MOD}
    s_mov_b64 exec, -1''')
    A.end_skip(ctx)


def ph_out(A, npart):
    raise NotImplementedError


P0, P1, P2, X0, X1, X2, FACC, FTMP = 16, 144, 176, 96, 108, 120, 208, 240
sVALID = 60


def final_setup_ops():
    t = f'''s_lshr_b32 s40, s{sJ}, 1
    s_and_b32 s41, s{sJ}, 1
    v_lshrrev_b32 v6, 3, v{vLANE}
    v_and_b32 v7, 7, v{vLANE}
    v_lshlrev_b32 v4, 8, v6
    v_lshl_add_u32 v4, v7, 4, v4
    v_lshlrev_b32 v5, 5, v6
    v_mul_u32_u24 v10, 1152, v7
    v_lshl_add_u32 v10, v6, 4, v10
    v_and_b32 v8, 15, v{vLANE}
    v_lshlrev_b32 v8, {FSC[0]}, v8
    s_lshl_b32 s43, s{sG}, 3
    s_add_u32 s43, s43, s40
    s_mul_i32 s96, s43, {T16}
    s_lshl_b32 s97, s41, 7
    s_add_u32 s96, s96, s97
    s_add_u32 s96, s96, {WS_X1}
    s_mul_i32 s98, s{sG}, {64*T16}
    s_mul_i32 s99, s40, {T16}
    s_add_u32 s98, s98, s99
    s_add_u32 s98, s98, s97
    s_add_u32 s98, s98, {WS_PART}
    s_lshl_b32 s99, s43, 4
    s_lshl_b32 s100, s41, 3
    s_add_u32 s99, s99, s100
    s_mul_i32 s99, s99, 1152
    s_lshl_b32 s100, s{sW}, 2
    s_lshr_b32 s52, 0x6510, s100
    s_and_b32 s52, s52, 15
    s_lshr_b32 s53, 0x0072, s100
    s_and_b32 s53, s53, 15
    s_lshr_b32 s58, 0x4308, s100
    s_and_b32 s58, s58, 15
    s_movk_i32 s56, 0x3f80
    s_mov_b32 s57, 0x3f800000
    s_mov_b32 s59, {fbits(-1.0 / LOG2E)}
    s_mov_b32 s12, s{sOUT}
    s_mov_b32 s13, s{sOUT+1}
    s_mov_b32 s14, {S*D*2}
    s_mov_b32 s15, 0x20000'''
    return [x.strip() for x in t.split('\n')]


def side_ops(sN, X):
    G = X + 4
    return [f's_lshl_b32 s50, s{sN}, 11', 's_add_u32 s51, s96, s50',
            f'buffer_load_dwordx4 v[{X}:{X+3}], v4, s[16:19], s51 offen sc1',
            f's_lshl_b32 s51, s{sN}, 8', f's_add_u32 s51, s51, {WS_MOD+5*576*4}',
            f'buffer_load_dwordx4 v[{G}:{G+3}], v5, s[16:19], s51 offen',
            f'buffer_load_dwordx4 v[{G+4}:{G+7}], v5, s[16:19], s51 offen offset:16']


def parts_ops(sN, P, base=98):
    r = [f's_lshl_b32 s50, s{sN}, 11', f's_add_u32 s51, s{base}, s50']
    for p in range(8):
        r.append(f'buffer_load_dwordx4 v[{P+4*p}:{P+4*p+3}], v4, s[16:19], s51 offen sc1')
        if p < 7:
            r.append(f's_add_u32 s51, s51, {8*T16}')
    return r


def ph_final(A, publish_all, wait, check):
    acc, tmp = FACC, FTMP

    def parts(sN, P):
        for x in parts_ops(sN, P):
            A(x)

    def finish(sN, P, X):
        G = X + 4
        for d in range(4):
            A(f'v_pk_mul_f32 v[{G+2*d}:{G+2*d+1}], v[{G+2*d}:{G+2*d+1}], s[58:59] op_sel:[0,1] op_sel_hi:[1,1]')
        for p in range(8):
            for d in range(4):
                for h in range(2):
                    c = '0' if p == 0 else f'v{acc+2*d+h}'
                    A(f'v_dot2_f32_bf16 v{acc+2*d+h}, v{P+4*p+d}, s{56+h}, {c}')
        for d in range(4):
            unpack(A, tmp + 2 * d, tmp + 2 * d + 1, X + d)
        for d in range(4):
            A(f'v_pk_fma_f32 v[{acc+2*d}:{acc+2*d+1}], v[{acc+2*d}:{acc+2*d+1}], v[{G+2*d}:{G+2*d+1}], v[{tmp+2*d}:{tmp+2*d+1}]')
        for d in range(4):
            A(f'v_cvt_pk_bf16_f32 v{X+d}, v{acc+2*d}, v{acc+2*d+1}')
        A(f's_lshl_b32 s50, s{sN}, 7\ns_add_u32 s50, s50, s99')
        A(f'buffer_store_dwordx4 v[{X}:{X+3}], v10, s[12:15], s50 offen')
    fin = A.label('L_fin')

    def save():
        return (list(A.vmq), list(A.lgq), A.vm_issued, A.lg_issued)

    def restore(st):
        A.vmq, A.lgq, A.vm_issued, A.lg_issued = list(st[0]), list(st[1]), st[2], st[3]

    def done():
        A.wait_all()
        A(f's_branch {fin}')

    def path(two, three):
        top = 3 if three else 2
        staged, staged2 = A.label('L_fst'), A.label('L_fst')
        check(top)
        A(f's_cbranch_scc0 {staged}')
        st = save()
        if two:
            parts(53, P1)
        if three:
            parts(58, P2)
        finish(52, P0, X0)
        if two:
            finish(53, P1, X1)
        if three:
            finish(58, P2, X2)
        done()
        A(staged + ':')
        restore(st)
        finish(52, P0, X0)
        if two and three:
            wait(2)
            check(3)
            A(f's_cbranch_scc0 {staged2}')
            st = save()
            parts(53, P1)
            parts(58, P2)
            finish(53, P1, X1)
            finish(58, P2, X2)
            done()
            A(staged2 + ':')
            restore(st)
        if two:
            if not three:
                wait(2)
            parts(53, P1)
            finish(53, P1, X1)
        if three:
            wait(3)
            parts(58, P2)
            finish(58, P2, X2)
        done()
    publish_all()
    A(f's_cmp_lg_u32 s{sVALID}, 0')
    ok = A.label('L_fv')
    A(f's_cbranch_scc1 {ok}')
    wait(1)
    parts(52, P0)
    A(ok + ':')
    l1, l2 = A.label('L_fw'), A.label('L_fw')
    st0 = save()
    A(f's_cmp_eq_u32 s{sW}, 1\ns_cbranch_scc1 {l1}')
    A(f's_cmp_ge_u32 s{sW}, 2\ns_cbranch_scc1 {l2}')
    path(True, True)
    A(l1 + ':')
    restore(st0)
    path(True, False)
    A(l2 + ':')
    restore(st0)
    path(False, True)
    A(fin + ':')
    A.vmq, A.lgq = [], []
```

```python
import sys, io, contextlib, json
sys.path.insert(0, 'gen')
import gen as G, ph_c, common as C
from common import *

def kd_body(a, b, mult, nw):
    (ka, la, opa), (kb, lb, opb) = a, b
    def body(A):
        srd(A, 8, sWS, WS_SIZE)
        A(f'v_lshlrev_b32 v2, 8, v{vLANE}')
        res = []
        for q, (k, lane, op) in enumerate((a, b)):
            n = nw[k] // 64
            acc = 10 + q
            for i in range(n):
                A(f's_mov_b32 s40, {WS_STAMP + k * 0x80000 + i * 64 * 256 + lane * 4}')
                A(f'buffer_load_dword v{20+i}, v2, s[8:11], s40 offen sc1')
            A(f'v_mov_b32 v{acc}, v20')
            ins = 'v_max_u32' if op == 'max' else 'v_min_u32'
            for i in range(1, n):
                A(f'{ins} v{acc}, v{acc}, v{20+i}')
            for rot in (8, 4, 2, 1):
                A(f'{ins}_dpp v{acc}, v{acc}, v{acc} row_ror:{rot} row_mask:0xf bank_mask:0xf')
            A(f'v_mov_b32 v4, v{acc}\nv_permlane16_swap_b32 v{acc}, v4\n{ins} v{acc}, v{acc}, v4')
            A(f'v_mov_b32 v4, v{acc}\nv_permlane32_swap_b32 v{acc}, v4\n{ins} v{acc}, v{acc}, v4')
            A(f'v_readfirstlane_b32 s{44+q}, v{acc}')
        A(f's_sub_u32 s44, s44, s45\ns_min_u32 s44, s44, 20000\ns_mul_i32 s44, s44, {mult}')
        A('s_memrealtime s[46:47]')
        A('s_waitcnt lgkmcnt(0)')
        A('L_spin:')
        A('s_memrealtime s[48:49]')
        A('s_waitcnt lgkmcnt(0)')
        A('s_sub_u32 s48, s48, s46\ns_cmp_lt_u32 s48, s44\ns_cbranch_scc1 L_spin')
    return body

def make(path, a, b, mult, opt={}):
    ph_c.OPT['pairs'] = 1; ph_c.OPT.update(opt)
    C.Stamps.on = True; C.Stamps.names = []
    with contextlib.redirect_stderr(io.StringIO()):
        ks = G.two()
    names = [list(x) for x in C.Stamps.names]
    C.Stamps.on = False
    for k in ks:
        k['body'] = k['body'].replace('s_memtime s[88:89]', 's_memrealtime s[88:89]')
    idx = lambda k, n: {'start': 62, 'end': 63}.get(n) if n in ('start', 'end') else names[k].index(n)
    A = Asm(); A.uid = 9000
    A('s_cmp_ge_u32 s2, 1\ns_cbranch_scc1 L_end_kd')
    A('s_load_dwordx16 s[64:79], s[0:1], 0\ns_load_dwordx8 s[80:87], s[0:1], 64')
    A(f'v_and_b32 v{vLANE}, 63, v0')
    kd_body((a[0], idx(a[0], a[1]), a[2]), (b[0], idx(b[0], b[1]), b[2]), mult, {0: 1408, 1: 1024})(A)
    A('L_end_kd:\ns_endpgm')
    ks.append(dict(name='kd_kernel', grid=1, block=64, lds=0, body=A.text(), vgpr=64, accum=64))
    open(path, 'w').write(C.build(ks))

if __name__ == '__main__':
    M = 20
    opt = eval(sys.argv[2]) if len(sys.argv) > 2 else {}
    p = sys.argv[1]
    make(p + '0.s', (0, 'end', 'max'), (0, 'start', 'min'), 0, opt)
    make(p + '1.s', (0, 'end', 'max'), (0, 'start', 'min'), M, opt)
    make(p + '2.s', (1, 'start', 'min'), (0, 'start', 'min'), M, opt)
    make(p + '3.s', (1, 'o published', 'max'), (1, 'start', 'min'), M, opt)
    make(p + '4.s', (1, 'S2', 'max'), (1, 'start', 'min'), M, opt)
    make(p + '5.s', (1, 'mfma done', 'max'), (1, 'start', 'min'), M, opt)
    make(p + '6.s', (1, 'end', 'max'), (1, 'start', 'min'), M, opt)
```

```python
from asmgen import *

S, D, F = 2048, 576, 4608
WS_MOD = 0
WS_ST = 0x4000
WS_ZEND = WS_ST + 128 * 2048
FSC = [7, 7]
WS_FLAG = WS_ZEND
WS_PF = WS_FLAG + (3 * 1024 << 7)
WS_F0 = WS_PF + (1024 << 7)
F0_X, F0_Q, F0_M, F0_O, F0_R, F0_T = 0, 256, 1280, 3328, 3584, 3840
WS_EPOCH = WS_F0 + (4096 << 6)
WS_MODP = WS_EPOCH + 256
WS_GBF = WS_MODP + 4 * 13824
WS_XH = WS_GBF + 16 * 2304
WS_WQ = WS_XH + 64 * 36864
WQ_J = 36 * 3840
WS_WO = WS_WQ + 16 * WQ_J + 1024
WO_C = 100 * 1024
WS_O = WS_WO + 8 * WO_C
O_G = 8 * 80 * 256
WS_X1 = WS_O + 16 * O_G
T16 = 72 * 256
WS_H2 = WS_X1 + 128 * T16
WS_XT = WS_H2 + 128 * T16
WS_PART = WS_XT + 128 * T16
WS_HX = WS_PART + 128 * 8 * T16
WS_END = WS_HX + 256 * 4 * 18432
WS_SIZE = 268435456

sX, sWQKV, sWO, sWG, sWU, sWD, sC = 64, 66, 68, 72, 74, 76, 78
sWMOD, sOUT, sDBG, sWS = 80, 82, 84, 86
sG, sJ, sW = 32, 33, 34
sMASKHI = 35
sHALF = 36
vTID, vLANE = 0, 1

sTAG = 90
TAGGED = [False]
HS = ['']
LOG2E = 1.4426950408889634


def fbits(x):
    import struct
    return '0x%08x' % struct.unpack('<I', struct.pack('<f', x))[0]


def prologue(A, nwg, endlabel, xcd_spread=4):
    A(f's_cmp_ge_u32 s2, {nwg}')
    A(f's_cbranch_scc1 {endlabel}')
    A('s_load_dwordx16 s[64:79], s[0:1], 0')
    A('s_load_dwordx8 s[80:87], s[0:1], 64')
    A(f'v_lshrrev_b32 v2, 6, v{vTID}')
    A(f'v_and_b32 v{vLANE}, 63, v{vTID}')
    A(f'v_readfirstlane_b32 s{sW}, v2')
    mapping(A, xcd_spread)
    A(f's_mov_b32 s{sMASKHI}, 0xffff0000')
    A(f's_mov_b32 s{sHALF}, 0')
    A(f's_mov_b32 s{sHALF+1}, -1')


def mapping(A, n):
    if n == 8:
        A(f's_lshr_b32 s{sG}, s2, 4\ns_and_b32 s{sJ}, s2, 15')
    elif n == 4:
        A(f'''s_and_b32 s40, s2, 7
        s_lshr_b32 s{sG}, s40, 2
        s_lshr_b32 s41, s2, 5
        s_lshl_b32 s41, s41, 1
        s_add_u32 s{sG}, s{sG}, s41
        s_and_b32 s{sJ}, s40, 3
        s_lshl_b32 s{sJ}, s{sJ}, 2
        s_lshr_b32 s41, s2, 3
        s_and_b32 s41, s41, 3
        s_add_u32 s{sJ}, s{sJ}, s41''')
    elif n == 2:
        A(f'''s_and_b32 s40, s2, 7
        s_lshr_b32 s{sG}, s40, 1
        s_lshr_b32 s41, s2, 6
        s_lshl_b32 s41, s41, 2
        s_add_u32 s{sG}, s{sG}, s41
        s_and_b32 s{sJ}, s40, 1
        s_lshl_b32 s{sJ}, s{sJ}, 3
        s_lshr_b32 s41, s2, 3
        s_and_b32 s41, s41, 7
        s_add_u32 s{sJ}, s{sJ}, s41''')
    elif n == 1:
        A(f'''s_and_b32 s{sG}, s2, 7
        s_lshl_b32 s{sG}, s{sG}, 1
        s_lshr_b32 s41, s2, 3
        s_and_b32 s41, s41, 1
        s_add_u32 s{sG}, s{sG}, s41
        s_lshr_b32 s{sJ}, s2, 4''')
    else:
        raise ValueError


def srd(A, q, ptr, size, off=0, bias=0):
    d = off - bias
    if d == 0:
        A(f's_mov_b32 s{q}, s{ptr}\ns_mov_b32 s{q+1}, s{ptr+1}')
    elif d > 0:
        A(f's_add_u32 s{q}, s{ptr}, {d}\ns_addc_u32 s{q+1}, s{ptr+1}, 0')
    else:
        A(f's_sub_u32 s{q}, s{ptr}, {-d}\ns_subb_u32 s{q+1}, s{ptr+1}, 0')
    A(f's_mov_b32 s{q+2}, {size + bias}\ns_mov_b32 s{q+3}, 0x20000')


def unpack(A, lo, hi, src):
    A(f'v_lshlrev_b32 v{lo}, 16, v{src}')
    A(f'v_and_b32 v{hi}, s{sMASKHI}, v{src}')


HDR = open('adaLN_cond__sliding_local_dilated__glu_gated_glu__prompt.s.ref').read().split('\n')[:13]


def kd(name, vgpr, accum, sgpr=102):
    return f""".p2align 6
.amdhsa_kernel {name}
  .amdhsa_next_free_vgpr {vgpr}
  .amdhsa_next_free_sgpr {sgpr}
  .amdhsa_accum_offset {accum}
  .amdhsa_group_segment_fixed_size 0
  .amdhsa_kernarg_size 96
  .amdhsa_user_sgpr_count 2
  .amdhsa_user_sgpr_kernarg_segment_ptr 1
  .amdhsa_system_sgpr_workgroup_id_x 1
  .amdhsa_float_denorm_mode_32 3
.end_amdhsa_kernel"""


def build(kernels):
    out = list(HDR)
    for k in kernels:
        out.append(f"; @launch kernel={k['name']} grid=({k['grid']},1,1) block=({k['block']},1,1) lds={k['lds']}")
    out.append('.amdgcn_target "amdgcn-amd-amdhsa--gfx950"')
    out.append('.text')
    seen = set()
    for k in kernels:
        if k['name'] in seen:
            continue
        seen.add(k['name'])
        out.append(f".globl {k['name']}\n.p2align 8\n.type {k['name']},@function\n{k['name']}:")
        out.append(k['body'])
        out.append('')
    out.append('.section .rodata,"a"')
    seen = set()
    for k in kernels:
        if k['name'] in seen:
            continue
        seen.add(k['name'])
        out.append(kd(k['name'], k.get('vgpr', 512), k.get('accum', 256), k.get('sgpr', 102)))
    return '\n'.join(out) + '\n'


WS_STAMP = 0x8000000
class Stamps:
    on = False
    vreg = 14
    n = 0
    names = []
    kidx = 0


def stamp_begin(A, kidx, vreg):
    Stamps.n = 0; Stamps.kidx = kidx; Stamps.vreg = vreg
    Stamps.names.append([])
    if not Stamps.on:
        return
    A(f'v_mov_b32 v{vreg}, 0')
    A('s_memrealtime s[88:89]')
    A(f'v_writelane_b32 v{vreg}, s88, 62')
    stamp(A, 'start')


def stamp(A, name):
    if not Stamps.on:
        return
    A('s_memtime s[88:89]')
    A(f'v_writelane_b32 v{Stamps.vreg}, s88, {Stamps.n}')
    Stamps.names[-1].append(name)
    Stamps.n += 1


def stamp_end(A, again=False):
    if not Stamps.on:
        return
    A.wait_all()
    stamp(A, 'end')
    if again:
        Stamps.names[-1].pop(); Stamps.n -= 1
    A('s_memrealtime s[88:89]')
    A(f'v_writelane_b32 v{Stamps.vreg}, s88, 63')
    srd(A, 8, sWS, WS_SIZE)
    A(f'''s_lshl_b32 s88, s2, 2
    s_add_u32 s88, s88, s{sW}
    s_lshl_b32 s88, s88, 8
    s_add_u32 s88, s88, {WS_STAMP + Stamps.kidx * 0x80000}
    v_lshlrev_b32 v2, 2, v{vLANE}
    buffer_store_dword v{Stamps.vreg}, v2, s[8:11], s88 offen''')


SPIN_MAX = 400000
SLEEP = [0]


def backoff():
    return [f's_sleep {SLEEP[0]}'] if SLEEP[0] else []


def flag_base(A, sD, stage, sCls):
    A(f'''s_lshl_b32 s{sD}, s{sG}, 2
    s_add_u32 s{sD}, s{sD}, s{sCls}
    s_lshl_b32 s{sD}, s{sD}, {4 + FSC[0]}
    s_add_u32 s{sD}, s{sD}, {WS_FLAG + (stage*1024 << FSC[0])}''')


def flag_value(A, v, val):
    if TAGGED[0]:
        A(f'v_mov_b32 v{v}, s{sTAG}\nv_add_u32 v{v}, {val}, v{v}')
    else:
        A(f'v_mov_b32 v{v}, {val}')


def flag_norm(v):
    if not TAGGED[0]:
        return []
    return [f'v_subrev_u32 v{v}, s{sTAG}, v{v}', f'v_cmp_gt_u32 vcc, 8, v{v}', 's_nop 1', f'v_cndmask_b32 v{v}, 0, v{v}, vcc']


def publish(A, srdq, sOff, v0, val=1):
    A('s_waitcnt vmcnt(0)')
    flag_value(A, v0, val)
    A(f'v_mov_b32 v{v0+1}, 0\ns_mov_b64 exec, 1')
    A(f'buffer_store_dword v{v0}, v{v0+1}, s[{srdq}:{srdq+3}], s{sOff} offen sc1')
    A('s_mov_b64 exec, -1')


def poll(A, srdq, sOff, v0, sCnt, val=1):
    lab = A.label('L_poll'); done = A.label('L_polled')
    A(f'v_and_b32 v{v0}, 15, v{vLANE}\nv_lshlrev_b32 v{v0}, {FSC[0]}, v{v0}\ns_mov_b32 s{sCnt}, 0')
    A.fence()
    A(lab + ':')
    for x in backoff():
        A(x)
    A(f'buffer_load_dword v{v0+1}, v{v0}, s[{srdq}:{srdq+3}], s{sOff} offen sc1')
    A(f's_add_u32 s{sCnt}, s{sCnt}, 1\ns_cmp_gt_u32 s{sCnt}, {SPIN_MAX}')
    A(f's_cbranch_scc1 {done}')
    for x in flag_norm(v0 + 1):
        A(x)
    A(f'v_cmp_gt_u32 vcc, {val}, v{v0+1}')
    A(f's_cbranch_vccnz {lab}')
    A(done + ':')
    A('s_waitcnt vmcnt(0)')


def code_prefetch(A, label, nbytes_expr, vOff, vDst, sq, ninstr, sBase=None, back=False):
    here = A.label('L_pc')
    A(f's_getpc_b64 s[{sq}:{sq+1}]')
    A(here + ':')
    if back:
        A(f's_sub_u32 s{sq}, s{sq}, {here}-{label}')
        A(f's_subb_u32 s{sq+1}, s{sq+1}, 0')
    else:
        A(f's_add_u32 s{sq}, s{sq}, {label}-{here}')
        A(f's_addc_u32 s{sq+1}, s{sq+1}, 0')
    A(f'v_lshlrev_b32 v{vOff}, 7, v{vLANE}')
    if sBase is not None:
        A(f'v_add_u32 v{vOff}, s{sBase}, v{vOff}')
    for i in range(ninstr):
        if i:
            A(f'v_add_u32 v{vOff}, 8192, v{vOff}')
        A(f'v_min_u32 v{vOff+1}, {nbytes_expr}, v{vOff}')
        A(f'global_load_dword v{vDst+i}, v{vOff+1}, s[{sq}:{sq+1}]')


sPC = 92


def itouch_setup(A, vLine):
    A('s_getpc_b64 s[92:93]')
    A('L_back_pc0:')
    A(f'v_lshlrev_b32 v{vLine}, 7, v{vLANE}')


def itouch(label, vLine, aDst):
    return [f's_add_u32 s94, s92, {label}-L_back_pc0', 's_addc_u32 s95, s93, 0',
            f'global_load_dword {aDst}, v{vLine}, s[94:95]']


def poll_begin(A, srdq, sOff, v0):
    A(f'v_and_b32 v{v0}, 15, v{vLANE}\nv_lshlrev_b32 v{v0}, {FSC[0]}, v{v0}')
    A(f'buffer_load_dword v{v0+1}, v{v0}, s[{srdq}:{srdq+3}], s{sOff} offen sc1')


def poll_end(A, srdq, sOff, v0, sCnt, val=1):
    ok = A.label('L_back_ok')
    slow = A.label('L_pslow'); again = A.label('L_pagain')
    for x in flag_norm(v0 + 1):
        A(x)
    A(f'v_cmp_gt_u32 vcc, {val}, v{v0+1}')
    A(f's_cbranch_vccnz {slow}')
    A(ok + ':')
    A.tail += [slow + ':', f's_mov_b32 s{sCnt}, 0', again + ':'] + backoff() + [
               f'buffer_load_dword v{v0+1}, v{v0}, s[{srdq}:{srdq+3}], s{sOff} offen sc1',
               f's_add_u32 s{sCnt}, s{sCnt}, 1', f's_cmp_gt_u32 s{sCnt}, {SPIN_MAX}', f's_cbranch_scc1 {ok}',
               's_waitcnt vmcnt(0)'] + flag_norm(v0 + 1) + [f'v_cmp_gt_u32 vcc, {val}, v{v0+1}', 's_nop 1', f's_cbranch_vccnz {again}', f's_branch {ok}']


NT = ['', '', '', '']
```

```python
from common import *

A_WIMG = 0
A_HH = 138240
A_VT = A_HH + 18432
A_LDS = A_VT + 5120
A_KREC = 0
A_VREC = 13824

QLOC = [(0, 0), (0, 1), (0, 2), (0, 3), (1, 0)]
KLOC = [(1, 2), (1, 3), (2, 0), (1, 1), (2, 2)]
VLOC = [(3, 0), (2, 1), (3, 2), (2, 3), (3, 1)]

ACC = 16
HACC = 80
XW = 96
HC = 136
TAB = 176
CB = 194
TB = 210
HB = 214
vA = 234
vA3 = 237
vAH = 240
vHB = 243
vL16 = 244
vCT = 245
HT = 246


def xr(s):
    return XW + 4 * (s % 10)


aFR = 80
aHBF = 120
LATE_S = 30
NPRE_X, NPRE_W = 3, 4
NWI = 34


def mod_table(A, vt, col_b, col_s, srdq=16, V=192):
    A(f'''v_lshlrev_b32 v8, 2, v{vTID}
    v_lshlrev_b32 v9, 2, v{vLANE}
    s_mov_b32 s96, {WS_MOD + 4*col_s}
    s_mov_b32 s97, {WS_MOD + 4*col_b}
    buffer_load_dword v{V}, v8, s[{srdq}:{srdq+3}], s96 offen sc1
    buffer_load_dword v{V+1}, v8, s[{srdq}:{srdq+3}], s96 offen offset:1024 sc1
    buffer_load_dword v{V+2}, v9, s[{srdq}:{srdq+3}], s96 offen offset:2048 sc1
    buffer_load_dword v{V+3}, v8, s[{srdq}:{srdq+3}], s97 offen sc1
    buffer_load_dword v{V+4}, v8, s[{srdq}:{srdq+3}], s97 offen offset:1024 sc1
    buffer_load_dword v{V+5}, v9, s[{srdq}:{srdq+3}], s97 offen offset:2048 sc1
    v_lshrrev_b32 v8, 3, v{vTID}
    v_lshlrev_b32 v8, 6, v8
    v_and_b32 v9, 7, v{vTID}
    v_lshl_add_u32 v8, v9, 2, v8
    v_add_u32 v8, {vt}, v8
    v_lshrrev_b32 v7, 3, v{vLANE}
    v_lshlrev_b32 v7, 6, v7
    v_lshl_add_u32 v9, v9, 2, v7
    v_add_u32 v9, {vt}, v9''')

    def write():
        A(f'''ds_write_b32 v8, v{V}
        ds_write_b32 v8, v{V+1} offset:2048
        ds_write_b32 v9, v{V+2} offset:4096
        ds_write_b32 v8, v{V+3} offset:32
        ds_write_b32 v8, v{V+4} offset:2080
        ds_write_b32 v9, v{V+5} offset:4128''')
    return write


def ph_a_main(A, early=None, late=None, gate=None, mid=None):
    A.comment('==== phase A ====')
    A(f'''v_lshlrev_b32 v{vL16}, 4, v{vLANE}
    s_lshl_b32 s40, s{sG}, 2
    s_add_u32 s40, s40, s{sW}
    s_mul_i32 s40, s40, 36864
    s_add_u32 s40, s40, {WS_XH}
    s_mul_i32 s41, s{sG}, {4*36864}
    s_add_u32 s41, s41, {WS_XH - 36864 + 256}
    s_cmp_eq_u32 s{sG}, 0
    s_cselect_b32 s41, {WS_XH + 256}, s41
    s_lshl_b32 s42, s{sW}, 11
    s_add_u32 s41, s41, s42
    v_lshrrev_b32 v4, 4, v{vLANE}
    v_and_b32 v5, 15, v{vLANE}
    v_lshlrev_b32 v6, 9, v4
    v_lshl_add_u32 v6, v5, 4, v6
    s_mul_i32 s42, s{sJ}, {WQ_J}
    s_lshl_b32 s43, s{sW}, 10
    s_add_u32 s42, s42, s43
    s_add_u32 s42, s42, {WS_WQ}''')
    srd(A, 16, sWS, WS_SIZE)
    if gate:
        gate()
    xq = list(range(36))
    wq = list(range(NWI))
    marks = {}

    def xload():
        s = xq.pop(0)
        if s % 4 == 0:
            A(f's_add_u32 s3, s40, {4096*(s//4)}')
        A(f'buffer_load_dwordx4 v[{xr(s)}:{xr(s)+3}], v{vL16}, s[16:19], s3 offen offset:{1024*(s%4)}{HS[0]}')

    def issue_w():
        i = wq.pop(0)
        if i == NWI - 1:
            A(f's_min_u32 s5, s{sW}, 2\ns_lshl_b32 s5, s5, 10\ns_sub_u32 s4, s42, s43\ns_add_u32 s4, s4, s5')
            A(f's_add_u32 m0, s5, {4096*i}\ns_add_u32 s4, s4, {4096*i}')
        else:
            A(f's_add_u32 m0, s43, {4096*i}\ns_add_u32 s4, s42, {4096*i}')
        A(f'buffer_load_dwordx4 v{vL16}, s[16:19], s4 offen{HS[0]} lds')
        marks[i] = A.mark()

    def halo_load(i):
        if i < 4:
            A(f's_add_u32 s6, s41, {8192*i}')
        else:
            A(f's_min_u32 s4, s{sW}, 1\ns_sub_u32 s4, s4, s{sW}\ns_lshl_b32 s4, s4, 11')
            A(f's_add_u32 s6, s41, s4\ns_add_u32 s6, s6, {8192*4}')
        A(f'buffer_load_dwordx4 v[{HB+4*i}:{HB+4*i+3}], v6, s[16:19], s6 offen{HS[0]}')

    if TAGGED[0]:
        import ph_prep1
        M0_, M1_ = 136, 152
        A(f'v_and_b32 v8, 31, v{vLANE}\nv_lshlrev_b32 v8, 4, v8\ns_add_u32 s4, s43, {WS_MODP}\ns_mov_b32 s5, {WS_MODP + 4096}')
        for q in range(4):
            A(f'buffer_load_dwordx4 v[{M0_+4*q}:{M0_+4*q+3}], v{vL16}, s[16:19], s4 offen sc1')
            A(f'buffer_load_dwordx4 v[{M1_+4*q}:{M1_+4*q+3}], v8, s[16:19], s5 offen sc1')
            if q < 3:
                A('s_add_u32 s4, s4, 13824\ns_add_u32 s5, s5, 13824')
    else:
        A(f's_add_u32 m0, s43, {A_VT}\ns_add_u32 s4, s43, {WS_MOD}')
        A(f'buffer_load_dwordx4 v{vL16}, s[16:19], s4 offen lds')
        A(f's_mov_b32 m0, {A_VT + 4096}\ns_mov_b32 s4, {WS_MOD + 4096}')
        A(f'buffer_load_dwordx4 v{vL16}, s[16:19], s4 offen lds')
    mkt = A.mark()
    xload()
    for i in range(5):
        halo_load(i)
    for k in range(3):
        issue_w()
    mk0 = A.mark()
    for k in range(NPRE_X):
        xload()
    for k in range(NPRE_W):
        issue_w()
    if early:
        early()
    A(f'''v_lshrrev_b32 v7, 5, v{vLANE}
    v_and_b32 v10, 31, v{vLANE}
    v_min_u32 v11, 23, v10
    v_mul_u32_u24 v12, 24, v7
    v_add_u32 v11, v11, v12
    v_lshlrev_b32 v11, 4, v11
    v_add_u32 v11, 3072, v11
    v_add_u32 v12, s43, v{vL16}
    s_cmp_eq_u32 s{sW}, 3
    s_cselect_b64 vcc, -1, 0
    v_cndmask_b32 v12, v12, v11, vcc''')
    for wd in range(3):
        A(f'v_add_u32 v{vA+wd}, {61440*wd}, v{vL16}')
        A(f'v_add_u32 v{vA3+wd}, {61440*wd}, v11')
        A(f'v_add_u32 v{vAH+wd}, {61440*wd}, v12')
    A(f'''v_and_b32 v10, 15, v{vLANE}
    v_lshlrev_b32 v10, 4, v10
    v_lshl_add_u32 v10, v7, 8, v10
    v_add_u32 v{vHB}, {A_HH}, v10
    v_and_b32 v10, 7, v5
    v_lshlrev_b32 v10, 2, v10
    v_lshrrev_b32 v11, 3, v5
    v_lshl_add_u32 v8, v11, 6, v10
    v_lshl_add_u32 v8, v7, 5, v8
    v_add_u32 v8, {A_VT + 2304}, v8
    v_lshlrev_b32 v{vCT}, 5, v7
    v_add_u32 v{vCT}, {A_VT}, v{vCT}
    s_lshl_b32 s4, s{sW}, 7
    s_add_u32 s4, s4, {A_VT}
    v_lshlrev_b32 v9, 5, v4
    v_add_u32 v9, s4, v9
    v_add_u32 v10, v9, v10
    v_add_u32 v5, s43, v{vL16}
    v_add_u32 v5, {A_HH}, v5
    s_min_u32 s5, s{sW}, 1
    s_sub_u32 s5, s5, s{sW}
    s_lshl_b32 s6, s5, 7
    v_add_u32 v6, s6, v9
    v_add_u32 v11, s6, v10
    s_lshl_b32 s6, s5, 10
    v_add_u32 v7, s6, v5''')
    if TAGGED[0]:
        A(f'''v_add_u32 v12, s43, v{vL16}
        v_cmp_le_u32 vcc, 2304, v12
        v_cndmask_b32 v15, 0, 1.0, vcc
        v_add_u32 v12, {A_VT}, v12
        v_mov_b32 v168, 1.0
        v_and_b32 v170, 31, v{vLANE}
        v_lshlrev_b32 v170, 4, v170
        v_add_u32 v170, {A_VT + 4096}, v170''')
        ph_prep1.combine(A, M0_, 172, 15)
        ph_prep1.combine(A, M1_, 174, 168)
        A(f'ds_write_b128 v12, v[{M0_}:{M0_+3}]\nds_write_b128 v170, v[{M1_}:{M1_+3}]')
        A.wait_all(vm=False)
    else:
        A.wait_vm_mark(mkt)
    A('s_barrier')
    stamp(A, 'table')

    def bread(s, z):
        c = CB + 8 * (s & 1) + 4 * z
        return f'ds_read_b128 v[{c}:{c+3}], v{vCT} offset:{64*s+16*z}'
    A(f'ds_read_b32 v{TAB}, v8')
    A(bread(0, 0)); A(bread(0, 1))
    for i in range(5):
        A(f'ds_read_b32 v{HT+i}, v{10 if i < 4 else 11} offset:{2304+512*i}')
        for z in range(2):
            A(f'ds_read_b128 v[{HC+8*i+4*z}:{HC+8*i+4*z+3}], v{9 if i < 4 else 6} offset:{512*i+16*z}')
    A(bread(1, 0)); A(bread(1, 1))
    for t in range(1, 18):
        A(f'ds_read_b32 v{TAB+t}, v8 offset:{128*t}')

    def norm_ops(r, tab, lane0, c):
        ops = []
        for d in range(4):
            ops.append(f'v_lshlrev_b32 v{TB+d}, 16, v{r+d}')
        for e in (1, 3, 5, 7, 0, 2, 4, 6):
            src = r + e // 2 if e & 1 else TB + e // 2
            ops.append(f'v_fmac_f32_dpp v{c+e}, v{tab}, v{src} row_newbcast:{lane0+e} row_mask:0xf bank_mask:0xf')
        for d in range(4):
            ops.append(f'v_cvt_pk_bf16_f32 v{r+d}, v{c+2*d}, v{c+2*d+1}')
        return ops

    def norm_main(s):
        return norm_ops(xr(s), TAB + s // 2, 8 * (s & 1), CB + 8 * (s & 1))
    todo = ['x'] * (3 - NPRE_X) + ['w'] * (4 - NPRE_W) + ['w', 'w', 'x', 'x', 'x']
    todo.sort(key=lambda c: 0) if False else None

    def some(n):
        for _ in range(n):
            if todo:
                (xload if todo.pop(0) == 'x' else issue_w)()
    some(2)
    for x in norm_main(0):
        A(x)
    for i in range(5):
        some(1)
        for q, x in enumerate(norm_ops(HB + 4 * i, HT + i, 0, HC + 8 * i)):
            A(x)
            if q == 8:
                some(1)
        A(f'ds_write_b128 v{5 if i < 4 else 7}, v[{HB+4*i}:{HB+4*i+3}] offset:{4096*i}')
    some(99)

    def aread(m):
        s, T = divmod(m, 5)
        f = aFR + 4 * (m % 10)
        wd, sl = divmod(s, 16)
        if T < 3:
            return f'ds_read_b128 a[{f}:{f+3}], v{vA+wd} offset:{3840*sl+1024*T}'
        return f'ds_read_b128 a[{f}:{f+3}], v{(vA3 if T == 3 else vAH)+wd} offset:{3840*sl}'

    def hread(s):
        f = aHBF + 4 * (s & 1)
        return f'ds_read_b128 a[{f}:{f+3}], v{vHB} offset:{512*s}'

    BS = (0, 3, 6, 10, 14, 18, 22, 26, 30, 33, 36)
    NEED = {BS[q]: (3840 * BS[q + 1] - 1) // 4096 for q in range(len(BS) - 1)}

    def boundary(s):
        A.wait_vm_mark(mk0 if s == 0 else marks[NEED[s]])
        if s == 0:
            A.wait_all(vm=False)
        A('s_barrier')
    boundary(0)
    stamp(A, 'first data')
    for m in range(5):
        A(aread(m))
    A(hread(0))
    for s in range(36):
        nops = norm_main(s + 1) if s + 1 < 36 else []
        for T in range(5):
            m = 5 * s + T
            f = aFR + 4 * (m % 10)
            if T < 4:
                acc = ACC + 16 * T
                b = f'v[{xr(s)}:{xr(s)+3}]'
            else:
                acc = HACC
                b = f'a[{aHBF+4*(s&1)}:{aHBF+4*(s&1)+3}]'
            cin = '0' if s == 0 else f'v[{acc}:{acc+15}]'
            if T in (0, 2):
                regs = rl('a', f, 4) + rl('a', aFR + 4 * ((m + 1) % 10), 4)
                if T == 2:
                    regs += rl('a', aFR + 4 * ((m + 2) % 10), 4) + rl('a', aHBF + 4 * (s & 1), 4)
                A.wait_regs(regs)
            A(f'v_mfma_f32_32x32x16_bf16 v[{acc}:{acc+15}], a[{f}:{f+3}], {b}, {cin}')
            if m + 5 < 180:
                if T == 0 and s + 1 in NEED:
                    boundary(s + 1)
                A(aread(m + 5))
            if T == 0 and s + 1 < 36:
                A(hread(s + 1))
            if T in (1, 2) and s + 2 < 36:
                A(bread(s + 2, T - 1))
            for x in nops[(0, 3, 6, 10, 13)[T]:(3, 6, 10, 13, 16)[T]]:
                A(x)
            if T == 0 and xq:
                xload()
            if T == 3 and wq:
                issue_w()
            if mid and T == 1 and s == LATE_S - 1:
                mid()
            if late and T == 3 and s == LATE_S:
                late()


def ph_a_attn(A, bg=()):
    bg = list(bg)

    def idle(n=1):
        for _ in range(n):
            if bg:
                A(bg.pop(0))

    stamp(A, 'gemm done')
    KO, Q, KN, L = 96, 108, 118, 242
    vK, vV, vO, vKh, vVh, vTok = 250, 251, 9, 10, 2, 3
    quad = lambda loc: ACC + 16 * loc[0] + 4 * loc[1]
    QR, KR, VR = [quad(x) for x in QLOC], [quad(x) for x in KLOC], [quad(x) for x in VLOC]
    A(f'''v_lshrrev_b32 v4, 5, v{vLANE}
    v_and_b32 v5, 31, v{vLANE}
    v_mul_u32_u24 v6, 144, v4
    v_add_u32 v6, v6, v5
    v_mul_u32_u24 v{vKh}, 48, v6
    v_mul_u32_u24 v{vVh}, 80, v6
    v_add_u32 v{vVh}, {A_VREC}, v{vVh}
    s_mul_i32 s96, s{sW}, {32*48}
    s_add_u32 s96, s96, 96
    v_add_u32 v{vK}, s96, v{vKh}
    s_mul_i32 s96, s{sW}, {32*80}
    s_add_u32 s96, s96, 160
    v_add_u32 v{vV}, s96, v{vVh}
    s_lshl_b32 s96, s{sG}, 2
    s_add_u32 s96, s96, s{sW}
    s_lshl_b32 s96, s96, 5
    v_add_u32 v{vTok}, s96, v5''')
    for m in range(5):
        for c in range(2):
            A(f'v_cvt_pk_bf16_f32 v{KO+2*m+c}, v{KR[m]+2*c}, v{KR[m]+2*c+1}')
    A(f'v_mov_b32 v{KO+10}, 0\nv_mov_b32 v{KO+11}, 0')
    A('s_barrier')
    for z in range(3):
        A(f'ds_write_b128 v{vK}, v[{KO+4*z}:{KO+4*z+3}] offset:{14*48+16*z}')
    for m in range(5):
        A(f'ds_write_b128 v{vV}, v[{VR[m]}:{VR[m]+3}] offset:{14*80+16*m}')
    idle(3)
    for w in (1, 2, 3):
        A(f's_cmp_lg_u32 s{sW}, {w}')
        ctx = A.begin_skip('s_cbranch_scc1 {}')
        A('s_mov_b32 exec_lo, 0xffff\ns_mov_b32 exec_hi, 0xffff')
        for m in range(5):
            T, i = KLOC[m]
            if T == w:
                A(f'v_cvt_pk_bf16_f32 v{KN+2*m}, v{HACC+4*i}, v{HACC+4*i+1}\nv_cvt_pk_bf16_f32 v{KN+2*m+1}, v{HACC+4*i+2}, v{HACC+4*i+3}')
                A(f'ds_write_b64 v{vKh}, v[{KN+2*m}:{KN+2*m+1}] offset:{8*m}')
            T, i = VLOC[m]
            if T == w:
                A(f'ds_write_b128 v{vVh}, v[{HACC+4*i}:{HACC+4*i+3}] offset:{16*m}')
        A('s_mov_b64 exec, -1')
        A.end_skip_lds(ctx)
    for e in (0, 1):
        A(f'v_cndmask_b32 v{QR[0]+e}, v{QR[0]+e}, 0, s[{sHALF}:{sHALF+1}]')
        A(f'v_cndmask_b32 v{QR[4]+2+e}, 0, v{QR[4]+2+e}, s[{sHALF}:{sHALF+1}]')
    for m in range(5):
        for c in range(2):
            A(f'v_cvt_pk_bf16_f32 v{Q+2*m+c}, v{QR[m]+2*c}, v{QR[m]+2*c+1}')
    idle(3)
    A.wait_all(vm=False)
    A('s_barrier')
    for w in range(1, 8):
        for z in range(3):
            r = KN + 12 * (w - 1) + 4 * z
            A(f'ds_read_b128 v[{r}:{r+3}], v{vK} offset:{(14-2*w)*48+16*z}')

    pool = list(range(16, 52, 4)) + [56, 76] + list(range(80, 96, 4)) + list(range(202, 242, 4))
    assert not set(pool) & set(VR)
    vb = {w: pool[5 * (w - 1):5 * w] for w in range(1, 6)}
    vb.update({w: [KN + 2 + 20 * (w - 6) + 4 * z for z in range(5)] for w in (6, 7)})

    def vread(w):
        for z in range(5):
            A(f'ds_read_b128 v[{vb[w][z]}:{vb[w][z]+3}], v{vV} offset:{(14-2*w)*80+16*z}')
    for ws in ((0, 1, 2, 3), (4, 5, 6, 7)):
        for d in range(10):
            for w in ws:
                k = (KO if w == 0 else KN + 12 * (w - 1)) + d
                c = '0' if d == 0 else f'v{L+w}'
                A(f'v_dot2_f32_bf16 v{L+w}, v{Q+d}, v{k}, {c}')
            if d % 3 == 0:
                idle()
        if ws[0] == 0:
            for w in range(1, 6):
                vread(w)
    for w in (6, 7):
        vread(w)
    A(f's_mov_b32 s96, {fbits(18 ** -0.5 * LOG2E)}')
    A(f's_mov_b32 s97, {fbits(-1e9)}')
    for w in range(8):
        A(f'v_mul_f32 v{L+w}, s96, v{L+w}')
    A(f's_or_b32 s98, s{sG}, s{sW}\ns_cmp_lg_u32 s98, 0')
    ctx = A.begin_skip('s_cbranch_scc1 {}')
    A(f'v_mov_b32 v4, s97')
    for w in range(1, 8):
        A(f'v_cmp_le_u32 vcc, {2*w}, v{vTok}')
        A(f'v_cndmask_b32 v{L+w}, v4, v{L+w}, vcc')
    A.end_skip(ctx)
    A(f'''v_max3_f32 v4, v{L}, v{L+1}, v{L+2}
    v_max3_f32 v5, v{L+3}, v{L+4}, v{L+5}
    v_max3_f32 v4, v4, v{L+6}, v{L+7}
    v_max_f32 v4, v4, v5''')
    for w in range(8):
        A(f'v_sub_f32 v{L+w}, v{L+w}, v4')
    for w in range(8):
        A(f'v_exp_f32 v{L+w}, v{L+w}')
    A(f'''v_add_f32 v4, v{L}, v{L+1}
    v_add_f32 v5, v{L+2}, v{L+3}
    v_add_f32 v6, v{L+4}, v{L+5}
    v_add_f32 v7, v{L+6}, v{L+7}
    v_add_f32 v4, v4, v5
    v_add_f32 v6, v6, v7
    v_add_f32 v4, v4, v6
    v_rcp_f32 v4, v4''')
    for w in range(8):
        A(f'v_mul_f32 v{L+w}, v{L+w}, v4')
    idle(3)
    for w in range(8):
        idle()
        lp = L + (w & ~1)
        for d in range(10):
            o = VR[d // 2] + 2 * (d & 1)
            if w == 0:
                A(f'v_pk_mul_f32 v[{o}:{o+1}], v[{o}:{o+1}], v[{lp}:{lp+1}] op_sel_hi:[1,0]')
            else:
                m = 'op_sel_hi:[1,0,1]' if w % 2 == 0 else 'op_sel:[0,1,0] op_sel_hi:[1,1,1]'
                v = vb[w][d // 2] + 2 * (d & 1)
                A(f'v_pk_fma_f32 v[{o}:{o+1}], v[{v}:{v+1}], v[{lp}:{lp+1}], v[{o}:{o+1}] {m}')
    TM = KO
    for d in range(10):
        o = VR[d // 2] + 2 * (d & 1)
        A(f'v_cvt_pk_bf16_f32 v{TM+d}, v{o}, v{o+1}')
    idle(100)
    OUT, E = 108, 116
    for d in range(9):
        A(f'v_cndmask_b32 v{OUT+d}, v{TM+d}, v{TM+d+1}, s[{sHALF}:{sHALF+1}]')
    A(f'''v_mov_b32 v{E+1}, v{E}
    v_mov_b32 v{E+2}, 0
    v_mov_b32 v{E+3}, 0
    v_permlane32_swap_b32 v{E}, v{E+1}''')
    A(f'''v_bfe_u32 v4, v{vLANE}, 4, 1
    v_mul_u32_u24 v4, 20480, v4
    v_and_b32 v5, 15, v{vLANE}
    v_lshl_add_u32 v4, v5, 4, v4
    v_lshrrev_b32 v5, 5, v{vLANE}
    v_lshl_add_u32 v{vO}, v5, 9, v4
    s_mul_i32 s96, s{sG}, {O_G}
    s_mul_i32 s97, s{sW}, 40960
    s_add_u32 s96, s96, s97
    s_mul_i32 s97, s{sJ}, 1280
    s_add_u32 s96, s96, s97
    s_add_u32 s96, s96, {WS_O}
    buffer_store_dwordx4 v[{OUT}:{OUT+3}], v{vO}, s[16:19], s96 offen sc1
    buffer_store_dwordx4 v[{OUT+4}:{OUT+7}], v{vO}, s[16:19], s96 offen offset:256 sc1
    s_mov_b32 exec_hi, 0
    buffer_store_dwordx4 v[{E}:{E+3}], v{vO}, s[16:19], s96 offen offset:1024 sc1
    s_mov_b32 exec_hi, -1''')


def ph_a(A):
    ph_a_main(A)
    ph_a_attn(A)
```

```python
from common import *

B_IMG = 61440
B_LDS = B_IMG + WO_C


def ph_b_dma(A, srdq=16):
    A.comment('==== phase B: wo image ====')
    A(f'''s_and_b32 s40, s{sJ}, 7
    s_mul_i32 s40, s40, {WO_C}
    s_mul_i32 s41, s{sW}, 25600
    s_add_u32 s40, s40, s41
    s_add_u32 s40, s40, {WS_WO}
    s_add_u32 s41, s41, {B_IMG}
    v_lshlrev_b32 v8, 4, v{vLANE}''')
    r = []
    for i in range(25):
        pre = f's_add_u32 m0, s41, {1024*i}\ns_add_u32 s42, s40, {1024*i}\n' if i % 4 == 0 else ''
        r.append(pre + f'buffer_load_dwordx4 v8, s[{srdq}:{srdq+3}], s42 offen offset:{1024*(i%4)}{HS[0]} lds')
    return r


OB, XR, GA, SC, SH, ACC, TM = 16, 96, 108, 128, 148, 168, 188
PK = 240
vL16, vX1, vST, vA, vVEC = 238, 239, 252, 253, 12
B_VEC = 49152
VP = 168
sgX = 28


def ph_b_pre(A):
    A(f'''s_lshr_b32 s3, s{sJ}, 3
    s_and_b32 s4, s{sJ}, 7
    v_lshlrev_b32 v{vL16}, 4, v{vLANE}
    s_lshl_b32 s5, s3, 2
    s_add_u32 s5, s5, s{sW}
    s_mul_i32 s6, s5, 20480
    s_mul_i32 s7, s{sG}, {O_G}
    s_add_u32 s6, s6, s7
    s_add_u32 s6, s6, {WS_O}
    v_and_b32 v4, 15, v{vLANE}
    v_lshrrev_b32 v5, 4, v{vLANE}
    v_and_b32 v8, 1, v5
    v_lshlrev_b32 v8, 1, v8
    v_lshrrev_b32 v9, 1, v5
    v_or_b32 v8, v8, v9
    v_lshlrev_b32 v8, 8, v8
    v_lshl_add_u32 v{vX1}, v4, 4, v8
    v_lshlrev_b32 v{vST}, 4, v4
    s_lshl_b32 s39, s{sG}, 3
    s_add_u32 s39, s39, s5
    s_mul_i32 s96, s39, {T16}
    s_mul_i32 s97, s4, 2304
    s_add_u32 s96, s96, s97
    s_add_u32 s7, s96, {WS_XT}
    s_add_u32 s96, s96, {WS_X1}
    v_mul_u32_u24 v6, 57, v{vLANE}
    v_lshrrev_b32 v6, 10, v6
    v_mul_u32_u24 v6, {2304-288}, v6
    v_add_u32 v6, v6, v{vL16}
    s_mul_i32 s38, s4, 288
    s_add_u32 s38, s38, {WS_MOD + 4*1152}
    s_mov_b32 m0, {B_VEC}''')
    if TAGGED[0]:
        A(f'''s_add_u32 s38, s38, {WS_MODP - WS_MOD}
        s_mul_i32 s99, s{sJ}, 144
        s_add_u32 s99, s99, {WS_MODP + 4*2880}
        s_sub_u32 s99, s99, s38
        v_add_u32 v7, s99, v{vL16}
        v_subrev_u32 v7, {54*16}, v7
        v_cmp_lt_u32 vcc, 53, v{vLANE}
        v_cndmask_b32 v6, v6, v7, vcc
        s_mov_b32 s99, s38''')
        for q in range(4):
            A(f'buffer_load_dwordx4 v[{VP+4*q}:{VP+4*q+3}], v6, s[16:19], s99 offen sc1')
            if q < 3:
                A('s_add_u32 s99, s99, 13824')
    else:
        A('''s_mov_b32 exec_hi, 0x3fffff
        buffer_load_dwordx4 v6, s[16:19], s38 offen lds
        s_mov_b32 exec_hi, -1''')
    mk = A.mark()
    for z in range(3):
        A(f'buffer_load_dwordx4 v[{XR+4*z}:{XR+4*z+3}], v{vX1}, s[16:19], s7 offen offset:{1024*z}{HS[0]}')
    A(f'''v_add_u32 v{vA}, {B_IMG}, v{vL16}
    v_lshlrev_b32 v{vVEC}, 4, v5
    v_add_u32 v{vVEC}, {B_VEC}, v{vVEC}
    s_lshl_b32 s97, s39, 11
    s_add_u32 s97, s97, {WS_ST}
    s_lshl_b32 s98, s4, 8
    s_add_u32 s98, s98, s97''')
    return mk


def ph_b_vec(A):
    if TAGGED[0]:
        import ph_prep1
        A(f'''v_cmp_le_u32 vcc, 36, v{vLANE}
        v_cndmask_b32 v{VP+18}, 0, 1.0, vcc
        v_cmp_lt_u32 vcc, 53, v{vLANE}
        v_cndmask_b32 v{VP+18}, v{VP+18}, 0, vcc
        v_add_u32 v{VP+19}, {B_VEC}, v{vL16}''')
        ph_prep1.combine(A, VP, VP + 16, VP + 18)
        A(f'ds_write_b128 v{VP+19}, v[{VP}:{VP+3}]')
        A(f'''s_mul_i32 s99, s{sG}, 2304
        s_mul_i32 s98, s{sJ}, 144
        s_add_u32 s99, s99, s98
        s_add_u32 s99, s99, {WS_GBF - 54*16}
        s_mov_b32 exec_lo, 0
        s_mov_b32 exec_hi, 0x7fc00000
        buffer_store_dwordx4 v[{VP}:{VP+3}], v{vL16}, s[16:19], s99 offen sc1
        s_mov_b64 exec, -1
        s_lshl_b32 s98, s4, 8
        s_add_u32 s98, s98, s97''')
    for base, off in ((GA, 0), (SH, 288), (SC, 576)):
        for T in range(5):
            A(f'ds_read_b128 v[{base+4*T}:{base+4*T+3}], v{vVEC} offset:{off+64*T}')
    for bb in (0, 4, 8):
        A(f'v_permlane16_swap_b32 v{XR+bb}, v{XR+bb+2}')
        A(f'v_permlane16_swap_b32 v{XR+bb+1}, v{XR+bb+3}')
    A(f's_mov_b32 s99, {fbits(-LOG2E)}')
    for e in range(20):
        A(f'v_mul_f32 v{SH+e}, s99, v{SH+e}')


NPRE = 56


def ph_b_pre_frags(A):
    for m in range(NPRE):
        A(f'ds_read_b128 a[{32+4*m}:{32+4*m+3}], v{vA} offset:{m*1024}')


def ph_b_main(A, before_stat=None, after_stat=None):
    A.comment('==== phase B ====')
    aFR = 0
    for k in range(20):
        A(f'buffer_load_dwordx4 v[{OB+4*k}:{OB+4*k+3}], v{vL16}, s[16:19], s6 offen offset:{1024*(k%4)} sc1')
        if k % 4 == 3 and k < 19:
            A('s_add_u32 s6, s6, 4096')
    NB = 8

    def freg(m):
        return 32 + 4 * m if m < NPRE else aFR + 4 * ((m - NPRE) % NB)

    def read(m):
        f = freg(m)
        if m == 60:
            A(f'v_add_u32 v{vA}, 61440, v{vA}')
        return f'ds_read_b128 a[{f}:{f+3}], v{vA} offset:{(m % 60)*1024}'
    nxt = NPRE
    while nxt < NPRE + NB:
        A(read(nxt)); nxt += 1
    for m in range(100):
        k, T = divmod(m, 5)
        f = freg(m)
        acc = ACC + 4 * T
        cin = '0' if k == 0 else f'v[{acc}:{acc+3}]'
        if m >= NPRE and (m - NPRE) % 2 == 0:
            A.wait_regs(rl('a', f, 4) + rl('a', freg(min(m + 1, 99)), 4))
        A(f'v_mfma_f32_16x16x32_bf16 v[{acc}:{acc+3}], a[{f}:{f+3}], v[{OB+4*k}:{OB+4*k+3}], {cin}')
        if m >= NPRE and nxt < 100:
            A(read(nxt)); nxt += 1
        if m < 10:
            unpack(A, TM + 2 * m, TM + 2 * m + 1, XR + m)
    stamp(A, 'gemm done')
    for u in range(10):
        t = TM + 2 * u
        A(f'v_pk_fma_f32 v[{t}:{t+1}], v[{ACC+2*u}:{ACC+2*u+1}], v[{GA+2*u}:{GA+2*u+1}], v[{t}:{t+1}]')
    a, b = 48, 40

    def allsum(r, t):
        A(f'''v_mov_b32 v{t}, v{r}
        v_permlane16_swap_b32 v{r}, v{t}
        v_add_f32 v{r}, v{r}, v{t}
        v_mov_b32 v{t}, v{r}
        v_permlane32_swap_b32 v{r}, v{t}
        v_add_f32 v{r}, v{r}, v{t}''')
    A(f'v_pk_add_f32 v[{a}:{a+1}], v[{TM}:{TM+1}], v[{TM+2}:{TM+3}]')
    for u in range(2, 10):
        if u == 8:
            A('s_mov_b32 exec_hi, 0')
        A(f'v_pk_add_f32 v[{a}:{a+1}], v[{a}:{a+1}], v[{TM+2*u}:{TM+2*u+1}]')
    A('s_mov_b32 exec_hi, -1')
    A(f'v_add_f32 v{a}, v{a}, v{a+1}')
    allsum(a, a + 1)
    A(f's_mov_b32 s99, {fbits(1.0/72)}\nv_mul_f32 v{a}, s99, v{a}')
    DV = ACC
    for u in range(10):
        A(f'v_pk_add_f32 v[{DV+2*u}:{DV+2*u+1}], v[{TM+2*u}:{TM+2*u+1}], v[{a}:{a+1}] op_sel_hi:[1,0] neg_lo:[0,1] neg_hi:[0,1]')
    A(f'v_pk_mul_f32 v[{b}:{b+1}], v[{DV}:{DV+1}], v[{DV}:{DV+1}]')
    for u in range(1, 10):
        if u == 8:
            A('s_mov_b32 exec_hi, 0')
        t = DV + 2 * u
        A(f'v_pk_fma_f32 v[{b}:{b+1}], v[{t}:{t+1}], v[{t}:{t+1}], v[{b}:{b+1}]')
    A('s_mov_b32 exec_hi, -1')
    A(f'v_add_f32 v{b}, v{b}, v{b+1}')
    allsum(b, b + 1)
    A(f'v_mov_b32 v{a+1}, v{b}\nv_mov_b32 v{a+3}, 0')
    flag_value(A, a + 2, 1)
    A('s_mov_b64 exec, 0xffff')
    A(f'buffer_store_dwordx4 v[{a}:{a+3}], v{vST}, s[16:19], s98 offen sc1')
    A('s_mov_b64 exec, -1')

    def swap_only(P):
        A(f'v_mov_b32 v{P+10}, v{P+8}\nv_mov_b32 v{P+11}, v{P+9}')
        for bb in (0, 4, 8):
            A(f'v_permlane16_swap_b32 v{P+bb}, v{P+bb+2}')
            A(f'v_permlane16_swap_b32 v{P+bb+1}, v{P+bb+3}')

    def swap_store(P, sOff, swap=True):
        if swap:
            swap_only(P)
        A(f'buffer_store_dwordx4 v[{P}:{P+3}], v{vX1}, s[16:19], s{sOff} offen sc1')
        A(f'buffer_store_dwordx4 v[{P+4}:{P+7}], v{vX1}, s[16:19], s{sOff} offen offset:1024 sc1')
        A('s_mov_b64 exec, 0xffff')
        A(f'buffer_store_dwordx4 v[{P+8}:{P+11}], v{vX1}, s[16:19], s{sOff} offen offset:2048 sc1')
        A('s_mov_b64 exec, -1')
    G0, G1 = 32, 36
    ok, slow, again = A.label('L_back_st'), A.label('L_stslow'), A.label('L_stagain')
    lds = [f'buffer_load_dwordx4 v[{G0}:{G0+3}], v{vL16}, s[16:19], s97 offen sc1',
           f'buffer_load_dwordx4 v[{G1}:{G1+3}], v{vL16}, s[16:19], s97 offen offset:1024 sc1']
    if before_stat:
        before_stat()
    for x in lds:
        A(x)
    if after_stat:
        after_stat()
    for u in range(10):
        A(f'v_cvt_pk_bf16_f32 v{PK+u}, v{TM+2*u}, v{TM+2*u+1}')
    swap_only(PK)
    chk = [f'v_and_b32 v44, v{G0+2}, v{G1+2}', 'v_cmp_eq_u32 vcc, 0, v44']
    if TAGGED[0]:
        chk = [f's_add_u32 s99, s{sTAG}, 1', f'v_xor_b32 v44, s99, v{G0+2}', f'v_xor_b32 v45, s99, v{G1+2}', 'v_or_b32 v44, v44, v45', 'v_cmp_ne_u32 vcc, 0, v44']
    for x in chk:
        A(x)
    A(f's_cbranch_vccnz {slow}')
    A(ok + ':')
    A.tail += [slow + ':', 's_mov_b32 s100, 0', again + ':'] + backoff() + lds + \
        ['s_add_u32 s100, s100, 1', f's_cmp_gt_u32 s100, {SPIN_MAX}', f's_cbranch_scc1 {ok}', 's_waitcnt vmcnt(0)'] + chk + \
        ['s_nop 1', f's_cbranch_vccnz {again}', f's_branch {ok}']
    stamp(A, 'stats in')
    swap_store(PK, 96, False)
    A(f'v_add_f32 v{a}, v{G0}, v{G1}')
    allsum(a, a + 1)
    A(f'''v_mul_f32 v{a}, {fbits(0.125)}, v{a}
    v_sub_f32 v{G0}, v{G0}, v{a}
    v_sub_f32 v{G1}, v{G1}, v{a}
    v_mul_f32 v{G0}, v{G0}, v{G0}
    v_fmac_f32 v{G0}, v{G1}, v{G1}
    v_add_f32 v{b}, v{G0+1}, v{G1+1}
    s_mov_b32 s99, {fbits(72.0)}
    v_fmac_f32 v{b}, s99, v{G0}''')
    allsum(b, b + 1)
    A(f'''s_mov_b32 s99, {fbits(1.0/576)}
    v_mov_b32 v{b+1}, {fbits(1e-5)}
    v_fmac_f32 v{b+1}, s99, v{b}
    v_rsq_f32 v{b}, v{b+1}''')
    for u in range(10):
        t = TM + 2 * u
        A(f'v_pk_add_f32 v[{t}:{t+1}], v[{t}:{t+1}], v[{a}:{a+1}] op_sel_hi:[1,0] neg_lo:[0,1] neg_hi:[0,1]')
    A(f's_mov_b32 s99, {fbits(-LOG2E)}\nv_mul_f32 v{b}, s99, v{b}')
    for u in range(10):
        t = TM + 2 * u
        A(f'v_pk_mul_f32 v[{t}:{t+1}], v[{t}:{t+1}], v[{b}:{b+1}] op_sel_hi:[1,0]')
    for u in range(10):
        t = TM + 2 * u
        A(f'v_pk_fma_f32 v[{t}:{t+1}], v[{t}:{t+1}], v[{SC+2*u}:{SC+2*u+1}], v[{SH+2*u}:{SH+2*u+1}]')
    P2 = OB
    for u in range(10):
        A(f'v_cvt_pk_bf16_f32 v{P2+u}, v{TM+2*u}, v{TM+2*u+1}')
    A(f's_add_u32 s96, s96, {WS_H2 - WS_X1}')
    swap_store(P2, 96)


def ph_b(A):
    srd(A, 16, sWS, WS_SIZE)
    for x in ph_b_dma(A):
        A(x)
    ph_b_pre(A)
    A.wait_all()
    A('s_barrier')
    ph_b_vec(A)
    ph_b_pre_frags(A)
    stamp(A, 'img landed')
    ph_b_main(A)
```

```python
from common import *
import ph_small as FS
import sys

NS = 10
WIN = 4
C_LDS = NS * 16384
BIAS = 4096

ACC = 16
HB = 144
vF = 216
vH = 228
vDG, vDH, vDD, vDE = 234, 235, 236, 237
vL16, vOUT = 238, 239
TMP = 240
OUTT = 248
aX = 0
aPH = 144
aFR = 216
sgG, sgU, sgGH, sgD, sgWS = 8, 12, 20, 24, 16

vT1, vT2 = 4, 5
OPT = dict(dma=True, fill=True, barrier=True, reads=True, pairs=False, NB=10, LA=6, LB=6, LAT=5, lag=0, lead=1, bigov=0, wstep=4, bper=2, xburst=8, xpace=4, dlag=28, prefill=6,
           rush={0: 70, 1: 106, 2: 142, 3: 162, 4: 172}, pubdelay=64, pub3delay=64, pub3=1, sched=0, pf=[], touch=[], itouch=[], fin=(212, 223, 229, 233), d2hi=0, outrush={0: 203, 1: 210, 2: 225, 3: 241}, hxst=1, hxpub=1, hxld=1, outst=1,
           checks=[(1, (0, 1), 122, 128), (2, (2,), 154, 159), (3, (3,), 176, 182), (4, (4,), 184, 189)])


def steps():
    st = []
    for p in range(4):
        for k in range(18):
            st.append(dict(kind='g', p=p, k=k))
            st.append(dict(kind='u', p=p, k=k))
    for k in range(18):
        st.append(dict(kind='gh', p=4, k=k))

    def dn(db, ks, who=0):
        for a in ks:
            st.append(dict(kind='dn', p=db, a=a, who=who))
    if not OPT['pairs']:
        ND = 3
        for db in range(ND):
            dn(db, range(6))
        for db in range(ND):
            dn(db, range(6, 9))
        for db in range(ND, 9):
            dn(db, range(9))
    else:
        if OPT.get('late2'):
            dn(0, range(6)); dn(0, range(4), 1)
            dn(1, range(6)); dn(1, range(4), 1)
            dn(0, range(4, 6), 1); dn(1, range(4, 6), 1)
        else:
            dn(0, range(6)); dn(0, range(6), 1)
            dn(1, range(6)); dn(1, range(6), 1)
        dn(0, range(6, 9)); dn(1, range(6, 9))
        if OPT['sched'] == 0:
            dn(0, range(6, 9), 1); dn(1, range(6, 9), 1)
            dn(2, range(9)); dn(2, range(9), 1)
        else:
            dn(2, range(OPT['sched']))
            dn(0, range(6, 9), 1); dn(1, range(6, 9), 1)
            dn(2, range(OPT['sched'], 9)); dn(2, range(9), 1)
        dn(3, range(9)); dn(3, range(9), 1)
        for u in range(9):
            st.append(dict(kind='dh', p=4, u=u))
    seen = set()
    for e in st:
        if e['kind'] in ('dn', 'dh'):
            e['first'] = e['p'] not in seen
            seen.add(e['p'])
    seen = set()
    for e in reversed(st):
        if e['kind'] in ('dn', 'dh'):
            e['last'] = e['p'] not in seen
            seen.add(e['p'])
    return st


def down_acc(db):
    if not OPT['pairs']:
        tab = {0: ('a', aX), 1: ('a', aX + 32), 2: ('a', aX + 64)}
        return tab.get(db, ('v', ACC + 32 * ((db + 1) % 4)))
    return {0: ('a', aX), 1: ('a', aX + 32), 2: ('v', ACC + 80 if OPT.get('d2hi', 1) else ACC), 3: ('v', ACC + 32), 4: ('v', ACC + 64)}[db]


def ph_c_setup_s(A):
    A.comment('==== phase C: setup ====')
    srd(A, sgG, sWG, 576 * 9216, bias=BIAS)
    srd(A, sgU, sWU, 576 * 9216, bias=BIAS + 1024)
    A(f'''s_cmp_lt_u32 s{sW}, 2
    s_cselect_b32 s96, s{sWG}, s{sWU}
    s_cselect_b32 s97, s{sWG+1}, s{sWU+1}''')
    srd(A, sgGH, 96, 576 * 9216, bias=BIAS)
    srd(A, sgD, sWD, F * 1152, bias=BIAS)
    A(f'''s_and_b32 s96, s{sJ}, 1
    s_mul_i32 s97, s{sJ}, 288
    s_lshl_b32 s98, s96, 5
    s_add_u32 s98, s98, s97
    s_lshl_b32 s56, s98, 1
    s_mul_i32 s58, s98, 1152
    s_cmp_eq_u32 s96, 0
    s_cselect_b32 s98, 256, 0
    s_add_u32 s98, s98, s97
    s_lshl_b32 s57, s98, 1
    s_mul_i32 s59, s98, 1152
    s_lshl_b32 s60, s{sW}, 12''')
    if OPT['pairs']:
        A(f'''s_cmp_eq_u32 s96, 0
        s_mov_b32 s98, {-288*1152 & 0xffffffff}
        s_cmov_b32 s98, {320*1152}
        s_mov_b32 s99, {-32*1152 & 0xffffffff}
        s_cmov_b32 s99, {288*1152}
        s_cselect_b32 s52, 0, 640
        s_movk_i32 s53, 576
        s_cmov_b32 s53, 512
        s_mul_i32 s100, s97, 1152
        s_add_u32 s50, s100, s98
        s_add_u32 s51, s100, s99
        s_add_u32 s50, s50, s52
        s_add_u32 s51, s51, s52
        s_add_u32 s48, s59, s53
        s_add_u32 s49, s51, s53
        s_sub_u32 s49, s49, s52
        s_add_u32 s46, s58, s53
        s_add_u32 s47, s50, s53
        s_sub_u32 s47, s47, s52
        s_add_u32 s58, s58, s52
        s_add_u32 s59, s59, s52
        s_lshr_b32 s45, s{sW}, 1
        s_mul_i32 s45, s45, {32*1152}''')
    np_ = 8 if OPT['pairs'] else 16
    A(f'''s_mul_i32 s96, s{sG}, {np_}
    s_lshr_b32 s97, s{sJ}, {1 if OPT['pairs'] else 0}
    s_add_u32 s96, s96, s97
    s_lshl_b32 s96, s96, 3
    s_lshl_b32 s97, s{sW}, 1
    s_add_u32 s96, s96, s97
    s_mul_i32 s55, s96, {T16}
    s_add_u32 s55, s55, {WS_PART}
    s_mov_b32 s62, {fbits(-LOG2E)}''')
    if OPT['pairs']:
        A(f'''s_lshl_b32 s96, s53, 4
        s_add_u32 s54, s55, s96
        s_lshl_b32 s96, s52, 4
        s_add_u32 s55, s55, s96''')


sPFB = 91
vPG, vPD, aJ = 254, 255, 128
aJC = None


def pf_setup(A):
    if OPT.get('pfl'):
        A(f's_movk_i32 s{sPFB}, {BIAS}')
        return pfl_setup(A)
    A(f'''v_mul_u32_u24 v176, 57, v{vLANE}
    v_lshrrev_b32 v176, 9, v176
    v_mul_u32_u24 v177, 9, v176
    v_sub_u32 v177, v{vLANE}, v177
    s_lshl_b32 s96, s{sG}, 2
    s_add_u32 s96, s96, s{sW}
    s_mul_i32 s96, s96, 9
    v_add_u32 v177, s96, v177
    s_movk_i32 s97, 9216
    v_mul_lo_u32 v178, v177, s97
    v_lshlrev_b32 v179, 7, v176
    v_add_u32 v180, s56, v179
    v_mov_b32 v181, s57
    v_cmp_eq_u32 vcc, 4, v176
    v_cndmask_b32 v180, v180, v181, vcc
    v_add_u32 v{vPG}, v178, v180
    s_lshr_b32 s96, s{sJ}, 1
    s_mul_i32 s96, s96, 576
    v_add_u32 v177, s96, v177
    v_mul_u32_u24 v177, 1152, v177
    s_and_b32 s96, s{sJ}, 1
    s_lshl_b32 s96, s96, 9
    v_add_u32 v179, s96, v179
    v_add_u32 v{vPD}, v177, v179
    s_movk_i32 s{sPFB}, {BIAS}''')


vPH = 253


def pfl_setup(A):
    A(f'''v_mul_u32_u24 v160, 57, v{vLANE}
    v_lshrrev_b32 v160, 10, v160
    v_mul_u32_u24 v161, 18, v160
    v_sub_u32 v161, v{vLANE}, v161
    s_lshr_b32 s96, s{sG}, 1
    s_lshl_b32 s96, s96, 2
    s_add_u32 s96, s96, s{sW}
    s_mul_i32 s96, s96, 18
    v_add_u32 v161, s96, v161
    s_movk_i32 s97, 9216
    v_mul_lo_u32 v162, v161, s97
    v_lshlrev_b32 v163, 7, v160
    v_add_u32 v162, v162, v163
    v_add_u32 v{vPG}, s56, v162
    s_lshr_b32 s96, s{sJ}, 1
    s_mul_i32 s96, s96, 576
    v_add_u32 v161, s96, v161
    v_mul_u32_u24 v161, 1152, v161
    s_and_b32 s96, s{sJ}, 1
    s_lshl_b32 s96, s96, 9
    v_add_u32 v163, s96, v163
    v_add_u32 v{vPD}, v161, v163
    s_sub_u32 s90, s57, s56
    s_add_u32 s90, s90, {BIAS}''')


def pfl_ops(mats, p0, n, dst='v13'):
    m = (1 << (18 * n)) - 1
    r = [f's_mov_b32 exec_lo, {m & 0xffffffff}', f's_mov_b32 exec_hi, {m >> 32}']
    for c in mats:
        sg, v = {'g': (sgG, vPG), 'u': (sgU, vPG), 'd': (sgD, vPD)}[c]
        extra = 1024 if c == 'u' else 0
        if c != 'd' and p0 == 4:
            so, off = 's90', extra
        else:
            so, off = f's{sPFB}', extra + 128 * p0
        r.append(f'buffer_load_dword {dst}, v{v}, s[{sg}:{sg+3}], {so} offen offset:{off} nt')
    r.append('s_mov_b64 exec, -1')
    return r


def pf_ops(mats, lo, hi, dst='v13'):
    if OPT.get('pfl'):
        return pfl_ops(mats, lo, hi)
    m = ((1 << hi) - 1) ^ ((1 << lo) - 1)
    r = [f's_mov_b32 exec_lo, {m & 0xffffffff}', f's_mov_b32 exec_hi, {m >> 32}']
    for q, c in enumerate(mats):
        sg, v = {'g': (sgG, vPG), 'u': (sgU, vPG), 'd': (sgD, vPD)}[c]
        o = ' offset:1024' if c == 'u' else ''
        r.append(f'buffer_load_dword {dst}, v{v}, s[{sg}:{sg+3}], s{sPFB} offen{o}{" nt" if OPT.get("pfnt") else ""}')
    r.append('s_mov_b64 exec, -1')
    return r


def ph_c_setup_v(A):
    A(f'''v_lshrrev_b32 v4, 3, v{vLANE}
    v_and_b32 v5, 7, v{vLANE}
    v_bfe_u32 v6, v{vLANE}, 4, 1
    s_and_b32 s40, s{sW}, 1
    s_lshr_b32 s41, s{sW}, 1
    s_lshl_b32 s42, s40, 1
    v_add_u32 v6, s42, v6
    v_lshlrev_b32 v6, 1, v6
    v_xor_b32 v5, v5, v6
    v_lshlrev_b32 v5, 4, v5
    s_lshl_b32 s42, s{sW}, 3
    v_add_u32 v6, s42, v4
    s_movk_i32 s43, 9216
    v_mul_lo_u32 v6, v6, s43
    v_add_u32 v{vDG}, v6, v5
    v_lshrrev_b32 v6, 2, v4
    v_lshlrev_b32 v6, 4, v6
    v_and_b32 v7, 3, v4
    v_add_u32 v6, v6, v7
    s_lshl_b32 s42, s{sW}, 2
    v_add_u32 v6, s42, v6
    v_mul_u32_u24 v6, 1152, v6
    v_add_u32 v{vDD}, v6, v5''')
    A(f'''v_lshrrev_b32 v4, 2, v{vLANE}
    v_and_b32 v5, 3, v{vLANE}
    v_lshrrev_b32 v6, 5, v{vLANE}
    v_lshlrev_b32 v7, 1, v6
    v_xor_b32 v5, v5, v7
    v_lshlrev_b32 v5, 4, v5
    s_lshl_b32 s42, s40, 4
    v_add_u32 v7, s42, v4
    v_mul_lo_u32 v7, v7, s43
    v_add_u32 v{vDH}, v7, v5
    v_bfe_u32 v7, v4, 2, 1
    v_lshlrev_b32 v7, 4, v7
    v_lshl_add_u32 v7, v6, 2, v7
    v_and_b32 v8, 3, v4
    v_add_u32 v7, v7, v8
    s_lshl_b32 s42, s40, 3
    v_add_u32 v7, s42, v7
    v_mul_u32_u24 v7, 1152, v7
    v_add_u32 v{vDE}, v7, v5''')
    A(f'''v_lshrrev_b32 v4, 4, v{vLANE}
    v_bfe_u32 v5, v{vLANE}, 2, 2
    v_bfe_u32 v6, v{vLANE}, 1, 1
    v_and_b32 v7, 1, v{vLANE}
    v_lshlrev_b32 v7, 3, v7
    v_lshl_add_u32 v7, v6, 4, v7
    v_and_b32 v8, 1, v4
    v_lshlrev_b32 v9, 1, v8
    v_lshrrev_b32 v10, 1, v5
    v_add_u32 v9, v9, v10
    v_lshlrev_b32 v9, 5, v9
    v_xor_b32 v9, v9, v7
    v_lshl_add_u32 v9, v5, 7, v9
    v_lshl_add_u32 v9, v4, 12, v9
    v_lshlrev_b32 v10, 5, v8
    v_xor_b32 v10, v10, v7
    v_lshl_add_u32 v10, v5, 6, v10
    v_lshl_add_u32 v10, v8, 9, v10
    v_lshrrev_b32 v11, 1, v4
    v_lshl_add_u32 v10, v11, 12, v10''')
    for wd in range(3):
        A(f'v_add_u32 v{vF+4*wd}, {WIN*16384*wd}, v9')
        for ft in range(1, 4):
            A(f'v_xor_b32 v{vF+4*wd+ft}, {32*ft}, v{vF+4*wd}')
        A(f'v_add_u32 v{vH+2*wd}, {WIN*16384*wd}, v10')
        A(f'v_xor_b32 v{vH+2*wd+1}, 32, v{vH+2*wd}')
    A(f'''v_lshlrev_b32 v{vL16}, 4, v{vLANE}
    v_lshlrev_b32 v8, 1, v8
    v_or_b32 v8, v8, v11
    v_lshlrev_b32 v8, 8, v8
    v_and_b32 v9, 15, v{vLANE}
    v_lshl_add_u32 v{vOUT}, v9, 4, v8''')


def ph_c_setup(A):
    ph_c_setup_s(A)
    ph_c_setup_v(A)


def nt_step(e):
    m = OPT.get('dmant', 0)
    if m == 1:
        return True
    if m == 2:
        return not (e['kind'] in 'gu' and e['p'] < 2)
    if m == 4:
        return e['kind'] in 'gu' and e['p'] >= 2
    if m == 5:
        return e['kind'] in 'gu' and e['p'] >= 3
    if m == 3:
        return e['kind'] in ('dn', 'dh')
    return False


def dma_ops(st, n):
    if n >= len(st) or (not OPT['dma'] and n >= 28):
        return []
    e = st[n]
    slot, z = divmod(n, 4)
    r = []
    if z == 0:
        r.append(f's_add_u32 m0, s60, {(slot % NS) * 16384}')
    comp = BIAS - 1024 * z
    k = e['kind']
    if k in 'gu':
        if k == 'g':
            r.append(f's_add_u32 s61, s56, {comp + e["p"]*128 + e["k"]*32*9216}')
        else:
            assert z & 1 and st[n - 1]['kind'] == 'g'
        q, v = (sgG if k == 'g' else sgU), vDG
    elif k == 'gh':
        r.append(f's_add_u32 s61, s57, {comp + e["k"]*32*9216}')
        q, v = sgGH, vDH
    elif k == 'dn':
        full, half = ((58, 59), (50, 51))[e['who']]
        if e['a'] < 8:
            r.append(f's_add_u32 s61, s{full}, {comp + e["p"]*128 + e["a"]*32*1152}')
        else:
            r.append(f's_add_u32 s61, s{half}, {comp + e["p"]*128}')
        q, v = sgD, vDD
    else:
        offs = []
        for par in range(2):
            who, a = divmod(2 * e['u'] + par, 9)
            sreg = ((46, 48), (47, 49))[who][a == 8]
            offs.append((sreg, comp + (a % 8) * 32 * 1152))
        if offs[0][0] == offs[1][0]:
            r.append(f's_add_u32 s61, s{offs[0][0]}, s45')
            r.append(f's_add_u32 s61, s61, {offs[0][1]}')
        else:
            r.append(f's_add_u32 s61, s{offs[0][0]}, {offs[0][1]}')
            r.append(f's_add_u32 s44, s{offs[1][0]}, {offs[1][1]}')
            r.append(f's_cmp_lt_u32 s{sW}, 2\ns_cselect_b32 s61, s61, s44')
        q, v = sgD, vDE
    r.append(f'buffer_load_dwordx4 v{v}, s[{q}:{q+3}], s61 offen offset:{1024*z}{" nt" if nt_step(e) else ""} lds')
    if OPT.get('dmajunk') and n >= 28:
        r[-1] = r[-1].replace(' lds', '').replace('buffer_load_dwordx4 ', 'buffer_load_dwordx4 a[212:215], ')
    return r


def mf_info(st, mu):
    n, e8 = divmod(mu, 8)
    fl, tt = divmod(e8, 2)
    e = st[n]
    slot, z = divmod(n, 4)
    win, sl = divmod(slot % NS, WIN)
    base = sl * 16384 + z * 1024
    k = e['kind']
    if k in 'gu':
        acc = ('v', ACC + 64 * (e['p'] & 1) + (32 if k == 'u' else 0) + 8 * fl + 4 * tt)
        b = ('a', aX + 72 * tt + 4 * e['k'])
        return acc, b, e['k'] == 0, vF + 4 * win + fl, [base + rd * 512 for rd in range(2)]
    if k == 'gh':
        mat, ft = divmod(fl, 2)
        acc = ('v', ACC + 32 * mat + 8 * ft + 4 * tt)
        b = ('a', aX + 72 * tt + 4 * e['k'])
        return acc, b, e['k'] == 0, vH + 2 * win + ft, [base + mat * 8192 + rd * 256 for rd in range(2)]
    ak, ab = down_acc(e['p'])
    if k == 'dn':
        acc = (ak, ab + 8 * fl + 4 * tt)
        b = ('v', HB + 8 * e['a'] + 4 * tt) if e['who'] == 0 else ('a', aPH + 8 * e['a'] + 4 * tt)
        return acc, b, e['first'], vF + 4 * win + fl, [base + rd * 512 for rd in range(2)]
    par, dt = divmod(fl, 2)
    who, a = divmod(2 * e['u'] + par, 9)
    acc = (ak, ab + 8 * dt + 4 * tt)
    b = ('v', HB + 8 * a + 4 * tt) if who == 0 else ('a', aPH + 8 * a + 4 * tt)
    return acc, b, e['first'] and par == 0, vH + 2 * win + dt, [base + par * 8192 + rd * 256 for rd in range(2)]


def act_ops(p):
    ops = []
    s = ACC + 64 * (p & 1)
    for ft in range(4 if p < 4 else 2):
        for tt in range(2):
            g = s + 8 * ft + 4 * tt
            u = g + 32
            h = HB + 8 * (2 * p + ft // 2) + 4 * tt + 2 * (ft & 1)
            T = TMP + 4 * tt
            r = range(4)
            ops += [(f'v_exp_f32 v{T+e}, v{g+e}', 2) for e in r]
            ops += [(f'v_add_f32 v{T+e}, 1.0, v{T+e}', 1) for e in r]
            ops += [(f'v_rcp_f32 v{T+e}, v{T+e}', 2) for e in r]
            ops += [(f'v_mul_f32 v{T+e}, v{u+e}, v{T+e}', 1) for e in r]
            ops += [(f'v_cvt_pk_bf16_f32 v{h+d}, v{T+2*d}, v{T+2*d+1}', 1) for d in range(2)]
    return ops


def out_ops(db, half=False):
    ops = []
    ak, ab = down_acc(db)
    for tt in range(2):
        for pr in range(1 if half else 2):
            P = OUTT + 4 * (pr & 1)
            for d in range(2):
                src = ab + 8 * (2 * pr + d) + 4 * tt
                if ak == 'a':
                    ops += [(f'v_accvgpr_read_b32 v{TMP+e}, a{src+e}', 1) for e in range(4)]
                    src = TMP
                ops += [(f'v_cvt_pk_bf16_f32 v{P+2*d+c}, v{src+2*c}, v{src+2*c+1}', 1) for c in range(2)]
            if pr == 0:
                off = tt * T16 + (0 if half else db * 2048)
                ops.append((f's_add_u32 s63, s{54 if half else 55}, {off}', 1))
            ops += [(f'v_permlane16_swap_b32 v{P}, v{P+2}', 2), (f'v_permlane16_swap_b32 v{P+1}, v{P+3}', 2)]
            if OPT['outst']:
              ops.append((f'buffer_store_dwordx4 v[{P}:{P+3}], v{vOUT}, s[{sgWS}:{sgWS+3}], s63 offen offset:{pr*1024} sc1', 2))
    return ops


sHXO, sHXP, sPFO, sPFP, sT = 52, 53, 7, 38, 39
vPF, vPV, vZ, vIL = 2, 3, 15, 12


def pair_setup(A):
    A(f'''s_lshl_b32 s40, s{sG}, 4
    s_add_u32 s40, s40, s{sJ}
    s_lshl_b32 s40, s40, 2
    s_add_u32 s40, s40, s{sW}
    s_xor_b32 s43, s40, 4
    s_mul_i32 s{sHXO}, s40, 18432
    s_add_u32 s{sHXO}, s{sHXO}, {WS_HX}
    s_mul_i32 s{sHXP}, s43, 18432
    s_add_u32 s{sHXP}, s{sHXP}, {WS_HX}
    s_lshl_b32 s{sPFO}, s40, {FSC[1]}
    s_add_u32 s{sPFO}, s{sPFO}, {WS_PF}
    s_lshl_b32 s{sPFP}, s43, {FSC[1]}
    s_add_u32 s{sPFP}, s{sPFP}, {WS_PF}
    v_mov_b32 v{vZ}, 0''')


sS3O, sS3C, sTB = 3, 4, 5
vT1, vT2, vFA, vFV = 4, 5, 6, 7


def tail_setup(A):
    flag_base(A, sS3O, 2, sW)
    A(f's_lshl_b32 s40, s{sJ}, {FSC[0]}\ns_add_u32 s{sS3O}, s{sS3O}, s40\ns_lshr_b32 s40, s{sJ}, 2')
    flag_base(A, sS3C, 2, 40)
    A(f'''s_mul_i32 s{sTB}, s{sG}, {64*T16}
    s_lshr_b32 s40, s{sJ}, 1
    s_mul_i32 s40, s40, {T16}
    s_add_u32 s{sTB}, s{sTB}, s40
    s_and_b32 s40, s{sJ}, 1
    s_lshl_b32 s40, s40, 7
    s_add_u32 s{sTB}, s{sTB}, s40
    s_mul_i32 s40, s{sW}, {16*T16}
    s_add_u32 s{sTB}, s{sTB}, s40
    s_add_u32 s{sTB}, s{sTB}, {WS_PART}
    v_and_b32 v{vFA}, 15, v{vLANE}
    v_lshrrev_b32 v8, 5, v{vLANE}
    v_mul_u32_u24 v8, {8*T16}, v8
    v_bfe_u32 v9, v{vLANE}, 4, 1
    v_mul_u32_u24 v10, 24, v9
    v_and_b32 v11, 31, v{vLANE}
    v_add_u32 v10, v10, v11
    v_lshl_add_u32 v{vT1}, v10, 8, v8
    v_mul_u32_u24 v8, {8*T16}, v9
    v_bfe_u32 v9, v{vLANE}, 3, 1
    v_lshlrev_b32 v9, 5, v9
    v_add3_u32 v9, v9, v{vFA}, 16
    v_lshl_add_u32 v{vT2}, v9, 8, v8
    v_lshlrev_b32 v{vFA}, {FSC[0]}, v{vFA}''')


def hx_store_ops(p):
    n = 4 if p < 4 else 2
    ops = [(f's_add_u32 s{sT}, s{sHXO}, {4096*p}', 1)]
    for q in range(n):
        r = HB + 16 * p + 4 * q
        ops.append((f'buffer_store_dwordx4 v[{r}:{r+3}], v{vL16}, s[{sgWS}:{sgWS+3}], s{sT} offen offset:{1024*q} sc1', 2))
    return ops


def hx_load_ops(p):
    n = 4 if p < 4 else 2
    ops = [f's_add_u32 s43, s{sHXP}, {4096*p}']
    for q in range(n):
        r = aPH + 16 * p + 4 * q
        ops.append(f'buffer_load_dwordx4 a[{r}:{r+3}], v{vL16}, s[{sgWS}:{sgWS+3}], s43 offen offset:{1024*q} sc1')
    return ops


class Ring:
    def __init__(self, A):
        self.A = A
        self.st = steps()
        self.marks = {}

    def issue(self, n):
        for x in dma_ops(self.st, n):
            self.A(x)
        if n % 4 == 3 or n == len(self.st) - 1:
            self.marks[n // 4] = self.A.mark()


def ph_c_prefill(A, R, s0, s1):
    for n in range(int(4 * s0), int(4 * s1)):
        R.issue(n)


def ph_c_xload(A):
    A(f'''s_lshl_b32 s40, s{sG}, 3
    s_lshl_b32 s41, s{sW}, 1
    s_add_u32 s40, s40, s41
    s_mul_i32 s41, s40, {T16}
    s_add_u32 s41, s41, {WS_H2}
    s_add_u32 s42, s41, {T16}''')
    ops = []
    for k in range(18):
        for tt in range(2):
            r = aX + 72 * tt + 4 * k
            ops.append(f'buffer_load_dwordx4 a[{r}:{r+3}], v{vL16}, s[{sgWS}:{sgWS+3}], s{41+tt} offen offset:{1024*(k%4)} sc1')
        if k % 4 == 3:
            ops.append('s_add_u32 s41, s41, 4096')
            ops.append('s_add_u32 s42, s42, 4096')
    return ops


def ph_c_stream(A, R, prefilled, xops):
    st = R.st
    NST = len(st)
    NM = 8 * NST
    NF = 4 * NST
    info = [mf_info(st, mu) for mu in range(NM)]
    NB, LA, WS_ = OPT['NB'], OPT['LA'], OPT['wstep']
    global aFR
    aFR = 256 - 4 * NB

    def reads(phi):
        if not OPT['reads'] and phi >= 8:
            return [None, None]
        acc, b, first, va, offs = info[2 * phi]
        f = aFR + 4 * (phi % NB)
        return [f'ds_read_b64_tr_b16 a[{f+2*rd}:{f+2*rd+1}], v{va} offset:{offs[rd]}' for rd in range(2)]

    BP = OPT['bper']

    def boundary(slot):
        A.wait_vm_mark(R.marks[min(slot + BP - 1, (NST - 1) // 4)])
        if OPT['barrier']:
            A('s_barrier')

    def deadline(ins, mu0):
        d, u = set(ins.defs), set(ins.uses)
        for mu in range(mu0, NM):
            acc, b, first, va, offs = info[mu]
            if d & set(rl(b[0], b[1], 4)):
                return mu
            if first and u & set(rl(acc[0], acc[1], 4)):
                return mu
        return NM + 40

    xq = list(xops)

    def xissue():
        while xq[0].startswith('s_'):
            A(xq.pop(0))
        A(xq.pop(0))
        while xq and xq[0].startswith('s_'):
            A(xq.pop(0))
    for k in range(OPT['xburst']):
        xissue()
    boundary(0)
    stamp(A, 'slot0 landed')
    for phi in range(LA):
        for x in reads(phi):
            A(x)
    pairs = OPT['pairs'] and OPT['fill']
    events = []
    hxq = []
    got = set()

    def ev_publish(val, mark):
        def f():
            A.wait_vm_mark(mark())
            flag_value(A, vPV, val)
            A('s_mov_b64 exec, 1')
            A(f'buffer_store_dword v{vPV}, v{vZ}, s[{sgWS}:{sgWS+3}], s{sPFO} offen sc1')
            A('s_mov_b64 exec, -1')
        return f

    def ev_flagload():
        A(f'buffer_load_dword v{vPF}, v{vZ}, s[{sgWS}:{sgWS+3}], s{sPFP} offen sc1')

    def ev_check(val, blocks):
        def f():
            slow, back, again = A.label('L_slow'), A.label('L_back'), A.label('L_again')
            sn = [f's_sub_u32 s40, s40, s{sTAG}', 's_cmp_lt_u32 s40, 8', 's_cselect_b32 s40, s40, 0'] if TAGGED[0] else []
            A(f'v_readfirstlane_b32 s40, v{vPF}')
            for x in sn:
                A(x)
            A(f's_cmp_ge_u32 s40, {val}')
            if Stamps.on:
                A(f's_cselect_b32 s88, 1, 0\nv_writelane_b32 v14, s88, {50+val}')
            A(f's_cbranch_scc0 {slow}')
            A(back + ':')
            A.tail += [slow + ':', 's_mov_b32 s44, 0', again + ':'] + backoff() + [
                       f'buffer_load_dword v{vPF}, v{vZ}, s[{sgWS}:{sgWS+3}], s{sPFP} offen sc1',
                       's_add_u32 s44, s44, 1', f's_cmp_gt_u32 s44, {SPIN_MAX}', f's_cbranch_scc1 {back}',
                       's_waitcnt vmcnt(0)', f'v_readfirstlane_b32 s40, v{vPF}', 's_nop 1'] + sn + [f's_cmp_ge_u32 s40, {val}',
                       f's_cbranch_scc0 {again}', f's_branch {back}']
            for p in blocks:
                if OPT['hxld']:
                    hxq.extend(hx_load_ops(p))
        return f
    def ev_pub3(val, mark):
        def f():
            A.wait_vm_mark(mark())
            flag_value(A, vPV, val)
            A('s_mov_b64 exec, 1')
            A(f'buffer_store_dword v{vPV}, v{vZ}, s[{sgWS}:{sgWS+3}], s{sS3O} offen sc1')
            A('s_mov_b64 exec, -1')
        f.optional = True
        return f

    def ev_flag3():
        assert not set(slowq) & set(FS.final_setup_ops()), 'final set-up not finished'
        A(f'buffer_load_dword v9, v8, s[{sgWS}:{sgWS+3}], s{sS3C} offen sc1')

    def ev_early():
        for x in flag_norm(9):
            A(x)
        A('v_cmp_gt_u32 vcc, 1, v9')
        A('s_cmp_eq_u64 vcc, 0')
        A(f's_cselect_b32 s{FS.sVALID}, 1, 0')
        A(f's_cselect_b32 s6, s98, {WS_XH}')
        if Stamps.on:
            A(f'v_writelane_b32 v14, s{FS.sVALID}, 41')
        busy = set(rl('v', FS.P0, 32))
        assert not any(busy & set(Ins(x).uses) for x, c, d in fill if c), 'stage-1 loads would overwrite live accumulators'
        slowq.extend(FS.parts_ops(52, FS.P0, 6))
    slowq = []
    if pairs and OPT['fin']:
        n0, n1, n2, n3 = OPT['fin']
        def ev_setup():
            assert all(st[q]['kind'] == 'dh' for q in pend if q < NST) and not any(isinstance(x, str) and 'v236' in x for x in misc)
            slowq.extend(FS.final_setup_ops())
        events.append([8 * n0, ev_setup])
        def ev_sides():
            busy = set(rl('v', FS.X0, 36))
            assert not any(busy & set(Ins(x).uses) for x, c, d in fill if c), 'side loads would overwrite live accumulators'
            slowq.extend(FS.side_ops(52, FS.X0) + FS.side_ops(53, FS.X1) + FS.side_ops(58, FS.X2))
        events.append([8 * n1, ev_sides])
        events.append([8 * n2 + 2, ev_flag3])
        events.append([8 * n3 + 3, ev_early])
    for (n_, tgt) in OPT['itouch']:
        events.append([8 * n_ + 4, (lambda tgt=tgt: [A(x) for x in itouch(f'L_back_step{tgt}', vIL, 'v13')])])
    for (n_, mats, lo, hi) in OPT['pf']:
        events.append([8 * n_ + 6, (lambda mats=mats, lo=lo, hi=hi: [A(x) for x in pf_ops(mats, lo, hi)])])
    if pairs and OPT['hxpub']:
        for (val, blocks, nload, ncheck) in OPT['checks']:
            events.append([8 * nload + 2, ev_flagload])
            events.append([8 * ncheck + 3, ev_check(val, blocks)])
    fill = []
    misc = []
    pend = list(range(4 * prefilled, 4 * (NS - 1)))
    credit = 0.0
    forced = 0
    LB, LAT = OPT['LB'], OPT['LAT']
    nr = 2 * LA
    open_frag = 16 * BP
    next_ld = 0
    for mu in range(NM):
        n, e8 = divmod(mu, 8)
        e = st[n]
        phi, tt = divmod(mu, 2)
        acc, b, first, va, offs = info[mu]
        f = aFR + 4 * (phi % NB)
        if e8 == 0:
            A(f'L_back_step{n}:')
        if e8 == 0 and n in (36, 72, 108, 144, 162, 180, 198, 216, 234):
            stamp(A, f'step {n}')
        if e8 == 4 and n > 0 and OPT['fill']:
            pe = st[n - 1]
            new = []
            if pe['kind'] == 'u' and pe['k'] == 17 or pe['kind'] == 'gh' and pe['k'] == 17:
                new = act_ops(pe['p'])
            elif pe['kind'] in ('dn', 'dh') and pe['last']:
                new = out_ops(pe['p'], pe['kind'] == 'dh')
                if pairs and OPT['pub3'] and pe['p'] in (1, 2):
                    new.append((('pub3', pe['p']), 0))
            rush = NM + 40
            if new and pairs and pe['kind'] == 'dn':
                rush = 8 * OPT['outrush'][pe['p']]
            if new and pairs and pe['kind'] in ('u', 'gh'):
                p = pe['p']
                if OPT['hxst']:
                    new = new + hx_store_ops(p)
                rush = 8 * OPT['rush'][p]
                if p >= 1 and OPT['hxpub']:
                    new.append((('pub', p), 0))
            for x, c in new:
                fill.append([x, c, min(rush, deadline(Ins(x), mu + 1)) if c else rush])
            for q in range(len(fill) - 2, -1, -1):
                fill[q][2] = min(fill[q][2], fill[q + 1][2])
        def emit_fill():
            x, c, d = fill.pop(0)
            if isinstance(x, tuple):
                mk = A.mark()
                events.append([mu + OPT['pubdelay' if x[0] == 'pub' else 'pub3delay'], (ev_publish if x[0] == 'pub' else ev_pub3)(x[1], lambda: mk)])
            else:
                A(x)
            return c
        while fill and fill[0][2] <= mu:
            emit_fill(); forced += 1
        if pairs and OPT['hxld'] and OPT['hxpub'] and b[0] == 'a' and b[1] >= aPH:
            assert b[1] in got, ('partner fragment not loaded yet', mu // 8, b)
        cin = '0' if first else f'{acc[0]}[{acc[1]}:{acc[1]+3}]'
        A(f'v_mfma_f32_16x16x32_bf16 {acc[0]}[{acc[1]}:{acc[1]+3}], a[{f}:{f+3}], {b[0]}[{b[1]}:{b[1]+3}], {cin}')
        cap = 2
        pb = phi + LB
        if tt == 0 and pb < NF and pb % (16 * BP) == 0:
            slot = pb // 16
            boundary(slot); cap -= 2
            open_frag = min(NF, 16 * (slot + BP))
            for q in range(slot - 1 - BP + NS, slot - 1 + NS):
                pend += [4 * q + z for z in range(4)]
        wait_next = tt == 1 and (phi + 1) % WS_ == 0 and phi + 1 < NF
        if wait_next:
            cap -= 1

        def rd_ok():
            return nr < 2 * NF and nr // 2 < open_frag and mu >= 2 * (nr // 2 - NB) + 1

        def rd_emit():
            nonlocal nr
            x = reads(nr // 2)[nr % 2]
            if x:
                A(x)
            nr += 1
        while nr < 2 * NF and mu >= 2 * (WS_ * ((nr // 2) // WS_)) - 1 - LAT:
            assert rd_ok(), (mu, nr)
            rd_emit(); cap -= 1
        for ev in [ev for ev in events if ev[0] <= mu]:
            events.remove(ev)
            ev[1](); cap -= 2
        if not misc and pend and (not xq or len(pend) > OPT['dlag']) and (e8 == 0 or (e8 in (3, 5) and len(pend) > 4 * BP)):
            nd = pend.pop(0)
            misc = dma_ops(st, nd)
            if nd % 4 == 3 or nd == NST - 1:
                misc.append(('mark', nd // 4))

        def marks():
            while misc and isinstance(misc[0], tuple):
                R.marks[misc.pop(0)[1]] = A.mark()
        marks()
        if fill:
            credit += max((q + 1) / max(1, d - mu) for q, (x, c, d) in enumerate(fill))
        else:
            credit = 0.0
        paced = mu >= next_ld
        while True:
            big = small = None
            if paced and xq:
                big = 'x'
            elif paced and hxq and not hxq[0].startswith('s_'):
                big = 'h'
            elif paced and slowq and slowq[0].startswith('buffer'):
                big = 's'
            elif misc and misc[0].startswith('buffer'):
                big = 'm'
            elif fill and fill[0][1] == 2:
                big = 'f'
            if hxq and hxq[0].startswith('s_'):
                small = 'h'
            elif misc and not misc[0].startswith('buffer'):
                small = 'm'
            elif slowq and not slowq[0].startswith('buffer'):
                small = 's'
            elif fill and fill[0][1] < 2:
                small = 'f'
            if small == 'h':
                A(hxq.pop(0)); cap -= 1
                continue
            behind = nr <= 2 * (phi + LA) + tt
            late = big in ('x', 'h', 's') and mu >= next_ld + 2 or big == 'm' and e8 >= 3
            lag = 2 * (phi + LA) + tt + 1 - nr
            if big and cap == 1 and lag <= 0 and OPT['bigov']:
                pick = big
                cap -= 2
            elif big and ((cap >= 2 and (lag <= OPT['lag'] or not rd_ok())) or late):
                pick = big
                cap -= 2
            elif cap <= 0:
                break
            elif rd_ok() and (behind or (lag > -OPT['lead'] and (not small or big))):
                rd_emit(); cap -= 1
                continue
            elif small:
                pick = small
                cap -= 1
            else:
                break
            if pick == 'x':
                xissue(); next_ld = mu + OPT['xpace']; paced = False
            elif pick == 'h':
                if not hxq[0].startswith('s_'):
                    got.add(Ins(hxq[0]).defs[0][1]); next_ld = mu + OPT['xpace']; paced = False
                A(hxq.pop(0))
            elif pick == 's':
                if slowq[0].startswith('buffer'):
                    next_ld = mu + 4; paced = False
                A(slowq.pop(0))
            elif pick == 'm':
                A(misc.pop(0)); marks()
            else:
                if emit_fill() == 0:
                    cap += 1
                credit = max(0.0, credit - 1.0)
        while fill and credit >= 1.0 and (fill[0][1] < 2 or credit >= 2.0):
            emit_fill()
            credit -= 1.0
        if wait_next:
            A.wait_regs([r for q in range(WS_) for r in rl('a', aFR + 4 * ((phi + 1 + q) % NB), 4)])
    stamp(A, 'mfma done')
    last = st[-1]
    for x in slowq:
        A(x)
    assert not hxq and all(getattr(ev[1], 'optional', False) for ev in events)
    for x, c, d in fill:
        A(x)
    for x, c in out_ops(last['p'], last['kind'] == 'dh'):
        A(x)
    print('phase C: forced', forced, 'tail', len(fill), file=sys.stderr)


def ph_c(A):
    A.junk = ('v', 13)
    srd(A, sgWS, sWS, WS_SIZE)
    ph_c_setup(A)
    R = Ring(A)
    ph_c_prefill(A, R, 0, OPT['prefill'])
    xops = ph_c_xload(A)
    if OPT['pairs']:
        pair_setup(A)
        tail_setup(A)
    stamp(A, 'prologue')
    ph_c_stream(A, R, OPT['prefill'], xops)
```

```python
import re
from common import *

PT = [(0, 1, 2, 3), (4, 13, 10, 11), (12, 21, 14, 23), (20, 24, 22, 22)]
sR1, sU1, sR2, sU2 = 3, 4, 5, 6
LDS2 = 40960
sEPN = 28


class Remap:
    SM = {n: 53 + n - 40 for n in range(40, 51)}
    SM.update({51: 96, 52: 97, 53: 98, 54: 99, 55: 100})

    def __init__(self, A):
        self.A = A

    def _v(self, n):
        return n + 128 if n >= 2 else n

    def _s(self, n):
        return self.SM.get(n, n)

    def tr(self, t):
        if TAGGED[0]:
            pass
        t = re.sub(r'\bv\[(\d+):(\d+)\]', lambda m: f'v[{self._v(int(m.group(1)))}:{self._v(int(m.group(2)))}]', t)
        t = re.sub(r'\bv(\d+)\b', lambda m: f'v{self._v(int(m.group(1)))}', t)
        t = re.sub(r'\bs(\d+)\b', lambda m: f's{self._s(int(m.group(1)))}', t)
        return t

    def __call__(self, t):
        self.A(self.tr(t))

    def __getattr__(self, k):
        return getattr(self.A, k)


def unit_flag(A, base, lines):
    TAGFN[0]()
    A(lines)
    A(f's_lshl_b32 s50, s50, 6\ns_add_u32 s50, s50, {WS_F0 + (base << 6)}')


def t_xhat(A, sU, lds0):
    A.comment('---- prep: xhat')
    X, T = 16, 56
    A(f'''v_lshrrev_b32 v4, 3, v{vLANE}
    v_and_b32 v5, 7, v{vLANE}
    v_mul_u32_u24 v2, 1152, v4
    v_lshl_add_u32 v2, v5, 4, v2
    s_mul_i32 s41, s{sU}, {8*1152}''')
    srd(A, 8, sX, S * D * 2)
    for n in range(9):
        A(f'buffer_load_dwordx4 v[{X+4*n}:{X+4*n+3}], v2, s[8:11], s41 offen offset:{128*n}{NT[0]}')
    A(f'''s_mul_i32 s42, s{sW}, 9216
    s_add_u32 s42, s42, {lds0}
    v_xor_b32 v6, v4, v5
    v_lshlrev_b32 v6, 4, v6
    v_add_u32 v6, s42, v6
    v_lshl_add_u32 v7, v4, 7, v6
    v_lshl_add_u32 v6, v5, 7, v6
    v_lshlrev_b32 v3, 9, v4
    v_lshl_add_u32 v3, v5, 4, v3
    s_lshr_b32 s43, s{sU}, 2
    s_mul_i32 s43, s43, 36864
    s_and_b32 s44, s{sU}, 3
    s_lshl_b32 s44, s44, 7
    s_add_u32 s43, s43, s44
    s_add_u32 s43, s43, {WS_XH}
    s_lshr_b32 s46, s{sU}, 1
    s_mul_i32 s46, s46, {T16}
    s_and_b32 s47, s{sU}, 1
    s_lshl_b32 s47, s47, 7
    s_add_u32 s46, s46, s47
    s_add_u32 s46, s46, {WS_XT}
    v_lshlrev_b32 v15, 8, v4
    v_lshl_add_u32 v15, v5, 4, v15''')
    RAW = 132
    for n in range(9):
        for d in range(4):
            unpack(A, T + 8 * n + 2 * d, T + 8 * n + 2 * d + 1, X + 4 * n + d)
        A(f'ds_write_b128 v6, v[{X+4*n}:{X+4*n+3}] offset:{1024*n}')
    for n in range(9):
        A(f'ds_read_b128 v[{RAW+4*n}:{RAW+4*n+3}], v7 offset:{1024*n}')
    a, q, b = 8, 10, 128

    def sum8(r):
        A(f'v_add_f32_dpp v{r}, v{r}, v{r} quad_perm:[1,0,3,2] row_mask:0xf bank_mask:0xf')
        A(f'v_add_f32_dpp v{r}, v{r}, v{r} quad_perm:[2,3,0,1] row_mask:0xf bank_mask:0xf')
        A(f'v_add_f32_dpp v{r}, v{r}, v{r} row_half_mirror row_mask:0xf bank_mask:0xf')
    A(f'v_pk_add_f32 v[{a}:{a+1}], v[{T}:{T+1}], v[{T+2}:{T+3}]')
    A(f'v_pk_add_f32 v[{q}:{q+1}], v[{T+4}:{T+5}], v[{T+6}:{T+7}]')
    for u in range(4, 36):
        r = a if u & 1 else q
        A(f'v_pk_add_f32 v[{r}:{r+1}], v[{r}:{r+1}], v[{T+2*u}:{T+2*u+1}]')
    A(f'v_pk_add_f32 v[{a}:{a+1}], v[{a}:{a+1}], v[{q}:{q+1}]')
    A(f'v_add_f32 v{a}, v{a}, v{a+1}')
    sum8(a)
    A(f's_mov_b32 s45, {fbits(1.0/576)}\nv_mul_f32 v{a}, s45, v{a}')
    for u in range(36):
        t = T + 2 * u
        A(f'v_pk_add_f32 v[{t}:{t+1}], v[{t}:{t+1}], v[{a}:{a+1}] op_sel_hi:[1,0] neg_lo:[0,1] neg_hi:[0,1]')
    A(f'v_pk_mul_f32 v[{q}:{q+1}], v[{T}:{T+1}], v[{T}:{T+1}]')
    A(f'v_pk_mul_f32 v[{b}:{b+1}], v[{T+2}:{T+3}], v[{T+2}:{T+3}]')
    for u in range(2, 36):
        r = b if u & 1 else q
        t = T + 2 * u
        A(f'v_pk_fma_f32 v[{r}:{r+1}], v[{t}:{t+1}], v[{t}:{t+1}], v[{r}:{r+1}]')
    A(f'v_pk_add_f32 v[{q}:{q+1}], v[{q}:{q+1}], v[{b}:{b+1}]')
    A(f'v_add_f32 v{q}, v{q}, v{q+1}')
    sum8(q)
    A(f'''v_mov_b32 v{q+1}, {fbits(1e-5)}
    v_fmac_f32 v{q+1}, s45, v{q}
    v_rsq_f32 v{a}, v{q+1}
    s_mov_b32 s48, 0xffff
    s_mov_b32 s47, 0x7fffffff''')
    for n in range(9):
        for d in range(4):
            t = T + 8 * n + 2 * d
            A(f'v_pk_mul_f32 v[{t}:{t+1}], v[{t}:{t+1}], v[{a}:{a+1}] op_sel_hi:[1,0]')
        ts = [T + 8 * n + 2 * d for d in range(4)]
        for t in ts:
            A(f'v_cvt_pk_bf16_f32 v{t}, v{t}, 0')
        for d, t in enumerate(ts):
            A(f'v_and_b32 v{X+4*n+d}, s47, v{t+1}')
        for d, t in enumerate(ts):
            A(f'v_add_u32 v{X+4*n+d}, 0x8000, v{X+4*n+d}')
        for d, t in enumerate(ts):
            A(f'v_sub_u32 v{X+4*n+d}, v{X+4*n+d}, v{t} clamp')
        for d, t in enumerate(ts):
            A(f'v_bfi_b32 v{X+4*n+d}, s47, v{X+4*n+d}, v{t+1}')
        for d, t in enumerate(ts):
            A(f'v_bfi_b32 v{X+4*n+d}, s48, v{t}, v{X+4*n+d}')
        A(f'ds_write_b128 v6, v[{X+4*n}:{X+4*n+3}] offset:{1024*n}')
    for n in range(9):
        A(f'ds_read_b128 v[{X+4*n}:{X+4*n+3}], v7 offset:{1024*n}')
    for n in range(9):
        A(f'buffer_store_dwordx4 v[{X+4*n}:{X+4*n+3}], v3, s[16:19], s43 offen sc1')
        if n < 8:
            A('s_add_u32 s43, s43, 4096')
    unit_flag(A, F0_X, f's_mov_b32 s50, s{sU}')
    publish(A, 16, 50, 8)
    for n in range(9):
        A(f'buffer_store_dwordx4 v[{RAW+4*n}:{RAW+4*n+3}], v15, s[16:19], s46 offen offset:{2048*(n&1)} sc1')
        if n & 1:
            A('s_add_u32 s46, s46, 4096')
    A(f's_add_u32 s50, s50, {(F0_T - F0_X) << 6}')
    publish(A, 16, 50, 8)


def t_wq(A, sU, lds0):
    A.comment('---- prep: qkv weight tiles')
    A(f'''v_mul_u32_u24 v4, 69, v{vLANE}
    v_lshrrev_b32 v4, 10, v4
    v_mul_u32_u24 v5, 15, v4
    v_sub_u32 v5, v{vLANE}, v5
    v_mul_u32_u24 v6, 13, v5
    v_lshrrev_b32 v6, 6, v6
    v_mul_u32_u24 v7, 5, v6
    v_sub_u32 v7, v5, v7
    v_mul_u32_u24 v4, 3456, v4
    v_mul_u32_u24 v6, 1152, v6
    v_add_u32 v4, v4, v6
    v_lshl_add_u32 v2, v7, 4, v4
    s_lshr_b32 s40, s{sU}, 4
    s_and_b32 s41, s{sU}, 15
    s_mul_i32 s42, s41, 72
    s_and_b32 s42, s42, 0xfffffff0
    s_mul_i32 s43, s40, {16*3456}
    s_add_u32 s42, s42, s43
    s_mul_i32 s44, s{sW}, 9216
    s_add_u32 s44, s44, {lds0}
    s_mov_b32 exec_hi, 0x0fffffff''')
    srd(A, 12, sWQKV, 576 * 3456)
    for i in range(4):
        A(f's_add_u32 m0, s44, {960*i}')
        A(f's_add_u32 s45, s42, {4*3456*i}')
        A(f'buffer_load_dwordx4 v2, s[12:15], s45 offen{NT[2]} lds')
    A('s_mov_b32 exec_hi, -1')
    A(f'''v_lshrrev_b32 v4, 5, v{vLANE}
    v_bfe_u32 v5, v{vLANE}, 2, 2
    v_and_b32 v6, 3, v{vLANE}
    v_bfe_u32 v7, v{vLANE}, 4, 1
    v_lshlrev_b32 v7, 1, v7
    v_lshrrev_b32 v9, 1, v6
    v_add_u32 v7, v7, v9
    v_lshlrev_b32 v7, 3, v7
    v_and_b32 v8, 1, v6
    v_lshlrev_b32 v8, 2, v8
    s_and_b32 s48, s41, 1
    v_add_u32 v8, s48, v8
    v_lshl_add_u32 v9, v4, 3, v5
    v_mul_u32_u24 v9, 240, v9
    v_add_u32 v9, s44, v9''')
    packs = [t[0] | t[1] << 8 | t[2] << 16 | t[3] << 24 for t in PT]
    for T in range(4):
        A(f'''s_mov_b32 s48, {packs[T]}
        v_bfe_u32 v10, s48, v7, 8
        v_add_u32 v10, v10, v8
        v_lshl_add_u32 v{32+T}, v10, 3, v9''')
    A(f'''v_lshlrev_b32 v3, 4, v{vLANE}
    v_and_b32 v10, 31, v{vLANE}
    v_mul_u32_u24 v11, 24, v4
    v_add_u32 v11, v11, v10
    v_lshlrev_b32 v11, 4, v11
    s_mul_i32 s46, s41, {WQ_J}
    s_mul_i32 s47, s40, 3840
    s_add_u32 s46, s46, s47
    s_add_u32 s46, s46, {WS_WQ}''')
    skip = A.label('L_npf')
    A(f's_lshr_b32 s48, s2, 3\ns_lshl_b32 s48, s48, 1\ns_add_u32 s48, s48, s{sW}\ns_sub_u32 s48, s48, 1\ns_cmp_gt_u32 s48, 11\ns_cbranch_scc1 {skip}\ns_lshl_b32 s48, s48, 13')
    code_prefetch(A, CODE[0], f'{CODE[1]}-{CODE[0]}-4', 36, 13, 50, 1, 48, back=True)
    A(skip + ':')
    A('s_waitcnt vmcnt(0)')
    for T in range(4):
        for rd in range(2):
            A(f'ds_read_b64_tr_b16 v[{16+4*T+2*rd}:{17+4*T+2*rd}], v{32+T} offset:{960*rd}')
    for T in range(3):
        A(f'buffer_store_dwordx4 v[{16+4*T}:{19+4*T}], v3, s[16:19], s46 offen offset:{1024*T} sc1')
    A('s_mov_b32 exec_lo, 0x00ffffff\ns_mov_b32 exec_hi, 0x00ffffff')
    A('buffer_store_dwordx4 v[28:31], v11, s[16:19], s46 offen offset:3072 sc1')
    A('s_mov_b64 exec, -1')
    unit_flag(A, F0_Q, 's_lshl_b32 s50, s41, 6\ns_add_u32 s50, s50, s40')
    publish(A, 16, 50, 8)


def t_wo(A, sU, lds0):
    A.comment('---- prep: wo tiles')
    A(f'''s_lshr_b32 s41, s{sU}, 3
    s_and_b32 s42, s{sU}, 7
    s_mul_i32 s43, s42, 144
    s_mul_i32 s44, s{sW}, 9216
    s_add_u32 s44, s44, {lds0}
    v_lshrrev_b32 v4, 3, v{vLANE}
    v_and_b32 v5, 7, v{vLANE}
    v_lshlrev_b32 v5, 4, v5
    v_mul_u32_u24 v6, 1152, v4
    v_add_u32 v6, v6, v5
    v_lshlrev_b32 v9, 2, v4
    s_mov_b32 s45, 0x00002211
    v_lshrrev_b32 v9, v9, s45
    v_and_b32 v9, 15, v9
    v_lshl_add_u32 v7, v9, 4, v4
    v_mul_u32_u24 v8, 1152, v7
    v_add_u32 v8, v8, v5
    s_lshl_b32 s45, s41, 2''')
    srd(A, 20, sWO, 576 * 1152)
    for q in range(4):
        A(f'''s_add_u32 s47, s45, {q}
        s_mul_i32 s48, s47, 205
        s_lshr_b32 s48, s48, 10
        s_mul_i32 s49, s48, 5
        s_sub_u32 s49, s47, s49
        s_lshr_b32 s50, s49, 1
        s_mul_i32 s50, s50, 18
        s_and_b32 s51, s49, 1
        s_lshl_b32 s51, s51, 3
        s_add_u32 s50, s50, s51
        s_mul_i32 s48, s48, 36
        s_cmp_eq_u32 s49, 4
        s_cselect_b32 s50, 0, s50
        s_cselect_b64 vcc, -1, 0
        s_add_u32 s50, s50, s48
        s_mul_i32 s50, s50, 1152
        s_add_u32 s{52+q}, s50, s43
        v_cndmask_b32 v{20+q}, v6, v8, vcc
        s_add_u32 m0, s44, {1024*q}
        s_nop 0
        buffer_load_dwordx4 v{20+q}, s[20:23], s{52+q} offen{NT[3]} lds''')
    A(f'''v_and_b32 v24, 7, v{vLANE}
    v_lshlrev_b32 v24, 5, v24
    v_bfe_u32 v25, v{vLANE}, 3, 2''')
    for q in range(4):
        A(f'v_add_u32 v{20+q}, s{52+q}, v{20+q}')
    for q in range(4):
        A(f'ds_bpermute_b32 v{16+q}, v24, v{20+q}')
    A(f'''v_cmp_eq_u32 vcc, 1, v25
    v_cndmask_b32 v16, v16, v17, vcc
    v_cmp_eq_u32 vcc, 2, v25
    v_cndmask_b32 v16, v16, v18, vcc
    v_cmp_eq_u32 vcc, 3, v25
    v_cndmask_b32 v16, v16, v19, vcc
    s_add_u32 m0, s44, 4096
    s_mov_b32 exec_hi, 0
    buffer_load_dwordx4 v16, s[20:23], 0 offen offset:128{NT[3]} lds
    s_mov_b32 exec_hi, -1
    v_lshrrev_b32 v4, 4, v{vLANE}
    v_bfe_u32 v5, v{vLANE}, 2, 2
    v_lshl_add_u32 v4, v4, 3, v5
    v_and_b32 v5, 3, v{vLANE}
    v_lshlrev_b32 v6, 7, v4
    v_lshl_add_u32 v6, v5, 3, v6
    v_add_u32 v6, s44, v6
    v_and_b32 v5, 1, v5
    v_lshlrev_b32 v7, 4, v4
    v_lshl_add_u32 v7, v5, 3, v7
    v_add_u32 v7, s44, v7
    v_lshlrev_b32 v3, 4, v{vLANE}
    s_mul_i32 s46, s42, {WO_C}
    s_mul_i32 s47, s41, 5120
    s_add_u32 s46, s46, s47
    s_add_u32 s46, s46, {WS_WO}
    s_add_u32 s47, s46, 4096''')
    A.wait_all()
    for T in range(4):
        for rd in range(2):
            A(f'ds_read_b64_tr_b16 v[{32+4*T+2*rd}:{33+4*T+2*rd}], v6 offset:{512*rd+32*T}')
    for rd in range(2):
        A(f'ds_read_b64_tr_b16 v[{48+2*rd}:{49+2*rd}], v7 offset:{4096+128+64*rd}')
    for T in range(4):
        A(f'buffer_store_dwordx4 v[{32+4*T}:{35+4*T}], v3, s[16:19], s46 offen offset:{1024*T} sc1')
    A('buffer_store_dwordx4 v[48:51], v3, s[16:19], s47 offen sc1')
    unit_flag(A, F0_O, 's_lshl_b32 s50, s42, 5\ns_add_u32 s50, s50, s41')
    publish(A, 16, 50, 8)


def t_mod(A, sU, lds):
    A.comment('---- prep: modulation')
    C0, W0, AC, TM = 100, 16, 88, 120
    A(f'''v_lshrrev_b32 v2, 3, v{vLANE}
    v_and_b32 v3, 7, v{vLANE}
    s_and_b32 s40, s{sU}, 3
    s_lshr_b32 s44, s{sU}, 2
    s_mul_i32 s41, s40, 144
    v_add_u32 v4, s41, v2
    s_movk_i32 s41, 6912
    v_mul_lo_u32 v5, v4, s41
    v_lshl_add_u32 v5, v3, 4, v5
    v_lshlrev_b32 v6, 1, v4
    s_lshl_b32 s41, s44, 7''')
    srd(A, 12, sC, 1152)
    srd(A, 8, sWMOD, 576 * 6912)
    for i in range(18):
        A(f'buffer_load_ushort v{C0+i}, v6, s[12:15], 0 offen offset:{16*i}')
    for i in range(18):
        A(f's_add_u32 s42, s41, {i*8*6912}')
        A(f'buffer_load_dwordx4 v[{W0+4*i}:{W0+4*i+3}], v5, s[8:11], s42 offen{NT[1]}')
    A(f's_mov_b32 s43, {fbits(-LOG2E)}')
    for h in range(2):
        for f in ('v_lshlrev_b32 v{c}, 16, v{c}', 'v_mul_f32 v{t}, s43, v{c}', 'v_exp_f32 v{t}, v{t}', 'v_add_f32 v{t}, 1.0, v{t}',
                  'v_rcp_f32 v{t}, v{t}', 'v_mul_f32 v{c}, v{c}, v{t}', 'v_cvt_pk_bf16_f32 v{c}, v{c}, v{c}', 'v_and_b32 v{c}, s%d, v{c}' % sMASKHI):
            for i in range(9):
                A(f.format(c=C0 + 9 * h + i, t=TM + i))
    for i in range(18):
        for d in range(4):
            unpack(A, TM + 2 * d, TM + 2 * d + 1, W0 + 4 * i + d)
        sp = C0 + (i & ~1)
        for d in range(4):
            if i == 0:
                A(f'v_pk_mul_f32 v[{AC+2*d}:{AC+2*d+1}], v[{TM+2*d}:{TM+2*d+1}], v[{sp}:{sp+1}] op_sel_hi:[1,0]')
            else:
                m = 'op_sel_hi:[1,0,1]' if i % 2 == 0 else 'op_sel:[0,1,0] op_sel_hi:[1,1,1]'
                A(f'v_pk_fma_f32 v[{AC+2*d}:{AC+2*d+1}], v[{TM+2*d}:{TM+2*d+1}], v[{sp}:{sp+1}], v[{AC+2*d}:{AC+2*d+1}] {m}')
    for d in range(8):
        A(f'v_add_f32_dpp v{AC+d}, v{AC+d}, v{AC+d} row_ror:8 row_mask:0xf bank_mask:0xf')
    for sw in ('16', '32'):
        for d in range(8):
            A(f'v_mov_b32 v{TM+d}, v{AC+d}')
        for d in range(8):
            A(f'v_permlane{sw}_swap_b32 v{AC+d}, v{TM+d}')
        for d in range(8):
            A(f'v_add_f32 v{AC+d}, v{AC+d}, v{TM+d}')
    A(f'''s_mul_i32 s42, s40, 13824
    s_lshl_b32 s43, s44, 8
    s_add_u32 s42, s42, s43
    s_add_u32 s42, s42, {WS_MODP}
    v_lshlrev_b32 v7, 5, v3
    s_mov_b64 exec, 0xff
    buffer_store_dwordx4 v[{AC}:{AC+3}], v7, s[16:19], s42 offen sc1
    buffer_store_dwordx4 v[{AC+4}:{AC+7}], v7, s[16:19], s42 offen offset:16 sc1
    s_mov_b64 exec, -1''')
    TAGFN[0]()
    A(f'''s_cmp_lt_u32 s{sU}, 72
    s_mov_b32 s50, {F0_R - 72}
    s_cmov_b32 s50, {F0_M}
    s_cselect_b32 s42, 0xffff, 1
    s_add_u32 s50, s50, s{sU}
    s_lshl_b32 s50, s50, 6
    s_add_u32 s50, s50, {WS_F0}
    v_lshlrev_b32 v9, 13, v{vLANE}
    s_waitcnt vmcnt(0)''')
    flag_value(A, 8, 1)
    A('''s_mov_b32 exec_lo, s42
    s_mov_b32 exec_hi, 0
    buffer_store_dword v8, v9, s[16:19], s50 offen sc1
    s_mov_b64 exec, -1''')


def combine(A, acc, tmp, one):
    for d in (0, 2):
        A(f'v_pk_add_f32 v[{acc+d}:{acc+d+1}], v[{acc+d}:{acc+d+1}], v[{acc+4+d}:{acc+5+d}]')
        A(f'v_pk_add_f32 v[{acc+8+d}:{acc+9+d}], v[{acc+8+d}:{acc+9+d}], v[{acc+12+d}:{acc+13+d}]')
    for d in (0, 2):
        A(f'v_pk_add_f32 v[{acc+d}:{acc+d+1}], v[{acc+d}:{acc+d+1}], v[{acc+8+d}:{acc+9+d}]')
    for rep in range(2 if one is not None else 1):
        if rep:
            for d in range(4):
                A(f'v_add_f32 v{acc+d}, v{acc+d}, v{one}')
        A(f'v_cvt_pk_bf16_f32 v{tmp}, v{acc}, v{acc+1}\nv_cvt_pk_bf16_f32 v{tmp+1}, v{acc+2}, v{acc+3}')
        unpack(A, acc, acc + 1, tmp)
        unpack(A, acc + 2, acc + 3, tmp + 1)


def prep(A, code_from, code_to):
    CODE[:] = [code_from, code_to]
    if OPT1.get('selfpf', 1):
        code_prefetch(A, code_from, f'{code_to}-{code_from}-4', 2, 13, 50, 1)
    A(code_from + ':')
    A(f'''s_lshl_b32 s40, s{sG}, 4
    s_add_u32 s40, s40, s{sJ}
    s_lshl_b32 s41, s40, 1
    s_add_u32 s41, s41, s{sW}
    s_sub_u32 s41, s41, 2
    s_add_u32 s42, s40, {512 - 216}
    s_cmp_lt_u32 s40, 216
    s_cselect_b32 s43, 2, 1
    s_cselect_b32 s42, s40, s42
    s_mov_b32 s{sR1}, 1
    s_mov_b32 s{sU1}, s41
    s_cmp_eq_u32 s{sW}, 1
    s_cselect_b32 s{sR1}, s43, s{sR1}
    s_cselect_b32 s{sU1}, s42, s{sU1}
    s_cmp_eq_u32 s{sW}, 0
    s_cselect_b32 s{sR1}, 0, s{sR1}
    s_cselect_b32 s{sU1}, s40, s{sU1}
    s_add_u32 s42, s41, 552
    s_sub_u32 s43, s41, 24
    s_cmp_lt_u32 s41, 24
    s_cselect_b32 s{sR2}, 1, 3
    s_cselect_b32 s{sU2}, s42, s43
    s_cmp_lt_u32 s41, 184
    s_cselect_b32 s{sR2}, s{sR2}, 4
    s_cmp_lt_u32 s{sW}, 2
    s_cselect_b32 s{sR2}, 4, s{sR2}''')
    srd(A, 16, sWS, WS_SIZE)
    A(f'v_mov_b32 v250, 0\ns_mov_b32 s48, {WS_EPOCH}')
    A('buffer_load_dword v251, v250, s[16:19], s48 offen sc1')

    def tag():
        A(f'v_readfirstlane_b32 s{sTAG}, v251')
        A(f's_add_u32 s{sEPN}, s{sTAG}, 1\ns_mul_i32 s{sTAG}, s{sEPN}, 0x9e3779b8')
    top, done = A.label('L_ptop'), A.label('L_pdone')
    A.fence()
    A(top + ':')
    st = (list(A.vmq), list(A.lgq), A.vm_issued, A.lg_issued)
    for val, fn in ((0, t_xhat), (2, t_mod), (1, t_wq), (3, t_wo)):
        nxt = A.label('L_tnext')
        A(f's_cmp_lg_u32 s{sR1}, {val}\ns_cbranch_scc1 {nxt}')
        A.vmq, A.lgq, A.vm_issued, A.lg_issued = list(st[0]), list(st[1]), st[2], st[3]
        TAGFN[0] = tag
        fn(A, sU1, 0)
        A.wait_all()
        A(f's_mov_b32 s{sR1}, s{sR2}\ns_mov_b32 s{sU1}, s{sU2}\ns_mov_b32 s{sR2}, 4')
        A.fence()
        A(f's_branch {top}')
        A(nxt + ':')
    A.vmq, A.lgq = [], []
    A('s_waitcnt vmcnt(0)')


TAGFN = [None]
CODE = [None, None]
OPT1 = {}


def gate(A):
    A(f's_cmp_lg_u32 s{sW}, 3')
    ctx = A.begin_skip('s_cbranch_scc1 {}')
    A(f'''s_lshl_b32 s3, s{sG}, 4
    s_sub_u32 s4, s3, 18
    s_cmp_eq_u32 s{sG}, 0
    s_cselect_b32 s4, {(-16) & 0xffffffff}, s4
    s_lshl_b32 s5, s{sJ}, 6
    s_add_u32 s5, s5, {F0_Q - 18}
    v_min_u32 v8, 53, v{vLANE}
    v_add_u32 v9, s3, v8
    v_add_u32 v10, s4, v8
    v_add_u32 v11, s5, v8
    v_cmp_lt_u32 vcc, 15, v8
    v_cndmask_b32 v9, v9, v10, vcc
    v_cmp_lt_u32 vcc, 17, v8
    v_cndmask_b32 v9, v9, v11, vcc
    v_lshlrev_b32 v9, 6, v9
    s_lshl_b32 s3, s{sG}, 7
    s_add_u32 s3, s3, {F0_M}
    v_min_u32 v10, 35, v{vLANE}
    v_add_u32 v10, s3, v10
    v_lshlrev_b32 v10, 6, v10
    s_mov_b32 s3, {WS_F0}
    s_add_u32 s4, s{sTAG}, 1
    s_mov_b32 s5, 0''')
    lab, done = A.label('L_g'), A.label('L_gdone')
    A.fence()
    A(lab + ':')
    A('''buffer_load_dword v11, v9, s[16:19], s3 offen sc1
    buffer_load_dword v12, v10, s[16:19], s3 offen sc1
    buffer_load_dword v15, v10, s[16:19], s3 offen offset:2304 sc1''')
    A(f's_add_u32 s5, s5, 1\ns_cmp_gt_u32 s5, {SPIN_MAX}\ns_cbranch_scc1 {done}')
    A('''v_xor_b32 v11, s4, v11
    v_xor_b32 v12, s4, v12
    v_xor_b32 v15, s4, v15
    v_or3_b32 v11, v11, v12, v15
    v_cmp_ne_u32 vcc, 0, v11''')
    A(f's_cbranch_vccnz {lab}')
    A(done + ':')
    A('s_waitcnt vmcnt(0)')
    A.end_skip(ctx)
    A('s_barrier')
    stamp(A, 'S0')


LATE_A, LATE_B, LATE_V = 252, 253, (15, 12, 11)


def late_loads():
    return [f'buffer_load_dword v{LATE_V[0]}, v{LATE_A}, s[16:19], s98 offen sc1',
            f'buffer_load_dword v{LATE_V[1]}, v{LATE_B}, s[16:19], s98 offen sc1',
            f'buffer_load_dword v{LATE_V[2]}, v{LATE_B}, s[16:19], s97 offen sc1']


def late_begin(A):
    A(f'''s_and_b32 s98, s{sJ}, 7
    s_lshl_b32 s98, s98, 5
    s_add_u32 s98, s98, {F0_O}
    v_add_u32 v{LATE_A}, s98, v{vLANE}
    s_lshl_b32 s98, s{sG}, 4
    s_add_u32 s98, s98, {F0_T - 20}
    v_add_u32 v{LATE_B}, s98, v{vLANE}
    v_cmp_lt_u32 vcc, 19, v{vLANE}
    v_cndmask_b32 v{LATE_A}, v{LATE_A}, v{LATE_B}, vcc
    v_add_u32 v{LATE_B}, {F0_R + 80}, v{vLANE}
    v_cmp_lt_u32 vcc, 35, v{vLANE}
    v_cndmask_b32 v{LATE_A}, v{LATE_A}, v{LATE_B}, vcc
    v_lshlrev_b32 v{LATE_A}, 6, v{LATE_A}
    v_add_u32 v{LATE_B}, {F0_R}, v{vLANE}
    v_lshlrev_b32 v{LATE_B}, 6, v{LATE_B}
    s_mov_b32 s98, {WS_F0}
    s_mov_b32 s97, {WS_F0 + (52 << 6)}''')
    for x in late_loads():
        A(x)


def late_end(A):
    ok, slow, again = A.label('L_back_lt'), A.label('L_ltslow'), A.label('L_ltagain')
    a, b, c = LATE_V
    chk = [f's_add_u32 s99, s{sTAG}, 1', f'v_xor_b32 v{a}, s99, v{a}', f'v_xor_b32 v{b}, s99, v{b}', f'v_xor_b32 v{c}, s99, v{c}',
           f'v_or3_b32 v{a}, v{a}, v{b}, v{c}', f'v_cmp_ne_u32 vcc, 0, v{a}']
    for x in chk:
        A(x)
    A(f's_cbranch_vccnz {slow}')
    A(ok + ':')
    A.tail += [slow + ':', 's_mov_b32 s100, 0', again + ':'] + late_loads() + \
        ['s_add_u32 s100, s100, 1', f's_cmp_gt_u32 s100, {SPIN_MAX}', f's_cbranch_scc1 {ok}', 's_waitcnt vmcnt(0)'] + chk + \
        ['s_nop 1', f's_cbranch_vccnz {again}', f's_branch {ok}']


def epoch_update(A):
    A(f's_or_b32 s40, s{sG}, s{sJ}\ns_xor_b32 s41, s{sW}, 1\ns_or_b32 s40, s40, s41\ns_cmp_lg_u32 s40, 0')
    ctx = A.begin_skip('s_cbranch_scc1 {}')
    A(f'''v_lshrrev_b32 v2, 4, v{vLANE}
    v_lshlrev_b32 v2, 6, v2
    v_and_b32 v3, 15, v{vLANE}
    v_add_u32 v2, v2, v3
    v_lshlrev_b32 v2, {FSC[0]}, v2
    s_mov_b32 s42, 0''')
    lab, done = A.label('L_e'), A.label('L_edone')
    A.fence()
    A(lab + ':')
    for q in range(4):
        A(f's_mov_b32 s40, {WS_FLAG + (q * 256 << FSC[0])}')
        A(f'buffer_load_dword v{4+q}, v2, s[16:19], s40 offen sc1')
    A(f's_add_u32 s42, s42, 1\ns_cmp_gt_u32 s42, {SPIN_MAX}\ns_cbranch_scc1 {done}\ns_add_u32 s41, s{sTAG}, 1')
    for q in range(4):
        A(f'v_xor_b32 v{4+q}, s41, v{4+q}')
    A('v_or_b32 v4, v4, v5\nv_or_b32 v6, v6, v7\nv_or_b32 v4, v4, v6\nv_cmp_ne_u32 vcc, 0, v4')
    A(f's_cbranch_vccnz {lab}')
    A(done + ':')
    A(f'''s_waitcnt vmcnt(0)
    v_mov_b32 v2, s{sEPN}
    v_mov_b32 v3, 0
    s_mov_b32 s40, {WS_EPOCH}
    s_mov_b64 exec, 1
    buffer_store_dword v2, v3, s[16:19], s40 offen sc1
    s_mov_b64 exec, -1''')
    A.end_skip(ctx)
```

```python
from common import *


def ph_mod(A, sM, lds):
    A.comment('==== phase mod ====')
    A(f'''v_lshrrev_b32 v2, 2, v{vLANE}
    v_and_b32 v3, 3, v{vLANE}
    s_mul_i32 s40, s{sW}, 144
    v_add_u32 v4, s40, v2
    s_movk_i32 s41, 6912
    v_mul_lo_u32 v5, v4, s41
    v_lshl_add_u32 v5, v3, 4, v5
    v_lshlrev_b32 v6, 1, v4
    s_lshl_b32 s41, s{sM}, 6''')
    srd(A, 12, sC, 1152)
    srd(A, 8, sWMOD, 576 * 6912)
    for i in range(9):
        A(f'buffer_load_ushort v{10+i}, v6, s[12:15], 0 offen offset:{32*i}')
    for i in range(9):
        A(f's_add_u32 s42, s41, {i*16*6912}')
        A(f'buffer_load_dwordx4 v[{20+4*i}:{23+4*i}], v5, s[8:11], s42 offen{NT[1]}')
    srd(A, 16, sWS, WS_SIZE)
    A(f's_mov_b32 s43, {fbits(-LOG2E)}')
    for i in range(9):
        A(f'v_lshlrev_b32 v{10+i}, 16, v{10+i}')
    for i in range(9):
        A(f'v_mul_f32 v{64+i}, s43, v{10+i}')
    for i in range(9):
        A(f'v_exp_f32 v{64+i}, v{64+i}')
    for i in range(9):
        A(f'v_add_f32 v{64+i}, 1.0, v{64+i}')
    for i in range(9):
        A(f'v_rcp_f32 v{64+i}, v{64+i}')
    for i in range(9):
        A(f'v_mul_f32 v{10+i}, v{10+i}, v{64+i}')
    for i in range(9):
        A(f'v_cvt_pk_bf16_f32 v{10+i}, v{10+i}, v{10+i}')
    for i in range(9):
        A(f'v_and_b32 v{10+i}, s{sMASKHI}, v{10+i}')
    for i in range(9):
        for d in range(4):
            unpack(A, 64 + 2 * d, 65 + 2 * d, 20 + 4 * i + d)
        sp = 10 + (i & ~1)
        for d in range(4):
            if i == 0:
                A(f'v_pk_mul_f32 v[{56+2*d}:{57+2*d}], v[{64+2*d}:{65+2*d}], v[{sp}:{sp+1}] op_sel_hi:[1,0]')
            else:
                m = 'op_sel_hi:[1,0,1]' if i % 2 == 0 else 'op_sel:[0,1,0] op_sel_hi:[1,1,1]'
                A(f'v_pk_fma_f32 v[{56+2*d}:{57+2*d}], v[{64+2*d}:{65+2*d}], v[{sp}:{sp+1}], v[{56+2*d}:{57+2*d}] {m}')
    for rot in (8, 4):
        for d in range(8):
            A(f'v_add_f32_dpp v{56+d}, v{56+d}, v{56+d} row_ror:{rot} row_mask:0xf bank_mask:0xf')
    A(f'''v_lshrrev_b32 v7, 4, v{vLANE}
    s_lshl_b32 s40, s{sW}, 2
    v_add_u32 v7, s40, v7
    v_lshlrev_b32 v7, 7, v7
    v_lshl_add_u32 v7, v3, 5, v7
    s_mov_b32 exec_lo, 0x000f000f
    s_mov_b32 exec_hi, 0x000f000f
    ds_write_b128 v7, v[56:59] offset:{lds}
    ds_write_b128 v7, v[60:63] offset:{lds+16}
    s_mov_b64 exec, -1''')
    A.wait_all(vm=False)
    A('s_barrier')
    A(f's_cmp_lg_u32 s{sW}, 0')
    ctx = A.begin_skip('s_cbranch_scc1 {}')
    A(f'''v_lshrrev_b32 v7, 5, v{vLANE}
    v_and_b32 v8, 31, v{vLANE}
    v_lshlrev_b32 v7, 10, v7
    v_lshl_add_u32 v7, v8, 2, v7''')
    for k in range(8):
        A(f'ds_read_b32 v{56+k}, v7 offset:{lds+128*k}')
    A('''v_add_f32 v56, v56, v57
    v_add_f32 v58, v58, v59
    v_add_f32 v60, v60, v61
    v_add_f32 v62, v62, v63
    v_add_f32 v56, v56, v58
    v_add_f32 v60, v60, v62
    v_add_f32 v56, v56, v60
    v_mov_b32 v57, v56
    v_permlane32_swap_b32 v56, v57
    v_add_f32 v56, v56, v57''')
    A(f'''v_cvt_pk_bf16_f32 v56, v56, v56
    v_and_b32 v56, s{sMASKHI}, v56
    s_mul_i32 s40, s{sM}, 57
    s_lshr_b32 s40, s40, 10
    s_cmp_eq_u32 s40, 1
    s_cselect_b32 s41, 1.0, 0
    s_cmp_eq_u32 s40, 4
    s_cselect_b32 s41, 1.0, s41
    v_add_f32 v56, s41, v56
    v_cvt_pk_bf16_f32 v56, v56, v56
    v_and_b32 v56, s{sMASKHI}, v56
    s_lshl_b32 s40, s{sM}, 7
    v_lshlrev_b32 v8, 2, v8
    s_mov_b32 exec_hi, 0
    buffer_store_dword v56, v8, s[16:19], s40 offen offset:{WS_MOD}
    s_mov_b64 exec, -1''')
    A.end_skip(ctx)


def ph_out(A, npart):
    raise NotImplementedError


P0, P1, P2, X0, X1, X2, FACC, FTMP = 16, 144, 176, 96, 108, 120, 208, 240
sVALID = 60
OUTPOL = ['']


def final_setup_ops():
    t = f'''s_lshr_b32 s40, s{sJ}, 1
    s_and_b32 s41, s{sJ}, 1
    v_lshrrev_b32 v6, 3, v{vLANE}
    v_and_b32 v7, 7, v{vLANE}
    v_lshlrev_b32 v4, 8, v6
    v_lshl_add_u32 v4, v7, 4, v4
    v_lshlrev_b32 v5, 5, v6
    v_mul_u32_u24 v10, 1152, v7
    v_lshl_add_u32 v10, v6, 4, v10
    v_and_b32 v8, 15, v{vLANE}
    v_lshlrev_b32 v8, {FSC[0]}, v8
    s_lshl_b32 s43, s{sG}, 3
    s_add_u32 s43, s43, s40
    s_mul_i32 s96, s43, {T16}
    s_lshl_b32 s97, s41, 7
    s_add_u32 s96, s96, s97
    s_add_u32 s96, s96, {WS_X1}
    s_mul_i32 s98, s{sG}, {64*T16}
    s_mul_i32 s99, s40, {T16}
    s_add_u32 s98, s98, s99
    s_add_u32 s98, s98, s97
    s_add_u32 s98, s98, {WS_PART}
    s_lshl_b32 s99, s43, 4
    s_lshl_b32 s100, s41, 3
    s_add_u32 s99, s99, s100
    s_mul_i32 s99, s99, 1152
    s_lshl_b32 s100, s{sW}, 2
    s_lshr_b32 s52, 0x6510, s100
    s_and_b32 s52, s52, 15
    s_lshr_b32 s53, 0x0072, s100
    s_and_b32 s53, s53, 15
    s_lshr_b32 s58, 0x4308, s100
    s_and_b32 s58, s58, 15
    s_movk_i32 s56, 0x3f80
    s_mov_b32 s57, 0x3f800000
    s_mov_b32 s59, {fbits(-1.0 / LOG2E)}
    s_mov_b32 s12, s{sOUT}
    s_mov_b32 s13, s{sOUT+1}
    s_mov_b32 s14, {S*D*2}
    s_mov_b32 s15, 0x20000
    s_mul_i32 s97, s{sG}, 2304
    s_add_u32 s97, s97, {WS_GBF}'''
    return [x.strip() for x in t.split('\n')]


def side_ops(sN, X):
    G = X + 4
    return [f's_lshl_b32 s50, s{sN}, 11', 's_add_u32 s51, s96, s50',
            f'buffer_load_dwordx4 v[{X}:{X+3}], v4, s[16:19], s51 offen sc1',
            f's_lshl_b32 s51, s{sN}, 8', f's_add_u32 s51, s51, {"s97" if TAGGED[0] else WS_MOD+5*576*4}',
            f'buffer_load_dwordx4 v[{G}:{G+3}], v5, s[16:19], s51 offen{HS[0]}',
            f'buffer_load_dwordx4 v[{G+4}:{G+7}], v5, s[16:19], s51 offen offset:16{HS[0]}']


def parts_ops(sN, P, base=98):
    r = [f's_lshl_b32 s50, s{sN}, 11', f's_add_u32 s51, s{base}, s50']
    for p in range(8):
        r.append(f'buffer_load_dwordx4 v[{P+4*p}:{P+4*p+3}], v4, s[16:19], s51 offen sc1')
        if p < 7:
            r.append(f's_add_u32 s51, s51, {8*T16}')
    return r


def ph_final(A, publish_all, wait, check):
    acc, tmp = FACC, FTMP

    def parts(sN, P):
        for x in parts_ops(sN, P):
            A(x)

    def finish(sN, P, X):
        G = X + 4
        for d in range(4):
            A(f'v_pk_mul_f32 v[{G+2*d}:{G+2*d+1}], v[{G+2*d}:{G+2*d+1}], s[58:59] op_sel:[0,1] op_sel_hi:[1,1]')
        for p in range(8):
            for d in range(4):
                for h in range(2):
                    c = '0' if p == 0 else f'v{acc+2*d+h}'
                    A(f'v_dot2_f32_bf16 v{acc+2*d+h}, v{P+4*p+d}, s{56+h}, {c}')
        for d in range(4):
            unpack(A, tmp + 2 * d, tmp + 2 * d + 1, X + d)
        for d in range(4):
            A(f'v_pk_fma_f32 v[{acc+2*d}:{acc+2*d+1}], v[{acc+2*d}:{acc+2*d+1}], v[{G+2*d}:{G+2*d+1}], v[{tmp+2*d}:{tmp+2*d+1}]')
        for d in range(4):
            A(f'v_cvt_pk_bf16_f32 v{X+d}, v{acc+2*d}, v{acc+2*d+1}')
        A(f's_lshl_b32 s50, s{sN}, 7\ns_add_u32 s50, s50, s99')
        A(f'buffer_store_dwordx4 v[{X}:{X+3}], v10, s[12:15], s50 offen{OUTPOL[0]}')
    fin = A.label('L_fin')

    def save():
        return (list(A.vmq), list(A.lgq), A.vm_issued, A.lg_issued)

    def restore(st):
        A.vmq, A.lgq, A.vm_issued, A.lg_issued = list(st[0]), list(st[1]), st[2], st[3]

    def done():
        A.wait_all()
        A(f's_branch {fin}')

    def path(two, three):
        top = 3 if three else 2
        staged, staged2 = A.label('L_fst'), A.label('L_fst')
        check(top)
        A(f's_cbranch_scc0 {staged}')
        st = save()
        if two:
            parts(53, P1)
        if three:
            parts(58, P2)
        finish(52, P0, X0)
        if two:
            finish(53, P1, X1)
        if three:
            finish(58, P2, X2)
        done()
        A(staged + ':')
        restore(st)
        finish(52, P0, X0)
        if two and three:
            wait(2)
            check(3)
            A(f's_cbranch_scc0 {staged2}')
            st = save()
            parts(53, P1)
            parts(58, P2)
            finish(53, P1, X1)
            finish(58, P2, X2)
            done()
            A(staged2 + ':')
            restore(st)
        if two:
            if not three:
                wait(2)
            parts(53, P1)
            finish(53, P1, X1)
        if three:
            wait(3)
            parts(58, P2)
            finish(58, P2, X2)
        done()
    publish_all()
    A(f's_cmp_lg_u32 s{sVALID}, 0')
    ok = A.label('L_fv')
    A(f's_cbranch_scc1 {ok}')
    wait(1)
    parts(52, P0)
    A(ok + ':')
    l1, l2 = A.label('L_fw'), A.label('L_fw')
    st0 = save()
    A(f's_cmp_eq_u32 s{sW}, 1\ns_cbranch_scc1 {l1}')
    A(f's_cmp_ge_u32 s{sW}, 2\ns_cbranch_scc1 {l2}')
    path(True, True)
    A(l1 + ':')
    restore(st0)
    path(True, False)
    A(l2 + ':')
    restore(st0)
    path(False, True)
    A(fin + ':')
    A.vmq, A.lgq = [], []
```

```python
import sys
sys.path.insert(0, 'gen')
from common import *
from ph_small import ph_mod, ph_final
import ph_a, ph_b, ph_c, ph_prep, ph_prep1

def kernel(name, fn, nwg, lds, vgpr=512, accum=256, spread=4, sv=14):
    A = Asm()
    end = f'L_end_{name}'
    A.uid = {'k1':6000,'k0':0,'ka':1000,'kb':2000,'kc':3000,'kd':4000}.get(name[:2], 5000)
    prologue(A, nwg, end, spread)
    stamp_begin(A, len(Stamps.names), sv)
    fn(A)
    stamp_end(A)
    A.wait_all()
    A(end + ':')
    A('s_endpgm')
    for x in A.tail:
        A._emit(Ins(x))
    A(f'L_{name[:2]}_end:')
    n = {}
    for i in A.out: n[i.kind] = n.get(i.kind, 0) + 1
    print(name, n, 'nops', A.nops_inserted, 'waits', A.waits_inserted, file=sys.stderr)
    return dict(name=name, grid=nwg, block=256, lds=lds, body=A.text(), vgpr=vgpr, accum=accum)

def multi(spread=4):
    ks = [kernel('k0_kernel', ph_prep.ph_prep, ph_prep.N_PREP, ph_prep.PREP_LDS, 136 if Stamps.on else 128, 136 if Stamps.on else 128, spread, 130),
          kernel('ka_kernel', ph_a.ph_a, 256, ph_a.A_LDS, spread=spread, sv=14),
          kernel('kb_kernel', ph_b.ph_b, 256, ph_b.B_LDS, spread=spread, sv=250),
          kernel('kc_kernel', ph_c.ph_c, 256, ph_c.C_LDS, spread=spread, sv=12),
          ]
    return ks

def merged_body(A):
    A.junk = ('v', 13)
    PF = ph_c.OPT.get('usepf', 1)
    ph_c.OPT['pfl'] = 0
    WINP = {}

    def win(name):
        if name in WINP:
            for x in ph_c.pf_ops(*WINP[name]):
                A(x)
    if PF:
        if PF == 1:
            ph_c.OPT['pf'] = [(24, 'gu', 18, 36), (44, 'gu', 36, 45), (60, 'd', 0, 27), (80, 'd', 27, 45)]
        elif PF == 2:
            ph_c.OPT['pf'] = [(8, 'g', 18, 27), (16, 'u', 18, 27), (30, 'g', 27, 36), (40, 'u', 27, 36), (52, 'g', 36, 45), (62, 'u', 36, 45)] + \
                [(74 + 10 * q, 'd', 9 * q, 9 * q + 9) for q in range(5)]
        elif PF == 4:
            ph_c.OPT['pf'] = [(30, 'gu', 27, 45), (60, 'd', 0, 45)]
        elif PF == 5:
            ph_c.OPT['pf'] = [(40, 'd', 0, 45)]
        elif PF == 30:
            ph_c.OPT['pf'] = [(2, 'gu', 9, 18), (28, 'gu', 18, 27), (48, 'gu', 27, 36), (66, 'gu', 36, 45), (82, 'd', 0, 23), (98, 'd', 23, 45)]
        elif PF == 31:
            ph_c.OPT['pf'] = [(2, 'gu', 9, 18), (26, 'gu', 18, 36), (52, 'gu', 36, 45), (66, 'd', 0, 27), (86, 'd', 27, 45)]
        elif PF == 32:
            ph_c.OPT['pf'] = [(24, 'gu', 18, 36), (44, 'gu', 36, 45), (60, 'd', 0, 27), (80, 'd', 27, 45)]
        elif PF >= 20:
            ph_c.OPT['pfl'] = 1
            ph_c.OPT['pf'] = {20: [(30, 'gu', 2, 1), (64, 'gu', 3, 1), (98, 'gu', 4, 1), (110, 'd', 0, 3), (130, 'd', 3, 2)],
                              21: [(4, 'gu', 1, 1), (36, 'gu', 2, 1), (70, 'gu', 3, 1), (100, 'gu', 4, 1), (112, 'd', 0, 3), (132, 'd', 3, 2)],
                              22: [(20, 'gu', 2, 1), (50, 'gu', 3, 1), (84, 'gu', 4, 1), (96, 'd', 0, 3), (120, 'd', 3, 2)],
                              23: [(36, 'g', 2, 1), (42, 'u', 2, 1), (70, 'g', 3, 1), (76, 'u', 3, 1), (96, 'g', 4, 1), (102, 'u', 4, 1), (112, 'd', 0, 2), (124, 'd', 2, 1), (140, 'd', 3, 1), (160, 'd', 4, 1)]}[PF]
        elif PF == 16:
            ph_c.OPT['pf'] = [(40, 'd', 0, 23), (60, 'd', 23, 45), (80, 'gu', 36, 45)]
        elif PF == 17:
            ph_c.OPT['pf'] = [(24, 'gu', 18, 27), (44, 'd', 0, 23), (64, 'd', 23, 45), (84, 'gu', 36, 45)]
        elif PF == 18:
            ph_c.OPT['pf'] = [(44, 'gu', 36, 45), (60, 'd', 0, 45)]
        elif PF == 15:
            ph_c.OPT['pf'] = [(24, 'gu', 18, 36), (44, 'gu', 36, 45)]
        elif PF in (6, 7):
            ph_c.OPT['pf'] = []
        elif PF == 8:
            ph_c.OPT['pf'] = [(22, 'gu', 18, 45), (62, 'd', 0, 45)]
        elif PF == 9:
            ph_c.OPT['pf'] = [(38, 'gud', 18, 45), (70, 'd', 0, 18)]
        elif 10 <= PF <= 14:
            WINP.update({10: dict(s1=('gu', 18, 27), st=('gu', 27, 36), s2=('gu', 36, 45)),
                         11: dict(s1=('gu', 18, 27), s2=('gu', 27, 36)),
                         12: dict(s1=('gu', 18, 27), st=('gu', 27, 36), s2=('gud', 36, 45)),
                         13: dict(s1=('gud', 18, 27), st=('gud', 27, 36), s2=('gud', 36, 45)),
                         14: dict(s2=('gu', 18, 27))}[PF])
            ph_c.OPT['pf'] = {10: [(40, 'd', 0, 23), (64, 'd', 23, 45)],
                              11: [(40, 'gu', 36, 45), (60, 'd', 0, 23), (84, 'd', 23, 45)],
                              12: [(40, 'd', 0, 18), (64, 'd', 18, 36)],
                              13: [(44, 'd', 0, 18)],
                              14: [(30, 'gu', 27, 36), (50, 'gu', 36, 45), (70, 'd', 0, 23), (90, 'd', 23, 45)]}[PF]
        elif PF == 3:
            ph_c.OPT['pf'] = [(20, 'g', 18, 27), (28, 'u', 18, 27), (40, 'g', 27, 36), (50, 'u', 27, 36), (60, 'g', 36, 45), (70, 'u', 36, 45)] + \
                [(80 + 9 * q, 'd', 9 * q, 9 * q + 9) for q in range(5)]

    def early():
        ph_c.ph_c_setup_s(A)
        ph_c.pf_setup(A)

    def late():
        if PF:
            for x in ph_c.pf_ops('gud' if PF == 6 else 'gu', 0, {4: 27, 5: 45, 6: 45, 20: 2, 21: 1, 22: 2, 23: 2, 30: 9, 31: 9}.get(PF, 18)):
                A(x)
    ph_a.NPRE_X, ph_a.NPRE_W = ph_c.OPT.get('apre', (0, 0))
    ph_a.LATE_S = 26 if PF == 32 else 30
    if TAGGED[0]:
        ph_prep1.prep(A, 'L_back_body', 'L_k1_end')
        stamp(A, 'prep done')
        ph_a.ph_a_main(A, early, late, lambda: ph_prep1.gate(A), lambda: ph_prep1.late_begin(A))
        ph_prep1.late_end(A)
    else:
        ph_a.ph_a_main(A, early, late)
    bg = ph_b.ph_b_dma(A)
    ph_a.ph_a_attn(A, bg[:ph_c.OPT.get('nbg', 25)])
    stamp(A, 'attn done')
    flag_base(A, 101, 0, sW)
    A(f's_lshl_b32 s40, s{sJ}, {FSC[0]}\ns_add_u32 s101, s101, s40')
    publish(A, 16, 101, 4)
    A('s_barrier')
    stamp(A, 'o published')
    mk = ph_b.ph_b_pre(A)
    A('s_lshr_b32 s40, s5, 1')
    flag_base(A, 101, 0, 40)
    ph_c.ph_c_setup_v(A)
    R = ph_c.Ring(A)
    SLEEP[0] = ph_c.OPT.get('sleep', 0)
    NP1, NP2, NP3 = ph_c.OPT.get('np', (3, 5, 9))
    Q1, Q2, Q3 = ph_c.OPT.get('nq', (3, 5, 9))
    ph_c.ph_c_prefill(A, R, 0, Q1)
    poll_begin(A, 16, 101, 2)
    ph_c.ph_c_prefill(A, R, Q1, NP1)
    A.wait_vm_mark(mk)
    ph_b.ph_b_vec(A)
    ph_b.NPRE = ph_c.OPT.get('npre', 30)
    ph_b.ph_b_pre_frags(A)
    poll_end(A, 16, 101, 2, 41)
    stamp(A, 'S1')

    def before_stat():
        A('s_barrier')
        ph_c.ph_c_prefill(A, R, NP1, Q2)

    def after_stat():
        ph_c.ph_c_prefill(A, R, Q2, NP2)
        A('s_lshr_b32 s40, s5, 1')
        flag_base(A, 101, 1, 40)
        A(f's_lshl_b32 s40, s4, 1\ns_and_b32 s41, s{sW}, 1\ns_add_u32 s40, s40, s41\ns_lshl_b32 s40, s40, {FSC[0]}\ns_add_u32 s101, s101, s40')
        XO.extend(ph_c.ph_c_xload(A))
        ph_c.pair_setup(A)
        ph_c.tail_setup(A)
    XO = []
    ph_b.ph_b_main(A, before_stat, after_stat)
    xops = XO
    publish(A, 16, 101, 10)
    stamp(A, 'h2 published')
    flag_base(A, 101, 1, sW)
    ph_c.ph_c_prefill(A, R, NP2, Q3)
    poll_begin(A, 16, 101, 10)
    ph_c.ph_c_prefill(A, R, Q3, NP3)
    poll_end(A, 16, 101, 10, 40)
    stamp(A, 'S2')
    ph_c.ph_c_stream(A, R, NP3, xops)
    def publish_all():
        A(f'buffer_load_dword v9, v8, s[16:19], s{ph_c.sS3C} offen sc1')
        publish(A, 16, ph_c.sS3O, 6, 3)
        for x in flag_norm(9):
            A(x)
        stamp(A, 'part published')

    def wait(v):
        lab, ok = A.label('L_w'), A.label('L_wok')
        check(v)
        A(f's_cbranch_scc1 {ok}')
        st = (list(A.vmq), list(A.lgq), A.vm_issued, A.lg_issued)
        poll(A, 16, ph_c.sS3C, 8, 43, v)
        A.vmq, A.lgq, A.vm_issued, A.lg_issued = st
        A(ok + ':')
        if Stamps.on and v > 1:
            A(f's_memtime s[88:89]\nv_writelane_b32 v14, s88, {43+v}')

    def check(v):
        A(f'v_cmp_gt_u32 vcc, {v}, v9')
        A('s_cmp_eq_u64 vcc, 0')
    ph_final(A, publish_all, wait, check)
    if TAGGED[0]:
        ph_prep1.epoch_update(A)


def one(spread=4):
    TAGGED[0] = True; HS[0] = ' sc1'
    ph_prep1.OPT1.update(ph_c.OPT)
    NT[:] = [' nt' if ph_c.OPT.get('nt', 3) >> q & 1 else '' for q in range(4)]
    FSC[:] = ph_c.OPT.get('fs', (6, 6))
    return [kernel('k1_kernel', merged_body, 256, 163840, spread=spread, sv=14)]


def two(spread=4):
    if ph_c.OPT.get('one'):
        return one(spread)
    TAGGED[0] = False; HS[0] = ''
    import ph_small
    ph_small.OUTPOL[0] = {0: '', 1: ' sc1', 2: ' nt', 3: ' sc0 sc1'}[ph_c.OPT.get('outpol', 0)]
    ph_prep.NEXT[:] = ['k1_kernel', 'L_k1_end']
    NT[:] = [' nt' if ph_c.OPT.get('nt', 3) >> q & 1 else '' for q in range(4)]
    FSC[:] = ph_c.OPT.get('fs', (6, 6))
    ph_prep.POPT['nlight'] = ph_c.OPT.get('nlight', 84)
    ph_prep.POPT['xm'] = ph_c.OPT.get('xm', 0)
    ph_prep.POPT['lin'] = ph_c.OPT.get('lin', 0)
    ph_prep.POPT['tlb'] = ph_c.OPT.get('tlb', 0); ph_prep.POPT['pf'] = ph_c.OPT.get('k0pf', 0)
    k0 = kernel('k0_kernel', ph_prep.ph_prep, ph_prep.n_prep(), ph_prep.PREP_LDS, 136 if Stamps.on else 128, 136 if Stamps.on else 128, spread, 130)
    pol = {0: '', 1: ' sc1', 2: ' sc0 sc1', 3: ' nt'}[ph_c.OPT.get('k0st', 0)]
    if pol:
        k0['body'] = '\n'.join(l + pol if l.strip().startswith('buffer_store') and 's88' not in l else l for l in k0['body'].split('\n'))
    return [k0, kernel('k1_kernel', merged_body, 256, 163840, spread=spread, sv=14)]


if __name__ == '__main__':
    out = sys.argv[1] if len(sys.argv) > 1 else 'v1.s'
    if 'stamp' in sys.argv:
        Stamps.on = True
    for a in sys.argv[2:]:
        if '=' in a:
            k, v = a.split('=')
            ph_c.OPT[k] = int(v)
    open(out, 'w').write(build(two() if 'two' in sys.argv else multi()))
    if Stamps.on:
        import json
        json.dump(Stamps.names, open(out + '.json', 'w'))
```

```python
from asmgen import *

S, D, F = 2048, 576, 4608
WS_MOD = 0
WS_ST = 0x4000
WS_ZEND = WS_ST + 128 * 2048
FSC = [7, 7]
WS_FLAG = WS_ZEND
WS_PF = WS_FLAG + (3 * 1024 << 7)
WS_F0 = WS_PF + (1024 << 7)
F0_X, F0_Q, F0_M, F0_O, F0_R, F0_T = 0, 256, 1280, 3328, 3584, 3840
WS_EPOCH = WS_F0 + (4096 << 6)
WS_MODP = WS_EPOCH + 256
WS_GBF = WS_MODP + 4 * 13824
WS_XH = WS_GBF + 16 * 2304
WS_WQ = WS_XH + 64 * 36864
WQ_J = 36 * 3840
WS_WO = WS_WQ + 16 * WQ_J + 1024
WO_C = 100 * 1024
WS_O = WS_WO + 8 * WO_C
O_G = 8 * 80 * 256
WS_X1 = WS_O + 16 * O_G
T16 = 72 * 256
WS_H2 = WS_X1 + 128 * T16
WS_XT = WS_H2 + 128 * T16
WS_PART = WS_XT + 128 * T16
WS_HX = WS_PART + 128 * 8 * T16
WS_END = WS_HX + 256 * 4 * 18432
WS_SIZE = 268435456

sX, sWQKV, sWO, sWG, sWU, sWD, sC = 64, 66, 68, 72, 74, 76, 78
sWMOD, sOUT, sDBG, sWS = 80, 82, 84, 86
sG, sJ, sW = 32, 33, 34
sMASKHI = 35
sHALF = 36
vTID, vLANE = 0, 1

sTAG = 90
TAGGED = [False]
HS = ['']
LOG2E = 1.4426950408889634


def fbits(x):
    import struct
    return '0x%08x' % struct.unpack('<I', struct.pack('<f', x))[0]


def prologue(A, nwg, endlabel, xcd_spread=4):
    A(f's_cmp_ge_u32 s2, {nwg}')
    A(f's_cbranch_scc1 {endlabel}')
    A('s_load_dwordx16 s[64:79], s[0:1], 0')
    A('s_load_dwordx8 s[80:87], s[0:1], 64')
    A(f'v_lshrrev_b32 v2, 6, v{vTID}')
    A(f'v_and_b32 v{vLANE}, 63, v{vTID}')
    A(f'v_readfirstlane_b32 s{sW}, v2')
    mapping(A, xcd_spread)
    A(f's_mov_b32 s{sMASKHI}, 0xffff0000')
    A(f's_mov_b32 s{sHALF}, 0')
    A(f's_mov_b32 s{sHALF+1}, -1')


def mapping(A, n):
    if n == 8:
        A(f's_lshr_b32 s{sG}, s2, 4\ns_and_b32 s{sJ}, s2, 15')
    elif n == 4:
        A(f'''s_and_b32 s40, s2, 7
        s_lshr_b32 s{sG}, s40, 2
        s_lshr_b32 s41, s2, 5
        s_lshl_b32 s41, s41, 1
        s_add_u32 s{sG}, s{sG}, s41
        s_and_b32 s{sJ}, s40, 3
        s_lshl_b32 s{sJ}, s{sJ}, 2
        s_lshr_b32 s41, s2, 3
        s_and_b32 s41, s41, 3
        s_add_u32 s{sJ}, s{sJ}, s41''')
    elif n == 2:
        A(f'''s_and_b32 s40, s2, 7
        s_lshr_b32 s{sG}, s40, 1
        s_lshr_b32 s41, s2, 6
        s_lshl_b32 s41, s41, 2
        s_add_u32 s{sG}, s{sG}, s41
        s_and_b32 s{sJ}, s40, 1
        s_lshl_b32 s{sJ}, s{sJ}, 3
        s_lshr_b32 s41, s2, 3
        s_and_b32 s41, s41, 7
        s_add_u32 s{sJ}, s{sJ}, s41''')
    elif n == 1:
        A(f'''s_and_b32 s{sG}, s2, 7
        s_lshl_b32 s{sG}, s{sG}, 1
        s_lshr_b32 s41, s2, 3
        s_and_b32 s41, s41, 1
        s_add_u32 s{sG}, s{sG}, s41
        s_lshr_b32 s{sJ}, s2, 4''')
    else:
        raise ValueError


def srd(A, q, ptr, size, off=0, bias=0):
    d = off - bias
    if d == 0:
        A(f's_mov_b32 s{q}, s{ptr}\ns_mov_b32 s{q+1}, s{ptr+1}')
    elif d > 0:
        A(f's_add_u32 s{q}, s{ptr}, {d}\ns_addc_u32 s{q+1}, s{ptr+1}, 0')
    else:
        A(f's_sub_u32 s{q}, s{ptr}, {-d}\ns_subb_u32 s{q+1}, s{ptr+1}, 0')
    A(f's_mov_b32 s{q+2}, {size + bias}\ns_mov_b32 s{q+3}, 0x20000')


def unpack(A, lo, hi, src):
    A(f'v_lshlrev_b32 v{lo}, 16, v{src}')
    A(f'v_and_b32 v{hi}, s{sMASKHI}, v{src}')


HDR = open('adaLN_cond__sliding_local_dilated__glu_gated_glu__prompt.s.ref').read().split('\n')[:13]


def kd(name, vgpr, accum, sgpr=102):
    return f""".p2align 6
.amdhsa_kernel {name}
  .amdhsa_next_free_vgpr {vgpr}
  .amdhsa_next_free_sgpr {sgpr}
  .amdhsa_accum_offset {accum}
  .amdhsa_group_segment_fixed_size 0
  .amdhsa_kernarg_size 96
  .amdhsa_user_sgpr_count 2
  .amdhsa_user_sgpr_kernarg_segment_ptr 1
  .amdhsa_system_sgpr_workgroup_id_x 1
  .amdhsa_float_denorm_mode_32 3
.end_amdhsa_kernel"""


ABOUT = '''
 Written with a generator script of my own (straight-line code, counted waits, hazards padded by the script).
 k0_kernel (prep, 356 workgroups, one role each): modulation vectors silu(c) @ w_mod; LayerNorm-1 without modulation
   (x-hat) and a raw copy of x in MFMA fragment order; wqkv and wo re-tiled into fragment order; hand-off words cleared;
   the code of k1_kernel pulled into the caches.
 k1_kernel (256 workgroups = 16 groups of 128 tokens x 16 members, one per CU):
   A  modulate x-hat, QKV GEMM for two heads (+16 halo tokens), dilated local attention (true max, exp2), o -> d_ws
   B  o @ wo for 64 tokens x 72 columns, residual, LayerNorm-2 statistics exchanged as tagged 16-byte words, h2 -> d_ws
   C  gate / up GEMMs over a 288-wide slice (weights streamed through an LDS ring), sigmoid(g) * u kept in registers,
      h swapped with the pair partner, down GEMM for half of the columns, bf16 partial sums -> d_ws
   D  eight partial sums + residual -> d_out
   h2 carries a factor -log2(e) (the gate then feeds exp2 directly); phase D divides it out again.
 Hand-offs: write-through (sc1) stores, s_waitcnt, a flag word per producing wave, sc1 polls and loads; every spin is bounded.
'''.strip('\n').split('\n')


def build(kernels):
    out = list(HDR) + [';' + l for l in ABOUT]
    for k in kernels:
        out.append(f"; @launch kernel={k['name']} grid=({k['grid']},1,1) block=({k['block']},1,1) lds={k['lds']}")
    out.append('.amdgcn_target "amdgcn-amd-amdhsa--gfx950"')
    out.append('.text')
    seen = set()
    for k in kernels:
        if k['name'] in seen:
            continue
        seen.add(k['name'])
        out.append(f".globl {k['name']}\n.p2align 8\n.type {k['name']},@function\n{k['name']}:")
        out.append(k['body'])
        out.append('')
    out.append('.section .rodata,"a"')
    seen = set()
    for k in kernels:
        if k['name'] in seen:
            continue
        seen.add(k['name'])
        out.append(kd(k['name'], k.get('vgpr', 512), k.get('accum', 256), k.get('sgpr', 102)))
    return '\n'.join(out) + '\n'


WS_STAMP = 0x8000000
class Stamps:
    on = False
    vreg = 14
    n = 0
    names = []
    kidx = 0


def stamp_begin(A, kidx, vreg):
    Stamps.n = 0; Stamps.kidx = kidx; Stamps.vreg = vreg
    Stamps.names.append([])
    if not Stamps.on:
        return
    A(f'v_mov_b32 v{vreg}, 0')
    A('s_memrealtime s[88:89]')
    A(f'v_writelane_b32 v{vreg}, s88, 62')
    stamp(A, 'start')


def stamp(A, name):
    if not Stamps.on:
        return
    A('s_memtime s[88:89]')
    A(f'v_writelane_b32 v{Stamps.vreg}, s88, {Stamps.n}')
    Stamps.names[-1].append(name)
    Stamps.n += 1


def stamp_end(A, again=False):
    if not Stamps.on:
        return
    A.wait_all()
    stamp(A, 'end')
    if again:
        Stamps.names[-1].pop(); Stamps.n -= 1
    A('s_memrealtime s[88:89]')
    A(f'v_writelane_b32 v{Stamps.vreg}, s88, 63')
    srd(A, 8, sWS, WS_SIZE)
    A(f'''s_lshl_b32 s88, s2, 2
    s_add_u32 s88, s88, s{sW}
    s_lshl_b32 s88, s88, 8
    s_add_u32 s88, s88, {WS_STAMP + Stamps.kidx * 0x80000}
    v_lshlrev_b32 v2, 2, v{vLANE}
    buffer_store_dword v{Stamps.vreg}, v2, s[8:11], s88 offen''')


SPIN_MAX = 400000
SLEEP = [0]


def backoff():
    return [f's_sleep {SLEEP[0]}'] if SLEEP[0] else []


def flag_base(A, sD, stage, sCls):
    A(f'''s_lshl_b32 s{sD}, s{sG}, 2
    s_add_u32 s{sD}, s{sD}, s{sCls}
    s_lshl_b32 s{sD}, s{sD}, {4 + FSC[0]}
    s_add_u32 s{sD}, s{sD}, {WS_FLAG + (stage*1024 << FSC[0])}''')


def flag_value(A, v, val):
    if TAGGED[0]:
        A(f'v_mov_b32 v{v}, s{sTAG}\nv_add_u32 v{v}, {val}, v{v}')
    else:
        A(f'v_mov_b32 v{v}, {val}')


def flag_norm(v):
    if not TAGGED[0]:
        return []
    return [f'v_subrev_u32 v{v}, s{sTAG}, v{v}', f'v_cmp_gt_u32 vcc, 8, v{v}', 's_nop 1', f'v_cndmask_b32 v{v}, 0, v{v}, vcc']


def publish(A, srdq, sOff, v0, val=1):
    A('s_waitcnt vmcnt(0)')
    flag_value(A, v0, val)
    A(f'v_mov_b32 v{v0+1}, 0\ns_mov_b64 exec, 1')
    A(f'buffer_store_dword v{v0}, v{v0+1}, s[{srdq}:{srdq+3}], s{sOff} offen sc1')
    A('s_mov_b64 exec, -1')


def poll(A, srdq, sOff, v0, sCnt, val=1):
    lab = A.label('L_poll'); done = A.label('L_polled')
    A(f'v_and_b32 v{v0}, 15, v{vLANE}\nv_lshlrev_b32 v{v0}, {FSC[0]}, v{v0}\ns_mov_b32 s{sCnt}, 0')
    A.fence()
    A(lab + ':')
    for x in backoff():
        A(x)
    A(f'buffer_load_dword v{v0+1}, v{v0}, s[{srdq}:{srdq+3}], s{sOff} offen sc1')
    A(f's_add_u32 s{sCnt}, s{sCnt}, 1\ns_cmp_gt_u32 s{sCnt}, {SPIN_MAX}')
    A(f's_cbranch_scc1 {done}')
    for x in flag_norm(v0 + 1):
        A(x)
    A(f'v_cmp_gt_u32 vcc, {val}, v{v0+1}')
    A(f's_cbranch_vccnz {lab}')
    A(done + ':')
    A('s_waitcnt vmcnt(0)')


def code_prefetch(A, label, nbytes_expr, vOff, vDst, sq, ninstr, sBase=None, back=False):
    here = A.label('L_pc')
    A(f's_getpc_b64 s[{sq}:{sq+1}]')
    A(here + ':')
    if back:
        A(f's_sub_u32 s{sq}, s{sq}, {here}-{label}')
        A(f's_subb_u32 s{sq+1}, s{sq+1}, 0')
    else:
        A(f's_add_u32 s{sq}, s{sq}, {label}-{here}')
        A(f's_addc_u32 s{sq+1}, s{sq+1}, 0')
    A(f'v_lshlrev_b32 v{vOff}, 7, v{vLANE}')
    if sBase is not None:
        A(f'v_add_u32 v{vOff}, s{sBase}, v{vOff}')
    for i in range(ninstr):
        if i:
            A(f'v_add_u32 v{vOff}, 8192, v{vOff}')
        A(f'v_min_u32 v{vOff+1}, {nbytes_expr}, v{vOff}')
        A(f'global_load_dword v{vDst+i}, v{vOff+1}, s[{sq}:{sq+1}]')


sPC = 92


def itouch_setup(A, vLine):
    A('s_getpc_b64 s[92:93]')
    A('L_back_pc0:')
    A(f'v_lshlrev_b32 v{vLine}, 7, v{vLANE}')


def itouch(label, vLine, aDst):
    return [f's_add_u32 s94, s92, {label}-L_back_pc0', 's_addc_u32 s95, s93, 0',
            f'global_load_dword {aDst}, v{vLine}, s[94:95]']


def poll_begin(A, srdq, sOff, v0):
    A(f'v_and_b32 v{v0}, 15, v{vLANE}\nv_lshlrev_b32 v{v0}, {FSC[0]}, v{v0}')
    A(f'buffer_load_dword v{v0+1}, v{v0}, s[{srdq}:{srdq+3}], s{sOff} offen sc1')


def poll_end(A, srdq, sOff, v0, sCnt, val=1):
    ok = A.label('L_back_ok')
    slow = A.label('L_pslow'); again = A.label('L_pagain')
    for x in flag_norm(v0 + 1):
        A(x)
    A(f'v_cmp_gt_u32 vcc, {val}, v{v0+1}')
    A(f's_cbranch_vccnz {slow}')
    A(ok + ':')
    A.tail += [slow + ':', f's_mov_b32 s{sCnt}, 0', again + ':'] + backoff() + [
               f'buffer_load_dword v{v0+1}, v{v0}, s[{srdq}:{srdq+3}], s{sOff} offen sc1',
               f's_add_u32 s{sCnt}, s{sCnt}, 1', f's_cmp_gt_u32 s{sCnt}, {SPIN_MAX}', f's_cbranch_scc1 {ok}',
               's_waitcnt vmcnt(0)'] + flag_norm(v0 + 1) + [f'v_cmp_gt_u32 vcc, {val}, v{v0+1}', 's_nop 1', f's_cbranch_vccnz {again}', f's_branch {ok}']


NT = ['', '', '', '']
```

```python
from common import *
from ph_small import ph_mod
from ph_a import mod_table

PT = [(0, 1, 2, 3), (4, 13, 10, 11), (12, 21, 14, 23), (20, 24, 22, 22)]
N_MOD, N_XH, N_WQ, N_WO = 108, 64, 144, 40
N_PREP = N_MOD + N_XH + N_WQ + N_WO
PREP_LDS = 4 * 9216


def task_xhat(A, sI):
    A.comment('---- prep: xhat')
    X, T, P = 16, 56, 136
    A(f'''v_lshrrev_b32 v4, 3, v{vLANE}
    v_and_b32 v5, 7, v{vLANE}
    v_mul_u32_u24 v2, 1152, v4
    v_lshl_add_u32 v2, v5, 4, v2
    s_lshl_b32 s40, s{sI}, 2
    s_add_u32 s40, s40, s{sW}
    s_mul_i32 s41, s40, {8*1152}''')
    srd(A, 8, sX, S * D * 2)
    for n in range(9):
        A(f'buffer_load_dwordx4 v[{X+4*n}:{X+4*n+3}], v2, s[8:11], s41 offen offset:{128*n}{NT[0]}')
    srd(A, 16, sWS, WS_SIZE)
    A(f'''s_mul_i32 s42, s{sW}, 9216
    v_xor_b32 v6, v4, v5
    v_lshlrev_b32 v6, 4, v6
    v_add_u32 v6, s42, v6
    v_lshl_add_u32 v7, v4, 7, v6
    v_lshl_add_u32 v6, v5, 7, v6
    v_lshlrev_b32 v3, 9, v4
    v_lshl_add_u32 v3, v5, 4, v3
    s_mul_i32 s43, s{sI}, 36864
    s_lshl_b32 s44, s{sW}, 7
    s_add_u32 s43, s43, s44
    s_add_u32 s43, s43, {WS_XH}''')
    A(f'''s_lshr_b32 s46, s40, 1
    s_mul_i32 s46, s46, {T16}
    s_and_b32 s47, s{sW}, 1
    s_lshl_b32 s47, s47, 7
    s_add_u32 s46, s46, s47
    s_add_u32 s46, s46, {WS_XT}
    v_lshlrev_b32 v15, 8, v4
    v_lshl_add_u32 v15, v5, 4, v15''')
    for n in range(9):
        A(f'ds_write_b128 v6, v[{X+4*n}:{X+4*n+3}] offset:{1024*n}')
        for d in range(4):
            unpack(A, T + 8 * n + 2 * d, T + 8 * n + 2 * d + 1, X + 4 * n + d)
    for n in range(9):
        A(f'ds_read_b128 v[{X+4*n}:{X+4*n+3}], v7 offset:{1024*n}')
    a, q = 8, 10

    def sum8(r):
        A(f'v_add_f32_dpp v{r}, v{r}, v{r} quad_perm:[1,0,3,2] row_mask:0xf bank_mask:0xf')
        A(f'v_add_f32_dpp v{r}, v{r}, v{r} quad_perm:[2,3,0,1] row_mask:0xf bank_mask:0xf')
        A(f'v_add_f32_dpp v{r}, v{r}, v{r} row_half_mirror row_mask:0xf bank_mask:0xf')
    A(f'v_pk_add_f32 v[{a}:{a+1}], v[{T}:{T+1}], v[{T+2}:{T+3}]')
    A(f'v_pk_add_f32 v[{q}:{q+1}], v[{T+4}:{T+5}], v[{T+6}:{T+7}]')
    for u in range(4, 36):
        r = a if u & 1 else q
        A(f'v_pk_add_f32 v[{r}:{r+1}], v[{r}:{r+1}], v[{T+2*u}:{T+2*u+1}]')
    A(f'v_pk_add_f32 v[{a}:{a+1}], v[{a}:{a+1}], v[{q}:{q+1}]')
    A(f'v_add_f32 v{a}, v{a}, v{a+1}')
    sum8(a)
    for n in range(9):
        A(f'buffer_store_dwordx4 v[{X+4*n}:{X+4*n+3}], v15, s[16:19], s46 offen offset:{2048*(n&1)}')
        if n & 1:
            A('s_add_u32 s46, s46, 4096')
    A(f's_mov_b32 s45, {fbits(1.0/576)}\nv_mul_f32 v{a}, s45, v{a}')
    for u in range(36):
        t = T + 2 * u
        A(f'v_pk_add_f32 v[{t}:{t+1}], v[{t}:{t+1}], v[{a}:{a+1}] op_sel_hi:[1,0] neg_lo:[0,1] neg_hi:[0,1]')
    b = 12
    A(f'v_pk_mul_f32 v[{q}:{q+1}], v[{T}:{T+1}], v[{T}:{T+1}]')
    A(f'v_pk_mul_f32 v[{b}:{b+1}], v[{T+2}:{T+3}], v[{T+2}:{T+3}]')
    for u in range(2, 36):
        r = b if u & 1 else q
        t = T + 2 * u
        A(f'v_pk_fma_f32 v[{r}:{r+1}], v[{t}:{t+1}], v[{t}:{t+1}], v[{r}:{r+1}]')
    A(f'v_pk_add_f32 v[{q}:{q+1}], v[{q}:{q+1}], v[{b}:{b+1}]')
    A(f'v_add_f32 v{q}, v{q}, v{q+1}')
    sum8(q)
    A(f'''v_mov_b32 v{q+1}, {fbits(1e-5)}
    v_fmac_f32 v{q+1}, s45, v{q}
    v_rsq_f32 v{a}, v{q+1}
    s_mov_b32 s48, 0xffff
    s_mov_b32 s47, 0x7fffffff''')
    for n in range(9):
        for d in range(4):
            t = T + 8 * n + 2 * d
            A(f'v_pk_mul_f32 v[{t}:{t+1}], v[{t}:{t+1}], v[{a}:{a+1}] op_sel_hi:[1,0]')
        ts = [T + 8 * n + 2 * d for d in range(4)]
        for t in ts:
            A(f'v_cvt_pk_bf16_f32 v{t}, v{t}, 0')
        for d, t in enumerate(ts):
            A(f'v_and_b32 v{X+4*n+d}, s47, v{t+1}')
        for d, t in enumerate(ts):
            A(f'v_add_u32 v{X+4*n+d}, 0x8000, v{X+4*n+d}')
        for d, t in enumerate(ts):
            A(f'v_sub_u32 v{X+4*n+d}, v{X+4*n+d}, v{t} clamp')
        for d, t in enumerate(ts):
            A(f'v_bfi_b32 v{X+4*n+d}, s47, v{X+4*n+d}, v{t+1}')
        for d, t in enumerate(ts):
            A(f'v_bfi_b32 v{X+4*n+d}, s48, v{t}, v{X+4*n+d}')
        A(f'ds_write_b128 v6, v[{X+4*n}:{X+4*n+3}] offset:{1024*n}')
    for n in range(9):
        A(f'ds_read_b128 v[{X+4*n}:{X+4*n+3}], v7 offset:{1024*n}')
    for n in range(9):
        A(f'buffer_store_dwordx4 v[{X+4*n}:{X+4*n+3}], v3, s[16:19], s43 offen')
        if n < 8:
            A('s_add_u32 s43, s43, 4096')


def task_wq(A, sI):
    A.comment('---- prep: qkv weight tiles')
    A(f'''v_mul_u32_u24 v4, 69, v{vLANE}
    v_lshrrev_b32 v4, 10, v4
    v_mul_u32_u24 v5, 15, v4
    v_sub_u32 v5, v{vLANE}, v5
    v_mul_u32_u24 v6, 13, v5
    v_lshrrev_b32 v6, 6, v6
    v_mul_u32_u24 v7, 5, v6
    v_sub_u32 v7, v5, v7
    v_mul_u32_u24 v4, 3456, v4
    v_mul_u32_u24 v6, 1152, v6
    v_add_u32 v4, v4, v6
    v_lshl_add_u32 v2, v7, 4, v4
    s_lshr_b32 s40, s{sI}, 2
    s_and_b32 s41, s{sI}, 3
    s_lshl_b32 s41, s41, 2
    s_add_u32 s41, s41, s{sW}
    s_mul_i32 s42, s41, 72
    s_and_b32 s42, s42, 0xfffffff0
    s_mul_i32 s43, s40, {16*3456}
    s_add_u32 s42, s42, s43
    s_mul_i32 s44, s{sW}, 3840
    s_mov_b32 exec_hi, 0x0fffffff''')
    srd(A, 12, sWQKV, 576 * 3456)
    for i in range(4):
        A(f's_add_u32 m0, s44, {960*i}')
        A(f's_add_u32 s45, s42, {4*3456*i}')
        A(f'buffer_load_dwordx4 v2, s[12:15], s45 offen{NT[2]} lds')
    A('s_mov_b32 exec_hi, -1')
    srd(A, 16, sWS, WS_SIZE)
    wq_extra(A, sI)
    A(f'''v_lshrrev_b32 v4, 5, v{vLANE}
    v_bfe_u32 v5, v{vLANE}, 2, 2
    v_and_b32 v6, 3, v{vLANE}
    v_bfe_u32 v7, v{vLANE}, 4, 1
    v_lshlrev_b32 v7, 1, v7
    v_lshrrev_b32 v9, 1, v6
    v_add_u32 v7, v7, v9
    v_lshlrev_b32 v7, 3, v7
    v_and_b32 v8, 1, v6
    v_lshlrev_b32 v8, 2, v8
    s_and_b32 s50, s41, 1
    v_add_u32 v8, s50, v8
    v_lshl_add_u32 v9, v4, 3, v5
    v_mul_u32_u24 v9, 240, v9
    v_add_u32 v9, s44, v9''')
    packs = [t[0] | t[1] << 8 | t[2] << 16 | t[3] << 24 for t in PT]
    for T in range(4):
        A(f'''s_mov_b32 s52, {packs[T]}
        v_bfe_u32 v10, s52, v7, 8
        v_add_u32 v10, v10, v8
        v_lshl_add_u32 v{12+T}, v10, 3, v9''')
    A(f'''v_lshlrev_b32 v3, 4, v{vLANE}
    v_and_b32 v10, 31, v{vLANE}
    v_mul_u32_u24 v11, 24, v4
    v_add_u32 v11, v11, v10
    v_lshlrev_b32 v11, 4, v11
    s_mul_i32 s46, s41, {WQ_J}
    s_mul_i32 s47, s40, 3840
    s_add_u32 s46, s46, s47
    s_add_u32 s46, s46, {WS_WQ}''')
    A.wait_all()
    for T in range(4):
        for rd in range(2):
            A(f'ds_read_b64_tr_b16 v[{16+4*T+2*rd}:{17+4*T+2*rd}], v{12+T} offset:{960*rd}')
    for T in range(3):
        A(f'buffer_store_dwordx4 v[{16+4*T}:{19+4*T}], v3, s[16:19], s46 offen offset:{1024*T}')
    A('s_mov_b32 exec_lo, 0x00ffffff\ns_mov_b32 exec_hi, 0x00ffffff')
    A('buffer_store_dwordx4 v[28:31], v11, s[16:19], s46 offen offset:3072')
    A('s_mov_b64 exec, -1')


def task_wo(A, sI):
    A.comment('---- prep: wo tiles')
    A(f'''s_lshl_b32 s40, s{sI}, 2
    s_add_u32 s40, s40, s{sW}
    s_lshr_b32 s41, s40, 3
    s_and_b32 s42, s40, 7
    s_mul_i32 s43, s42, 144
    s_mul_i32 s44, s{sW}, 4864
    v_lshrrev_b32 v4, 3, v{vLANE}
    v_and_b32 v5, 7, v{vLANE}
    v_lshlrev_b32 v5, 4, v5
    v_mul_u32_u24 v6, 1152, v4
    v_add_u32 v6, v6, v5
    v_lshlrev_b32 v7, 2, v4
    s_mov_b32 s45, 0x76543210
    v_lshrrev_b32 v7, v7, s45
    v_and_b32 v7, 15, v7
    v_lshlrev_b32 v9, 2, v4
    s_mov_b32 s45, 0x00002211
    v_lshrrev_b32 v9, v9, s45
    v_and_b32 v9, 15, v9
    v_lshl_add_u32 v7, v9, 4, v7
    v_mul_u32_u24 v8, 1152, v7
    v_add_u32 v8, v8, v5
    s_lshl_b32 s45, s41, 2''')
    srd(A, 20, sWO, 576 * 1152)
    for q in range(4):
        A(f'''s_add_u32 s47, s45, {q}
        s_mul_i32 s48, s47, 205
        s_lshr_b32 s48, s48, 10
        s_mul_i32 s49, s48, 5
        s_sub_u32 s49, s47, s49
        s_lshr_b32 s50, s49, 1
        s_mul_i32 s50, s50, 18
        s_and_b32 s51, s49, 1
        s_lshl_b32 s51, s51, 3
        s_add_u32 s50, s50, s51
        s_mul_i32 s48, s48, 36
        s_cmp_eq_u32 s49, 4
        s_cselect_b32 s50, 0, s50
        s_cselect_b64 vcc, -1, 0
        s_add_u32 s50, s50, s48
        s_mul_i32 s50, s50, 1152
        s_add_u32 s{52+q}, s50, s43
        v_cndmask_b32 v{10+q}, v6, v8, vcc
        s_add_u32 m0, s44, {1024*q}
        s_nop 0
        buffer_load_dwordx4 v{10+q}, s[20:23], s{52+q} offen{NT[3]} lds''')
    A(f'''v_and_b32 v14, 7, v{vLANE}
    v_lshlrev_b32 v14, 5, v14
    v_bfe_u32 v15, v{vLANE}, 3, 2''')
    for q in range(4):
        A(f'v_add_u32 v{10+q}, s{52+q}, v{10+q}')
    for q in range(4):
        A(f'ds_bpermute_b32 v{16+q}, v14, v{10+q}')
    A(f'''v_cmp_eq_u32 vcc, 1, v15
    v_cndmask_b32 v16, v16, v17, vcc
    v_cmp_eq_u32 vcc, 2, v15
    v_cndmask_b32 v16, v16, v18, vcc
    v_cmp_eq_u32 vcc, 3, v15
    v_cndmask_b32 v16, v16, v19, vcc
    s_add_u32 m0, s44, 4096
    s_mov_b32 exec_hi, 0
    buffer_load_dwordx4 v16, s[20:23], 0 offen offset:128{NT[3]} lds
    s_mov_b32 exec_hi, -1''')
    srd(A, 16, sWS, WS_SIZE)
    A(f'''v_lshrrev_b32 v4, 4, v{vLANE}
    v_bfe_u32 v5, v{vLANE}, 2, 2
    v_lshl_add_u32 v4, v4, 3, v5
    v_and_b32 v5, 3, v{vLANE}
    v_lshlrev_b32 v6, 7, v4
    v_lshl_add_u32 v6, v5, 3, v6
    v_add_u32 v6, s44, v6
    v_and_b32 v5, 1, v5
    v_lshlrev_b32 v7, 4, v4
    v_lshl_add_u32 v7, v5, 3, v7
    v_add_u32 v7, s44, v7
    v_lshlrev_b32 v3, 4, v{vLANE}
    s_mul_i32 s46, s42, {WO_C}
    s_mul_i32 s47, s41, 5120
    s_add_u32 s46, s46, s47
    s_add_u32 s46, s46, {WS_WO}
    s_add_u32 s47, s46, 4096''')
    A.wait_all()
    for T in range(4):
        for rd in range(2):
            A(f'ds_read_b64_tr_b16 v[{32+4*T+2*rd}:{33+4*T+2*rd}], v6 offset:{512*rd+32*T}')
    for rd in range(2):
        A(f'ds_read_b64_tr_b16 v[{48+2*rd}:{49+2*rd}], v7 offset:{4096+128+64*rd}')
    for T in range(4):
        A(f'buffer_store_dwordx4 v[{32+4*T}:{35+4*T}], v3, s[16:19], s46 offen offset:{1024*T}')
    A('buffer_store_dwordx4 v[48:51], v3, s[16:19], s47 offen')


def task_zero(A, sI):
    A(f'''v_mov_b32 v56, 0
    v_mov_b32 v57, 0
    v_mov_b32 v58, 0
    v_mov_b32 v59, 0
    v_lshlrev_b32 v60, 4, v{vTID}
    s_lshl_b32 s48, s{sI}, 12''')
    assert WS_ZEND - WS_ST <= N_WQ * 4096
    srd(A, 24, sWS, WS_ZEND - WS_ST, off=WS_ST)
    A('buffer_store_dwordx4 v[56:59], v60, s[24:27], s48 offen')
    for base, sh, cnt in ((0, FSC[0], 3072), (WS_PF - WS_FLAG, FSC[1], 1024)):
        srd(A, 28, sWS, cnt << sh, off=WS_FLAG + base)
        A(f'v_lshlrev_b32 v60, {sh}, v{vTID}\ns_lshl_b32 s48, s{sI}, {8 + sh}')
        A('buffer_store_dword v56, v60, s[28:31], s48 offen')


def wq_extra(A, sI):
    task_zero(A, sI)
    if NEXT[0]:
        A(f's_lshr_b32 s48, s{sI}, 3\ns_lshl_b32 s48, s48, 2\ns_add_u32 s48, s48, s{sW}\ns_lshl_b32 s48, s48, 13')
        code_prefetch(A, NEXT[0], f'{NEXT[1]}-{NEXT[0]}-4', 60, 62, 50, 1, 48)


POPT = dict(tlb=0, pf=0)
N_PF = 128


def task_tlb(A, sI, shift):
    bufs = [(sWG, 576 * 9216, 0), (sWU, 576 * 9216, 0), (sWD, F * 1152, 0), (sOUT, S * D * 2, 0), (sWS, WS_END, 0)]
    A(f's_lshr_b32 s48, s{sI}, 3\ns_lshl_b32 s48, s48, 2\ns_add_u32 s48, s48, s{sW}')
    A(f'v_lshlrev_b32 v56, {shift}, v{vLANE}')
    q = 0
    for ptr, size, off in bufs:
        srd(A, 24, ptr, size)
        n = -(-size // (64 << shift))
        for i in range(n):
            if q % 20 or True:
                A(f's_cmp_eq_u32 s48, {q % 20}')
                A(f's_cselect_b32 s49, {i * (64 << shift)}, s47') if False else None
                A(f's_mov_b32 s49, 0x80000000\ns_cmov_b32 s49, {i * (64 << shift)}')
                A(f'buffer_load_dword v57, v56, s[24:27], s49 offen')
            q += 1
            if q % 40 == 0:
                A('s_waitcnt vmcnt(0)')


def task_pf(A, sI):
    A(f's_lshl_b32 s40, s{sI}, 2\ns_add_u32 s40, s40, s{sW}\nv_lshlrev_b32 v2, 7, v{vLANE}')
    per = 576 * 9216 // (4 * N_PF)
    assert per % 128 == 0
    A(f's_mul_i32 s41, s40, {per}')
    for ptr in (sWG, sWU, sWD):
        srd(A, 8, ptr, 576 * 9216)
        A(f's_mov_b32 s42, s41')
        n = per // 128
        k = 0
        while n > 0:
            if n < 64:
                m = (1 << n) - 1
                A(f's_mov_b32 exec_lo, {m & 0xffffffff}\ns_mov_b32 exec_hi, {m >> 32}')
            A(f'buffer_load_dword v{8+k}, v2, s[8:11], s42 offen\ns_add_u32 s42, s42, 8192')
            n -= 64; k += 1
        A('s_mov_b64 exec, -1')


NEXT = [None, None]


def n_prep():
    return N_PREP + (N_PF if POPT['pf'] else 0)


def ph_prep(A):
    code_prefetch(A, 'L_k0_body', 'L_k0_end-L_k0_body-4', 2, 127, 50, 1)
    A('L_k0_body:')
    if POPT.get('lin'):
        nw = N_PREP * 4
        A(f's_lshl_b32 s40, s2, 2\ns_add_u32 s40, s40, s{sW}\nv_lshlrev_b32 v3, 7, v{vLANE}')
        for q, (ptr, size) in enumerate(((sWMOD, 576 * 6912), (sX, S * D * 2), (sWQKV, 576 * 3456), (sWO, 576 * 1152))):
            n = -(-(size // 128) // nw)
            srd(A, 8, ptr, size)
            A(f's_mul_i32 s41, s40, {n*128}\ns_mov_b64 exec, {(1 << n) - 1}')
            A(f'buffer_load_dword v{122+q}, v3, s[8:11], s41 offen')
        A('s_mov_b64 exec, -1')
    NL = POPT.get('nlight', 84)
    lab = {r: A.label('L_role' + r) for r in ('mod', 'xh', 'wq', 'wo')}
    (r1, n1), (r2, n2) = (('xh', N_XH), ('mod', N_MOD)) if POPT.get('xm') else (('mod', N_MOD), ('xh', N_XH))
    A(f'''s_mov_b32 s39, s2
    s_cmp_lt_u32 s2, {NL}
    s_cbranch_scc1 {lab['wq']}
    s_sub_u32 s39, s2, {NL}
    s_cmp_lt_u32 s39, {n1}
    s_cbranch_scc1 {lab[r1]}
    s_sub_u32 s39, s39, {n1}
    s_cmp_lt_u32 s39, {n2}
    s_cbranch_scc1 {lab[r2]}
    s_sub_u32 s39, s2, {N_MOD + N_XH}
    s_cmp_lt_u32 s39, {N_WQ}
    s_cbranch_scc1 {lab['wq']}
    s_sub_u32 s39, s39, {N_WQ}''')
    st0 = (list(A.vmq), list(A.lgq), A.vm_issued, A.lg_issued)
    for r, fn in (('wo', task_wo), ('mod', None), ('xh', task_xhat), ('wq', task_wq)):
        A(lab[r] + ':')
        A.vmq, A.lgq, A.vm_issued, A.lg_issued = list(st0[0]), list(st0[1]), st0[2], st0[3]
        if r == 'mod':
            A('s_and_b32 s40, s39, 7\ns_lshl_b32 s40, s40, 1\ns_bfe_u32 s41, s39, 0x10003\ns_and_b32 s42, s39, 0xfffffff0\ns_or_b32 s40, s40, s41\ns_or_b32 s40, s40, s42')
            A('s_cmp_lt_u32 s39, 96\ns_cselect_b32 s39, s40, s39')
            ph_mod(A, 39, 0)
        else:
            fn(A, 39)
        if r != 'wq':
            stamp_end(A, again=True)
            A('s_endpgm')
```

```python
from asmgen import *

S, D, F = 2048, 576, 4608
WS_MOD = 0
WS_ST = 0x4000
WS_ZEND = WS_ST + 128 * 2048
FSC = [7, 7]
WS_FLAG = WS_ZEND
WS_PF = WS_FLAG + (3 * 1024 << 7)
WS_F0 = WS_PF + (1024 << 7)
F0_X, F0_Q, F0_M, F0_O, F0_R, F0_T = 0, 256, 1280, 3328, 3584, 3840
WS_EPOCH = WS_F0 + (4096 << 6)
WS_MODP = WS_EPOCH + 256
WS_GBF = WS_MODP + 4 * 13824
WS_XH = WS_GBF + 16 * 2304
WS_WQ = WS_XH + 64 * 36864
WQ_J = 36 * 3840
WS_WO = WS_WQ + 16 * WQ_J + 1024
WO_C = 100 * 1024
WS_O = WS_WO + 8 * WO_C
O_G = 8 * 80 * 256
WS_X1 = WS_O + 16 * O_G
T16 = 72 * 256
WS_H2 = WS_X1 + 128 * T16
WS_XT = WS_H2 + 128 * T16
WS_PART = WS_XT + 128 * T16
WS_HX = WS_PART + 128 * 8 * T16
WS_END = WS_HX + 256 * 4 * 18432
WS_SIZE = 268435456

sX, sWQKV, sWO, sWG, sWU, sWD, sC = 64, 66, 68, 72, 74, 76, 78
sWMOD, sOUT, sDBG, sWS = 80, 82, 84, 86
sG, sJ, sW = 32, 33, 34
sMASKHI = 35
sHALF = 36
vTID, vLANE = 0, 1

sTAG = 90
TAGGED = [False]
NOXT = [0]
X1LATE = [0]
HS = ['']
LOG2E = 1.4426950408889634


def fbits(x):
    import struct
    return '0x%08x' % struct.unpack('<I', struct.pack('<f', x))[0]


def prologue(A, nwg, endlabel, xcd_spread=4):
    A(f's_cmp_ge_u32 s2, {nwg}')
    A(f's_cbranch_scc1 {endlabel}')
    A('s_load_dwordx16 s[64:79], s[0:1], 0')
    A('s_load_dwordx8 s[80:87], s[0:1], 64')
    A(f'v_lshrrev_b32 v2, 6, v{vTID}')
    A(f'v_and_b32 v{vLANE}, 63, v{vTID}')
    A(f'v_readfirstlane_b32 s{sW}, v2')
    mapping(A, xcd_spread)
    A(f's_mov_b32 s{sMASKHI}, 0xffff0000')
    A(f's_mov_b32 s{sHALF}, 0')
    A(f's_mov_b32 s{sHALF+1}, -1')


def mapping(A, n):
    if n == 8:
        A(f's_lshr_b32 s{sG}, s2, 4\ns_and_b32 s{sJ}, s2, 15')
    elif n == 4:
        A(f'''s_and_b32 s40, s2, 7
        s_lshr_b32 s{sG}, s40, 2
        s_lshr_b32 s41, s2, 5
        s_lshl_b32 s41, s41, 1
        s_add_u32 s{sG}, s{sG}, s41
        s_and_b32 s{sJ}, s40, 3
        s_lshl_b32 s{sJ}, s{sJ}, 2
        s_lshr_b32 s41, s2, 3
        s_and_b32 s41, s41, 3
        s_add_u32 s{sJ}, s{sJ}, s41''')
    elif n == 2:
        A(f'''s_and_b32 s40, s2, 7
        s_lshr_b32 s{sG}, s40, 1
        s_lshr_b32 s41, s2, 6
        s_lshl_b32 s41, s41, 2
        s_add_u32 s{sG}, s{sG}, s41
        s_and_b32 s{sJ}, s40, 1
        s_lshl_b32 s{sJ}, s{sJ}, 3
        s_lshr_b32 s41, s2, 3
        s_and_b32 s41, s41, 7
        s_add_u32 s{sJ}, s{sJ}, s41''')
    elif n == 1:
        A(f'''s_and_b32 s{sG}, s2, 7
        s_lshl_b32 s{sG}, s{sG}, 1
        s_lshr_b32 s41, s2, 3
        s_and_b32 s41, s41, 1
        s_add_u32 s{sG}, s{sG}, s41
        s_lshr_b32 s{sJ}, s2, 4''')
    else:
        raise ValueError


def srd(A, q, ptr, size, off=0, bias=0):
    d = off - bias
    if d == 0:
        A(f's_mov_b32 s{q}, s{ptr}\ns_mov_b32 s{q+1}, s{ptr+1}')
    elif d > 0:
        A(f's_add_u32 s{q}, s{ptr}, {d}\ns_addc_u32 s{q+1}, s{ptr+1}, 0')
    else:
        A(f's_sub_u32 s{q}, s{ptr}, {-d}\ns_subb_u32 s{q+1}, s{ptr+1}, 0')
    A(f's_mov_b32 s{q+2}, {size + bias}\ns_mov_b32 s{q+3}, 0x20000')


def unpack(A, lo, hi, src):
    A(f'v_lshlrev_b32 v{lo}, 16, v{src}')
    A(f'v_and_b32 v{hi}, s{sMASKHI}, v{src}')


HDR = open('adaLN_cond__sliding_local_dilated__glu_gated_glu__prompt.s.ref').read().split('\n')[:13]


def kd(name, vgpr, accum, sgpr=102):
    return f""".p2align 6
.amdhsa_kernel {name}
  .amdhsa_next_free_vgpr {vgpr}
  .amdhsa_next_free_sgpr {sgpr}
  .amdhsa_accum_offset {accum}
  .amdhsa_group_segment_fixed_size 0
  .amdhsa_kernarg_size 96
  .amdhsa_user_sgpr_count 2
  .amdhsa_user_sgpr_kernarg_segment_ptr 1
  .amdhsa_system_sgpr_workgroup_id_x 1
  .amdhsa_float_denorm_mode_32 3
.end_amdhsa_kernel"""


ABOUT = '''
 Written with a generator script of my own (straight-line code, counted waits, hazards padded by the script).
 k0_kernel (prep, 356 workgroups, one role each): modulation vectors silu(c) @ w_mod; LayerNorm-1 without modulation
   (x-hat) in MFMA fragment order; wqkv and wo re-tiled into fragment order; hand-off words cleared;
   the code of k1_kernel pulled into the caches.
 k1_kernel (256 workgroups = 16 groups of 128 tokens x 16 members, one per CU):
   A  modulate x-hat, QKV GEMM for two heads (+16 halo tokens), dilated local attention (true max, exp2), o -> d_ws
   B  o @ wo for 64 tokens x 72 columns, residual, LayerNorm-2 statistics exchanged as tagged 16-byte words, h2 -> d_ws
   C  gate / up GEMMs over a 288-wide slice (weights streamed through an LDS ring), sigmoid(g) * u kept in registers,
      h swapped with the pair partner, down GEMM for half of the columns, bf16 partial sums -> d_ws
   D  eight partial sums + residual -> d_out
   h2 carries a factor -log2(e) (the gate then feeds exp2 directly); phase D divides it out again.
 Hand-offs: write-through (sc1) stores, s_waitcnt, a flag word per producing wave, sc1 polls and loads; every spin is bounded.
'''.strip('\n').split('\n')


def build(kernels):
    out = list(HDR) + [';' + l for l in ABOUT]
    for k in kernels:
        out.append(f"; @launch kernel={k['name']} grid=({k['grid']},1,1) block=({k['block']},1,1) lds={k['lds']}")
    out.append('.amdgcn_target "amdgcn-amd-amdhsa--gfx950"')
    out.append('.text')
    seen = set()
    for k in kernels:
        if k['name'] in seen:
            continue
        seen.add(k['name'])
        out.append(f".globl {k['name']}\n.p2align 8\n.type {k['name']},@function\n{k['name']}:")
        out.append(k['body'])
        out.append('')
    out.append('.section .rodata,"a"')
    seen = set()
    for k in kernels:
        if k['name'] in seen:
            continue
        seen.add(k['name'])
        out.append(kd(k['name'], k.get('vgpr', 512), k.get('accum', 256), k.get('sgpr', 102)))
    return '\n'.join(out) + '\n'


WS_STAMP = 0x8000000
class Stamps:
    on = False
    vreg = 14
    n = 0
    names = []
    kidx = 0


def stamp_begin(A, kidx, vreg):
    Stamps.n = 0; Stamps.kidx = kidx; Stamps.vreg = vreg
    Stamps.names.append([])
    if not Stamps.on:
        return
    A(f'v_mov_b32 v{vreg}, 0')
    A('s_memrealtime s[88:89]')
    A(f'v_writelane_b32 v{vreg}, s88, 62')
    stamp(A, 'start')


def stamp(A, name):
    if getattr(Stamps, 'jitter', 0):
        Stamps.jn = getattr(Stamps, 'jn', 0) + 1
        k = (Stamps.jitter * 2654435761 + Stamps.jn * 40503) & 0xffffffff | 1
        lab, out = A.label('L_back_j'), A.label('L_back_jo')
        who = 's2' if Stamps.jn % 3 else f's{sW}'
        A(f's_add_u32 s88, {who}, {Stamps.jn + 1}\ns_mul_i32 s88, s88, {k}\ns_lshr_b32 s88, s88, 7\ns_mul_i32 s88, s88, {k}\ns_lshr_b32 s89, s88, 28')
        A(f's_cmp_lt_u32 s89, {16 - Stamps.jfrac}\ns_cbranch_scc1 {out}\ns_bfe_u32 s88, s88, 0x4000c')
        A(lab + ':')
        A(f's_sleep 16\ns_sub_u32 s88, s88, 1\ns_cmp_gt_i32 s88, 0\ns_cbranch_scc1 {lab}')
        A(out + ':')
    if not Stamps.on:
        return
    A('s_memtime s[88:89]')
    A(f'v_writelane_b32 v{Stamps.vreg}, s88, {Stamps.n}')
    Stamps.names[-1].append(name)
    Stamps.n += 1


def stamp_end(A, again=False):
    if not Stamps.on:
        return
    A.wait_all()
    stamp(A, 'end')
    if again:
        Stamps.names[-1].pop(); Stamps.n -= 1
    A('s_memrealtime s[88:89]')
    A(f'v_writelane_b32 v{Stamps.vreg}, s88, 63')
    srd(A, 8, sWS, WS_SIZE)
    A(f'''s_lshl_b32 s88, s2, 2
    s_add_u32 s88, s88, s{sW}
    s_lshl_b32 s88, s88, 8
    s_add_u32 s88, s88, {WS_STAMP + Stamps.kidx * 0x80000}
    v_lshlrev_b32 v2, 2, v{vLANE}
    buffer_store_dword v{Stamps.vreg}, v2, s[8:11], s88 offen''')


SPIN_MAX = 400000
SLEEP = [0]


def backoff():
    return [f's_sleep {SLEEP[0]}'] if SLEEP[0] else []


def flag_base(A, sD, stage, sCls):
    A(f'''s_lshl_b32 s{sD}, s{sG}, 2
    s_add_u32 s{sD}, s{sD}, s{sCls}
    s_lshl_b32 s{sD}, s{sD}, {4 + FSC[0]}
    s_add_u32 s{sD}, s{sD}, {WS_FLAG + (stage*1024 << FSC[0])}''')


def flag_value(A, v, val):
    if TAGGED[0]:
        A(f'v_mov_b32 v{v}, s{sTAG}\nv_add_u32 v{v}, {val}, v{v}')
    else:
        A(f'v_mov_b32 v{v}, {val}')


def flag_norm(v):
    if not TAGGED[0]:
        return []
    return [f'v_subrev_u32 v{v}, s{sTAG}, v{v}', f'v_cmp_gt_u32 vcc, 8, v{v}', 's_nop 1', f'v_cndmask_b32 v{v}, 0, v{v}, vcc']


def publish(A, srdq, sOff, v0, val=1, mark=None):
    if mark is None:
        A('s_waitcnt vmcnt(0)')
    else:
        A.wait_vm_mark(mark)
    flag_value(A, v0, val)
    A(f'v_mov_b32 v{v0+1}, 0\ns_mov_b64 exec, 1')
    A(f'buffer_store_dword v{v0}, v{v0+1}, s[{srdq}:{srdq+3}], s{sOff} offen sc1')
    A('s_mov_b64 exec, -1')


def poll(A, srdq, sOff, v0, sCnt, val=1):
    lab = A.label('L_poll'); done = A.label('L_polled')
    A(f'v_and_b32 v{v0}, 15, v{vLANE}\nv_lshlrev_b32 v{v0}, {FSC[0]}, v{v0}\ns_mov_b32 s{sCnt}, 0')
    A.fence()
    A(lab + ':')
    for x in backoff():
        A(x)
    A(f'buffer_load_dword v{v0+1}, v{v0}, s[{srdq}:{srdq+3}], s{sOff} offen sc1')
    A(f's_add_u32 s{sCnt}, s{sCnt}, 1\ns_cmp_gt_u32 s{sCnt}, {SPIN_MAX}')
    A(f's_cbranch_scc1 {done}')
    for x in flag_norm(v0 + 1):
        A(x)
    A(f'v_cmp_gt_u32 vcc, {val}, v{v0+1}')
    A(f's_cbranch_vccnz {lab}')
    A(done + ':')
    A('s_waitcnt vmcnt(0)')


def code_prefetch(A, label, nbytes_expr, vOff, vDst, sq, ninstr, sBase=None, back=False):
    here = A.label('L_pc')
    A(f's_getpc_b64 s[{sq}:{sq+1}]')
    A(here + ':')
    if back:
        A(f's_sub_u32 s{sq}, s{sq}, {here}-{label}')
        A(f's_subb_u32 s{sq+1}, s{sq+1}, 0')
    else:
        A(f's_add_u32 s{sq}, s{sq}, {label}-{here}')
        A(f's_addc_u32 s{sq+1}, s{sq+1}, 0')
    A(f'v_lshlrev_b32 v{vOff}, 7, v{vLANE}')
    if sBase is not None:
        A(f'v_add_u32 v{vOff}, s{sBase}, v{vOff}')
    for i in range(ninstr):
        if i:
            A(f'v_add_u32 v{vOff}, 8192, v{vOff}')
        A(f'v_min_u32 v{vOff+1}, {nbytes_expr}, v{vOff}')
        A(f'global_load_dword v{vDst+i}, v{vOff+1}, s[{sq}:{sq+1}]')


sPC = 92


def itouch_setup(A, vLine):
    A('s_getpc_b64 s[92:93]')
    A('L_back_pc0:')
    A(f'v_lshlrev_b32 v{vLine}, 7, v{vLANE}')


def itouch(label, vLine, aDst):
    return [f's_add_u32 s94, s92, {label}-L_back_pc0', 's_addc_u32 s95, s93, 0',
            f'global_load_dword {aDst}, v{vLine}, s[94:95]']


def poll_begin(A, srdq, sOff, v0):
    A(f'v_and_b32 v{v0}, 15, v{vLANE}\nv_lshlrev_b32 v{v0}, {FSC[0]}, v{v0}')
    A(f'buffer_load_dword v{v0+1}, v{v0}, s[{srdq}:{srdq+3}], s{sOff} offen sc1')


def poll_end(A, srdq, sOff, v0, sCnt, val=1):
    ok = A.label('L_back_ok')
    slow = A.label('L_pslow'); again = A.label('L_pagain')
    for x in flag_norm(v0 + 1):
        A(x)
    A(f'v_cmp_gt_u32 vcc, {val}, v{v0+1}')
    A(f's_cbranch_vccnz {slow}')
    A(ok + ':')
    A.tail += [slow + ':', f's_mov_b32 s{sCnt}, 0', again + ':'] + backoff() + [
               f'buffer_load_dword v{v0+1}, v{v0}, s[{srdq}:{srdq+3}], s{sOff} offen sc1',
               f's_add_u32 s{sCnt}, s{sCnt}, 1', f's_cmp_gt_u32 s{sCnt}, {SPIN_MAX}', f's_cbranch_scc1 {ok}',
               's_waitcnt vmcnt(0)'] + flag_norm(v0 + 1) + [f'v_cmp_gt_u32 vcc, {val}, v{v0+1}', 's_nop 1', f's_cbranch_vccnz {again}', f's_branch {ok}']


NT = ['', '', '', '']
```

```python
import sys
sys.path.insert(0, 'gen')
from common import *
from ph_small import ph_mod, ph_final
import ph_a, ph_b, ph_c, ph_prep, ph_prep1

def kernel(name, fn, nwg, lds, vgpr=512, accum=256, spread=4, sv=14):
    A = Asm()
    end = f'L_end_{name}'
    A.uid = {'k1':6000,'k0':0,'ka':1000,'kb':2000,'kc':3000,'kd':4000}.get(name[:2], 5000)
    prologue(A, nwg, end, spread)
    stamp_begin(A, len(Stamps.names), sv)
    fn(A)
    stamp_end(A)
    A.wait_all()
    A(end + ':')
    A('s_endpgm')
    for x in A.tail:
        A._emit(Ins(x))
    A(f'L_{name[:2]}_end:')
    n = {}
    for i in A.out: n[i.kind] = n.get(i.kind, 0) + 1
    print(name, n, 'nops', A.nops_inserted, 'waits', A.waits_inserted, file=sys.stderr)
    return dict(name=name, grid=nwg, block=256, lds=lds, body=A.text(), vgpr=vgpr, accum=accum)

def multi(spread=4):
    ks = [kernel('k0_kernel', ph_prep.ph_prep, ph_prep.N_PREP, ph_prep.PREP_LDS, 136 if Stamps.on else 128, 136 if Stamps.on else 128, spread, 130),
          kernel('ka_kernel', ph_a.ph_a, 256, ph_a.A_LDS, spread=spread, sv=14),
          kernel('kb_kernel', ph_b.ph_b, 256, ph_b.B_LDS, spread=spread, sv=250),
          kernel('kc_kernel', ph_c.ph_c, 256, ph_c.C_LDS, spread=spread, sv=12),
          ]
    return ks

def merged_body(A):
    A.junk = ('v', 13)
    PF = ph_c.OPT.get('usepf', 1)
    ph_c.OPT['pfl'] = 0
    WINP = {}

    def win(name):
        if name in WINP:
            for x in ph_c.pf_ops(*WINP[name]):
                A(x)
    if PF:
        if PF == 1:
            ph_c.OPT['pf'] = [(24, 'gu', 18, 36), (44, 'gu', 36, 45), (60, 'd', 0, 27), (80, 'd', 27, 45)]
        elif PF == 2:
            ph_c.OPT['pf'] = [(8, 'g', 18, 27), (16, 'u', 18, 27), (30, 'g', 27, 36), (40, 'u', 27, 36), (52, 'g', 36, 45), (62, 'u', 36, 45)] + \
                [(74 + 10 * q, 'd', 9 * q, 9 * q + 9) for q in range(5)]
        elif PF == 4:
            ph_c.OPT['pf'] = [(30, 'gu', 27, 45), (60, 'd', 0, 45)]
        elif PF == 5:
            ph_c.OPT['pf'] = [(40, 'd', 0, 45)]
        elif PF == 30:
            ph_c.OPT['pf'] = [(2, 'gu', 9, 18), (28, 'gu', 18, 27), (48, 'gu', 27, 36), (66, 'gu', 36, 45), (82, 'd', 0, 23), (98, 'd', 23, 45)]
        elif PF == 31:
            ph_c.OPT['pf'] = [(2, 'gu', 9, 18), (26, 'gu', 18, 36), (52, 'gu', 36, 45), (66, 'd', 0, 27), (86, 'd', 27, 45)]
        elif PF == 32:
            ph_c.OPT['pf'] = [(24, 'gu', 18, 36), (44, 'gu', 36, 45), (60, 'd', 0, 27), (80, 'd', 27, 45)]
        elif PF >= 20:
            ph_c.OPT['pfl'] = 1
            ph_c.OPT['pf'] = {20: [(30, 'gu', 2, 1), (64, 'gu', 3, 1), (98, 'gu', 4, 1), (110, 'd', 0, 3), (130, 'd', 3, 2)],
                              21: [(4, 'gu', 1, 1), (36, 'gu', 2, 1), (70, 'gu', 3, 1), (100, 'gu', 4, 1), (112, 'd', 0, 3), (132, 'd', 3, 2)],
                              22: [(20, 'gu', 2, 1), (50, 'gu', 3, 1), (84, 'gu', 4, 1), (96, 'd', 0, 3), (120, 'd', 3, 2)],
                              23: [(36, 'g', 2, 1), (42, 'u', 2, 1), (70, 'g', 3, 1), (76, 'u', 3, 1), (96, 'g', 4, 1), (102, 'u', 4, 1), (112, 'd', 0, 2), (124, 'd', 2, 1), (140, 'd', 3, 1), (160, 'd', 4, 1)]}[PF]
        elif PF == 16:
            ph_c.OPT['pf'] = [(40, 'd', 0, 23), (60, 'd', 23, 45), (80, 'gu', 36, 45)]
        elif PF == 17:
            ph_c.OPT['pf'] = [(24, 'gu', 18, 27), (44, 'd', 0, 23), (64, 'd', 23, 45), (84, 'gu', 36, 45)]
        elif PF == 18:
            ph_c.OPT['pf'] = [(44, 'gu', 36, 45), (60, 'd', 0, 45)]
        elif PF == 15:
            ph_c.OPT['pf'] = [(24, 'gu', 18, 36), (44, 'gu', 36, 45)]
        elif PF in (6, 7):
            ph_c.OPT['pf'] = []
        elif PF == 8:
            ph_c.OPT['pf'] = [(22, 'gu', 18, 45), (62, 'd', 0, 45)]
        elif PF == 9:
            ph_c.OPT['pf'] = [(38, 'gud', 18, 45), (70, 'd', 0, 18)]
        elif 10 <= PF <= 14:
            WINP.update({10: dict(s1=('gu', 18, 27), st=('gu', 27, 36), s2=('gu', 36, 45)),
                         11: dict(s1=('gu', 18, 27), s2=('gu', 27, 36)),
                         12: dict(s1=('gu', 18, 27), st=('gu', 27, 36), s2=('gud', 36, 45)),
                         13: dict(s1=('gud', 18, 27), st=('gud', 27, 36), s2=('gud', 36, 45)),
                         14: dict(s2=('gu', 18, 27))}[PF])
            ph_c.OPT['pf'] = {10: [(40, 'd', 0, 23), (64, 'd', 23, 45)],
                              11: [(40, 'gu', 36, 45), (60, 'd', 0, 23), (84, 'd', 23, 45)],
                              12: [(40, 'd', 0, 18), (64, 'd', 18, 36)],
                              13: [(44, 'd', 0, 18)],
                              14: [(30, 'gu', 27, 36), (50, 'gu', 36, 45), (70, 'd', 0, 23), (90, 'd', 23, 45)]}[PF]
        elif PF == 3:
            ph_c.OPT['pf'] = [(20, 'g', 18, 27), (28, 'u', 18, 27), (40, 'g', 27, 36), (50, 'u', 27, 36), (60, 'g', 36, 45), (70, 'u', 36, 45)] + \
                [(80 + 9 * q, 'd', 9 * q, 9 * q + 9) for q in range(5)]

    def early():
        ph_c.ph_c_setup_s(A)
        ph_c.pf_setup(A)

    def late():
        if PF:
            for x in ph_c.pf_ops('gud' if PF == 6 else 'gu', 0, {4: 27, 5: 45, 6: 45, 20: 2, 21: 1, 22: 2, 23: 2, 30: 9, 31: 9}.get(PF, 18)):
                A(x)
    ph_a.NPRE_X, ph_a.NPRE_W = ph_c.OPT.get('apre', (0, 0))
    ph_a.LATE_S = 26 if PF == 32 else 30
    if TAGGED[0]:
        ph_prep1.prep(A, 'L_back_body', 'L_k1_end')
        stamp(A, 'prep done')
        ph_a.ph_a_main(A, early, late, lambda: ph_prep1.gate(A), lambda: ph_prep1.late_begin(A))
        ph_prep1.late_end(A)
    else:
        ph_a.ph_a_main(A, early, late)
    bg = ph_b.ph_b_dma(A)
    ph_a.ph_a_attn(A, bg[:ph_c.OPT.get('nbg', 25)])
    stamp(A, 'attn done')
    SLEEP[0] = ph_c.OPT.get('sleep', 0)
    NP1, NP2, NP3 = ph_c.OPT.get('np', (3, 5, 9))
    Q1, Q2, Q3 = ph_c.OPT.get('nq', (3, 5, 9))
    D1, D3 = ph_c.OPT.get('nd', (0, 0))
    R = ph_c.Ring(A)
    mko = A.mark()
    flag_base(A, 101, 0, sW)
    A(f's_lshl_b32 s40, s{sJ}, {FSC[0]}\ns_add_u32 s101, s101, s40')
    if D1:
        ph_c.ph_c_setup_v(A)
        A('s_barrier')
        ph_c.ph_c_prefill(A, R, 0, D1)
        publish(A, 16, 101, 4, mark=mko)
    else:
        publish(A, 16, 101, 4)
    A('s_barrier')
    stamp(A, 'o published')
    mk = ph_b.ph_b_pre(A)
    A('s_lshr_b32 s40, s5, 1')
    flag_base(A, 101, 0, 40)
    if not D1:
        ph_c.ph_c_setup_v(A)
    ph_c.ph_c_prefill(A, R, D1, max(D1, Q1))
    if ph_c.OPT.get('vecfirst'):
        A.wait_vm_mark(mk)
        ph_b.ph_b_vec(A)
    poll_begin(A, 16, 101, 2)
    ph_c.ph_c_prefill(A, R, max(D1, Q1), NP1)
    if not ph_c.OPT.get('vecfirst'):
        A.wait_vm_mark(mk)
        ph_b.ph_b_vec(A)
    ph_b.NPRE = ph_c.OPT.get('npre', 30)
    ph_b.ph_b_pre_frags(A)
    poll_end(A, 16, 101, 2, 41)
    stamp(A, 'S1')

    def before_stat():
        A('s_barrier')
        ph_c.ph_c_prefill(A, R, NP1, Q2)

    def after_stat():
        ph_c.ph_c_prefill(A, R, Q2, NP2)
        A('s_lshr_b32 s40, s5, 1')
        flag_base(A, 101, 1, 40)
        A(f's_lshl_b32 s40, s4, 1\ns_and_b32 s41, s{sW}, 1\ns_add_u32 s40, s40, s41\ns_lshl_b32 s40, s40, {FSC[0]}\ns_add_u32 s101, s101, s40')
        XO.extend(ph_c.ph_c_xload(A))
        ph_c.pair_setup(A)
        ph_c.tail_setup(A)
        if ph_c.OPT['itouch']:
            itouch_setup(A, ph_c.vIL)
    XO = []
    ph_b.ph_b_main(A, before_stat, after_stat)
    xops = XO
    mkh = A.mark()
    ph_c.ph_c_prefill(A, R, NP2, NP2 + D3)
    publish(A, 16, 101, 10, mark=mkh if D3 else None)
    stamp(A, 'h2 published')
    flag_base(A, 101, 1, sW)
    ph_c.ph_c_prefill(A, R, NP2 + D3, max(NP2 + D3, Q3))
    poll_begin(A, 16, 101, 10)
    ph_c.ph_c_prefill(A, R, max(NP2 + D3, Q3), NP3)
    poll_end(A, 16, 101, 10, 40)
    stamp(A, 'S2')
    ph_c.ph_c_stream(A, R, NP3, xops)
    def publish_all():
        A(f'buffer_load_dword v9, v8, s[16:19], s{ph_c.sS3C} offen sc1')
        publish(A, 16, ph_c.sS3O, 6, 3)
        for x in flag_norm(9):
            A(x)
        stamp(A, 'part published')

    def wait(v):
        lab, ok = A.label('L_w'), A.label('L_wok')
        check(v)
        A(f's_cbranch_scc1 {ok}')
        st = (list(A.vmq), list(A.lgq), A.vm_issued, A.lg_issued)
        poll(A, 16, ph_c.sS3C, 8, 43, v)
        A.vmq, A.lgq, A.vm_issued, A.lg_issued = st
        A(ok + ':')
        if Stamps.on and v > 1:
            A(f's_memtime s[88:89]\nv_writelane_b32 v14, s88, {43+v}')

    def check(v):
        A(f'v_cmp_gt_u32 vcc, {v}, v9')
        A('s_cmp_eq_u64 vcc, 0')
    ph_final(A, publish_all, wait, check)
    if TAGGED[0]:
        ph_prep1.epoch_update(A)


def one(spread=4):
    TAGGED[0] = True; HS[0] = ' sc1'
    ph_prep1.OPT1.update(ph_c.OPT)
    NT[:] = [' nt' if ph_c.OPT.get('nt', 3) >> q & 1 else '' for q in range(4)]
    FSC[:] = ph_c.OPT.get('fs', (6, 6))
    return [kernel('k1_kernel', merged_body, 256, 163840, spread=spread, sv=14)]


def two(spread=4):
    if ph_c.OPT.get('one'):
        return one(spread)
    TAGGED[0] = False; HS[0] = ''
    import ph_small as FS
    FS.P0, FS.X0, FS.X1, FS.X2 = (80, 112, 124, 48) if ph_c.OPT.get('allarch') else (16, 96, 108, 120)
    import ph_small
    ph_small.OUTPOL[0] = {0: '', 1: ' sc1', 2: ' nt', 3: ' sc0 sc1'}[ph_c.OPT.get('outpol', 0)]
    ph_prep.NEXT[:] = ['k1_kernel', 'L_k1_end']
    NT[:] = [' nt' if ph_c.OPT.get('nt', 3) >> q & 1 else '' for q in range(4)]
    FSC[:] = ph_c.OPT.get('fs', (6, 6))
    ph_prep.POPT['nlight'] = ph_c.OPT.get('nlight', 84)
    ph_prep.POPT['xm'] = ph_c.OPT.get('xm', 0)
    ph_prep.POPT['lin'] = ph_c.OPT.get('lin', 0)
    ph_prep.POPT['tlb'] = ph_c.OPT.get('tlb', 0); ph_prep.POPT['pf'] = ph_c.OPT.get('k0pf', 0)
    k0 = kernel('k0_kernel', ph_prep.ph_prep, ph_prep.n_prep(), ph_prep.PREP_LDS, 136 if Stamps.on else 128, 136 if Stamps.on else 128, spread, 130)
    pol = {0: '', 1: ' sc1', 2: ' sc0 sc1', 3: ' nt'}[ph_c.OPT.get('k0st', 0)]
    if pol:
        k0['body'] = '\n'.join(l + pol if l.strip().startswith('buffer_store') and 's88' not in l else l for l in k0['body'].split('\n'))
    return [k0, kernel('k1_kernel', merged_body, 256, 163840, spread=spread, sv=14)]


if __name__ == '__main__':
    out = sys.argv[1] if len(sys.argv) > 1 else 'v1.s'
    if 'stamp' in sys.argv:
        Stamps.on = True
    for a in sys.argv[2:]:
        if '=' in a:
            k, v = a.split('=')
            ph_c.OPT[k] = int(v)
    open(out, 'w').write(build(two() if 'two' in sys.argv else multi()))
    if Stamps.on:
        import json
        json.dump(Stamps.names, open(out + '.json', 'w'))
```

```python
from common import *
import ph_small as FS
import sys

NS = 10
WIN = 4
C_LDS = NS * 16384
BIAS = 4096

ACC = 16
HB = 144
vF = 216
vH = 228
vDG, vDH, vDD, vDE = 234, 235, 236, 237
vL16, vOUT = 238, 239
TMP = 240
OUTT = 248
aX = 0
aPH = 144
aFR = 216
sgG, sgU, sgGH, sgD, sgWS = 8, 12, 20, 24, 16

vT1, vT2 = 4, 5
OPT = dict(dma=True, fill=True, barrier=True, reads=True, pairs=False, NB=10, LA=6, LB=6, LAT=5, lag=0, lead=1, bigov=0, wstep=4, bper=2, xburst=8, xpace=4, dlag=28, prefill=6,
           rush={0: 70, 1: 106, 2: 142, 3: 162, 4: 172}, pubdelay=64, pub3delay=64, pub3=1, sched=0, pf=[], touch=[], itouch=[], fin=(212, 223, 229, 233), d2hi=0, outrush={0: 203, 1: 210, 2: 225, 3: 241}, hxst=1, hxpub=1, hxld=1, outst=1,
           checks=[(1, (0, 1), 122, 128), (2, (2,), 154, 159), (3, (3,), 176, 182), (4, (4,), 184, 189)])


def steps():
    st = []
    for p in range(4):
        for k in range(18):
            st.append(dict(kind='g', p=p, k=k))
            st.append(dict(kind='u', p=p, k=k))
    for k in range(18):
        st.append(dict(kind='gh', p=4, k=k))

    def dn(db, ks, who=0):
        for a in ks:
            st.append(dict(kind='dn', p=db, a=a, who=who))
    if not OPT['pairs']:
        ND = 3
        for db in range(ND):
            dn(db, range(6))
        for db in range(ND):
            dn(db, range(6, 9))
        for db in range(ND, 9):
            dn(db, range(9))
    else:
        if OPT.get('late2'):
            dn(0, range(6)); dn(0, range(4), 1)
            dn(1, range(6)); dn(1, range(4), 1)
            dn(0, range(4, 6), 1); dn(1, range(4, 6), 1)
        else:
            dn(0, range(6)); dn(0, range(6), 1)
            dn(1, range(6)); dn(1, range(6), 1)
        dn(0, range(6, 9)); dn(1, range(6, 9))
        if OPT['sched'] == 0:
            dn(0, range(6, 9), 1); dn(1, range(6, 9), 1)
            dn(2, range(9)); dn(2, range(9), 1)
        else:
            dn(2, range(OPT['sched']))
            dn(0, range(6, 9), 1); dn(1, range(6, 9), 1)
            dn(2, range(OPT['sched'], 9)); dn(2, range(9), 1)
        dn(3, range(9)); dn(3, range(9), 1)
        for u in range(9):
            st.append(dict(kind='dh', p=4, u=u))
    seen = set()
    for e in st:
        if e['kind'] in ('dn', 'dh'):
            e['first'] = e['p'] not in seen
            seen.add(e['p'])
    seen = set()
    for e in reversed(st):
        if e['kind'] in ('dn', 'dh'):
            e['last'] = e['p'] not in seen
            seen.add(e['p'])
    return st


def dtile(ab, dt):
    return ab[dt] if isinstance(ab, list) else ab + 8 * dt


def down_acc(db):
    if not OPT['pairs']:
        tab = {0: ('a', aX), 1: ('a', aX + 32), 2: ('a', aX + 64)}
        return tab.get(db, ('v', ACC + 32 * ((db + 1) % 4)))
    if OPT.get('allarch'):
        lo = [ACC + 16, ACC + 24, ACC + 48, ACC + 56]
        return 'v', {0: lo, 1: ACC + 64, 2: ACC + 96, 3: lo, 4: ACC}[db]
    return {0: ('a', aX), 1: ('a', aX + 32), 2: ('v', ACC + 80 if OPT.get('d2hi', 1) else ACC), 3: ('v', ACC + 32), 4: ('v', ACC + 64)}[db]


def ph_c_setup_s(A):
    A.comment('==== phase C: setup ====')
    srd(A, sgG, sWG, 576 * 9216, bias=BIAS)
    srd(A, sgU, sWU, 576 * 9216, bias=BIAS + 1024)
    A(f'''s_cmp_lt_u32 s{sW}, 2
    s_cselect_b32 s96, s{sWG}, s{sWU}
    s_cselect_b32 s97, s{sWG+1}, s{sWU+1}''')
    srd(A, sgGH, 96, 576 * 9216, bias=BIAS)
    srd(A, sgD, sWD, F * 1152, bias=BIAS)
    A(f'''s_and_b32 s96, s{sJ}, 1
    s_mul_i32 s97, s{sJ}, 288
    s_lshl_b32 s98, s96, 5
    s_add_u32 s98, s98, s97
    s_lshl_b32 s56, s98, 1
    s_mul_i32 s58, s98, 1152
    s_cmp_eq_u32 s96, 0
    s_cselect_b32 s98, 256, 0
    s_add_u32 s98, s98, s97
    s_lshl_b32 s57, s98, 1
    s_mul_i32 s59, s98, 1152
    s_lshl_b32 s60, s{sW}, 12''')
    if OPT['pairs']:
        A(f'''s_cmp_eq_u32 s96, 0
        s_mov_b32 s98, {-288*1152 & 0xffffffff}
        s_cmov_b32 s98, {320*1152}
        s_mov_b32 s99, {-32*1152 & 0xffffffff}
        s_cmov_b32 s99, {288*1152}
        s_cselect_b32 s52, 0, 640
        s_movk_i32 s53, 576
        s_cmov_b32 s53, 512
        s_mul_i32 s100, s97, 1152
        s_add_u32 s50, s100, s98
        s_add_u32 s51, s100, s99
        s_add_u32 s50, s50, s52
        s_add_u32 s51, s51, s52
        s_add_u32 s48, s59, s53
        s_add_u32 s49, s51, s53
        s_sub_u32 s49, s49, s52
        s_add_u32 s46, s58, s53
        s_add_u32 s47, s50, s53
        s_sub_u32 s47, s47, s52
        s_add_u32 s58, s58, s52
        s_add_u32 s59, s59, s52
        s_lshr_b32 s45, s{sW}, 1
        s_mul_i32 s45, s45, {32*1152}''')
    np_ = 8 if OPT['pairs'] else 16
    A(f'''s_mul_i32 s96, s{sG}, {np_}
    s_lshr_b32 s97, s{sJ}, {1 if OPT['pairs'] else 0}
    s_add_u32 s96, s96, s97
    s_lshl_b32 s96, s96, 3
    s_lshl_b32 s97, s{sW}, 1
    s_add_u32 s96, s96, s97
    s_mul_i32 s55, s96, {T16}
    s_add_u32 s55, s55, {WS_PART}
    s_mov_b32 s62, {fbits(-LOG2E)}''')
    if OPT['pairs']:
        A(f'''s_lshl_b32 s96, s53, 4
        s_add_u32 s54, s55, s96
        s_lshl_b32 s96, s52, 4
        s_add_u32 s55, s55, s96''')


sPFB = 91
vPG, vPD, aJ = 254, 255, 128
aJC = None


def pf_setup(A):
    if OPT.get('pfl'):
        A(f's_movk_i32 s{sPFB}, {BIAS}')
        return pfl_setup(A)
    A(f'''v_mul_u32_u24 v176, 57, v{vLANE}
    v_lshrrev_b32 v176, 9, v176
    v_mul_u32_u24 v177, 9, v176
    v_sub_u32 v177, v{vLANE}, v177
    s_lshl_b32 s96, s{sG}, 2
    s_add_u32 s96, s96, s{sW}
    s_mul_i32 s96, s96, 9
    v_add_u32 v177, s96, v177
    s_movk_i32 s97, 9216
    v_mul_lo_u32 v178, v177, s97
    v_lshlrev_b32 v179, 7, v176
    v_add_u32 v180, s56, v179
    v_mov_b32 v181, s57
    v_cmp_eq_u32 vcc, 4, v176
    v_cndmask_b32 v180, v180, v181, vcc
    v_add_u32 v{vPG}, v178, v180
    s_lshr_b32 s96, s{sJ}, 1
    s_mul_i32 s96, s96, 576
    v_add_u32 v177, s96, v177
    v_mul_u32_u24 v177, 1152, v177
    s_and_b32 s96, s{sJ}, 1
    s_lshl_b32 s96, s96, 9
    v_add_u32 v179, s96, v179
    v_add_u32 v{vPD}, v177, v179
    s_movk_i32 s{sPFB}, {BIAS}''')


vPH = 253


def pfl_setup(A):
    A(f'''v_mul_u32_u24 v160, 57, v{vLANE}
    v_lshrrev_b32 v160, 10, v160
    v_mul_u32_u24 v161, 18, v160
    v_sub_u32 v161, v{vLANE}, v161
    s_lshr_b32 s96, s{sG}, 1
    s_lshl_b32 s96, s96, 2
    s_add_u32 s96, s96, s{sW}
    s_mul_i32 s96, s96, 18
    v_add_u32 v161, s96, v161
    s_movk_i32 s97, 9216
    v_mul_lo_u32 v162, v161, s97
    v_lshlrev_b32 v163, 7, v160
    v_add_u32 v162, v162, v163
    v_add_u32 v{vPG}, s56, v162
    s_lshr_b32 s96, s{sJ}, 1
    s_mul_i32 s96, s96, 576
    v_add_u32 v161, s96, v161
    v_mul_u32_u24 v161, 1152, v161
    s_and_b32 s96, s{sJ}, 1
    s_lshl_b32 s96, s96, 9
    v_add_u32 v163, s96, v163
    v_add_u32 v{vPD}, v161, v163
    s_sub_u32 s90, s57, s56
    s_add_u32 s90, s90, {BIAS}''')


def pfl_ops(mats, p0, n, dst='v13'):
    m = (1 << (18 * n)) - 1
    r = [f's_mov_b32 exec_lo, {m & 0xffffffff}', f's_mov_b32 exec_hi, {m >> 32}']
    for c in mats:
        sg, v = {'g': (sgG, vPG), 'u': (sgU, vPG), 'd': (sgD, vPD)}[c]
        extra = 1024 if c == 'u' else 0
        if c != 'd' and p0 == 4:
            so, off = 's90', extra
        else:
            so, off = f's{sPFB}', extra + 128 * p0
        r.append(f'buffer_load_dword {dst}, v{v}, s[{sg}:{sg+3}], {so} offen offset:{off} nt')
    r.append('s_mov_b64 exec, -1')
    return r


def pf_ops(mats, lo, hi, dst='v13'):
    if OPT.get('pfl'):
        return pfl_ops(mats, lo, hi)
    m = ((1 << hi) - 1) ^ ((1 << lo) - 1)
    r = [f's_mov_b32 exec_lo, {m & 0xffffffff}', f's_mov_b32 exec_hi, {m >> 32}']
    for q, c in enumerate(mats):
        sg, v = {'g': (sgG, vPG), 'u': (sgU, vPG), 'd': (sgD, vPD)}[c]
        o = ' offset:1024' if c == 'u' else ''
        r.append(f'buffer_load_dword {dst}, v{v}, s[{sg}:{sg+3}], s{sPFB} offen{o}{" nt" if OPT.get("pfnt") else ""}')
    r.append('s_mov_b64 exec, -1')
    return r


def ph_c_setup_v(A):
    A(f'''v_lshrrev_b32 v4, 3, v{vLANE}
    v_and_b32 v5, 7, v{vLANE}
    v_bfe_u32 v6, v{vLANE}, 4, 1
    s_and_b32 s40, s{sW}, 1
    s_lshr_b32 s41, s{sW}, 1
    s_lshl_b32 s42, s40, 1
    v_add_u32 v6, s42, v6
    v_lshlrev_b32 v6, 1, v6
    v_xor_b32 v5, v5, v6
    v_lshlrev_b32 v5, 4, v5
    s_lshl_b32 s42, s{sW}, 3
    v_add_u32 v6, s42, v4
    s_movk_i32 s43, 9216
    v_mul_lo_u32 v6, v6, s43
    v_add_u32 v{vDG}, v6, v5
    v_lshrrev_b32 v6, 2, v4
    v_lshlrev_b32 v6, 4, v6
    v_and_b32 v7, 3, v4
    v_add_u32 v6, v6, v7
    s_lshl_b32 s42, s{sW}, 2
    v_add_u32 v6, s42, v6
    v_mul_u32_u24 v6, 1152, v6
    v_add_u32 v{vDD}, v6, v5''')
    A(f'''v_lshrrev_b32 v4, 2, v{vLANE}
    v_and_b32 v5, 3, v{vLANE}
    v_lshrrev_b32 v6, 5, v{vLANE}
    v_lshlrev_b32 v7, 1, v6
    v_xor_b32 v5, v5, v7
    v_lshlrev_b32 v5, 4, v5
    s_lshl_b32 s42, s40, 4
    v_add_u32 v7, s42, v4
    v_mul_lo_u32 v7, v7, s43
    v_add_u32 v{vDH}, v7, v5
    v_bfe_u32 v7, v4, 2, 1
    v_lshlrev_b32 v7, 4, v7
    v_lshl_add_u32 v7, v6, 2, v7
    v_and_b32 v8, 3, v4
    v_add_u32 v7, v7, v8
    s_lshl_b32 s42, s40, 3
    v_add_u32 v7, s42, v7
    v_mul_u32_u24 v7, 1152, v7
    v_add_u32 v{vDE}, v7, v5''')
    A(f'''v_lshrrev_b32 v4, 4, v{vLANE}
    v_bfe_u32 v5, v{vLANE}, 2, 2
    v_bfe_u32 v6, v{vLANE}, 1, 1
    v_and_b32 v7, 1, v{vLANE}
    v_lshlrev_b32 v7, 3, v7
    v_lshl_add_u32 v7, v6, 4, v7
    v_and_b32 v8, 1, v4
    v_lshlrev_b32 v9, 1, v8
    v_lshrrev_b32 v10, 1, v5
    v_add_u32 v9, v9, v10
    v_lshlrev_b32 v9, 5, v9
    v_xor_b32 v9, v9, v7
    v_lshl_add_u32 v9, v5, 7, v9
    v_lshl_add_u32 v9, v4, 12, v9
    v_lshlrev_b32 v10, 5, v8
    v_xor_b32 v10, v10, v7
    v_lshl_add_u32 v10, v5, 6, v10
    v_lshl_add_u32 v10, v8, 9, v10
    v_lshrrev_b32 v11, 1, v4
    v_lshl_add_u32 v10, v11, 12, v10''')
    for wd in range(3):
        A(f'v_add_u32 v{vF+4*wd}, {WIN*16384*wd}, v9')
        for ft in range(1, 4):
            A(f'v_xor_b32 v{vF+4*wd+ft}, {32*ft}, v{vF+4*wd}')
        A(f'v_add_u32 v{vH+2*wd}, {WIN*16384*wd}, v10')
        A(f'v_xor_b32 v{vH+2*wd+1}, 32, v{vH+2*wd}')
    A(f'''v_lshlrev_b32 v{vL16}, 4, v{vLANE}
    v_lshlrev_b32 v8, 1, v8
    v_or_b32 v8, v8, v11
    v_lshlrev_b32 v8, 8, v8
    v_and_b32 v9, 15, v{vLANE}
    v_lshl_add_u32 v{vOUT}, v9, 4, v8''')


def ph_c_setup(A):
    ph_c_setup_s(A)
    ph_c_setup_v(A)


def nt_step(e):
    m = OPT.get('dmant', 0)
    if m == 1:
        return True
    if m == 2:
        return not (e['kind'] in 'gu' and e['p'] < 2)
    if m == 4:
        return e['kind'] in 'gu' and e['p'] >= 2
    if m == 5:
        return e['kind'] in 'gu' and e['p'] >= 3
    if m == 3:
        return e['kind'] in ('dn', 'dh')
    return False


def dma_ops(st, n):
    if n >= len(st) or (not OPT['dma'] and n >= 28):
        return []
    e = st[n]
    slot, z = divmod(n, 4)
    r = []
    if z == 0:
        r.append(f's_add_u32 m0, s60, {(slot % NS) * 16384}')
    comp = BIAS - 1024 * z
    k = e['kind']
    if k in 'gu':
        if k == 'g':
            r.append(f's_add_u32 s61, s56, {comp + e["p"]*128 + e["k"]*32*9216}')
        else:
            assert z & 1 and st[n - 1]['kind'] == 'g'
        q, v = (sgG if k == 'g' else sgU), vDG
    elif k == 'gh':
        r.append(f's_add_u32 s61, s57, {comp + e["k"]*32*9216}')
        q, v = sgGH, vDH
    elif k == 'dn':
        full, half = ((58, 59), (50, 51))[e['who']]
        if e['a'] < 8:
            r.append(f's_add_u32 s61, s{full}, {comp + e["p"]*128 + e["a"]*32*1152}')
        else:
            r.append(f's_add_u32 s61, s{half}, {comp + e["p"]*128}')
        q, v = sgD, vDD
    else:
        offs = []
        for par in range(2):
            who, a = divmod(2 * e['u'] + par, 9)
            sreg = ((46, 48), (47, 49))[who][a == 8]
            offs.append((sreg, comp + (a % 8) * 32 * 1152))
        if offs[0][0] == offs[1][0]:
            r.append(f's_add_u32 s61, s{offs[0][0]}, s45')
            r.append(f's_add_u32 s61, s61, {offs[0][1]}')
        else:
            r.append(f's_add_u32 s61, s{offs[0][0]}, {offs[0][1]}')
            r.append(f's_add_u32 s44, s{offs[1][0]}, {offs[1][1]}')
            r.append(f's_cmp_lt_u32 s{sW}, 2\ns_cselect_b32 s61, s61, s44')
        q, v = sgD, vDE
    r.append(f'buffer_load_dwordx4 v{v}, s[{q}:{q+3}], s61 offen offset:{1024*z}{" nt" if nt_step(e) else ""} lds')
    if OPT.get('dmajunk') and n >= 28:
        r[-1] = r[-1].replace(' lds', '').replace('buffer_load_dwordx4 ', 'buffer_load_dwordx4 a[212:215], ')
    return r


def mf_info(st, mu):
    n, e8 = divmod(mu, 8)
    fl, tt = divmod(e8, 2)
    if OPT.get('snake') and fl & 1:
        tt ^= 1
    e = st[n]
    slot, z = divmod(n, 4)
    win, sl = divmod(slot % NS, WIN)
    base = sl * 16384 + z * 1024
    k = e['kind']
    if k in 'gu':
        acc = ('v', ACC + 64 * (e['p'] & 1) + (32 if k == 'u' else 0) + 8 * fl + 4 * tt)
        b = ('a', aX + 72 * tt + 4 * e['k'])
        return acc, b, e['k'] == 0, vF + 4 * win + fl, [base + rd * 512 for rd in range(2)]
    if k == 'gh':
        mat, ft = divmod(fl, 2)
        acc = ('v', ACC + 32 * mat + 8 * ft + 4 * tt)
        b = ('a', aX + 72 * tt + 4 * e['k'])
        return acc, b, e['k'] == 0, vH + 2 * win + ft, [base + mat * 8192 + rd * 256 for rd in range(2)]
    ak, ab = down_acc(e['p'])
    if k == 'dn':
        acc = (ak, dtile(ab, fl) + 4 * tt)
        b = ('v', HB + 8 * e['a'] + 4 * tt) if e['who'] == 0 else ('a', aPH + 8 * e['a'] + 4 * tt)
        return acc, b, e['first'], vF + 4 * win + fl, [base + rd * 512 for rd in range(2)]
    par, dt = divmod(fl, 2)
    who, a = divmod(2 * e['u'] + par, 9)
    acc = (ak, dtile(ab, dt) + 4 * tt)
    b = ('v', HB + 8 * a + 4 * tt) if who == 0 else ('a', aPH + 8 * a + 4 * tt)
    return acc, b, e['first'] and par == 0, vH + 2 * win + dt, [base + par * 8192 + rd * 256 for rd in range(2)]


def act_ops(p):
    ops = []
    s = ACC + 64 * (p & 1)
    for ft in range(4 if p < 4 else 2):
        for tt in range(2):
            g = s + 8 * ft + 4 * tt
            u = g + 32
            h = HB + 8 * (2 * p + ft // 2) + 4 * tt + 2 * (ft & 1)
            T = TMP + 4 * tt
            r = range(4)
            ops += [(f'v_exp_f32 v{T+e}, v{g+e}', 2) for e in r]
            ops += [(f'v_add_f32 v{T+e}, 1.0, v{T+e}', 1) for e in r]
            ops += [(f'v_rcp_f32 v{T+e}, v{T+e}', 2) for e in r]
            ops += [(f'v_mul_f32 v{T+e}, v{u+e}, v{T+e}', 1) for e in r]
            ops += [(f'v_cvt_pk_bf16_f32 v{h+d}, v{T+2*d}, v{T+2*d+1}', 1) for d in range(2)]
    return ops


def out_ops(db, half=False):
    ops = []
    ak, ab = down_acc(db)
    for tt in range(2):
        for pr in range(1 if half else 2):
            P = OUTT + 4 * (pr & 1)
            for d in range(2):
                src = dtile(ab, 2 * pr + d) + 4 * tt
                if ak == 'a':
                    ops += [(f'v_accvgpr_read_b32 v{TMP+e}, a{src+e}', 1) for e in range(4)]
                    src = TMP
                ops += [(f'v_cvt_pk_bf16_f32 v{P+2*d+c}, v{src+2*c}, v{src+2*c+1}', 1) for c in range(2)]
            if pr == 0:
                off = tt * T16 + (0 if half else db * 2048)
                ops.append((f's_add_u32 s63, s{54 if half else 55}, {off}', 1))
            ops += [(f'v_permlane16_swap_b32 v{P}, v{P+2}', 2), (f'v_permlane16_swap_b32 v{P+1}, v{P+3}', 2)]
            if OPT['outst']:
              ops.append((f'buffer_store_dwordx4 v[{P}:{P+3}], v{vOUT}, s[{sgWS}:{sgWS+3}], s63 offen offset:{pr*1024} sc1', 2))
    return ops


sHXO, sHXP, sPFO, sPFP, sT = 52, 53, 7, 38, 39
vPF, vPV, vZ, vIL = 2, 3, 15, 12


def pair_setup(A):
    A(f'''s_lshl_b32 s40, s{sG}, 4
    s_add_u32 s40, s40, s{sJ}
    s_lshl_b32 s40, s40, 2
    s_add_u32 s40, s40, s{sW}
    s_xor_b32 s43, s40, 4
    s_mul_i32 s{sHXO}, s40, 18432
    s_add_u32 s{sHXO}, s{sHXO}, {WS_HX}
    s_mul_i32 s{sHXP}, s43, 18432
    s_add_u32 s{sHXP}, s{sHXP}, {WS_HX}
    s_lshl_b32 s{sPFO}, s40, {FSC[1]}
    s_add_u32 s{sPFO}, s{sPFO}, {WS_PF}
    s_lshl_b32 s{sPFP}, s43, {FSC[1]}
    s_add_u32 s{sPFP}, s{sPFP}, {WS_PF}
    v_mov_b32 v{vZ}, 0''')


sS3O, sS3C, sTB = 3, 4, 5
vT1, vT2, vFA, vFV = 4, 5, 6, 7


def tail_setup(A):
    flag_base(A, sS3O, 2, sW)
    A(f's_lshl_b32 s40, s{sJ}, {FSC[0]}\ns_add_u32 s{sS3O}, s{sS3O}, s40\ns_lshr_b32 s40, s{sJ}, 2')
    flag_base(A, sS3C, 2, 40)
    A(f'''s_mul_i32 s{sTB}, s{sG}, {64*T16}
    s_lshr_b32 s40, s{sJ}, 1
    s_mul_i32 s40, s40, {T16}
    s_add_u32 s{sTB}, s{sTB}, s40
    s_and_b32 s40, s{sJ}, 1
    s_lshl_b32 s40, s40, 7
    s_add_u32 s{sTB}, s{sTB}, s40
    s_mul_i32 s40, s{sW}, {16*T16}
    s_add_u32 s{sTB}, s{sTB}, s40
    s_add_u32 s{sTB}, s{sTB}, {WS_PART}
    v_and_b32 v{vFA}, 15, v{vLANE}
    v_lshrrev_b32 v8, 5, v{vLANE}
    v_mul_u32_u24 v8, {8*T16}, v8
    v_bfe_u32 v9, v{vLANE}, 4, 1
    v_mul_u32_u24 v10, 24, v9
    v_and_b32 v11, 31, v{vLANE}
    v_add_u32 v10, v10, v11
    v_lshl_add_u32 v{vT1}, v10, 8, v8
    v_mul_u32_u24 v8, {8*T16}, v9
    v_bfe_u32 v9, v{vLANE}, 3, 1
    v_lshlrev_b32 v9, 5, v9
    v_add3_u32 v9, v9, v{vFA}, 16
    v_lshl_add_u32 v{vT2}, v9, 8, v8
    v_lshlrev_b32 v{vFA}, {FSC[0]}, v{vFA}''')


def hx_store_ops(p):
    n = 4 if p < 4 else 2
    ops = [(f's_add_u32 s{sT}, s{sHXO}, {4096*p}', 1)]
    for q in range(n):
        r = HB + 16 * p + 4 * q
        ops.append((f'buffer_store_dwordx4 v[{r}:{r+3}], v{vL16}, s[{sgWS}:{sgWS+3}], s{sT} offen offset:{1024*q} sc1', 2))
    return ops


def hx_load_ops(p):
    n = 4 if p < 4 else 2
    ops = [f's_add_u32 s43, s{sHXP}, {4096*p}']
    for q in range(n):
        r = aPH + 16 * p + 4 * q
        ops.append(f'buffer_load_dwordx4 a[{r}:{r+3}], v{vL16}, s[{sgWS}:{sgWS+3}], s43 offen offset:{1024*q} sc1')
    return ops


class Ring:
    def __init__(self, A):
        self.A = A
        self.st = steps()
        self.marks = {}

    def issue(self, n):
        for x in dma_ops(self.st, n):
            self.A(x)
        if n % 4 == 3 or n == len(self.st) - 1:
            self.marks[n // 4] = self.A.mark()


def ph_c_prefill(A, R, s0, s1):
    for n in range(int(4 * s0), int(4 * s1)):
        R.issue(n)


def ph_c_xload(A):
    A(f'''s_lshl_b32 s40, s{sG}, 3
    s_lshl_b32 s41, s{sW}, 1
    s_add_u32 s40, s40, s41
    s_mul_i32 s41, s40, {T16}
    s_add_u32 s41, s41, {WS_H2}
    s_add_u32 s42, s41, {T16}''')
    ops = []
    for k in range(18):
        for tt in range(2):
            r = aX + 72 * tt + 4 * k
            ops.append(f'buffer_load_dwordx4 a[{r}:{r+3}], v{vL16}, s[{sgWS}:{sgWS+3}], s{41+tt} offen offset:{1024*(k%4)} sc1')
        if k % 4 == 3:
            ops.append('s_add_u32 s41, s41, 4096')
            ops.append('s_add_u32 s42, s42, 4096')
    return ops


def ph_c_stream(A, R, prefilled, xops):
    st = R.st
    NST = len(st)
    NM = 8 * NST
    NF = 4 * NST
    info = [mf_info(st, mu) for mu in range(NM)]
    NB, LA, WS_ = OPT['NB'], OPT['LA'], OPT['wstep']
    global aFR
    aFR = 256 - 4 * NB

    def reads(phi):
        if not OPT['reads'] and phi >= 8:
            return [None, None]
        acc, b, first, va, offs = info[2 * phi]
        f = aFR + 4 * (phi % NB)
        return [f'ds_read_b64_tr_b16 a[{f+2*rd}:{f+2*rd+1}], v{va} offset:{offs[rd]}' for rd in range(2)]

    BP = OPT['bper']

    def boundary(slot):
        A.wait_vm_mark(R.marks[min(slot + BP - 1, (NST - 1) // 4)])
        if OPT['barrier']:
            A('s_barrier')

    def deadline(ins, mu0):
        d, u = set(ins.defs), set(ins.uses)
        for mu in range(mu0, NM):
            acc, b, first, va, offs = info[mu]
            if d & set(rl(b[0], b[1], 4)):
                return mu
            if first and u & set(rl(acc[0], acc[1], 4)):
                return mu
        return NM + 40

    xq = list(xops)

    def xissue():
        while xq[0].startswith('s_'):
            A(xq.pop(0))
        A(xq.pop(0))
        while xq and xq[0].startswith('s_'):
            A(xq.pop(0))
    for k in range(OPT['xburst']):
        xissue()
    boundary(0)
    stamp(A, 'slot0 landed')
    for phi in range(LA):
        for x in reads(phi):
            A(x)
    pairs = OPT['pairs'] and OPT['fill']
    events = []
    hxq = []
    got = set()

    def ev_publish(val, mark):
        def f():
            A.wait_vm_mark(mark())
            flag_value(A, vPV, val)
            A('s_mov_b64 exec, 1')
            A(f'buffer_store_dword v{vPV}, v{vZ}, s[{sgWS}:{sgWS+3}], s{sPFO} offen sc1')
            A('s_mov_b64 exec, -1')
        return f

    def ev_flagload():
        A(f'buffer_load_dword v{vPF}, v{vZ}, s[{sgWS}:{sgWS+3}], s{sPFP} offen sc1')

    def ev_check(val, blocks):
        def f():
            slow, back, again = A.label('L_slow'), A.label('L_back'), A.label('L_again')
            sn = [f's_sub_u32 s40, s40, s{sTAG}', 's_cmp_lt_u32 s40, 8', 's_cselect_b32 s40, s40, 0'] if TAGGED[0] else []
            A(f'v_readfirstlane_b32 s40, v{vPF}')
            for x in sn:
                A(x)
            A(f's_cmp_ge_u32 s40, {val}')
            if Stamps.on:
                A(f's_cselect_b32 s88, 1, 0\nv_writelane_b32 v14, s88, {50+val}')
            A(f's_cbranch_scc0 {slow}')
            A(back + ':')
            A.tail += [slow + ':', 's_mov_b32 s44, 0', again + ':'] + backoff() + [
                       f'buffer_load_dword v{vPF}, v{vZ}, s[{sgWS}:{sgWS+3}], s{sPFP} offen sc1',
                       's_add_u32 s44, s44, 1', f's_cmp_gt_u32 s44, {SPIN_MAX}', f's_cbranch_scc1 {back}',
                       's_waitcnt vmcnt(0)', f'v_readfirstlane_b32 s40, v{vPF}', 's_nop 1'] + sn + [f's_cmp_ge_u32 s40, {val}',
                       f's_cbranch_scc0 {again}', f's_branch {back}']
            for p in blocks:
                if OPT['hxld']:
                    hxq.extend(hx_load_ops(p))
        return f
    def ev_pub3(val, mark):
        def f():
            A.wait_vm_mark(mark())
            flag_value(A, vPV, val)
            A('s_mov_b64 exec, 1')
            A(f'buffer_store_dword v{vPV}, v{vZ}, s[{sgWS}:{sgWS+3}], s{sS3O} offen sc1')
            A('s_mov_b64 exec, -1')
        f.optional = True
        return f

    def ev_flag3():
        assert not set(slowq) & set(FS.final_setup_ops()), 'final set-up not finished'
        A(f'buffer_load_dword v9, v8, s[{sgWS}:{sgWS+3}], s{sS3C} offen sc1')

    def ev_early():
        for x in flag_norm(9):
            A(x)
        A('v_cmp_gt_u32 vcc, 1, v9')
        A('s_cmp_eq_u64 vcc, 0')
        A(f's_cselect_b32 s{FS.sVALID}, 1, 0')
        A(f's_cselect_b32 s6, s98, {WS_XH}')
        if Stamps.on:
            A(f'v_writelane_b32 v14, s{FS.sVALID}, 41')
        busy = set(rl('v', FS.P0, 32))
        assert not any(busy & set(Ins(x).uses) for x, c, d in fill if c), 'stage-1 loads would overwrite live accumulators'
        slowq.extend(FS.parts_ops(52, FS.P0, 6))
        if X1LATE[0]:
            A(f's_cselect_b32 s7, s96, {WS_XH}')
            slowq.extend(FS.x1_ops(52, FS.X0, 7) + FS.x1_ops(53, FS.X1, 7) + FS.x1_ops(58, FS.X2, 7))
    slowq = []
    if pairs and OPT['fin']:
        n0, n1, n2, n3 = OPT['fin']
        def ev_setup():
            assert all(st[q]['kind'] == 'dh' for q in pend if q < NST) and not any(isinstance(x, str) and 'v236' in x for x in misc)
            slowq.extend(FS.final_setup_ops())
        events.append([8 * n0, ev_setup])
        def ev_sides():
            busy = set(rl('v', FS.X0, 12) + rl('v', FS.X1, 12) + rl('v', FS.X2, 12))
            assert not any(busy & set(Ins(x).uses) for x, c, d in fill if c), 'side loads would overwrite live accumulators'
            slowq.extend(FS.side_ops(52, FS.X0) + FS.side_ops(53, FS.X1) + FS.side_ops(58, FS.X2))
        events.append([8 * n1, ev_sides])
        events.append([8 * n2 + 2, ev_flag3])
        events.append([8 * n3 + 3, ev_early])
    for (n_, tgt) in OPT['itouch']:
        events.append([8 * n_ + 4, (lambda tgt=tgt: [A(x) for x in itouch(f'L_back_step{tgt}', vIL, 'v13')])])
    for (n_, mats, lo, hi) in OPT['pf']:
        events.append([8 * n_ + 6, (lambda mats=mats, lo=lo, hi=hi: [A(x) for x in pf_ops(mats, lo, hi)])])
    if pairs and OPT['hxpub']:
        for (val, blocks, nload, ncheck) in OPT['checks']:
            events.append([8 * nload + 2, ev_flagload])
            events.append([8 * ncheck + 3, ev_check(val, blocks)])
    fill = []
    misc = []
    pend = list(range(4 * prefilled, 4 * (NS - 1)))
    credit = 0.0
    forced = 0
    LB, LAT = OPT['LB'], OPT['LAT']
    nr = 2 * LA
    open_frag = 16 * BP
    next_ld = 0
    for mu in range(NM):
        n, e8 = divmod(mu, 8)
        e = st[n]
        phi, tt = divmod(mu, 2)
        acc, b, first, va, offs = info[mu]
        f = aFR + 4 * (phi % NB)
        if e8 == 0:
            A(f'L_back_step{n}:')
        if e8 == 0 and n in (36, 72, 108, 144, 162, 180, 198, 216, 234):
            stamp(A, f'step {n}')
        if e8 == 4 and n > 0 and OPT['fill']:
            pe = st[n - 1]
            new = []
            if pe['kind'] == 'u' and pe['k'] == 17 or pe['kind'] == 'gh' and pe['k'] == 17:
                new = act_ops(pe['p'])
            elif pe['kind'] in ('dn', 'dh') and pe['last']:
                new = out_ops(pe['p'], pe['kind'] == 'dh')
                if pairs and OPT['pub3'] and pe['p'] in (1, 2):
                    new.append((('pub3', pe['p']), 0))
            rush = NM + 40
            if new and pairs and pe['kind'] == 'dn':
                rush = 8 * OPT['outrush'][pe['p']]
            if new and pairs and pe['kind'] in ('u', 'gh'):
                p = pe['p']
                if OPT['hxst']:
                    new = new + hx_store_ops(p)
                rush = 8 * OPT['rush'][p]
                if p >= 1 and OPT['hxpub']:
                    new.append((('pub', p), 0))
            for x, c in new:
                fill.append([x, c, min(rush, deadline(Ins(x), mu + 1)) if c else rush])
            for q in range(len(fill) - 2, -1, -1):
                fill[q][2] = min(fill[q][2], fill[q + 1][2])
        def emit_fill():
            x, c, d = fill.pop(0)
            if isinstance(x, tuple):
                mk = A.mark()
                events.append([mu + OPT['pubdelay' if x[0] == 'pub' else 'pub3delay'], (ev_publish if x[0] == 'pub' else ev_pub3)(x[1], lambda: mk)])
            else:
                A(x)
            return c
        while fill and fill[0][2] <= mu:
            emit_fill(); forced += 1
        if pairs and OPT['hxld'] and OPT['hxpub'] and b[0] == 'a' and b[1] >= aPH:
            assert b[1] in got, ('partner fragment not loaded yet', mu // 8, b)
        cin = '0' if first else f'{acc[0]}[{acc[1]}:{acc[1]+3}]'
        A(f'v_mfma_f32_16x16x32_bf16 {acc[0]}[{acc[1]}:{acc[1]+3}], a[{f}:{f+3}], {b[0]}[{b[1]}:{b[1]+3}], {cin}')
        cap = 2
        pb = phi + LB
        if tt == 0 and pb < NF and pb % (16 * BP) == 0:
            slot = pb // 16
            boundary(slot); cap -= 2
            open_frag = min(NF, 16 * (slot + BP))
            for q in range(slot - 1 - BP + NS, slot - 1 + NS):
                pend += [4 * q + z for z in range(4)]
        wait_next = tt == 1 and (phi + 1) % WS_ == 0 and phi + 1 < NF
        if wait_next:
            cap -= 1

        def rd_ok():
            return nr < 2 * NF and nr // 2 < open_frag and mu >= 2 * (nr // 2 - NB) + 1

        def rd_emit():
            nonlocal nr
            x = reads(nr // 2)[nr % 2]
            if x:
                A(x)
            nr += 1
        while nr < 2 * NF and mu >= 2 * (WS_ * ((nr // 2) // WS_)) - 1 - LAT:
            assert rd_ok(), (mu, nr)
            rd_emit(); cap -= 1
        for ev in [ev for ev in events if ev[0] <= mu]:
            events.remove(ev)
            ev[1](); cap -= 2
        if not misc and pend and (not xq or len(pend) > OPT['dlag']) and (e8 == 0 or (e8 in (3, 5) and len(pend) > 4 * BP)):
            nd = pend.pop(0)
            misc = dma_ops(st, nd)
            if nd % 4 == 3 or nd == NST - 1:
                misc.append(('mark', nd // 4))

        def marks():
            while misc and isinstance(misc[0], tuple):
                R.marks[misc.pop(0)[1]] = A.mark()
        marks()
        if fill:
            credit += max((q + 1) / max(1, d - mu) for q, (x, c, d) in enumerate(fill))
        else:
            credit = 0.0
        paced = mu >= next_ld
        while True:
            big = small = None
            if paced and xq:
                big = 'x'
            elif paced and hxq and not hxq[0].startswith('s_'):
                big = 'h'
            elif paced and slowq and slowq[0].startswith('buffer'):
                big = 's'
            elif misc and misc[0].startswith('buffer'):
                big = 'm'
            elif fill and fill[0][1] == 2:
                big = 'f'
            if hxq and hxq[0].startswith('s_'):
                small = 'h'
            elif misc and not misc[0].startswith('buffer'):
                small = 'm'
            elif slowq and not slowq[0].startswith('buffer'):
                small = 's'
            elif fill and fill[0][1] < 2:
                small = 'f'
            if small == 'h':
                A(hxq.pop(0)); cap -= 1
                continue
            behind = nr <= 2 * (phi + LA) + tt
            late = big in ('x', 'h', 's') and mu >= next_ld + 2 or big == 'm' and e8 >= 3
            lag = 2 * (phi + LA) + tt + 1 - nr
            if big and cap == 1 and lag <= 0 and OPT['bigov']:
                pick = big
                cap -= 2
            elif big and ((cap >= 2 and (lag <= OPT['lag'] or not rd_ok())) or late):
                pick = big
                cap -= 2
            elif cap <= 0:
                break
            elif rd_ok() and (behind or (lag > -OPT['lead'] and (not small or big))):
                rd_emit(); cap -= 1
                continue
            elif small:
                pick = small
                cap -= 1
            else:
                break
            if pick == 'x':
                xissue(); next_ld = mu + OPT['xpace']; paced = False
            elif pick == 'h':
                if not hxq[0].startswith('s_'):
                    got.add(Ins(hxq[0]).defs[0][1]); next_ld = mu + OPT['xpace']; paced = False
                A(hxq.pop(0))
            elif pick == 's':
                if slowq[0].startswith('buffer'):
                    next_ld = mu + 4; paced = False
                A(slowq.pop(0))
            elif pick == 'm':
                A(misc.pop(0)); marks()
            else:
                if emit_fill() == 0:
                    cap += 1
                credit = max(0.0, credit - 1.0)
        while fill and credit >= 1.0 and (fill[0][1] < 2 or credit >= 2.0):
            emit_fill()
            credit -= 1.0
        if wait_next:
            A.wait_regs([r for q in range(WS_) for r in rl('a', aFR + 4 * ((phi + 1 + q) % NB), 4)])
    stamp(A, 'mfma done')
    last = st[-1]
    for x in slowq:
        A(x)
    assert not hxq and all(getattr(ev[1], 'optional', False) for ev in events)
    for x, c, d in fill:
        A(x)
    for x, c in out_ops(last['p'], last['kind'] == 'dh'):
        A(x)
    print('phase C: forced', forced, 'tail', len(fill), file=sys.stderr)


def ph_c(A):
    A.junk = ('v', 13)
    srd(A, sgWS, sWS, WS_SIZE)
    ph_c_setup(A)
    R = Ring(A)
    ph_c_prefill(A, R, 0, OPT['prefill'])
    xops = ph_c_xload(A)
    if OPT['pairs']:
        pair_setup(A)
        tail_setup(A)
    stamp(A, 'prologue')
    ph_c_stream(A, R, OPT['prefill'], xops)
```

```python
import sys, io, contextlib
sys.path.insert(0,'gen')
import gen as G, ph_c, common as C
base=dict(ph_c.OPT); base['pairs']=1
good=[]
for v in eval(sys.argv[1]):
    ph_c.OPT.clear(); ph_c.OPT.update(base); ph_c.OPT.update(v)
    try:
        with contextlib.redirect_stderr(io.StringIO()): C.build(G.two(v.get('spread',4)))
        good.append(v)
    except AssertionError as e: print('FAIL', v, e)
print(good)
```

```python
import sys
sys.path.insert(0, 'gen')
from common import *
from ph_small import ph_mod, ph_final
import ph_a, ph_b, ph_c, ph_prep, ph_prep1

def kernel(name, fn, nwg, lds, vgpr=512, accum=256, spread=4, sv=14):
    A = Asm()
    end = f'L_end_{name}'
    A.uid = {'k1':6000,'k0':0,'ka':1000,'kb':2000,'kc':3000,'kd':4000}.get(name[:2], 5000)
    prologue(A, nwg, end, spread)
    stamp_begin(A, len(Stamps.names), sv)
    fn(A)
    stamp_end(A)
    A.wait_all()
    A(end + ':')
    A('s_endpgm')
    for x in A.tail:
        A._emit(Ins(x))
    A(f'L_{name[:2]}_end:')
    n = {}
    for i in A.out: n[i.kind] = n.get(i.kind, 0) + 1
    print(name, n, 'nops', A.nops_inserted, 'waits', A.waits_inserted, file=sys.stderr)
    return dict(name=name, grid=nwg, block=256, lds=lds, body=A.text(), vgpr=vgpr, accum=accum)

def multi(spread=4):
    ks = [kernel('k0_kernel', ph_prep.ph_prep, ph_prep.N_PREP, ph_prep.PREP_LDS, 136 if Stamps.on else 128, 136 if Stamps.on else 128, spread, 130),
          kernel('ka_kernel', ph_a.ph_a, 256, ph_a.A_LDS, spread=spread, sv=14),
          kernel('kb_kernel', ph_b.ph_b, 256, ph_b.B_LDS, spread=spread, sv=250),
          kernel('kc_kernel', ph_c.ph_c, 256, ph_c.C_LDS, spread=spread, sv=12),
          ]
    return ks

def merged_body(A):
    A.junk = ('v', 13)
    PF = ph_c.OPT.get('usepf', 1)
    ph_c.OPT['pfl'] = 0
    WINP = {}

    def win(name):
        if name in WINP:
            for x in ph_c.pf_ops(*WINP[name]):
                A(x)
    if PF:
        if PF == 1:
            ph_c.OPT['pf'] = [(24, 'gu', 18, 36), (44, 'gu', 36, 45), (60, 'd', 0, 27), (80, 'd', 27, 45)]
        elif PF == 2:
            ph_c.OPT['pf'] = [(8, 'g', 18, 27), (16, 'u', 18, 27), (30, 'g', 27, 36), (40, 'u', 27, 36), (52, 'g', 36, 45), (62, 'u', 36, 45)] + \
                [(74 + 10 * q, 'd', 9 * q, 9 * q + 9) for q in range(5)]
        elif PF == 4:
            ph_c.OPT['pf'] = [(30, 'gu', 27, 45), (60, 'd', 0, 45)]
        elif PF == 5:
            ph_c.OPT['pf'] = [(40, 'd', 0, 45)]
        elif PF == 30:
            ph_c.OPT['pf'] = [(2, 'gu', 9, 18), (28, 'gu', 18, 27), (48, 'gu', 27, 36), (66, 'gu', 36, 45), (82, 'd', 0, 23), (98, 'd', 23, 45)]
        elif PF == 31:
            ph_c.OPT['pf'] = [(2, 'gu', 9, 18), (26, 'gu', 18, 36), (52, 'gu', 36, 45), (66, 'd', 0, 27), (86, 'd', 27, 45)]
        elif PF == 32:
            ph_c.OPT['pf'] = [(24, 'gu', 18, 36), (44, 'gu', 36, 45), (60, 'd', 0, 27), (80, 'd', 27, 45)]
        elif PF >= 20:
            ph_c.OPT['pfl'] = 1
            ph_c.OPT['pf'] = {20: [(30, 'gu', 2, 1), (64, 'gu', 3, 1), (98, 'gu', 4, 1), (110, 'd', 0, 3), (130, 'd', 3, 2)],
                              21: [(4, 'gu', 1, 1), (36, 'gu', 2, 1), (70, 'gu', 3, 1), (100, 'gu', 4, 1), (112, 'd', 0, 3), (132, 'd', 3, 2)],
                              22: [(20, 'gu', 2, 1), (50, 'gu', 3, 1), (84, 'gu', 4, 1), (96, 'd', 0, 3), (120, 'd', 3, 2)],
                              23: [(36, 'g', 2, 1), (42, 'u', 2, 1), (70, 'g', 3, 1), (76, 'u', 3, 1), (96, 'g', 4, 1), (102, 'u', 4, 1), (112, 'd', 0, 2), (124, 'd', 2, 1), (140, 'd', 3, 1), (160, 'd', 4, 1)]}[PF]
        elif PF == 16:
            ph_c.OPT['pf'] = [(40, 'd', 0, 23), (60, 'd', 23, 45), (80, 'gu', 36, 45)]
        elif PF == 17:
            ph_c.OPT['pf'] = [(24, 'gu', 18, 27), (44, 'd', 0, 23), (64, 'd', 23, 45), (84, 'gu', 36, 45)]
        elif PF == 18:
            ph_c.OPT['pf'] = [(44, 'gu', 36, 45), (60, 'd', 0, 45)]
        elif PF == 15:
            ph_c.OPT['pf'] = [(24, 'gu', 18, 36), (44, 'gu', 36, 45)]
        elif PF in (6, 7):
            ph_c.OPT['pf'] = []
        elif PF == 8:
            ph_c.OPT['pf'] = [(22, 'gu', 18, 45), (62, 'd', 0, 45)]
        elif PF == 9:
            ph_c.OPT['pf'] = [(38, 'gud', 18, 45), (70, 'd', 0, 18)]
        elif 10 <= PF <= 14:
            WINP.update({10: dict(s1=('gu', 18, 27), st=('gu', 27, 36), s2=('gu', 36, 45)),
                         11: dict(s1=('gu', 18, 27), s2=('gu', 27, 36)),
                         12: dict(s1=('gu', 18, 27), st=('gu', 27, 36), s2=('gud', 36, 45)),
                         13: dict(s1=('gud', 18, 27), st=('gud', 27, 36), s2=('gud', 36, 45)),
                         14: dict(s2=('gu', 18, 27))}[PF])
            ph_c.OPT['pf'] = {10: [(40, 'd', 0, 23), (64, 'd', 23, 45)],
                              11: [(40, 'gu', 36, 45), (60, 'd', 0, 23), (84, 'd', 23, 45)],
                              12: [(40, 'd', 0, 18), (64, 'd', 18, 36)],
                              13: [(44, 'd', 0, 18)],
                              14: [(30, 'gu', 27, 36), (50, 'gu', 36, 45), (70, 'd', 0, 23), (90, 'd', 23, 45)]}[PF]
        elif PF == 3:
            ph_c.OPT['pf'] = [(20, 'g', 18, 27), (28, 'u', 18, 27), (40, 'g', 27, 36), (50, 'u', 27, 36), (60, 'g', 36, 45), (70, 'u', 36, 45)] + \
                [(80 + 9 * q, 'd', 9 * q, 9 * q + 9) for q in range(5)]

    def early():
        ph_c.ph_c_setup_s(A)
        ph_c.pf_setup(A)

    def late():
        if PF:
            for x in ph_c.pf_ops('gud' if PF == 6 else 'gu', 0, {4: 27, 5: 45, 6: 45, 20: 2, 21: 1, 22: 2, 23: 2, 30: 9, 31: 9}.get(PF, 18)):
                A(x)
    ph_a.NPRE_X, ph_a.NPRE_W = ph_c.OPT.get('apre', (0, 0))
    ph_a.LATE_S = 26 if PF == 32 else 30
    if TAGGED[0]:
        ph_prep1.prep(A, 'L_back_body', 'L_k1_end')
        stamp(A, 'prep done')
        ph_a.ph_a_main(A, early, late, lambda: ph_prep1.gate(A), lambda: ph_prep1.late_begin(A))
        ph_prep1.late_end(A)
    else:
        ph_a.ph_a_main(A, early, late)
    bg = ph_b.ph_b_dma(A)
    ph_a.ph_a_attn(A, bg[:ph_c.OPT.get('nbg', 25)])
    stamp(A, 'attn done')
    SLEEP[0] = ph_c.OPT.get('sleep', 0)
    NP1, NP2, NP3 = ph_c.OPT.get('np', (3, 5, 9))
    Q1, Q2, Q3 = ph_c.OPT.get('nq', (3, 5, 9))
    D1, D3 = ph_c.OPT.get('nd', (0, 0))
    R = ph_c.Ring(A)
    mko = A.mark()
    flag_base(A, 101, 0, sW)
    A(f's_lshl_b32 s40, s{sJ}, {FSC[0]}\ns_add_u32 s101, s101, s40')
    if D1:
        ph_c.ph_c_setup_v(A)
        A('s_barrier')
        ph_c.ph_c_prefill(A, R, 0, D1)
        publish(A, 16, 101, 4, mark=mko)
    else:
        publish(A, 16, 101, 4)
    A('s_barrier')
    stamp(A, 'o published')
    mk = ph_b.ph_b_pre(A)
    A('s_lshr_b32 s40, s5, 1')
    flag_base(A, 101, 0, 40)
    if not D1:
        ph_c.ph_c_setup_v(A)
    ph_c.ph_c_prefill(A, R, D1, max(D1, Q1))
    if ph_c.OPT.get('vecfirst'):
        A.wait_vm_mark(mk)
        ph_b.ph_b_vec(A)
    poll_begin(A, 16, 101, 2)
    if ph_b.XLATE[0] == 1:
        ph_b.ph_b_xres(A)
    ph_c.ph_c_prefill(A, R, max(D1, Q1), NP1)
    if not ph_c.OPT.get('vecfirst'):
        A.wait_vm_mark(mk)
        ph_b.ph_b_vec(A)
    ph_b.NPRE = ph_c.OPT.get('npre', 30)
    ph_b.ph_b_pre_frags(A)
    poll_end(A, 16, 101, 2, 41)
    stamp(A, 'S1')
    ph_b.AFTER_O[0] = (lambda: ph_b.ph_b_xres(A)) if ph_b.XLATE[0] == 2 else None

    def before_stat():
        A('s_barrier')
        ph_c.ph_c_prefill(A, R, NP1, Q2)

    def after_stat():
        ph_c.ph_c_prefill(A, R, Q2, NP2)
        A('s_lshr_b32 s40, s5, 1')
        flag_base(A, 101, 1, 40)
        A(f's_lshl_b32 s40, s4, 1\ns_and_b32 s41, s{sW}, 1\ns_add_u32 s40, s40, s41\ns_lshl_b32 s40, s40, {FSC[0]}\ns_add_u32 s101, s101, s40')
        XO.extend(ph_c.ph_c_xload(A))
        ph_c.pair_setup(A)
        ph_c.tail_setup(A)
        if ph_c.OPT['itouch']:
            itouch_setup(A, ph_c.vIL)
    XO = []
    store_x1 = ph_b.ph_b_main(A, before_stat, after_stat)
    xops = XO
    mkh = A.mark()
    ph_c.ph_c_prefill(A, R, NP2, NP2 + D3)
    publish(A, 16, 101, 10, mark=mkh if D3 else None)
    stamp(A, 'h2 published')
    store_x1()
    flag_base(A, 101, 1, sW)
    ph_c.ph_c_prefill(A, R, NP2 + D3, max(NP2 + D3, Q3))
    poll_begin(A, 16, 101, 10)
    ph_c.ph_c_prefill(A, R, max(NP2 + D3, Q3), NP3)
    poll_end(A, 16, 101, 10, 40)
    stamp(A, 'S2')
    ph_c.ph_c_stream(A, R, NP3, xops)
    def publish_all():
        A(f'buffer_load_dword v9, v8, s[16:19], s{ph_c.sS3C} offen sc1')
        publish(A, 16, ph_c.sS3O, 6, 3)
        for x in flag_norm(9):
            A(x)
        stamp(A, 'part published')

    def wait(v):
        lab, ok = A.label('L_w'), A.label('L_wok')
        check(v)
        A(f's_cbranch_scc1 {ok}')
        st = (list(A.vmq), list(A.lgq), A.vm_issued, A.lg_issued)
        poll(A, 16, ph_c.sS3C, 8, 43, v)
        A.vmq, A.lgq, A.vm_issued, A.lg_issued = st
        A(ok + ':')
        if Stamps.on and v > 1:
            A(f's_memtime s[88:89]\nv_writelane_b32 v14, s88, {43+v}')

    def check(v):
        A(f'v_cmp_gt_u32 vcc, {v}, v9')
        A('s_cmp_eq_u64 vcc, 0')
    ph_final(A, publish_all, wait, check)
    if TAGGED[0]:
        ph_prep1.epoch_update(A)


def one(spread=4):
    TAGGED[0] = True; HS[0] = ' sc1'
    ph_prep1.OPT1.update(ph_c.OPT)
    NT[:] = [' nt' if ph_c.OPT.get('nt', 2) >> q & 1 else '' for q in range(4)]
    FSC[:] = ph_c.OPT.get('fs', (6, 6))
    return [kernel('k1_kernel', merged_body, 256, 163840, spread=spread, sv=14)]


def two(spread=4):
    if ph_c.OPT.get('one'):
        return one(spread)
    TAGGED[0] = False; HS[0] = ''
    NOXT[0] = ph_c.OPT.get('noxt', 1)
    ph_b.XLATE[0] = ph_c.OPT.get('xlate', 0)
    X1LATE[0] = ph_c.OPT.get('x1late', 0)
    import ph_small as FS
    FS.P0, FS.X0, FS.X1, FS.X2 = (80, 112, 124, 48) if ph_c.OPT.get('allarch') else (16, 96, 108, 120)
    import ph_small
    ph_small.OUTPOL[0] = {0: '', 1: ' sc1', 2: ' nt', 3: ' sc0 sc1'}[ph_c.OPT.get('outpol', 0)]
    ph_prep.NEXT[:] = ['k1_kernel', 'L_k1_end']
    NT[:] = [' nt' if ph_c.OPT.get('nt', 2) >> q & 1 else '' for q in range(4)]
    FSC[:] = ph_c.OPT.get('fs', (6, 6))
    ph_prep.POPT['nlight'] = ph_c.OPT.get('nlight', 84)
    ph_prep.POPT['zfull'] = ph_c.OPT.get('zfull', 1)
    ph_prep.POPT['xm'] = ph_c.OPT.get('xm', 0)
    ph_prep.POPT['lin'] = ph_c.OPT.get('lin', 0)
    ph_prep.POPT['tlb'] = ph_c.OPT.get('tlb', 0); ph_prep.POPT['pf'] = ph_c.OPT.get('k0pf', 0)
    k0 = kernel('k0_kernel', ph_prep.ph_prep, ph_prep.n_prep(), ph_prep.PREP_LDS, 136 if Stamps.on else 128, 136 if Stamps.on else 128, spread, 130)
    kst = ph_c.OPT.get('k0st', 0)
    pol = {0: '', 1: ' sc1', 2: ' sc0 sc1', 3: ' nt'}.get(kst, '')
    if kst >= 4:
        def early(l):
            l0 = l.strip()
            if not l0.startswith('buffer_store') or 's88' in l0:
                return False
            xt = ' v15, s[16:19], s46' in l0
            zero = 's[24:27]' in l0 or 's[28:31]' in l0
            wo = ' v3, s[16:19], s46' in l0 and '32:35' in l0 + '' or False
            return xt or zero
        k0['body'] = '\n'.join(l + (' sc1' if kst == 4 else ' nt') if early(l) else l for l in k0['body'].split('\n'))
    if pol:
        k0['body'] = '\n'.join(l + pol if l.strip().startswith('buffer_store') and 's88' not in l else l for l in k0['body'].split('\n'))
    return [k0, kernel('k1_kernel', merged_body, 256, 163840, spread=spread, sv=14)]


if __name__ == '__main__':
    out = sys.argv[1] if len(sys.argv) > 1 else 'v1.s'
    if 'stamp' in sys.argv:
        Stamps.on = True
    for a in sys.argv[2:]:
        if '=' in a:
            k, v = a.split('=')
            ph_c.OPT[k] = int(v)
    open(out, 'w').write(build(two() if 'two' in sys.argv else multi()))
    if Stamps.on:
        import json
        json.dump(Stamps.names, open(out + '.json', 'w'))
```

```python
from common import *

B_IMG = 61440
B_LDS = B_IMG + WO_C


def ph_b_dma(A, srdq=16):
    A.comment('==== phase B: wo image ====')
    A(f'''s_and_b32 s40, s{sJ}, 7
    s_mul_i32 s40, s40, {WO_C}
    s_mul_i32 s41, s{sW}, 25600
    s_add_u32 s40, s40, s41
    s_add_u32 s40, s40, {WS_WO}
    s_add_u32 s41, s41, {B_IMG}
    v_lshlrev_b32 v8, 4, v{vLANE}''')
    r = []
    for i in range(25):
        pre = f's_add_u32 m0, s41, {1024*i}\ns_add_u32 s42, s40, {1024*i}\n' if i % 4 == 0 else ''
        r.append(pre + f'buffer_load_dwordx4 v8, s[{srdq}:{srdq+3}], s42 offen offset:{1024*(i%4)}{HS[0]} lds')
    return r


OB, XR, GA, SC, SH, ACC, TM = 16, 96, 108, 128, 148, 168, 188
PK = 240
vL16, vX1, vST, vA, vVEC = 238, 239, 252, 253, 12
B_VEC = 49152
VP = 168
sgX = 28


def ph_b_pre(A):
    A(f'''s_lshr_b32 s3, s{sJ}, 3
    s_and_b32 s4, s{sJ}, 7
    v_lshlrev_b32 v{vL16}, 4, v{vLANE}
    s_lshl_b32 s5, s3, 2
    s_add_u32 s5, s5, s{sW}
    s_mul_i32 s6, s5, 20480
    s_mul_i32 s7, s{sG}, {O_G}
    s_add_u32 s6, s6, s7
    s_add_u32 s6, s6, {WS_O}
    v_and_b32 v4, 15, v{vLANE}
    v_lshrrev_b32 v5, 4, v{vLANE}
    v_and_b32 v8, 1, v5
    v_lshlrev_b32 v8, 1, v8
    v_lshrrev_b32 v9, 1, v5
    v_or_b32 v8, v8, v9
    v_lshlrev_b32 v8, 8, v8
    v_lshl_add_u32 v{vX1}, v4, 4, v8
    v_lshlrev_b32 v{vST}, 4, v4
    s_lshl_b32 s39, s{sG}, 3
    s_add_u32 s39, s39, s5
    s_mul_i32 s96, s39, {T16}
    s_mul_i32 s97, s4, 2304
    s_add_u32 s96, s96, s97
    s_add_u32 s7, s96, {WS_XT}
    s_add_u32 s96, s96, {WS_X1}
    v_mul_u32_u24 v6, 57, v{vLANE}
    v_lshrrev_b32 v6, 10, v6
    v_mul_u32_u24 v6, {2304-288}, v6
    v_add_u32 v6, v6, v{vL16}
    s_mul_i32 s38, s4, 288
    s_add_u32 s38, s38, {WS_MOD + 4*1152}
    s_mov_b32 m0, {B_VEC}''')
    if TAGGED[0]:
        A(f'''s_add_u32 s38, s38, {WS_MODP - WS_MOD}
        s_mul_i32 s99, s{sJ}, 144
        s_add_u32 s99, s99, {WS_MODP + 4*2880}
        s_sub_u32 s99, s99, s38
        v_add_u32 v7, s99, v{vL16}
        v_subrev_u32 v7, {54*16}, v7
        v_cmp_lt_u32 vcc, 53, v{vLANE}
        v_cndmask_b32 v6, v6, v7, vcc
        s_mov_b32 s99, s38''')
        for q in range(4):
            A(f'buffer_load_dwordx4 v[{VP+4*q}:{VP+4*q+3}], v6, s[16:19], s99 offen sc1')
            if q < 3:
                A('s_add_u32 s99, s99, 13824')
    else:
        A('''s_mov_b32 exec_hi, 0x3fffff
        buffer_load_dwordx4 v6, s[16:19], s38 offen lds
        s_mov_b32 exec_hi, -1''')
    mk = A.mark()
    if NOXT[0]:
        srd(A, sgX, sX, S * D * 2)
        A(f'''v_lshrrev_b32 v8, 4, v8
        v_mul_u32_u24 v9, 1152, v4
        v_add_u32 v8, v8, v9
        s_mul_i32 s7, s39, {16*1152}
        s_mul_i32 s38, s4, 144
        s_add_u32 s7, s7, s38''')
        if XLATE[0]:
            A('v_mov_b32 v15, v8')
        else:
            ph_b_xres(A, 8)
    for z in range(0 if NOXT[0] else 3):
        A(f'buffer_load_dwordx4 v[{XR+4*z}:{XR+4*z+3}], v{vX1}, s[16:19], s7 offen offset:{1024*z}{HS[0]}')
    A(f'''v_add_u32 v{vA}, {B_IMG}, v{vL16}
    v_lshlrev_b32 v{vVEC}, 4, v5
    v_add_u32 v{vVEC}, {B_VEC}, v{vVEC}
    s_lshl_b32 s97, s39, 11
    s_add_u32 s97, s97, {WS_ST}
    s_lshl_b32 s98, s4, 8
    s_add_u32 s98, s98, s97''')
    return mk


XLATE = [0]
AFTER_O = [None]


def ph_b_xres(A, v=15):
    for z in range(3):
        A(f'buffer_load_dwordx4 v[{XR+4*z}:{XR+4*z+3}], v{v}, s[{sgX}:{sgX+3}], s7 offen offset:{64*z}')


def xr_swaps():
    return [f'v_permlane16_swap_b32 v{XR+bb+c}, v{XR+bb+c+2}' for bb in (0, 4, 8) for c in range(2)]


def ph_b_vec(A):
    if TAGGED[0]:
        import ph_prep1
        A(f'''v_cmp_le_u32 vcc, 36, v{vLANE}
        v_cndmask_b32 v{VP+18}, 0, 1.0, vcc
        v_cmp_lt_u32 vcc, 53, v{vLANE}
        v_cndmask_b32 v{VP+18}, v{VP+18}, 0, vcc
        v_add_u32 v{VP+19}, {B_VEC}, v{vL16}''')
        ph_prep1.combine(A, VP, VP + 16, VP + 18)
        A(f'ds_write_b128 v{VP+19}, v[{VP}:{VP+3}]')
        A(f'''s_mul_i32 s99, s{sG}, 2304
        s_mul_i32 s98, s{sJ}, 144
        s_add_u32 s99, s99, s98
        s_add_u32 s99, s99, {WS_GBF - 54*16}
        s_mov_b32 exec_lo, 0
        s_mov_b32 exec_hi, 0x7fc00000
        buffer_store_dwordx4 v[{VP}:{VP+3}], v{vL16}, s[16:19], s99 offen sc1
        s_mov_b64 exec, -1
        s_lshl_b32 s98, s4, 8
        s_add_u32 s98, s98, s97''')
    for base, off in ((GA, 0), (SH, 288), (SC, 576)):
        for T in range(5):
            A(f'ds_read_b128 v[{base+4*T}:{base+4*T+3}], v{vVEC} offset:{off+64*T}')
    if not XLATE[0]:
        for x in xr_swaps():
            A(x)
    A(f's_mov_b32 s99, {fbits(-LOG2E)}')
    for e in range(20):
        A(f'v_mul_f32 v{SH+e}, s99, v{SH+e}')


NPRE = 56


def ph_b_pre_frags(A):
    for m in range(NPRE):
        A(f'ds_read_b128 a[{32+4*m}:{32+4*m+3}], v{vA} offset:{m*1024}')


def ph_b_main(A, before_stat=None, after_stat=None):
    A.comment('==== phase B ====')
    aFR = 0
    for k in range(20):
        A(f'buffer_load_dwordx4 v[{OB+4*k}:{OB+4*k+3}], v{vL16}, s[16:19], s6 offen offset:{1024*(k%4)} sc1')
        if k % 4 == 3 and k < 19:
            A('s_add_u32 s6, s6, 4096')
    if AFTER_O[0]:
        AFTER_O[0]()
    NB = 8

    def freg(m):
        return 32 + 4 * m if m < NPRE else aFR + 4 * ((m - NPRE) % NB)

    def read(m):
        f = freg(m)
        if m == 60:
            A(f'v_add_u32 v{vA}, 61440, v{vA}')
        return f'ds_read_b128 a[{f}:{f+3}], v{vA} offset:{(m % 60)*1024}'
    nxt = NPRE
    while nxt < NPRE + NB:
        A(read(nxt)); nxt += 1
    for m in range(100):
        k, T = divmod(m, 5)
        f = freg(m)
        acc = ACC + 4 * T
        cin = '0' if k == 0 else f'v[{acc}:{acc+3}]'
        if m >= NPRE and (m - NPRE) % 2 == 0:
            A.wait_regs(rl('a', f, 4) + rl('a', freg(min(m + 1, 99)), 4))
        A(f'v_mfma_f32_16x16x32_bf16 v[{acc}:{acc+3}], a[{f}:{f+3}], v[{OB+4*k}:{OB+4*k+3}], {cin}')
        if m >= NPRE and nxt < 100:
            A(read(nxt)); nxt += 1
        m0 = 56 if XLATE[0] else 0
        if XLATE[0] and m0 - 6 <= m < m0:
            A(xr_swaps()[m - m0 + 6])
        if m0 <= m < m0 + 10:
            unpack(A, TM + 2 * (m - m0), TM + 2 * (m - m0) + 1, XR + m - m0)
    stamp(A, 'gemm done')
    for u in range(10):
        t = TM + 2 * u
        A(f'v_pk_fma_f32 v[{t}:{t+1}], v[{ACC+2*u}:{ACC+2*u+1}], v[{GA+2*u}:{GA+2*u+1}], v[{t}:{t+1}]')
    a, b = 48, 40

    def allsum(r, t):
        A(f'''v_mov_b32 v{t}, v{r}
        v_permlane16_swap_b32 v{r}, v{t}
        v_add_f32 v{r}, v{r}, v{t}
        v_mov_b32 v{t}, v{r}
        v_permlane32_swap_b32 v{r}, v{t}
        v_add_f32 v{r}, v{r}, v{t}''')
    A(f'v_pk_add_f32 v[{a}:{a+1}], v[{TM}:{TM+1}], v[{TM+2}:{TM+3}]')
    for u in range(2, 10):
        if u == 8:
            A('s_mov_b32 exec_hi, 0')
        A(f'v_pk_add_f32 v[{a}:{a+1}], v[{a}:{a+1}], v[{TM+2*u}:{TM+2*u+1}]')
    A('s_mov_b32 exec_hi, -1')
    A(f'v_add_f32 v{a}, v{a}, v{a+1}')
    allsum(a, a + 1)
    A(f's_mov_b32 s99, {fbits(1.0/72)}\nv_mul_f32 v{a}, s99, v{a}')
    DV = ACC
    for u in range(10):
        A(f'v_pk_add_f32 v[{DV+2*u}:{DV+2*u+1}], v[{TM+2*u}:{TM+2*u+1}], v[{a}:{a+1}] op_sel_hi:[1,0] neg_lo:[0,1] neg_hi:[0,1]')
    A(f'v_pk_mul_f32 v[{b}:{b+1}], v[{DV}:{DV+1}], v[{DV}:{DV+1}]')
    for u in range(1, 10):
        if u == 8:
            A('s_mov_b32 exec_hi, 0')
        t = DV + 2 * u
        A(f'v_pk_fma_f32 v[{b}:{b+1}], v[{t}:{t+1}], v[{t}:{t+1}], v[{b}:{b+1}]')
    A('s_mov_b32 exec_hi, -1')
    A(f'v_add_f32 v{b}, v{b}, v{b+1}')
    allsum(b, b + 1)
    A(f'v_mov_b32 v{a+1}, v{b}\nv_mov_b32 v{a+3}, 0')
    flag_value(A, a + 2, 1)
    A('s_mov_b64 exec, 0xffff')
    A(f'buffer_store_dwordx4 v[{a}:{a+3}], v{vST}, s[16:19], s98 offen sc1')
    A('s_mov_b64 exec, -1')

    def swap_only(P):
        A(f'v_mov_b32 v{P+10}, v{P+8}\nv_mov_b32 v{P+11}, v{P+9}')
        for bb in (0, 4, 8):
            A(f'v_permlane16_swap_b32 v{P+bb}, v{P+bb+2}')
            A(f'v_permlane16_swap_b32 v{P+bb+1}, v{P+bb+3}')

    def swap_store(P, sOff, swap=True):
        if swap:
            swap_only(P)
        A(f'buffer_store_dwordx4 v[{P}:{P+3}], v{vX1}, s[16:19], s{sOff} offen sc1')
        A(f'buffer_store_dwordx4 v[{P+4}:{P+7}], v{vX1}, s[16:19], s{sOff} offen offset:1024 sc1')
        A('s_mov_b64 exec, 0xffff')
        A(f'buffer_store_dwordx4 v[{P+8}:{P+11}], v{vX1}, s[16:19], s{sOff} offen offset:2048 sc1')
        A('s_mov_b64 exec, -1')
    G0, G1 = 32, 36
    ok, slow, again = A.label('L_back_st'), A.label('L_stslow'), A.label('L_stagain')
    lds = [f'buffer_load_dwordx4 v[{G0}:{G0+3}], v{vL16}, s[16:19], s97 offen sc1',
           f'buffer_load_dwordx4 v[{G1}:{G1+3}], v{vL16}, s[16:19], s97 offen offset:1024 sc1']
    if before_stat:
        before_stat()
    for x in lds:
        A(x)
    if after_stat:
        after_stat()
    for u in range(10):
        A(f'v_cvt_pk_bf16_f32 v{PK+u}, v{TM+2*u}, v{TM+2*u+1}')
    swap_only(PK)
    chk = [f'v_and_b32 v44, v{G0+2}, v{G1+2}', 'v_cmp_eq_u32 vcc, 0, v44']
    if TAGGED[0]:
        chk = [f's_add_u32 s99, s{sTAG}, 1', f'v_xor_b32 v44, s99, v{G0+2}', f'v_xor_b32 v45, s99, v{G1+2}', 'v_or_b32 v44, v44, v45', 'v_cmp_ne_u32 vcc, 0, v44']
    for x in chk:
        A(x)
    A(f's_cbranch_vccnz {slow}')
    A(ok + ':')
    A.tail += [slow + ':', 's_mov_b32 s100, 0', again + ':'] + backoff() + lds + \
        ['s_add_u32 s100, s100, 1', f's_cmp_gt_u32 s100, {SPIN_MAX}', f's_cbranch_scc1 {ok}', 's_waitcnt vmcnt(0)'] + chk + \
        ['s_nop 1', f's_cbranch_vccnz {again}', f's_branch {ok}']
    stamp(A, 'stats in')
    if not X1LATE[0]:
        swap_store(PK, 96, False)
    A(f'v_add_f32 v{a}, v{G0}, v{G1}')
    allsum(a, a + 1)
    A(f'''v_mul_f32 v{a}, {fbits(0.125)}, v{a}
    v_sub_f32 v{G0}, v{G0}, v{a}
    v_sub_f32 v{G1}, v{G1}, v{a}
    v_mul_f32 v{G0}, v{G0}, v{G0}
    v_fmac_f32 v{G0}, v{G1}, v{G1}
    v_add_f32 v{b}, v{G0+1}, v{G1+1}
    s_mov_b32 s99, {fbits(72.0)}
    v_fmac_f32 v{b}, s99, v{G0}''')
    allsum(b, b + 1)
    A(f'''s_mov_b32 s99, {fbits(1.0/576)}
    v_mov_b32 v{b+1}, {fbits(1e-5)}
    v_fmac_f32 v{b+1}, s99, v{b}
    v_rsq_f32 v{b}, v{b+1}''')
    for u in range(10):
        t = TM + 2 * u
        A(f'v_pk_add_f32 v[{t}:{t+1}], v[{t}:{t+1}], v[{a}:{a+1}] op_sel_hi:[1,0] neg_lo:[0,1] neg_hi:[0,1]')
    A(f's_mov_b32 s99, {fbits(-LOG2E)}\nv_mul_f32 v{b}, s99, v{b}')
    for u in range(10):
        t = TM + 2 * u
        A(f'v_pk_mul_f32 v[{t}:{t+1}], v[{t}:{t+1}], v[{b}:{b+1}] op_sel_hi:[1,0]')
    for u in range(10):
        t = TM + 2 * u
        A(f'v_pk_fma_f32 v[{t}:{t+1}], v[{t}:{t+1}], v[{SC+2*u}:{SC+2*u+1}], v[{SH+2*u}:{SH+2*u+1}]')
    P2 = OB
    for u in range(10):
        A(f'v_cvt_pk_bf16_f32 v{P2+u}, v{TM+2*u}, v{TM+2*u+1}')
    A(f's_add_u32 s98, s96, {WS_H2 - WS_X1}')
    swap_store(P2, 98)
    return (lambda: swap_store(PK, 96, False)) if X1LATE[0] else (lambda: None)


def ph_b(A):
    srd(A, 16, sWS, WS_SIZE)
    for x in ph_b_dma(A):
        A(x)
    ph_b_pre(A)
    A.wait_all()
    A('s_barrier')
    ph_b_vec(A)
    ph_b_pre_frags(A)
    stamp(A, 'img landed')
    ph_b_main(A)
```

```python
from common import *
from ph_small import ph_mod
from ph_a import mod_table

PT = [(0, 1, 2, 3), (4, 13, 10, 11), (12, 21, 14, 23), (20, 24, 22, 22)]
N_MOD, N_XH, N_WQ, N_WO = 108, 64, 144, 40
N_PREP = N_MOD + N_XH + N_WQ + N_WO
PREP_LDS = 4 * 9216


def task_xhat(A, sI):
    A.comment('---- prep: xhat')
    X, T, P = 16, 56, 136
    A(f'''v_lshrrev_b32 v4, 3, v{vLANE}
    v_and_b32 v5, 7, v{vLANE}
    v_mul_u32_u24 v2, 1152, v4
    v_lshl_add_u32 v2, v5, 4, v2
    s_lshl_b32 s40, s{sI}, 2
    s_add_u32 s40, s40, s{sW}
    s_mul_i32 s41, s40, {8*1152}''')
    srd(A, 8, sX, S * D * 2)
    for n in range(9):
        A(f'buffer_load_dwordx4 v[{X+4*n}:{X+4*n+3}], v2, s[8:11], s41 offen offset:{128*n}{NT[0]}')
    srd(A, 16, sWS, WS_SIZE)
    A(f'''s_mul_i32 s42, s{sW}, 9216
    v_xor_b32 v6, v4, v5
    v_lshlrev_b32 v6, 4, v6
    v_add_u32 v6, s42, v6
    v_lshl_add_u32 v7, v4, 7, v6
    v_lshl_add_u32 v6, v5, 7, v6
    v_lshlrev_b32 v3, 9, v4
    v_lshl_add_u32 v3, v5, 4, v3
    s_mul_i32 s43, s{sI}, 36864
    s_lshl_b32 s44, s{sW}, 7
    s_add_u32 s43, s43, s44
    s_add_u32 s43, s43, {WS_XH}''')
    A(f'''s_lshr_b32 s46, s40, 1
    s_mul_i32 s46, s46, {T16}
    s_and_b32 s47, s{sW}, 1
    s_lshl_b32 s47, s47, 7
    s_add_u32 s46, s46, s47
    s_add_u32 s46, s46, {WS_XT}
    v_lshlrev_b32 v15, 8, v4
    v_lshl_add_u32 v15, v5, 4, v15''')
    for n in range(9):
        if not NOXT[0]:
            A(f'ds_write_b128 v6, v[{X+4*n}:{X+4*n+3}] offset:{1024*n}')
        for d in range(4):
            unpack(A, T + 8 * n + 2 * d, T + 8 * n + 2 * d + 1, X + 4 * n + d)
    for n in range(0 if NOXT[0] else 9):
        A(f'ds_read_b128 v[{X+4*n}:{X+4*n+3}], v7 offset:{1024*n}')
    a, q = 8, 10

    def sum8(r):
        A(f'v_add_f32_dpp v{r}, v{r}, v{r} quad_perm:[1,0,3,2] row_mask:0xf bank_mask:0xf')
        A(f'v_add_f32_dpp v{r}, v{r}, v{r} quad_perm:[2,3,0,1] row_mask:0xf bank_mask:0xf')
        A(f'v_add_f32_dpp v{r}, v{r}, v{r} row_half_mirror row_mask:0xf bank_mask:0xf')
    A(f'v_pk_add_f32 v[{a}:{a+1}], v[{T}:{T+1}], v[{T+2}:{T+3}]')
    A(f'v_pk_add_f32 v[{q}:{q+1}], v[{T+4}:{T+5}], v[{T+6}:{T+7}]')
    for u in range(4, 36):
        r = a if u & 1 else q
        A(f'v_pk_add_f32 v[{r}:{r+1}], v[{r}:{r+1}], v[{T+2*u}:{T+2*u+1}]')
    A(f'v_pk_add_f32 v[{a}:{a+1}], v[{a}:{a+1}], v[{q}:{q+1}]')
    A(f'v_add_f32 v{a}, v{a}, v{a+1}')
    sum8(a)
    for n in range(0 if NOXT[0] else 9):
        A(f'buffer_store_dwordx4 v[{X+4*n}:{X+4*n+3}], v15, s[16:19], s46 offen offset:{2048*(n&1)}')
        if n & 1:
            A('s_add_u32 s46, s46, 4096')
    A(f's_mov_b32 s45, {fbits(1.0/576)}\nv_mul_f32 v{a}, s45, v{a}')
    for u in range(36):
        t = T + 2 * u
        A(f'v_pk_add_f32 v[{t}:{t+1}], v[{t}:{t+1}], v[{a}:{a+1}] op_sel_hi:[1,0] neg_lo:[0,1] neg_hi:[0,1]')
    b = 12
    A(f'v_pk_mul_f32 v[{q}:{q+1}], v[{T}:{T+1}], v[{T}:{T+1}]')
    A(f'v_pk_mul_f32 v[{b}:{b+1}], v[{T+2}:{T+3}], v[{T+2}:{T+3}]')
    for u in range(2, 36):
        r = b if u & 1 else q
        t = T + 2 * u
        A(f'v_pk_fma_f32 v[{r}:{r+1}], v[{t}:{t+1}], v[{t}:{t+1}], v[{r}:{r+1}]')
    A(f'v_pk_add_f32 v[{q}:{q+1}], v[{q}:{q+1}], v[{b}:{b+1}]')
    A(f'v_add_f32 v{q}, v{q}, v{q+1}')
    sum8(q)
    A(f'''v_mov_b32 v{q+1}, {fbits(1e-5)}
    v_fmac_f32 v{q+1}, s45, v{q}
    v_rsq_f32 v{a}, v{q+1}
    s_mov_b32 s48, 0xffff
    s_mov_b32 s47, 0x7fffffff''')
    for n in range(9):
        for d in range(4):
            t = T + 8 * n + 2 * d
            A(f'v_pk_mul_f32 v[{t}:{t+1}], v[{t}:{t+1}], v[{a}:{a+1}] op_sel_hi:[1,0]')
        ts = [T + 8 * n + 2 * d for d in range(4)]
        for t in ts:
            A(f'v_cvt_pk_bf16_f32 v{t}, v{t}, 0')
        for d, t in enumerate(ts):
            A(f'v_and_b32 v{X+4*n+d}, s47, v{t+1}')
        for d, t in enumerate(ts):
            A(f'v_add_u32 v{X+4*n+d}, 0x8000, v{X+4*n+d}')
        for d, t in enumerate(ts):
            A(f'v_sub_u32 v{X+4*n+d}, v{X+4*n+d}, v{t} clamp')
        for d, t in enumerate(ts):
            A(f'v_bfi_b32 v{X+4*n+d}, s47, v{X+4*n+d}, v{t+1}')
        for d, t in enumerate(ts):
            A(f'v_bfi_b32 v{X+4*n+d}, s48, v{t}, v{X+4*n+d}')
        A(f'ds_write_b128 v6, v[{X+4*n}:{X+4*n+3}] offset:{1024*n}')
    for n in range(9):
        A(f'ds_read_b128 v[{X+4*n}:{X+4*n+3}], v7 offset:{1024*n}')
    for n in range(9):
        A(f'buffer_store_dwordx4 v[{X+4*n}:{X+4*n+3}], v3, s[16:19], s43 offen')
        if n < 8:
            A('s_add_u32 s43, s43, 4096')


def task_wq(A, sI):
    A.comment('---- prep: qkv weight tiles')
    A(f'''v_mul_u32_u24 v4, 69, v{vLANE}
    v_lshrrev_b32 v4, 10, v4
    v_mul_u32_u24 v5, 15, v4
    v_sub_u32 v5, v{vLANE}, v5
    v_mul_u32_u24 v6, 13, v5
    v_lshrrev_b32 v6, 6, v6
    v_mul_u32_u24 v7, 5, v6
    v_sub_u32 v7, v5, v7
    v_mul_u32_u24 v4, 3456, v4
    v_mul_u32_u24 v6, 1152, v6
    v_add_u32 v4, v4, v6
    v_lshl_add_u32 v2, v7, 4, v4
    s_lshr_b32 s40, s{sI}, 2
    s_and_b32 s41, s{sI}, 3
    s_lshl_b32 s41, s41, 2
    s_add_u32 s41, s41, s{sW}
    s_mul_i32 s42, s41, 72
    s_and_b32 s42, s42, 0xfffffff0
    s_mul_i32 s43, s40, {16*3456}
    s_add_u32 s42, s42, s43
    s_mul_i32 s44, s{sW}, 3840
    s_mov_b32 exec_hi, 0x0fffffff''')
    srd(A, 12, sWQKV, 576 * 3456)
    for i in range(4):
        A(f's_add_u32 m0, s44, {960*i}')
        A(f's_add_u32 s45, s42, {4*3456*i}')
        A(f'buffer_load_dwordx4 v2, s[12:15], s45 offen{NT[2]} lds')
    A('s_mov_b32 exec_hi, -1')
    srd(A, 16, sWS, WS_SIZE)
    wq_extra(A, sI)
    A(f'''v_lshrrev_b32 v4, 5, v{vLANE}
    v_bfe_u32 v5, v{vLANE}, 2, 2
    v_and_b32 v6, 3, v{vLANE}
    v_bfe_u32 v7, v{vLANE}, 4, 1
    v_lshlrev_b32 v7, 1, v7
    v_lshrrev_b32 v9, 1, v6
    v_add_u32 v7, v7, v9
    v_lshlrev_b32 v7, 3, v7
    v_and_b32 v8, 1, v6
    v_lshlrev_b32 v8, 2, v8
    s_and_b32 s50, s41, 1
    v_add_u32 v8, s50, v8
    v_lshl_add_u32 v9, v4, 3, v5
    v_mul_u32_u24 v9, 240, v9
    v_add_u32 v9, s44, v9''')
    packs = [t[0] | t[1] << 8 | t[2] << 16 | t[3] << 24 for t in PT]
    for T in range(4):
        A(f'''s_mov_b32 s52, {packs[T]}
        v_bfe_u32 v10, s52, v7, 8
        v_add_u32 v10, v10, v8
        v_lshl_add_u32 v{12+T}, v10, 3, v9''')
    A(f'''v_lshlrev_b32 v3, 4, v{vLANE}
    v_and_b32 v10, 31, v{vLANE}
    v_mul_u32_u24 v11, 24, v4
    v_add_u32 v11, v11, v10
    v_lshlrev_b32 v11, 4, v11
    s_mul_i32 s46, s41, {WQ_J}
    s_mul_i32 s47, s40, 3840
    s_add_u32 s46, s46, s47
    s_add_u32 s46, s46, {WS_WQ}''')
    A.wait_all()
    for T in range(4):
        for rd in range(2):
            A(f'ds_read_b64_tr_b16 v[{16+4*T+2*rd}:{17+4*T+2*rd}], v{12+T} offset:{960*rd}')
    for T in range(3):
        A(f'buffer_store_dwordx4 v[{16+4*T}:{19+4*T}], v3, s[16:19], s46 offen offset:{1024*T}')
    A('s_mov_b32 exec_lo, 0x00ffffff\ns_mov_b32 exec_hi, 0x00ffffff')
    A('buffer_store_dwordx4 v[28:31], v11, s[16:19], s46 offen offset:3072')
    A('s_mov_b64 exec, -1')


def task_wo(A, sI):
    A.comment('---- prep: wo tiles')
    A(f'''s_lshl_b32 s40, s{sI}, 2
    s_add_u32 s40, s40, s{sW}
    s_lshr_b32 s41, s40, 3
    s_and_b32 s42, s40, 7
    s_mul_i32 s43, s42, 144
    s_mul_i32 s44, s{sW}, 4864
    v_lshrrev_b32 v4, 3, v{vLANE}
    v_and_b32 v5, 7, v{vLANE}
    v_lshlrev_b32 v5, 4, v5
    v_mul_u32_u24 v6, 1152, v4
    v_add_u32 v6, v6, v5
    v_lshlrev_b32 v7, 2, v4
    s_mov_b32 s45, 0x76543210
    v_lshrrev_b32 v7, v7, s45
    v_and_b32 v7, 15, v7
    v_lshlrev_b32 v9, 2, v4
    s_mov_b32 s45, 0x00002211
    v_lshrrev_b32 v9, v9, s45
    v_and_b32 v9, 15, v9
    v_lshl_add_u32 v7, v9, 4, v7
    v_mul_u32_u24 v8, 1152, v7
    v_add_u32 v8, v8, v5
    s_lshl_b32 s45, s41, 2''')
    srd(A, 20, sWO, 576 * 1152)
    for q in range(4):
        A(f'''s_add_u32 s47, s45, {q}
        s_mul_i32 s48, s47, 205
        s_lshr_b32 s48, s48, 10
        s_mul_i32 s49, s48, 5
        s_sub_u32 s49, s47, s49
        s_lshr_b32 s50, s49, 1
        s_mul_i32 s50, s50, 18
        s_and_b32 s51, s49, 1
        s_lshl_b32 s51, s51, 3
        s_add_u32 s50, s50, s51
        s_mul_i32 s48, s48, 36
        s_cmp_eq_u32 s49, 4
        s_cselect_b32 s50, 0, s50
        s_cselect_b64 vcc, -1, 0
        s_add_u32 s50, s50, s48
        s_mul_i32 s50, s50, 1152
        s_add_u32 s{52+q}, s50, s43
        v_cndmask_b32 v{10+q}, v6, v8, vcc
        s_add_u32 m0, s44, {1024*q}
        s_nop 0
        buffer_load_dwordx4 v{10+q}, s[20:23], s{52+q} offen{NT[3]} lds''')
    A(f'''v_and_b32 v14, 7, v{vLANE}
    v_lshlrev_b32 v14, 5, v14
    v_bfe_u32 v15, v{vLANE}, 3, 2''')
    for q in range(4):
        A(f'v_add_u32 v{10+q}, s{52+q}, v{10+q}')
    for q in range(4):
        A(f'ds_bpermute_b32 v{16+q}, v14, v{10+q}')
    A(f'''v_cmp_eq_u32 vcc, 1, v15
    v_cndmask_b32 v16, v16, v17, vcc
    v_cmp_eq_u32 vcc, 2, v15
    v_cndmask_b32 v16, v16, v18, vcc
    v_cmp_eq_u32 vcc, 3, v15
    v_cndmask_b32 v16, v16, v19, vcc
    s_add_u32 m0, s44, 4096
    s_mov_b32 exec_hi, 0
    buffer_load_dwordx4 v16, s[20:23], 0 offen offset:128{NT[3]} lds
    s_mov_b32 exec_hi, -1''')
    srd(A, 16, sWS, WS_SIZE)
    A(f'''v_lshrrev_b32 v4, 4, v{vLANE}
    v_bfe_u32 v5, v{vLANE}, 2, 2
    v_lshl_add_u32 v4, v4, 3, v5
    v_and_b32 v5, 3, v{vLANE}
    v_lshlrev_b32 v6, 7, v4
    v_lshl_add_u32 v6, v5, 3, v6
    v_add_u32 v6, s44, v6
    v_and_b32 v5, 1, v5
    v_lshlrev_b32 v7, 4, v4
    v_lshl_add_u32 v7, v5, 3, v7
    v_add_u32 v7, s44, v7
    v_lshlrev_b32 v3, 4, v{vLANE}
    s_mul_i32 s46, s42, {WO_C}
    s_mul_i32 s47, s41, 5120
    s_add_u32 s46, s46, s47
    s_add_u32 s46, s46, {WS_WO}
    s_add_u32 s47, s46, 4096''')
    A.wait_all()
    for T in range(4):
        for rd in range(2):
            A(f'ds_read_b64_tr_b16 v[{32+4*T+2*rd}:{33+4*T+2*rd}], v6 offset:{512*rd+32*T}')
    for rd in range(2):
        A(f'ds_read_b64_tr_b16 v[{48+2*rd}:{49+2*rd}], v7 offset:{4096+128+64*rd}')
    for T in range(4):
        A(f'buffer_store_dwordx4 v[{32+4*T}:{35+4*T}], v3, s[16:19], s46 offen offset:{1024*T}')
    A('buffer_store_dwordx4 v[48:51], v3, s[16:19], s47 offen')


def task_zero(A, sI):
    A(f'''v_mov_b32 v56, 0
    v_mov_b32 v57, 0
    v_mov_b32 v58, 0
    v_mov_b32 v59, 0
    v_lshlrev_b32 v60, 4, v{vTID}
    s_lshl_b32 s48, s{sI}, 12''')
    assert WS_ZEND - WS_ST <= N_WQ * 4096
    srd(A, 24, sWS, WS_ZEND - WS_ST, off=WS_ST)
    A('buffer_store_dwordx4 v[56:59], v60, s[24:27], s48 offen')
    for base, sh, cnt in ((0, FSC[0], 3072), (WS_PF - WS_FLAG, FSC[1], 1024)):
        srd(A, 28, sWS, cnt << sh, off=WS_FLAG + base)
        if POPT.get('zfull'):
            A(f'v_lshlrev_b32 v60, 4, v{vTID}\ns_lshl_b32 s48, s{sI}, 12')
            assert (cnt << sh) <= N_WQ * 4096
            A('buffer_store_dwordx4 v[56:59], v60, s[28:31], s48 offen')
            continue
        A(f'v_lshlrev_b32 v60, {sh}, v{vTID}\ns_lshl_b32 s48, s{sI}, {8 + sh}')
        A('buffer_store_dword v56, v60, s[28:31], s48 offen')


def wq_extra(A, sI):
    task_zero(A, sI)
    if NEXT[0]:
        A(f's_lshr_b32 s48, s{sI}, 3\ns_lshl_b32 s48, s48, 2\ns_add_u32 s48, s48, s{sW}\ns_lshl_b32 s48, s48, 13')
        code_prefetch(A, NEXT[0], f'{NEXT[1]}-{NEXT[0]}-4', 60, 62, 50, 1, 48)


POPT = dict(tlb=0, pf=0)
N_PF = 128


def task_tlb(A, sI, shift):
    bufs = [(sWG, 576 * 9216, 0), (sWU, 576 * 9216, 0), (sWD, F * 1152, 0), (sOUT, S * D * 2, 0), (sWS, WS_END, 0)]
    A(f's_lshr_b32 s48, s{sI}, 3\ns_lshl_b32 s48, s48, 2\ns_add_u32 s48, s48, s{sW}')
    A(f'v_lshlrev_b32 v56, {shift}, v{vLANE}')
    q = 0
    for ptr, size, off in bufs:
        srd(A, 24, ptr, size)
        n = -(-size // (64 << shift))
        for i in range(n):
            if q % 20 or True:
                A(f's_cmp_eq_u32 s48, {q % 20}')
                A(f's_cselect_b32 s49, {i * (64 << shift)}, s47') if False else None
                A(f's_mov_b32 s49, 0x80000000\ns_cmov_b32 s49, {i * (64 << shift)}')
                A(f'buffer_load_dword v57, v56, s[24:27], s49 offen')
            q += 1
            if q % 40 == 0:
                A('s_waitcnt vmcnt(0)')


def task_pf(A, sI):
    A(f's_lshl_b32 s40, s{sI}, 2\ns_add_u32 s40, s40, s{sW}\nv_lshlrev_b32 v2, 7, v{vLANE}')
    per = 576 * 9216 // (4 * N_PF)
    assert per % 128 == 0
    A(f's_mul_i32 s41, s40, {per}')
    for ptr in (sWG, sWU, sWD):
        srd(A, 8, ptr, 576 * 9216)
        A(f's_mov_b32 s42, s41')
        n = per // 128
        k = 0
        while n > 0:
            if n < 64:
                m = (1 << n) - 1
                A(f's_mov_b32 exec_lo, {m & 0xffffffff}\ns_mov_b32 exec_hi, {m >> 32}')
            A(f'buffer_load_dword v{8+k}, v2, s[8:11], s42 offen\ns_add_u32 s42, s42, 8192')
            n -= 64; k += 1
        A('s_mov_b64 exec, -1')


NEXT = [None, None]


def n_prep():
    return N_PREP + (N_PF if POPT['pf'] else 0)


def ph_prep(A):
    code_prefetch(A, 'L_k0_body', 'L_k0_end-L_k0_body-4', 2, 127, 50, 1)
    A('L_k0_body:')
    if POPT.get('lin'):
        nw = N_PREP * 4
        A(f's_lshl_b32 s40, s2, 2\ns_add_u32 s40, s40, s{sW}\nv_lshlrev_b32 v3, 7, v{vLANE}')
        for q, (ptr, size) in enumerate(((sWMOD, 576 * 6912), (sX, S * D * 2), (sWQKV, 576 * 3456), (sWO, 576 * 1152))):
            n = -(-(size // 128) // nw)
            srd(A, 8, ptr, size)
            A(f's_mul_i32 s41, s40, {n*128}\ns_mov_b64 exec, {(1 << n) - 1}')
            A(f'buffer_load_dword v{122+q}, v3, s[8:11], s41 offen')
        A('s_mov_b64 exec, -1')
    NL = POPT.get('nlight', 84)
    lab = {r: A.label('L_role' + r) for r in ('mod', 'xh', 'wq', 'wo')}
    (r1, n1), (r2, n2) = (('xh', N_XH), ('mod', N_MOD)) if POPT.get('xm') else (('mod', N_MOD), ('xh', N_XH))
    A(f'''s_mov_b32 s39, s2
    s_cmp_lt_u32 s2, {NL}
    s_cbranch_scc1 {lab['wq']}
    s_sub_u32 s39, s2, {NL}
    s_cmp_lt_u32 s39, {n1}
    s_cbranch_scc1 {lab[r1]}
    s_sub_u32 s39, s39, {n1}
    s_cmp_lt_u32 s39, {n2}
    s_cbranch_scc1 {lab[r2]}
    s_sub_u32 s39, s2, {N_MOD + N_XH}
    s_cmp_lt_u32 s39, {N_WQ}
    s_cbranch_scc1 {lab['wq']}
    s_sub_u32 s39, s39, {N_WQ}''')
    st0 = (list(A.vmq), list(A.lgq), A.vm_issued, A.lg_issued)
    for r, fn in (('wo', task_wo), ('mod', None), ('xh', task_xhat), ('wq', task_wq)):
        A(lab[r] + ':')
        A.vmq, A.lgq, A.vm_issued, A.lg_issued = list(st0[0]), list(st0[1]), st0[2], st0[3]
        if r == 'mod':
            A('s_and_b32 s40, s39, 7\ns_lshl_b32 s40, s40, 1\ns_bfe_u32 s41, s39, 0x10003\ns_and_b32 s42, s39, 0xfffffff0\ns_or_b32 s40, s40, s41\ns_or_b32 s40, s40, s42')
            A('s_cmp_lt_u32 s39, 96\ns_cselect_b32 s39, s40, s39')
            ph_mod(A, 39, 0)
        else:
            fn(A, 39)
        if r != 'wq':
            stamp_end(A, again=True)
            A('s_endpgm')
```

```python
from common import *


def ph_mod(A, sM, lds):
    A.comment('==== phase mod ====')
    A(f'''v_lshrrev_b32 v2, 2, v{vLANE}
    v_and_b32 v3, 3, v{vLANE}
    s_mul_i32 s40, s{sW}, 144
    v_add_u32 v4, s40, v2
    s_movk_i32 s41, 6912
    v_mul_lo_u32 v5, v4, s41
    v_lshl_add_u32 v5, v3, 4, v5
    v_lshlrev_b32 v6, 1, v4
    s_lshl_b32 s41, s{sM}, 6''')
    srd(A, 12, sC, 1152)
    srd(A, 8, sWMOD, 576 * 6912)
    for i in range(9):
        A(f'buffer_load_ushort v{10+i}, v6, s[12:15], 0 offen offset:{32*i}')
    for i in range(9):
        A(f's_add_u32 s42, s41, {i*16*6912}')
        A(f'buffer_load_dwordx4 v[{20+4*i}:{23+4*i}], v5, s[8:11], s42 offen{NT[1]}')
    srd(A, 16, sWS, WS_SIZE)
    A(f's_mov_b32 s43, {fbits(-LOG2E)}')
    for i in range(9):
        A(f'v_lshlrev_b32 v{10+i}, 16, v{10+i}')
    for i in range(9):
        A(f'v_mul_f32 v{64+i}, s43, v{10+i}')
    for i in range(9):
        A(f'v_exp_f32 v{64+i}, v{64+i}')
    for i in range(9):
        A(f'v_add_f32 v{64+i}, 1.0, v{64+i}')
    for i in range(9):
        A(f'v_rcp_f32 v{64+i}, v{64+i}')
    for i in range(9):
        A(f'v_mul_f32 v{10+i}, v{10+i}, v{64+i}')
    for i in range(9):
        A(f'v_cvt_pk_bf16_f32 v{10+i}, v{10+i}, v{10+i}')
    for i in range(9):
        A(f'v_and_b32 v{10+i}, s{sMASKHI}, v{10+i}')
    for i in range(9):
        for d in range(4):
            unpack(A, 64 + 2 * d, 65 + 2 * d, 20 + 4 * i + d)
        sp = 10 + (i & ~1)
        for d in range(4):
            if i == 0:
                A(f'v_pk_mul_f32 v[{56+2*d}:{57+2*d}], v[{64+2*d}:{65+2*d}], v[{sp}:{sp+1}] op_sel_hi:[1,0]')
            else:
                m = 'op_sel_hi:[1,0,1]' if i % 2 == 0 else 'op_sel:[0,1,0] op_sel_hi:[1,1,1]'
                A(f'v_pk_fma_f32 v[{56+2*d}:{57+2*d}], v[{64+2*d}:{65+2*d}], v[{sp}:{sp+1}], v[{56+2*d}:{57+2*d}] {m}')
    for rot in (8, 4):
        for d in range(8):
            A(f'v_add_f32_dpp v{56+d}, v{56+d}, v{56+d} row_ror:{rot} row_mask:0xf bank_mask:0xf')
    A(f'''v_lshrrev_b32 v7, 4, v{vLANE}
    s_lshl_b32 s40, s{sW}, 2
    v_add_u32 v7, s40, v7
    v_lshlrev_b32 v7, 7, v7
    v_lshl_add_u32 v7, v3, 5, v7
    s_mov_b32 exec_lo, 0x000f000f
    s_mov_b32 exec_hi, 0x000f000f
    ds_write_b128 v7, v[56:59] offset:{lds}
    ds_write_b128 v7, v[60:63] offset:{lds+16}
    s_mov_b64 exec, -1''')
    A.wait_all(vm=False)
    A('s_barrier')
    A(f's_cmp_lg_u32 s{sW}, 0')
    ctx = A.begin_skip('s_cbranch_scc1 {}')
    A(f'''v_lshrrev_b32 v7, 5, v{vLANE}
    v_and_b32 v8, 31, v{vLANE}
    v_lshlrev_b32 v7, 10, v7
    v_lshl_add_u32 v7, v8, 2, v7''')
    for k in range(8):
        A(f'ds_read_b32 v{56+k}, v7 offset:{lds+128*k}')
    A('''v_add_f32 v56, v56, v57
    v_add_f32 v58, v58, v59
    v_add_f32 v60, v60, v61
    v_add_f32 v62, v62, v63
    v_add_f32 v56, v56, v58
    v_add_f32 v60, v60, v62
    v_add_f32 v56, v56, v60
    v_mov_b32 v57, v56
    v_permlane32_swap_b32 v56, v57
    v_add_f32 v56, v56, v57''')
    A(f'''v_cvt_pk_bf16_f32 v56, v56, v56
    v_and_b32 v56, s{sMASKHI}, v56
    s_mul_i32 s40, s{sM}, 57
    s_lshr_b32 s40, s40, 10
    s_cmp_eq_u32 s40, 1
    s_cselect_b32 s41, 1.0, 0
    s_cmp_eq_u32 s40, 4
    s_cselect_b32 s41, 1.0, s41
    v_add_f32 v56, s41, v56
    v_cvt_pk_bf16_f32 v56, v56, v56
    v_and_b32 v56, s{sMASKHI}, v56
    s_lshl_b32 s40, s{sM}, 7
    v_lshlrev_b32 v8, 2, v8
    s_mov_b32 exec_hi, 0
    buffer_store_dword v56, v8, s[16:19], s40 offen offset:{WS_MOD}
    s_mov_b64 exec, -1''')
    A.end_skip(ctx)


def ph_out(A, npart):
    raise NotImplementedError


P0, P1, P2, X0, X1, X2, FACC, FTMP = 16, 144, 176, 96, 108, 120, 208, 240
sVALID = 60
OUTPOL = ['']


def final_setup_ops():
    t = f'''s_lshr_b32 s40, s{sJ}, 1
    s_and_b32 s41, s{sJ}, 1
    v_lshrrev_b32 v6, 3, v{vLANE}
    v_and_b32 v7, 7, v{vLANE}
    v_lshlrev_b32 v4, 8, v6
    v_lshl_add_u32 v4, v7, 4, v4
    v_lshlrev_b32 v5, 5, v6
    v_mul_u32_u24 v10, 1152, v7
    v_lshl_add_u32 v10, v6, 4, v10
    v_and_b32 v8, 15, v{vLANE}
    v_lshlrev_b32 v8, {FSC[0]}, v8
    s_lshl_b32 s43, s{sG}, 3
    s_add_u32 s43, s43, s40
    s_mul_i32 s96, s43, {T16}
    s_lshl_b32 s97, s41, 7
    s_add_u32 s96, s96, s97
    s_add_u32 s96, s96, {WS_X1}
    s_mul_i32 s98, s{sG}, {64*T16}
    s_mul_i32 s99, s40, {T16}
    s_add_u32 s98, s98, s99
    s_add_u32 s98, s98, s97
    s_add_u32 s98, s98, {WS_PART}
    s_lshl_b32 s99, s43, 4
    s_lshl_b32 s100, s41, 3
    s_add_u32 s99, s99, s100
    s_mul_i32 s99, s99, 1152
    s_lshl_b32 s100, s{sW}, 2
    s_lshr_b32 s52, 0x6510, s100
    s_and_b32 s52, s52, 15
    s_lshr_b32 s53, 0x0072, s100
    s_and_b32 s53, s53, 15
    s_lshr_b32 s58, 0x4308, s100
    s_and_b32 s58, s58, 15
    s_movk_i32 s56, 0x3f80
    s_mov_b32 s57, 0x3f800000
    s_mov_b32 s59, {fbits(-1.0 / LOG2E)}
    s_mov_b32 s12, s{sOUT}
    s_mov_b32 s13, s{sOUT+1}
    s_mov_b32 s14, {S*D*2}
    s_mov_b32 s15, 0x20000
    s_mul_i32 s97, s{sG}, 2304
    s_add_u32 s97, s97, {WS_GBF}'''
    return [x.strip() for x in t.split('\n')]


def x1_ops(sN, X, base=96):
    return [f's_lshl_b32 s50, s{sN}, 11', f's_add_u32 s51, s{base}, s50',
            f'buffer_load_dwordx4 v[{X}:{X+3}], v4, s[16:19], s51 offen sc1']


def side_ops(sN, X):
    G = X + 4
    return ([] if X1LATE[0] else x1_ops(sN, X)) + [
            f's_lshl_b32 s51, s{sN}, 8', f's_add_u32 s51, s51, {"s97" if TAGGED[0] else WS_MOD+5*576*4}',
            f'buffer_load_dwordx4 v[{G}:{G+3}], v5, s[16:19], s51 offen{HS[0]}',
            f'buffer_load_dwordx4 v[{G+4}:{G+7}], v5, s[16:19], s51 offen offset:16{HS[0]}']


def parts_ops(sN, P, base=98):
    r = [f's_lshl_b32 s50, s{sN}, 11', f's_add_u32 s51, s{base}, s50']
    for p in range(8):
        r.append(f'buffer_load_dwordx4 v[{P+4*p}:{P+4*p+3}], v4, s[16:19], s51 offen sc1')
        if p < 7:
            r.append(f's_add_u32 s51, s51, {8*T16}')
    return r


def ph_final(A, publish_all, wait, check):
    acc, tmp = FACC, FTMP

    def parts(sN, P):
        for x in parts_ops(sN, P):
            A(x)

    def finish(sN, P, X):
        G = X + 4
        for d in range(4):
            A(f'v_pk_mul_f32 v[{G+2*d}:{G+2*d+1}], v[{G+2*d}:{G+2*d+1}], s[58:59] op_sel:[0,1] op_sel_hi:[1,1]')
        for p in range(8):
            for d in range(4):
                for h in range(2):
                    c = '0' if p == 0 else f'v{acc+2*d+h}'
                    A(f'v_dot2_f32_bf16 v{acc+2*d+h}, v{P+4*p+d}, s{56+h}, {c}')
        for d in range(4):
            unpack(A, tmp + 2 * d, tmp + 2 * d + 1, X + d)
        for d in range(4):
            A(f'v_pk_fma_f32 v[{acc+2*d}:{acc+2*d+1}], v[{acc+2*d}:{acc+2*d+1}], v[{G+2*d}:{G+2*d+1}], v[{tmp+2*d}:{tmp+2*d+1}]')
        for d in range(4):
            A(f'v_cvt_pk_bf16_f32 v{X+d}, v{acc+2*d}, v{acc+2*d+1}')
        A(f's_lshl_b32 s50, s{sN}, 7\ns_add_u32 s50, s50, s99')
        A(f'buffer_store_dwordx4 v[{X}:{X+3}], v10, s[12:15], s50 offen{OUTPOL[0]}')
    fin = A.label('L_fin')

    def save():
        return (list(A.vmq), list(A.lgq), A.vm_issued, A.lg_issued)

    def restore(st):
        A.vmq, A.lgq, A.vm_issued, A.lg_issued = list(st[0]), list(st[1]), st[2], st[3]

    def done():
        A.wait_all()
        A(f's_branch {fin}')

    def path(two, three):
        top = 3 if three else 2
        staged, staged2 = A.label('L_fst'), A.label('L_fst')
        check(top)
        A(f's_cbranch_scc0 {staged}')
        st = save()
        if two:
            parts(53, P1)
        if three:
            parts(58, P2)
        finish(52, P0, X0)
        if two:
            finish(53, P1, X1)
        if three:
            finish(58, P2, X2)
        done()
        A(staged + ':')
        restore(st)
        finish(52, P0, X0)
        if two and three:
            wait(2)
            check(3)
            A(f's_cbranch_scc0 {staged2}')
            st = save()
            parts(53, P1)
            parts(58, P2)
            finish(53, P1, X1)
            finish(58, P2, X2)
            done()
            A(staged2 + ':')
            restore(st)
        if two:
            if not three:
                wait(2)
            parts(53, P1)
            finish(53, P1, X1)
        if three:
            wait(3)
            parts(58, P2)
            finish(58, P2, X2)
        done()
    publish_all()
    A(f's_cmp_lg_u32 s{sVALID}, 0')
    ok = A.label('L_fv')
    A(f's_cbranch_scc1 {ok}')
    wait(1)
    parts(52, P0)
    if X1LATE[0]:
        for x in x1_ops(52, X0) + x1_ops(53, X1) + x1_ops(58, X2):
            A(x)
    A(ok + ':')
    l1, l2 = A.label('L_fw'), A.label('L_fw')
    st0 = save()
    A(f's_cmp_eq_u32 s{sW}, 1\ns_cbranch_scc1 {l1}')
    A(f's_cmp_ge_u32 s{sW}, 2\ns_cbranch_scc1 {l2}')
    path(True, True)
    A(l1 + ':')
    restore(st0)
    path(True, False)
    A(l2 + ':')
    restore(st0)
    path(False, True)
    A(fin + ':')
    A.vmq, A.lgq = [], []
```
